```python
import torch

def _softmax(x, axis=-1):
    return torch.softmax(x, dim=axis)

def _gelu(x):
    return torch.nn.functional.gelu(x, approximate='tanh')

def _silu(x):
    return torch.nn.functional.silu(x)

def _sigmoid(x):
    return torch.sigmoid(x)

def _layernorm(x, axis=-1, eps=1e-05):
    m = x.mean(dim=axis, keepdim=True)
    v = x.var(dim=axis, keepdim=True, unbiased=False)
    return (x - m) / torch.sqrt(v + eps)

def _scatter_add(tgt, idx, src, axis=0):
    return tgt.clone().index_add_(axis, idx, src)

def _segment_sum(src, seg, n):
    out = torch.zeros((n,) + src.shape[1:], dtype=src.dtype)
    return out.index_add_(0, seg, src)

def _pad(x, pw):
    flat = tuple((v for pair in reversed(pw) for v in pair))
    return torch.nn.functional.pad(x, flat)
kernel_name = 'recurrent_scan__memory_aug_recurrent_mem_tr__glu_gated_geglu__prompt'

def setup_inputs():

    _w = lambda a: (lambda t: t.to(torch.bfloat16) if t.is_floating_point() else t)(torch.as_tensor(a))

    def _A_setup():
        B, S, Dm = (1, 2048, 512)
        H, Dh = (32, 128)
        M, seg = (8, 32)
        seg = min(seg, S)
        S = S // seg * seg
        return {'x': _w((lambda *s: torch.randn(*s, dtype=torch.bfloat16) * 0.1)(B, S, Dm)), 'mem0': _w((lambda *s: torch.randn(*s, dtype=torch.bfloat16) * 1.6)(B, M, Dm)), 'Wq': _w((lambda *s: torch.randn(*s, dtype=torch.bfloat16) * 0.8)(Dm, H, Dh) * Dm ** (-0.5)), 'Wk': _w((lambda *s: torch.randn(*s, dtype=torch.bfloat16) * 0.8)(Dm, H, Dh) * Dm ** (-0.5)), 'Wv': _w((lambda *s: torch.randn(*s, dtype=torch.bfloat16) * 1.6)(Dm, H, Dh) * Dm ** (-0.5)), 'Wo': _w((lambda *s: torch.randn(*s, dtype=torch.bfloat16) * 1.6)(H, Dh, Dm) * (H * Dh) ** (-0.5)), 'seg_len': seg}
    _A_in = _A_setup()

    def _B_setup():
        B, S, Dm, Df = (1, 2048, 512, 1792)
        return {'x': _w((lambda *s: torch.randn(*s, dtype=torch.bfloat16) * 0.1)(B, S, Dm)), 'w_gate': _w((lambda *s: torch.randn(*s, dtype=torch.bfloat16) * 0.4)(Dm, Df) * Dm ** (-0.5)), 'w_up': _w((lambda *s: torch.randn(*s, dtype=torch.bfloat16) * 0.4)(Dm, Df) * Dm ** (-0.5)), 'w_down': _w((lambda *s: torch.randn(*s, dtype=torch.bfloat16) * 0.4)(Df, Dm) * Df ** (-0.5))}
    _B_in = _B_setup()
    return {'A_x': _A_in['x'], 'A_mem0': _A_in['mem0'], 'A_Wq': _A_in['Wq'], 'A_Wk': _A_in['Wk'], 'A_Wv': _A_in['Wv'], 'A_Wo': _A_in['Wo'], 'A_seg_len': _A_in['seg_len'], 'B_x': _B_in['x'], 'B_w_gate': _B_in['w_gate'], 'B_w_up': _B_in['w_up'], 'B_w_down': _B_in['w_down']}

def reference(A_x, A_mem0, A_Wq, A_Wk, A_Wv, A_Wo, A_seg_len, B_x, B_w_gate, B_w_up, B_w_down):

    def _A_ref(x, mem0, Wq, Wk, Wv, Wo, seg_len):
        B, S, Dm = x.shape
        H, Dh = (Wq.shape[1], Wq.shape[2])
        M = mem0.shape[1]
        scale = Dh ** (-0.5)
        n_seg = S // seg_len
        L = M + seg_len
        idx = torch.arange(L)
        mask = (idx[:, None] < M) | (idx[:, None] >= idx[None, :])
        mem = mem0
        outs = []
        for s in range(n_seg):
            xs = x[:, s * seg_len:(s + 1) * seg_len, :].clone()
            h = torch.concatenate([mem, xs], axis=1)
            q = torch.einsum('btd,dhe->bhte', h, Wq)
            k = torch.einsum('btd,dhe->bhte', h, Wk)
            v = torch.einsum('btd,dhe->bhte', h, Wv)
            scores = torch.einsum('bhqe,bhke->bhqk', q, k) * scale
            scores = torch.where(mask[None, None], scores, -1000000000.0)
            p = _softmax(scores, axis=-1)
            o = torch.einsum('bhqk,bhke->bhqe', p, v)
            o = torch.einsum('bhte,hed->btd', o, Wo)
            mem = o[:, :M, :].clone()
            outs.append(o[:, M:, :])
        return torch.concatenate(outs, axis=1)

    def _B_ref(x, w_gate, w_up, w_down):
        g = torch.einsum('bsd,df->bsf', x, w_gate)
        u = torch.einsum('bsd,df->bsf', x, w_up)
        h = _gelu(g) * u
        return torch.einsum('bsf,fd->bsd', h, w_down)
    x = A_x
    xn = _layernorm(x, axis=-1)
    s = _A_ref(xn, A_mem0, A_Wq, A_Wk, A_Wv, A_Wo, A_seg_len)
    g = _silu(_B_ref(xn, B_w_gate, B_w_up, B_w_down))
    return x + s * g
```

```python
import re

TRANS = ("v_exp_", "v_log_", "v_rcp_", "v_rsq_", "v_sqrt_", "v_sin_", "v_cos_")

def regs_of(tok):
    tok = tok.strip()
    tok = tok.lstrip("-").strip("|")
    m = re.fullmatch(r"([vas])(\d+)", tok)
    if m:
        return [(m.group(1), int(m.group(2)))]
    m = re.fullmatch(r"([vas])\[(\d+):(\d+)\]", tok)
    if m:
        return [(m.group(1), i) for i in range(int(m.group(2)), int(m.group(3)) + 1)]
    if tok in ("vcc", "vcc_lo", "vcc_hi"):
        return [("s", "vcc")]
    if tok in ("exec", "exec_lo", "exec_hi"):
        return [("s", "exec")]
    if tok == "m0":
        return [("s", "m0")]
    return []

class Ins:
    def __init__(self, text):
        self.text = text
        body = text.split(";")[0].strip()
        parts = body.split(None, 1)
        self.op = parts[0]
        rest = parts[1] if len(parts) > 1 else ""
        ops = [t.strip() for t in rest.split(",")]
        self.mods = ""
        if ops and ops[-1]:
            m = re.match(r"(\S+)\s*(.*)", ops[-1])
            ops[-1] = m.group(1)
            self.mods = m.group(2)
        clean = []
        for i, t in enumerate(ops):
            if " " in t:
                a, b = t.split(None, 1)
                clean.append(a)
                self.mods = b + "," + ",".join(ops[i + 1:]) + " " + self.mods
                break
            clean.append(t)
        self.ops = clean
        op = self.op
        self.mfma = op.startswith("v_mfma") or op.startswith("v_smfmac")
        self.valu = op.startswith("v_") and not self.mfma
        self.vmem = op.startswith("global_") or op.startswith("buffer_")
        self.ds = op.startswith("ds_")
        self.salu = op.startswith("s_")
        self.trans = self.valu and op.startswith(TRANS)
        self.perm = op.startswith("v_permlane")
        self.dpp = self.valu and bool(re.search(r"row_|quad_perm|wave_|_dpp", self.mods + op))
        self.opsel = self.valu and (("dst_sel" in self.mods and "dst_sel:DWORD" not in self.mods) or
                                    (re.search(r"op_sel:\[[01],[01],1\]|op_sel:\[[01],[01],[01],1\]", self.mods) is not None and not op.startswith("v_pk")))
        self.w = set(); self.r = set(); self.srcC = set(); self.srcAB = set(); self.stdata = set()
        self.passes = 0
        R = [regs_of(t) for t in self.ops]
        if self.mfma:
            self.passes = 8 if "32x32" in op else 4
            self.w = set(R[0])
            if op.startswith("v_smfmac"):
                self.srcC = set(R[0]); self.srcAB = set(R[1]) | set(R[2]) | set(R[3])
            else:
                self.srcC = set(R[3]); self.srcAB = set(R[1]) | set(R[2])
            self.r = self.srcC | self.srcAB
            self.dkey = self.ops[0]
            self.ckey = self.ops[0] if op.startswith("v_smfmac") else self.ops[3]
        elif self.valu:
            if op.startswith("v_nop"):
                pass
            elif self.perm and "swap" in op:
                self.w = set(R[0]) | set(R[1]); self.r = set(self.w)
            elif op.startswith("v_swap"):
                self.w = set(R[0]) | set(R[1]); self.r = set(self.w)
            elif op.startswith("v_cmpx"):
                self.w = {("s", "exec")} | set(R[0])
                for x in R[1:]: self.r |= set(x)
            elif re.match(r"v_(add|sub|subrev)_co_u32|v_(addc|subb|subbrev)_co_u32|v_div_scale|v_mad_u64_u32", op):
                self.w = set(R[0]) | set(R[1])
                for x in R[2:]: self.r |= set(x)
            else:
                self.w = set(R[0])
                for x in R[1:]: self.r |= set(x)
                if op.startswith(("v_fmac", "v_mac", "v_pk_fmac", "v_dot2c", "v_writelane")) or self.dpp or "dst_unused:UNUSED_PRESERVE" in self.mods:
                    self.r |= set(R[0])
                if op.startswith("v_cndmask") and len(self.ops) == 3:
                    self.r.add(("s", "vcc"))
        elif self.vmem:
            lds = "_lds_" in op or re.search(r"\blds\b", self.mods) is not None
            self.ldsdma = lds
            if "store" in op:
                for x in R: self.r |= set(x)
                d = R[1] if op.startswith("global_") else R[0]
                if len(d) >= 3: self.stdata = set(d)
            elif "atomic" in op:
                ret = "sc0" in self.mods
                if op.startswith("global_") and ret:
                    self.w = set(R[0])
                    for x in R[1:]: self.r |= set(x)
                else:
                    for x in R: self.r |= set(x)
                    if ret: self.w = set(R[0])
            elif lds:
                for x in R: self.r |= set(x)
                self.r.add(("s", "m0"))
            elif op in ("buffer_inv", "buffer_wbl2"):
                pass
            else:
                self.w = set(R[0])
                for x in R[1:]: self.r |= set(x)
        elif self.ds:
            if op.startswith(("ds_read", "ds_bpermute", "ds_permute", "ds_swizzle")) or "_rtn" in op:
                self.w = set(R[0])
                for x in R[1:]: self.r |= set(x)
            else:
                for x in R: self.r |= set(x)
        elif self.salu:
            if op.startswith(("s_cmp", "s_cbranch", "s_branch", "s_waitcnt", "s_barrier", "s_nop", "s_endpgm", "s_setprio", "s_sleep", "s_bitcmp", "s_setpc")):
                for x in R: self.r |= set(x)
            else:
                self.w = set(R[0]) if R else set()
                for x in R[1:]: self.r |= set(x)
                if "saveexec" in op:
                    self.w.add(("s", "exec")); self.r.add(("s", "exec"))
        self.states = 1
        if op == "s_nop":
            self.states = int(self.ops[0], 0) + 1

def isv(x): return x[0] in ("v", "a")

def need(p, c):
    n = 0
    pw_v = {x for x in p.w if isv(x)}
    pw_s = {x for x in p.w if x[0] == "s"}
    if p.mfma:
        big = {4: 8, 8: 12}[p.passes]
        if c.mfma:
            if pw_v & c.srcAB: n = max(n, big)
            if pw_v & c.srcC:
                if not (c.ckey == p.dkey and c.passes == p.passes):
                    n = max(n, big - 2)
            elif pw_v & c.w:
                n = max(n, big - 2)
        elif c.valu or c.vmem or c.ds:
            if pw_v & (c.r | c.w): n = max(n, big)
        if c.valu and (p.srcC & c.w):
            n = max(n, {4: 3, 8: 7}[p.passes])
    if p.valu:
        if c.mfma and (pw_v & c.r): n = max(n, 2)
        if c.mfma and ("s", "exec") in pw_s: n = max(n, 4)
        if c.valu:
            if (c.perm or c.dpp) and (pw_v & c.r): n = max(n, 2)
            if c.op.startswith(("v_readlane", "v_readfirstlane")) and (pw_v & c.r): n = max(n, 1)
            if p.trans and (pw_v & c.r): n = max(n, 1)
            if p.opsel and (pw_v & (c.r | c.w)): n = max(n, 1)
            if pw_s & c.r:
                n = max(n, 4 if c.op.startswith(("v_readlane", "v_writelane", "v_div_fmas")) else 2)
            if ("s", "exec") in pw_s:
                if c.dpp: n = max(n, 5)
                if c.perm or c.op.startswith(("v_readlane", "v_readfirstlane", "v_writelane")): n = max(n, 4)
        if c.vmem and (pw_s & c.r): n = max(n, 5)
    if p.vmem and p.stdata:
        if p.stdata & c.w: n = max(n, 2 if c.valu or c.mfma else 1)
    if p.salu and ("s", "m0") in p.w and c.vmem and getattr(c, "ldsdma", False): n = max(n, 1)
    return n

class Asm:
    def __init__(self):
        self.items = []
        self.uid = 0
    def __call__(self, text):
        for line in text.split("\n"):
            line = line.strip()
            if not line: continue
            if line.startswith(";") or line.startswith(".") or line.endswith(":"):
                self.items.append(line)
            else:
                self.items.append(Ins(line))
    def label(self, base="L"):
        self.uid += 1
        return f"{base}_{self.uid}"
    def fix(self):
        out = []; hist = []; added = 0
        for it in self.items:
            if isinstance(it, str):
                out.append(it); continue
            dist = 0; pad = 0
            for p in reversed(hist):
                if dist >= 12: break
                k = need(p, it) - dist
                if k > pad: pad = k
                dist += p.states
            if pad > 0:
                nop = Ins(f"s_nop {pad-1}")
                out.append(nop); hist.append(nop); added += pad
            out.append(it); hist.append(it)
            if it.op in ("s_branch", "s_endpgm", "s_setpc_b64"):
                hist = []
            hist = hist[-16:]
        self.items = out
        labels = {it[:-1]: i for i, it in enumerate(out) if isinstance(it, str) and it.endswith(":")}
        for i, it in enumerate(out):
            if isinstance(it, Ins) and it.op.startswith(("s_branch", "s_cbranch")):
                tgt = labels[it.ops[0]]
                tail = [x for x in out[max(0, i - 16):i + 1] if isinstance(x, Ins)]
                head = [x for x in out[tgt:tgt + 24] if isinstance(x, Ins)]
                d0 = 0
                for c in head:
                    if d0 >= 12: break
                    dist = d0
                    for p in reversed(tail):
                        if dist >= 12: break
                        if need(p, c) > dist:
                            raise RuntimeError(f"hazard across branch {it.text}: {p.text} -> {c.text}")
                        dist += p.states
                    d0 += c.states
                    if c.op in ("s_branch", "s_endpgm"): break
        return added
    def text(self):
        o = []
        for it in self.items:
            if isinstance(it, str): o.append(it)
            else: o.append("  " + it.text)
        return "\n".join(o) + "\n"

def v(i, n=1): return f"v{i}" if n == 1 else f"v[{i}:{i+n-1}]"
def a(i, n=1): return f"a{i}" if n == 1 else f"a[{i}:{i+n-1}]"
def s(i, n=1): return f"s{i}" if n == 1 else f"s[{i}:{i+n-1}]"
```

```python
from common import *
from worker import stamp, spin_dec, Stager
import struct

L_KX, L_A, L_Q, L_K = 0x20000, 0x24000, 0x27000, 0x27800
V_IDX, V_WQ, V_L16, V_T, V_WO = 0, 1, 2, 3, 4
V_A = [5, 6, 7, 8]
V_QW, V_QR, V_PST, V_MST, V_KX = 9, 10, 11, 12, 13
RA, RE, RQ, RK = 16, 48, 112, 120
S_S, S_RING, S_ROT = 64, 65, 66
S_RDY, S_PB, S_MB, S_KVB, S_HP, S_FLM, S_KXB, S_C = 70, 71, 72, 73, 74, 75, 76, 77
S_LO, S_HI, S_MM = 78, 80, 82
S_SENT, S_ONE = 84, 85
S_SEL = 86
def f2u(x): return struct.unpack("<I", struct.pack("<f", x))[0]

def WQ(t, ab):
    return v(RE + 8 * (2 * t + ab), 8) if t < 4 else v(128 + 8 * (2 * (t - 4) + ab), 8)
def WK(t, ab): return a(8 * (2 * t + ab), 8)
def WV(t, ab): return a(128 + 8 * (2 * t + ab), 8)
WOS = {(2, 0): 80, (2, 1): 88, (3, 0): 64, (3, 1): 72, (2, 2): 16, (2, 3): 24, (3, 2): 32, (3, 3): 40}
def WO(c, T): return v(192 + 8 * (4 * c + T), 8) if c < 2 else v(WOS[(c, T)], 8)
def SM(d, aa, b): return f"v_smfmac_f32_16x16x64_bf16 {v(d,4)}, {v(aa,4)}, {b}, v{V_IDX}"

def chain_init(A, cfg):
    L = 1
    A(f"""
    CHAIN:
    s_lshl_b32 s{S_RING}, s{S_W}, 15
    """)
    A(f"""
    v_lshrrev_b32 v4, 4, v{L}
    v_and_b32 v5, 15, v{L}
    v_lshlrev_b32 v14, 12, v4
    v_lshl_add_u32 v14, v5, 4, v14
    s_lshl_b32 s{S_T0}, s{S_H}, 17
    s_lshl_b32 s{S_T1}, s{S_W}, 8
    s_add_u32 s{S_T0}, s{S_T0}, s{S_T1}
    v_add_u32 v14, s{S_T0}, v14
    """)
    for i in range(4):
        A(f"s_add_u32 s{S_T0}, s{S_W}, {i}\ns_and_b32 s{S_ROT+i}, s{S_T0}, 3")
    def wo_raw(cs):
        for ci, c in enumerate(cs):
            A(f"s_lshl_b32 s{S_T0}, s{S_ROT+c}, 15\ns_add_u32 s{S_T1}, s{S_T0}, 16384")
            for i in range(8):
                r = RE + 32 * ci + 4 * i
                A(f"buffer_load_dwordx4 {v(r,4)}, v14, {srd(R_WO)}, s{S_T0 if i < 4 else S_T1} offen offset:{(i&3)*1024}")
    wo_raw([0, 1])
    A(f"""
    v_lshrrev_b32 v4, 2, v{L}               ; rho'
    v_bfe_u32 v5, v4, 1, 2
    v_lshlrev_b32 v5, 3, v5
    v_and_b32 v6, 1, v4
    v_lshl_add_u32 v5, v6, 1, v5
    v_lshrrev_b32 v6, 3, v4
    v_add_u32 v5, v5, v6
    v_and_b32 v6, 3, v{L}
    v_lshlrev_b32 v15, 13, v5
    v_lshl_add_u32 v15, v6, 4, v15
    s_lshl_b32 s{S_T0}, s{S_H}, 8
    s_lshl_b32 s{S_T1}, s{S_W}, 6
    s_add_u32 s{S_T0}, s{S_T0}, s{S_T1}
    v_add_u32 v15, s{S_T0}, v15
    """)
    for i in range(4):
        A(f"s_lshl_b32 s{S_T0}, s{S_ROT+i}, 20\nv_add_u32 v{16+i}, s{S_T0}, v15")
    A(f"""
    v_lshrrev_b32 v4, 4, v{L}
    v_bfe_u32 v5, v{L}, 2, 2
    v_lshlrev_b32 v4, 9, v4
    v_lshl_add_u32 v4, v5, 6, v4
    v_lshl_add_u32 v4, v6, 4, v4
    v_add_u32 v20, s{S_RING}, v4
    """)
    st = Stager(A, S_RING, 32)
    def frag_reads(regf):
        out = []
        for ab in range(2):
            for m in range(4):
                base = regf(ab)
                kind, r0 = regs_of(base)[0]
                dst = f"{kind}[{r0+2*m}:{r0+2*m+1}]"
                out.append(lambda o, dst=dst, m=m, ab=ab: f"ds_read_b64_tr_b16 {dst}, v20 offset:{o - 3072 + (32*(m>>1) + 4*(m&1))*64 + ab*8}")
        return out
    for R, regf in ((R_WK, WK), (R_WV, WV), (R_WQ, WQ)):
        for t in range(8):
            for sg in range(4):
                rd = []
                if sg == 3 and not (R == R_WQ and t < 4):
                    rd = frag_reads(lambda ab, t=t, regf=regf: regf(t, ab))
                st.add(R, 16 + (t >> 1), (4 * (t & 1) + 32 * sg) * 8192, rd)
    st.issue(32)
    A("s_waitcnt vmcnt(32)")
    for c in range(2):
        for T in range(4):
            for i in range(8):
                A(f"v_mov_b32 v{192 + 8*(4*c+T) + i}, v{RE + 32*c + 4*i + T}")
    wo_raw([2, 3])
    A(f"""
    v_bfe_u32 v4, v{L}, 2, 2
    v_lshrrev_b32 v5, 4, v{L}
    v_and_b32 v6, 3, v{L}
    v_lshlrev_b32 v{V_PST}, 13, v4
    v_lshl_add_u32 v{V_PST}, v5, 6, v{V_PST}
    v_lshl_add_u32 v{V_PST}, v6, 4, v{V_PST}
    s_lshl_b32 s{S_T0}, s{S_W}, 16
    s_lshl_b32 s{S_T1}, s{S_H}, 8
    s_add_u32 s{S_T0}, s{S_T0}, s{S_T1}
    v_add_u32 v{V_PST}, s{S_T0}, v{V_PST}
    v_bfe_u32 v4, v{L}, 2, 1
    v_lshlrev_b32 v{V_MST}, 7, v4
    v_lshl_add_u32 v{V_MST}, v6, 4, v{V_MST}
    v_bfe_u32 v7, v{L}, 4, 1
    v_lshl_add_u32 v{V_MST}, v7, 6, v{V_MST}
    v_lshrrev_b32 v8, 5, v{L}
    v_lshl_add_u32 v{V_MST}, v8, 3, v{V_MST}
    v_add_u32 v{V_MST}, s{S_T1}, v{V_MST}
    v_mov_b32 v24, -1
    v_mov_b32 v25, -1
    v_mov_b32 v26, -1
    v_mov_b32 v27, -1
    """)
    for i in range(4):
        A(f"s_mov_b32 s{S_T0}, {WS_P + (i>>1)*262144 + (i&1)*32768}")
        A(f"buffer_store_dwordx4 v[24:27], v{V_PST}, {srd(R_WS)}, s{S_T0} offen sc1")
    A(f"""
    s_mov_b32 s{S_MM}, 0x00ff00ff
    s_mov_b32 s{S_MM+1}, 0x00ff00ff
    s_lshl_b32 s{S_T0}, s{S_H}, 7
    s_lshl_b32 s{S_T1}, s{S_W}, 2
    s_add_u32 s{S_FLM}, s{S_T0}, s{S_T1}
    s_add_u32 s{S_FLM}, s{S_FLM}, {FL_KVM}
    v_mov_b32 v28, 0
    s_mov_b64 exec, 1
    buffer_store_dword v28, off, {srd(R_WS)}, s{S_FLM} sc1
    s_mov_b64 exec, -1
    s_cmp_eq_u32 s{S_W}, 0
    s_cbranch_scc1 C_M0
    s_lshl_b32 s{S_T0}, s{S_W}, 13
    s_add_u32 s{S_T0}, s{S_T0}, {WS_M}
    s_mov_b64 exec, s[{S_MM}:{S_MM+1}]
    buffer_store_dwordx2 v[24:25], v{V_MST}, {srd(R_WS)}, s{S_T0} offen sc1
    s_mov_b64 exec, -1
    s_branch C_M1
    C_M0:
    v_lshl_add_u32 v5, v7, 2, v6
    v_lshlrev_b32 v5, 10, v5
    v_lshl_add_u32 v5, v4, 2, v5
    v_lshl_add_u32 v5, v8, 1, v5
    s_lshr_b32 s{S_T0}, s{S_H}, 3
    s_lshl_b32 s{S_T0}, s{S_T0}, 8
    s_and_b32 s{S_T1}, s{S_H}, 3
    s_lshl_b32 s{S_T1}, s{S_T1}, 6
    s_add_u32 s{S_T0}, s{S_T0}, s{S_T1}
    s_and_b32 s{S_T1}, s{S_H}, 4
    s_lshl_b32 s{S_T1}, s{S_T1}, 1
    s_add_u32 s{S_T0}, s{S_T0}, s{S_T1}
    buffer_load_ushort v28, v5, {srd(R_M0)}, s{S_T0} offen
    buffer_load_ushort v29, v5, {srd(R_M0)}, s{S_T0} offen offset:16
    buffer_load_ushort v30, v5, {srd(R_M0)}, s{S_T0} offen offset:32
    buffer_load_ushort v31, v5, {srd(R_M0)}, s{S_T0} offen offset:48
    s_waitcnt vmcnt(0)
    v_lshl_or_b32 v28, v29, 16, v28
    v_lshl_or_b32 v29, v31, 16, v30
    v_min_u32 v28, -2, v28
    s_mov_b32 s{S_T0}, {WS_M}
    s_mov_b64 exec, s[{S_MM}:{S_MM+1}]
    buffer_store_dwordx2 v[28:29], v{V_MST}, {srd(R_WS)}, s{S_T0} offen sc1
    s_mov_b64 exec, -1
    C_M1:
    s_waitcnt vmcnt(0)
    s_barrier
    s_cmp_eq_u32 s{S_W}, 3
    s_cbranch_scc0 C_NOA
    s_and_b32 s{S_T0}, s{S_XCC}, 3
    s_lshl_b32 s{S_T0}, s{S_T0}, 3
    s_lshl_b32 s{S_T0}, 1, s{S_T0}
    s_and_b32 s{S_T1}, s{S_XCC}, 4
    v_mov_b32 v4, s{S_T0}
    s_mov_b64 exec, 1
    buffer_atomic_add v4, off, {srd(R_DBG)}, s{S_T1} offset:{D_HIST}
    s_mov_b64 exec, -1
    s_waitcnt vmcnt(0)
    C_NOA:
    """)
    stamp(A, cfg, 1)
    if cfg.get("prof"): A("s_waitcnt vmcnt(0)")
    st.run(drained=True)
    A("s_waitcnt vmcnt(0)")
    A(f"""
    v_add_u32 v{V_WO}, s{S_RING}, v{V_L16}
    v_add_u32 v{V_WO}, 0x4000, v{V_WO}
    """)
    for fi, (c, T) in enumerate(WOS):
        for i in range(8):
            A(f"v_mov_b32 v{24 + 8*(fi&1) + i}, v{RE + 32*(c-2) + 4*i + T}")
        A(f"ds_write_b128 v{V_WO}, {v(24 + 8*(fi&1), 4)} offset:{fi*2048}")
        A(f"ds_write_b128 v{V_WO}, {v(28 + 8*(fi&1), 4)} offset:{fi*2048+1024}")
    A(f"""
    v_and_b32 v24, 8, v{L}
    v_cmp_eq_u32 vcc, 0, v24
    v_mov_b32 v25, 0xdddddddd
    v_mov_b32 v26, 0x88888888
    v_cndmask_b32 v{V_IDX}, v25, v26, vcc
    v_bfe_u32 v24, v{L}, 2, 2
    v_lshlrev_b32 v{V_QW}, 7, v24
    v_lshrrev_b32 v25, 5, v{L}
    v_lshl_add_u32 v{V_QW}, v25, 6, v{V_QW}
    v_and_b32 v25, 3, v{L}
    v_lshl_add_u32 v{V_QW}, v25, 4, v{V_QW}
    v_bfe_u32 v25, v{L}, 4, 1
    v_lshl_add_u32 v{V_QW}, v25, 3, v{V_QW}
    s_lshl_b32 s{S_T0}, s{S_W}, 9
    s_add_u32 s{S_T0}, s{S_T0}, {L_Q}
    v_add_u32 v{V_QW}, s{S_T0}, v{V_QW}
    v_lshrrev_b32 v25, 4, v{L}
    v_lshlrev_b32 v{V_QR}, 7, v25
    v_lshl_add_u32 v{V_QR}, v24, 4, v{V_QR}
    v_and_b32 v25, 1, v{L}
    v_lshl_add_u32 v{V_QR}, v25, 3, v{V_QR}
    v_add_u32 v{V_QR}, {L_Q}, v{V_QR}
    v_add_u32 v{V_KX}, {L_KX}, v{V_L16}
    v_mov_b32 v{V_WQ}, v20
    s_mov_b32 s{S_LO}, -1
    s_mov_b32 s{S_LO+1}, 0
    s_mov_b32 s{S_HI}, 0
    s_mov_b32 s{S_HI+1}, -1
    s_mov_b32 s{S_C}, {f2u(128**-0.5 * 1.4426950408889634)}
    s_lshl_b32 s{S_HP}, s{S_H}, 13
    s_mov_b32 s{S_RDY}, 0
    s_mov_b32 s{S_S}, 0
    s_mov_b32 s{S_ONE}, 0x3f80
    """)
    for i in range(4):
        A(f"s_mov_b32 s{S_SEL+2*i}, {0x03030303 << (2*i)}\ns_mov_b32 s{S_SEL+2*i+1}, {0x03030303 << (2*i)}")
    for i in range(4):
        A(f"s_mul_i32 s{S_T0}, s{S_ROT+i}, 3072\ns_add_u32 s{S_T0}, s{S_T0}, {L_A}\nv_add_u32 v{V_A[i]}, s{S_T0}, v{V_L16}")
    stamp(A, cfg, 2)
    A(f"""
    C_W0:
    buffer_load_dwordx2 v[24:25], off, {srd(R_DBG)}, 0 offset:{D_HIST} sc1
    buffer_load_dwordx4 v[28:31], off, {srd(R_DBG)}, 0 offset:{D_ARR} sc1
    buffer_load_dwordx4 v[32:35], off, {srd(R_DBG)}, 0 offset:{D_ARR+16} sc1
    """)
    spin_dec(A)
    A(f"""
    s_waitcnt vmcnt(0)
    v_sad_u8 v26, v24, 0, 0
    v_sad_u8 v26, v25, 0, v26
    v_min3_u32 v26, v26, v29, v30
    v_min3_u32 v26, v26, v31, v32
    v_min3_u32 v26, v26, v33, v34
    v_min_u32 v26, v26, v35
    v_readfirstlane_b32 s{S_T0}, v26
    s_cmp_lt_u32 s{S_T0}, 32
    s_cbranch_scc1 C_W0
    v_or_b32 v24, v24, v25
    v_and_b32 v24, 0x20202020, v24
    v_readfirstlane_b32 s{S_SENT}, v24
    """)

def kv_ready(A, s_target, tag):
    A(f"""
    s_cmp_gt_u32 s{S_RDY}, s{s_target}
    s_cbranch_scc1 RDY_OK{tag}
    s_lshr_b32 s{S_T0}, s{S_HP}, 6
    s_add_u32 s{S_T0}, s{S_T0}, {FL_KV}
    RDY_P{tag}:
    buffer_load_dwordx4 v[24:27], off, {srd(R_WS)}, s{S_T0} sc1
    buffer_load_dwordx4 v[28:31], off, {srd(R_WS)}, s{S_T0} offset:16 sc1
    """)
    spin_dec(A)
    A("s_waitcnt vmcnt(0)")
    for g in range(7):
        A(f"v_mad_u32_u24 v{25+g}, v{25+g}, 7, {g}")
    A(f"""
    v_min3_u32 v24, v25, v26, v27
    v_min3_u32 v24, v24, v28, v29
    v_min3_u32 v24, v24, v30, v31
    s_nop 0
    v_readfirstlane_b32 s{S_RDY}, v24
    s_cmp_gt_u32 s{S_RDY}, s{s_target}
    s_cbranch_scc0 RDY_P{tag}
    RDY_OK{tag}:
    """)

def kx_dma(A, s_seg_off, s_lds):
    A(f"""
    s_lshl_b32 s{S_T1}, s{S_W}, 11
    s_add_u32 m0, s{s_lds}, s{S_T1}
    s_add_u32 s{S_T1}, s{S_T1}, s{s_seg_off}
    s_add_u32 s{S_T1}, s{S_T1}, {WS_KX}
    buffer_load_dwordx4 v{V_L16}, {srd(R_WS)}, s{S_T1} offen sc1 lds
    buffer_load_dwordx4 v{V_L16}, {srd(R_WS)}, s{S_T1} offen offset:1024 sc1 lds
    """)

def wq_prefetch(A):
    for t in range(4):
        for ab in range(2):
            for m in range(4):
                r = RE + 8 * (2 * t + ab) + 2 * m
                A(f"ds_read_b64_tr_b16 v[{r}:{r+1}], v{V_WQ} offset:{t*4096 + (32*(m>>1) + 4*(m&1))*64 + ab*8}")

def fold(A, acc, dst):
    for r in range(4):
        A(f"v_permlane32_swap_b32 v{acc+r}, v{acc+4+r}")
    for r in range(4):
        A(f"v_add_f32 v{acc+r}, v{acc+r}, v{acc+4+r}")
    A(f"v_cvt_pk_bf16_f32 v{dst}, v{acc}, v{acc+1}")
    A(f"v_cvt_pk_bf16_f32 v{dst+1}, v{acc+2}, v{acc+3}")

def xG(A, t, u, op):
    A(f"v_mov_b32 v{u}, v{t}")
    A(f"v_permlane16_swap_b32 v{t}, v{u}")
    A(f"{op} v{t}, v{t}, v{u}")
    A(f"v_mov_b32 v{u}, v{t}")
    A(f"v_permlane32_swap_b32 v{t}, v{u}")
    A(f"{op} v{t}, v{t}, v{u}")

def chain_loop(A, cfg, tag, sc):
    P = lambda i: stamp(A, cfg, i) if cfg.get("prof", 0) >= 2 else None
    A(f"""
    LOOP{tag}:
    s_and_b32 s{S_T0}, s{S_S}, 3
    s_lshl_b32 s{S_T0}, s{S_T0}, 13
    s_lshl_b32 s{S_T1}, s{S_W}, 11
    s_add_u32 s{S_T0}, s{S_T0}, s{S_T1}
    s_add_u32 s{S_MB}, s{S_T0}, {WS_M}
    POLL2{tag}:
    buffer_load_dwordx4 {v(RA,4)}, v{V_L16}, {srd(R_WS)}, s{S_MB} offen sc1
    buffer_load_dwordx4 {v(RA+4,4)}, v{V_L16}, {srd(R_WS)}, s{S_MB} offen offset:1024 sc1
    """)
    for i in range(16): A(f"v_mov_b32 v{RQ+i}, 0")
    spin_dec(A)
    A(f"""
    s_waitcnt vmcnt(0)
    v_max3_u32 v14, v{RA}, v{RA+2}, v{RA+4}
    v_max_u32 v14, v14, v{RA+6}
    v_cmp_eq_u32 vcc, -1, v14
    s_cbranch_vccnz POLL2{tag}
    ds_write_b128 v{V_A[0]}, {v(RA,4)}
    ds_write_b128 v{V_A[0]}, {v(RA+4,4)} offset:1024
    s_waitcnt lgkmcnt(2)
    """)
    for t in range(2):
        for ab in range(2): A(SM(RQ + 4*ab, RA + 4*t, WQ(t, ab)))
    A("s_waitcnt lgkmcnt(0)\ns_barrier")
    for t in range(2, 8):
        A(f"ds_read_b128 {v(RA+4*t,4)}, v{V_A[t>>1]} offset:{(t&1)*1024}")
    for t in range(2):
        for ab in range(2): A(SM(RK + 4*ab, RA + 4*t, WK(t, ab)))
    A(f"""
    v_mov_b32 v14, s{S_S}
    s_mov_b64 exec, 1
    buffer_store_dword v14, off, {srd(R_WS)}, s{S_FLM} sc1
    s_mov_b64 exec, -1
    s_lshl_b32 s{S_KVB}, s{S_S}, 18
    s_add_u32 s{S_KVB}, s{S_KVB}, s{S_HP}
    s_add_u32 s{S_T2}, s{S_KVB}, 0x40000
    s_xor_b32 s{S_KXB}, s{S_KXB}, 0x2000
    """)
    kx_dma(A, S_T2, S_KXB)
    A(f"""
    s_add_u32 s{S_T1}, s{S_T1}, {WS_VX - WS_KX}
    v_lshlrev_b32 v15, 1, v{V_L16}
    buffer_load_dword v{V_T}, v15, {srd(R_WS)}, s{S_T1} offen sc1
    """)
    for t in range(2, 8):
        A(f"s_waitcnt lgkmcnt({7-t})")
        for ab in range(2): A(SM(RQ + 4*ab, RA + 4*t, WQ(t, ab)))
    for tl in range(2):
        for c in range(4):
            A(f"ds_read_b128 {v(64 + 16*tl + 4*c, 4)}, v{V_KX} offset:{tl*4096 + c*1024}")
    A(f"""
    v_mov_b32 v108, -1
    v_mov_b32 v109, -1
    v_mov_b32 v110, -1
    v_mov_b32 v111, -1
    s_and_b32 s{S_T0}, s{S_S}, 1
    s_lshl_b32 s{S_T0}, s{S_T0}, 18
    s_add_u32 s{S_PB}, s{S_T0}, {WS_P}
    s_xor_b32 s{S_T0}, s{S_PB}, 0x40000
    s_add_u32 s{S_T1}, s{S_T0}, 0x8000
    buffer_store_dwordx4 v[108:111], v{V_PST}, {srd(R_WS)}, s{S_T0} offen {sc}
    buffer_store_dwordx4 v[108:111], v{V_PST}, {srd(R_WS)}, s{S_T1} offen {sc}
    """)
    for t in range(2, 4):
        for ab in range(2): A(SM(RK + 4*ab, RA + 4*t, WK(t, ab)))
    fold(A, RQ, 14)
    A(f"ds_write_b64 v{V_QW}, v[14:15]")
    for t in range(4, 6):
        for ab in range(2): A(SM(RK + 4*ab, RA + 4*t, WK(t, ab)))
    for i in range(8): A(f"v_mov_b32 v{RQ+i}, 0")
    A("s_waitcnt lgkmcnt(0)\ns_barrier")
    for c in range(4):
        A(f"ds_read_b64_tr_b16 v[{48+4*c}:{49+4*c}], v{V_QR} offset:{c*512}")
        A(f"ds_read_b64_tr_b16 v[{50+4*c}:{51+4*c}], v{V_QR} offset:{c*512+64}")
    for t in range(6, 8):
        for ab in range(2): A(SM(RK + 4*ab, RA + 4*t, WK(t, ab)))
    A("s_waitcnt lgkmcnt(0)")
    for c in range(2):
        for tl in range(2):
            cc = "0" if c == 0 else v(96 + 4*tl, 4)
            A(f"v_mfma_f32_16x16x32_bf16 {v(96+4*tl,4)}, {v(64+16*tl+4*c,4)}, {v(48+4*c,4)}, {cc}")
    fold(A, RK, 108)
    A(f"ds_write_b64 v{V_QW}, v[108:109] offset:{L_K - L_Q}")
    A(f"""
    s_lshl_b32 s{S_T1}, s{S_W}, 11
    s_add_u32 s{S_T1}, s{S_T1}, s{S_KVB}
    s_add_u32 s{S_T1}, s{S_T1}, {WS_VX}
    buffer_load_dwordx4 {v(RK,4)}, v{V_L16}, {srd(R_WS)}, s{S_T1} offen sc1
    buffer_load_dwordx4 {v(RK+4,4)}, v{V_L16}, {srd(R_WS)}, s{S_T1} offen offset:1024 sc1
    """)
    for c in range(2, 4):
        for tl in range(2):
            A(f"v_mfma_f32_16x16x32_bf16 {v(96+4*tl,4)}, {v(64+16*tl+4*c,4)}, {v(48+4*c,4)}, {v(96+4*tl,4)}")
    A("s_waitcnt lgkmcnt(0)\ns_barrier")
    for c in range(4):
        A(f"ds_read_b64_tr_b16 v[{64+4*c}:{65+4*c}], v{V_QR} offset:{L_K - L_Q + c*512}")
        A(f"ds_read_b64_tr_b16 v[{66+4*c}:{67+4*c}], v{V_QR} offset:{L_K - L_Q + c*512+64}")
    def wo_rd(fi):
        r = list(WOS.values())[fi]
        A(f"ds_read_b128 {v(r,4)}, v{V_WO} offset:{fi*2048}")
        A(f"ds_read_b128 {v(r+4,4)}, v{V_WO} offset:{fi*2048+1024}")
    wo_rd(0); wo_rd(1)
    for t in range(0, 3):
        for ab in range(2): A(SM(RQ + 4*ab, RA + 4*t, WV(t, ab)))
    A("s_waitcnt lgkmcnt(4)")
    for c in range(4):
        cc = "0" if c == 0 else v(104, 4)
        A(f"v_mfma_f32_16x16x32_bf16 {v(104,4)}, {v(64+4*c,4)}, {v(48+4*c,4)}, {cc}")
    A(f"""
    s_lshr_b32 s{S_T2}, s{S_KVB}, 1
    s_add_u32 s{S_T2}, s{S_T2}, {WS_KVM}
    v_lshrrev_b32 v14, 1, v{V_L16}             ; lane*8
    v_and_b32 v15, 0x70, v{V_L16}
    v_and_b32 v110, 0x180, v14
    v_or_b32 v15, v15, v110                    ; g*128 + key*16
    s_cmp_eq_u32 s{S_W}, 1
    s_cbranch_scc0 NOKM{tag}
    s_mov_b64 exec, s[{S_MM}:{S_MM+1}]
    """)
    for c in range(4):
        A(f"buffer_store_dwordx4 {v(64+4*c,4)}, v15, {srd(R_WS)}, s{S_T2} offen offset:{c*512} sc1")
    A(f"s_mov_b64 exec, -1\nNOKM{tag}:")
    for t in range(3, 8):
        for ab in range(2): A(SM(RQ + 4*ab, RA + 4*t, WV(t, ab)))
    wo_rd(2); wo_rd(3)
    for fi in range(4, 8): wo_rd(fi)
    A("""
    v_max3_f32 v108, v96, v97, v98
    v_max3_f32 v109, v99, v100, v101
    v_max3_f32 v108, v108, v102, v103
    v_max3_f32 v109, v109, v104, v105
    v_max3_f32 v108, v108, v106, v107
    v_max_f32 v108, v108, v109
    """)
    xG(A, 108, 109, "v_max_f32")
    A(f"v_mul_f32 v108, s{S_C}, v108")
    for i in range(12):
        A(f"v_fma_f32 v{96+i}, v{96+i}, s{S_C}, -v108")
    for i in range(12):
        A(f"v_exp_f32 v{96+i}, v{96+i}")
    for i in range(4):
        A(f"v_cvt_pk_bf16_f32 v{48+i}, v{96+2*i}, v{97+2*i}")
    A(f"""
    v_cvt_pk_bf16_f32 v110, v104, v105
    v_cvt_pk_bf16_f32 v111, v106, v107
    v_cndmask_b32 v52, 0, v110, s[{S_LO}:{S_LO+1}]
    v_cndmask_b32 v53, 0, v111, s[{S_LO}:{S_LO+1}]
    v_cndmask_b32 v54, 0, v110, s[{S_HI}:{S_HI+1}]
    v_cndmask_b32 v55, 0, v111, s[{S_HI}:{S_HI+1}]
    v_add_f32 v108, v104, v105
    v_add_f32 v109, v106, v107
    v_add_f32 v108, v108, v109
    v_fma_f32 v108, v108, 0.5, v96
    v_add_f32 v109, v97, v98
    v_add_f32 v108, v108, v99
    v_add_f32 v109, v109, v100
    v_add_f32 v108, v108, v101
    v_add_f32 v109, v109, v102
    v_add_f32 v108, v108, v103
    v_add_f32 v108, v108, v109
    """)
    fold(A, RQ, 56)
    A(f"""
    s_lshl_b32 s{S_T1}, s{S_W}, 9
    s_add_u32 s{S_T2}, s{S_T2}, s{S_T1}
    s_waitcnt vmcnt(0)
    buffer_store_dwordx2 v[56:57], v14, {srd(R_WS)}, s{S_T2} offen offset:2048 sc1
    s_cmp_eq_u32 s{S_S}, 63
    s_cbranch_scc1 C_FIN
    v_mfma_f32_16x16x32_bf16 v[96:99], {v(RK,4)}, v[48:51], 0
    v_mfma_f32_16x16x32_bf16 v[100:103], {v(RK+4,4)}, v[48:51], 0
    v_mfma_f32_16x16x16_bf16 v[96:99], v[56:57], v[52:53], v[96:99]
    v_mfma_f32_16x16x16_bf16 v[100:103], v[56:57], v[54:55], v[100:103]
    """)
    xG(A, 108, 109, "v_add_f32")
    A("v_rcp_f32 v108, v108")
    for i in range(16): A(f"v_mov_b32 v{RQ+i}, 0")
    for i in range(8): A(f"v_mul_f32 v{96+i}, v{96+i}, v108")
    for i in range(4): A(f"v_cvt_pk_bf16_f32 v{104+i}, v{96+2*i}, v{97+2*i}")
    A(f"ds_write_b128 v{V_A[0]}, v[104:107] offset:2048")
    for T in range(4): A(SM(RQ + 4*T, 104, WO(0, T)))
    A("s_waitcnt lgkmcnt(0)\ns_barrier")
    for c in range(1, 4):
        A(f"ds_read_b128 {v(44+4*c,4)}, v{V_A[c]} offset:2048")
    A(f"s_add_u32 s{S_T1}, s{S_PB}, 0x8000")
    for c in range(1, 4):
        A(f"s_waitcnt lgkmcnt({3-c})")
        for T in range(2): A(SM(RQ + 4*T, 44 + 4*c, WO(c, T)))
    for c in range(1, 4):
        for T in range(2, 4): A(SM(RQ + 4*T, 44 + 4*c, WO(c, T)))
    for i in range(4): A(f"v_cvt_pk_bf16_f32 v{96+i}, v{RQ+2*i}, v{RQ+1+2*i}")
    A("v_min_u32 v96, -2, v96")
    A(f"buffer_store_dwordx4 v[96:99], v{V_PST}, {srd(R_WS)}, s{S_PB} offen {sc}")
    for i in range(4): A(f"v_cvt_pk_bf16_f32 v{100+i}, v{RQ+8+2*i}, v{RQ+9+2*i}")
    A("v_min_u32 v100, -2, v100")
    A(f"buffer_store_dwordx4 v[100:103], v{V_PST}, {srd(R_WS)}, s{S_T1} offen {sc}")
    A(f"v_xor_b32 v{V_KX}, 0x2000, v{V_KX}")
    wq_prefetch(A)
    A(f"""
    s_add_u32 s{S_S}, s{S_S}, 1
    s_cmp_eq_u32 s{S_W}, 0
    s_cbranch_scc1 HOP1{tag}
    s_cmp_eq_u32 s{S_W}, 3
    s_cbranch_scc0 LOOP{tag}
    s_add_u32 s{S_T3}, s{S_S}, 1
    s_min_u32 s{S_T3}, s{S_T3}, 63
    """)
    kv_ready(A, S_T3, tag)
    A(f"""
    s_branch LOOP{tag}
    HOP1{tag}:
    v_and_b32 v14, 16, v{V_L16}
    v_lshlrev_b32_e64 v14, v14, s{S_ONE}
    v_cndmask_b32 v{RQ}, 0, v14, s[{S_SEL}:{S_SEL+1}]
    v_cndmask_b32 v{RQ+1}, 0, v14, s[{S_SEL+2}:{S_SEL+3}]
    v_cndmask_b32 v{RQ+2}, 0, v14, s[{S_SEL+4}:{S_SEL+5}]
    v_cndmask_b32 v{RQ+3}, 0, v14, s[{S_SEL+6}:{S_SEL+7}]
    s_add_u32 s{S_T0}, s{S_PB}, s{S_HP}
    s_add_u32 s{S_T1}, s{S_T0}, 4096
    POLL1{tag}:
    """)
    for i in range(8):
        A(f"buffer_load_dwordx4 {v(RA+4*i,4)}, v{V_L16}, {srd(R_WS)}, s{S_T0 if i < 4 else S_T1} offen offset:{(i&3)*1024} sc1")
    spin_dec(A)
    for i in range(8):
        A(f"s_waitcnt vmcnt({7-i})")
        cc = "0" if i == 0 else v(RQ+4, 4)
        A(f"v_mfma_f32_16x16x32_bf16 {v(RQ+4,4)}, {v(RA+4*i,4)}, {v(RQ,4)}, {cc}")
        if i == 2: A(f"v_max3_u32 v14, v{RA}, v{RA+4}, v{RA+8}")
        if i in (4, 6): A(f"v_max3_u32 v14, v14, v{RA+4*i-4}, v{RA+4*i}")
    A(f"""
    v_max_u32 v14, v14, v{RA+28}
    v_cmp_eq_u32 vcc, -1, v14
    s_and_b32 s{S_T2}, s{S_S}, 3
    s_lshl_b32 s{S_T2}, s{S_T2}, 13
    s_add_u32 s{S_T2}, s{S_T2}, {WS_M}
    s_cbranch_vccnz POLL1{tag}
    v_cvt_pk_bf16_f32 v14, v{RQ+4}, v{RQ+5}
    v_cvt_pk_bf16_f32 v15, v{RQ+6}, v{RQ+7}
    v_min_u32 v14, -2, v14
    s_mov_b64 exec, s[{S_MM}:{S_MM+1}]
    buffer_store_dwordx2 v[14:15], v{V_MST}, {srd(R_WS)}, s{S_T2} offen {sc}
    v_mov_b32 v{RQ}, -1
    v_mov_b32 v{RQ+1}, -1
    buffer_store_dwordx2 {v(RQ,2)}, v{V_MST}, {srd(R_WS)}, s{S_MB} offen {sc}
    s_mov_b64 exec, -1
    """)
    if cfg.get("prof"):
        A(f"""
        s_memtime s[{S_TS}:{S_TS+1}]
        s_lshl_b32 s{S_T0}, s{S_S}, 2
        s_add_u32 s{S_T0}, s{S_T0}, s{S_PROF}
        s_waitcnt lgkmcnt(0)
        v_mov_b32 v{V_T}, s{S_TS}
        s_mov_b64 exec, 1
        buffer_store_dword v{V_T}, off, {srd(R_WS)}, s{S_T0} offset:64
        s_mov_b64 exec, -1
        """)
    A(f"s_branch LOOP{tag}")

def chain(A, cfg):
    cfg["vt"] = V_T
    chain_init(A, cfg)
    A(f"s_mov_b32 s{S_T3}, 1")
    kv_ready(A, S_T3, "I")
    A(f"s_mov_b32 s{S_KXB}, {L_KX}")
    kx_dma(A, S_HP, S_KXB)
    wq_prefetch(A)
    stamp(A, cfg, 3)
    A(f"s_cmp_eq_u32 s{S_SENT}, 0\ns_cbranch_scc1 LOOPS")
    chain_loop(A, cfg, "F", "")
    chain_loop(A, cfg, "S", "sc1")
    A(f"""
    C_FIN:
    s_waitcnt vmcnt(0)
    v_mov_b32 v14, 64
    s_mov_b64 exec, 1
    buffer_store_dword v14, off, {srd(R_WS)}, s{S_FLM} sc1
    s_mov_b64 exec, -1
    """)
    stamp(A, cfg, 4)
    A("s_waitcnt vmcnt(0)")
```

```python
from asm import *
KNAME = "recurrent_scan__memory_aug_recurrent_mem_tr__glu_gated_geglu__prompt_kernel"
MB = 1 << 20
WS_XN   = 0
WS_KX   = 2 * MB
WS_VX   = 18 * MB
WS_QX   = 34 * MB
WS_KVM  = 50 * MB
WS_H    = 58 * MB
WS_O    = 66 * MB
WS_P    = 82 * MB
WS_M    = 83 * MB
WS_FL   = 84 * MB
FL_KV   = WS_FL
FL_KVM  = WS_FL + 4096
FL_GRP  = WS_FL + 8192
WS_PROF = 85 * MB
WS_DBG  = 86 * MB
WS_SIZE = 256 * MB
R_X, R_M0, R_WQ, R_WK, R_WV, R_WO, R_WG, R_WU, R_WD, R_OUT, R_DBG, R_WS = [4 + 4 * i for i in range(12)]
def srd(r): return f"s[{r}:{r+3}]"
S_W, S_H, S_G, S_XCC = 52, 53, 54, 55
S_T0, S_T1, S_T2, S_T3 = 56, 57, 58, 59
S_SPIN = 60
S_PROF = 61
S_TS = 62
SPIN_MAX = 1 << 20
D_HIST, D_TICK, D_ARR = 0, 16, 128
import struct
def f2u(x): return struct.unpack('<I', struct.pack('<f', x))[0]
```

```python
from common import *

def stamp(A, cfg, idx):
    if not cfg.get("prof"): return
    A(f"""
    s_memtime s[{S_TS}:{S_TS+1}]
    s_waitcnt lgkmcnt(0)
    v_mov_b32 v{cfg['vt']}, s{S_TS}
    s_mov_b64 exec, 1
    buffer_store_dword v{cfg['vt']}, off, {srd(R_WS)}, s{S_PROF} offset:{idx*4}
    s_mov_b64 exec, -1
    """)

def spin_dec(A):
    A(f"s_sub_u32 s{S_SPIN}, s{S_SPIN}, 1\ns_cbranch_scc1 EXIT")

class Stager:
    def __init__(self, A, s_base, nring, batch=4):
        self.A = A; self.s_base = s_base; self.nring = nring; self.batch = batch
        self.slots = []
        self.issued = 0; self.done = 0
    def add(self, r, voff, soff, reads):
        self.slots.append((r, voff, soff, reads))
    def issue(self, n):
        A = self.A
        for _ in range(n):
            if self.issued >= len(self.slots): return
            r, voff, soff, _r = self.slots[self.issued]
            pos = self.issued % self.nring
            A(f"s_add_u32 m0, s{self.s_base}, {pos*1024}")
            A(f"s_mov_b32 s{S_T0}, {soff}")
            A(f"buffer_load_dwordx4 v{voff}, {srd(r)}, s{S_T0} offen lds")
            self.issued += 1
    def run(self, drained=False):
        A = self.A
        known = self.issued if drained else self.done
        while self.done < len(self.slots):
            n = min(self.batch, len(self.slots) - self.done)
            if self.done + n > known:
                A(f"s_waitcnt vmcnt({self.issued - self.done - n})")
            for i in range(self.done, self.done + n):
                pos = i % self.nring
                for f in self.slots[i][3]:
                    A(f(pos * 1024))
            self.done += n
            if self.issued < len(self.slots):
                A("s_waitcnt lgkmcnt(0)")
                self.issue(n)
        A("s_waitcnt lgkmcnt(0)")

def xlane_sum8(A, t, u, op="v_add_f32"):
    A(f"{op}_dpp v{t}, v{t}, v{t} row_ror:8 row_mask:0xf bank_mask:0xf")
    A(f"v_mov_b32 v{u}, v{t}")
    A(f"v_permlane16_swap_b32 v{t}, v{u}")
    A(f"{op} v{t}, v{t}, v{u}")
    A(f"v_mov_b32 v{u}, v{t}")
    A(f"v_permlane32_swap_b32 v{t}, v{u}")
    A(f"{op} v{t}, v{t}, v{u}")

def rnd_bf16(A, t):
    A(f"v_cvt_pk_bf16_f32 v{t}, v{t}, v{t}")
    A(f"v_and_b32 v{t}, 0xffff0000, v{t}")

def xG(A, t, u, op):
    A(f"v_mov_b32 v{u}, v{t}")
    A(f"v_permlane16_swap_b32 v{t}, v{u}")
    A(f"{op} v{t}, v{t}, v{u}")
    A(f"v_mov_b32 v{u}, v{t}")
    A(f"v_permlane32_swap_b32 v{t}, v{u}")
    A(f"{op} v{t}, v{t}, v{u}")

S_GI, S_NR, S_R, S_SEG, S_RING, S_BUF, S_HOFF = 64, 65, 66, 67, 68, 69, 70
V_L, V_L16, V_T = 1, 2, 3

def worker(A, cfg):
    cfg["vt"] = V_T
    A(f"""
    WORKER:
    s_sub_u32 s{S_GI}, s{S_G}, 1
    s_cmp_eq_u32 s{S_GI}, 0
    s_cselect_b32 s{S_NR}, 10, 9
    s_lshl_b32 s{S_RING}, s{S_W}, 15
    """)
    RAW, F = 16, 48
    A(f"""
    s_lshl_b32 s{S_T0}, s{S_W}, 5
    s_add_u32 s{S_T0}, s{S_T0}, s{S_H}      ; u
    s_lshl_b32 s{S_T1}, s{S_NR}, 2
    s_cmp_lt_u32 s{S_T0}, s{S_T1}
    s_cselect_b32 s{S_BUF}, 1, 0
    s_lshr_b32 s{S_T1}, s{S_T0}, 2
    s_mul_i32 s{S_T1}, s{S_T1}, 7
    s_add_u32 s{S_T1}, s{S_T1}, s{S_GI}     ; seg
    s_and_b32 s{S_T0}, s{S_T0}, 3           ; quarter
    s_lshl_b32 s{S_T2}, s{S_T1}, 15
    s_lshl_b32 s{S_T3}, s{S_T0}, 13
    s_add_u32 s{S_SEG}, s{S_T2}, s{S_T3}
    s_lshl_b32 s{S_T3}, s{S_T0}, 7
    s_add_u32 s{S_R}, s{S_T2}, s{S_T3}
    v_and_b32 v4, 7, v{V_L}
    v_lshrrev_b32 v5, 3, v{V_L}
    v_lshlrev_b32 v6, 10, v4
    v_lshl_add_u32 v6, v5, 4, v6            ; row*1024 + p*16
    v_lshlrev_b32 v7, 4, v4
    v_lshl_add_u32 v7, v5, 9, v7            ; p*512 + row*16
    s_cmp_eq_u32 s{S_BUF}, 0
    s_cbranch_scc1 W_NOLN0
    """)
    for i in range(8):
        A(f"buffer_load_dwordx4 v[{RAW+4*i}:{RAW+4*i+3}], v6, {srd(R_X)}, s{S_SEG} offen offset:{i*128}")
    A("W_NOLN0:")
    VS, VRK, VRV = 8, 9, 10
    A(f"""
    v_lshrrev_b32 v4, 2, v{V_L}
    v_and_b32 v5, 3, v{V_L}
    v_lshlrev_b32 v{VS}, 13, v4
    v_lshl_add_u32 v{VS}, v5, 4, v{VS}
    s_lshl_b32 s{S_T0}, s{S_H}, 8
    s_lshl_b32 s{S_T1}, s{S_W}, 6
    s_add_u32 s{S_T0}, s{S_T0}, s{S_T1}
    v_add_u32 v{VS}, s{S_T0}, v{VS}
    v_lshrrev_b32 v4, 5, v{V_L}              ; hf
    v_bfe_u32 v5, v{V_L}, 2, 2               ; r'
    v_lshlrev_b32 v4, 9, v4
    v_lshl_add_u32 v4, v5, 6, v4             ; (8hf + r')*64
    v_add_u32 v4, s{S_RING}, v4
    v_bfe_u32 v5, v{V_L}, 4, 1               ; colhalf
    v_and_b32 v11, 1, v{V_L}
    v_bfe_u32 v12, v{V_L}, 1, 1
    ; K/Q: e = 16*colhalf + 8*(c'&1) + 4*(c'>>1)
    v_lshl_add_u32 v{VRK}, v5, 5, v4
    v_lshl_add_u32 v{VRK}, v11, 4, v{VRK}
    v_lshl_add_u32 v{VRK}, v12, 3, v{VRK}
    ; V: e = 8*c' + 4*colhalf
    v_and_b32 v11, 3, v{V_L}
    v_lshl_add_u32 v{VRV}, v11, 4, v4
    v_lshl_add_u32 v{VRV}, v5, 3, v{VRV}
    """)
    def rd32(reg, va):
        return [lambda o, reg=reg: f"ds_read_b64_tr_b16 {reg(0)}, v{va} offset:{o}",
                lambda o, reg=reg: f"ds_read_b64_tr_b16 {reg(2)}, v{va} offset:{o+256}"]
    st = Stager(A, S_RING, 32)
    for ks in range(32):
        st.add(R_WK, VS, ks * 16 * 8192, rd32(lambda j, ks=ks: a(4*ks+j, 2), VRK))
        st.add(R_WV, VS, ks * 16 * 8192, rd32(lambda j, ks=ks: a(128+4*ks+j, 2), VRV))
    st.issue(32)
    A(f"s_cmp_eq_u32 s{S_BUF}, 0\ns_cbranch_scc1 W_NOLN1")
    A("s_waitcnt vmcnt(32)")
    for i in range(32):
        A(f"v_lshlrev_b32 v{F+2*i}, 16, v{RAW+i}")
        A(f"v_and_b32 v{F+2*i+1}, 0xffff0000, v{RAW+i}")
    A(f"v_add_f32 v12, v{F}, v{F+1}\nv_add_f32 v13, v{F+2}, v{F+3}")
    for i in range(4, 64, 2):
        A(f"v_add_f32 v12, v12, v{F+i}\nv_add_f32 v13, v13, v{F+i+1}")
    A("v_add_f32 v12, v12, v13")
    xlane_sum8(A, 12, 13)
    A("v_mul_f32 v12, 0x3b000000, v12      ; mean")
    A("v_mov_b32 v14, 0\nv_mov_b32 v15, 0")
    for i in range(0, 64, 2):
        A(f"v_sub_f32 v4, v{F+i}, v12\nv_sub_f32 v5, v{F+i+1}, v12")
        A("v_fmac_f32 v14, v4, v4\nv_fmac_f32 v15, v5, v5")
    A("v_add_f32 v14, v14, v15")
    xlane_sum8(A, 14, 13)
    A("v_mul_f32 v14, 0x3b000000, v14      ; var")
    rnd_bf16(A, 12); rnd_bf16(A, 14)
    A("v_add_f32 v14, 0x3727c5ac, v14")
    rnd_bf16(A, 14)
    A("v_sqrt_f32 v14, v14")
    rnd_bf16(A, 14)
    A("v_rcp_f32 v14, v14")
    for i in range(32):
        A(f"v_sub_f32 v4, v{F+2*i}, v12\nv_sub_f32 v5, v{F+2*i+1}, v12")
        A("v_cvt_pk_bf16_f32 v4, v4, v5")
        A("v_and_b32 v5, 0xffff0000, v4\nv_lshlrev_b32 v4, 16, v4")
        A("v_mul_f32 v5, v5, v14\nv_mul_f32 v4, v4, v14")
        A(f"v_cvt_pk_bf16_f32 v{RAW+i}, v4, v5")
    for i in range(8):
        A(f"s_add_u32 s{S_T0}, s{S_R}, {WS_XN + i*4096}")
        A(f"buffer_store_dwordx4 v[{RAW+4*i}:{RAW+4*i+3}], v7, {srd(R_WS)}, s{S_T0} offen sc1")
    A("W_NOLN1:")
    A(f"""
    s_lshl_b32 s{S_T0}, s{S_H}, 7
    s_lshl_b32 s{S_T1}, s{S_G}, 2
    s_add_u32 s71, s{S_T0}, s{S_T1}
    s_add_u32 s71, s71, {FL_KV}
    s_lshl_b32 s{S_T0}, s{S_G}, 7
    s_lshl_b32 s{S_T1}, s{S_H}, 2
    s_add_u32 s72, s{S_T0}, s{S_T1}
    s_add_u32 s72, s72, {FL_GRP}
    s_cmp_eq_u32 s{S_W}, 3
    s_cbranch_scc0 W_NOZ
    v_mov_b32 v4, 0
    s_mov_b64 exec, 1
    buffer_store_dword v4, off, {srd(R_WS)}, s71 sc1
    buffer_store_dword v4, off, {srd(R_WS)}, s72 sc1
    s_mov_b64 exec, -1
    W_NOZ:
    s_waitcnt vmcnt(0)
    s_barrier
    s_cmp_eq_u32 s{S_W}, 3
    s_cbranch_scc0 W_NOA
    v_mov_b32 v4, 1
    s_lshl_b32 s{S_T1}, s{S_G}, 2
    s_mov_b64 exec, 1
    buffer_atomic_add v4, off, {srd(R_DBG)}, s{S_T1} offset:{D_ARR}
    s_mov_b64 exec, -1
    s_waitcnt vmcnt(0)
    W_NOA:
    """)
    stamp(A, cfg, 1)
    if cfg.get("prof"): A("s_waitcnt vmcnt(0)")
    st.run(drained=True)
    stamp(A, cfg, 2)
    A(f"""
    s_cmp_eq_u32 s{S_W}, 0
    s_cbranch_scc0 W_LNOK
    s_lshl_b32 s{S_T1}, s{S_G}, 2
    W_LNP:
    buffer_load_dword v4, off, {srd(R_DBG)}, s{S_T1} offset:{D_ARR} sc1
    """)
    spin_dec(A)
    A(f"""
    s_waitcnt vmcnt(0)
    v_readfirstlane_b32 s{S_T0}, v4
    s_cmp_lt_u32 s{S_T0}, 32
    s_cbranch_scc1 W_LNP
    W_LNOK:
    s_barrier
    """)
    VKS, VVS = 11, 12
    A(f"""
    v_and_b32 v4, 15, v{V_L}
    v_lshlrev_b32 v4, 4, v4
    v_lshrrev_b32 v5, 5, v{V_L}
    v_lshl_add_u32 v4, v5, 8, v4
    v_bfe_u32 v5, v{V_L}, 4, 1
    v_lshl_add_u32 v{VKS}, v5, 12, v4
    s_lshl_b32 s{S_T0}, s{S_W}, 10
    v_add_u32 v{VKS}, s{S_T0}, v{VKS}
    v_lshl_add_u32 v{VVS}, v5, 10, v4
    s_lshl_b32 s{S_T0}, s{S_W}, 11
    v_add_u32 v{VVS}, s{S_T0}, v{VVS}
    s_lshl_b32 s{S_HOFF}, s{S_H}, 13
    """)
    def xn_dma(sseg, sbuf):
        A(f"""
        s_lshl_b32 s{S_T0}, s{sseg}, 15
        s_lshl_b32 s{S_T1}, s{S_W}, 13
        s_add_u32 s{S_T0}, s{S_T0}, s{S_T1}
        s_add_u32 m0, s{sbuf}, s{S_T1}
        s_add_u32 s{S_T2}, s{S_T0}, 4096
        """)
        for i in range(4):
            A(f"buffer_load_dwordx4 v{V_L16}, {srd(R_WS)}, s{S_T0} offen offset:{i*1024} sc1 lds")
        A("s_add_u32 m0, m0, 4096")
        for i in range(4):
            A(f"buffer_load_dwordx4 v{V_L16}, {srd(R_WS)}, s{S_T2} offen offset:{i*1024} sc1 lds")
    def seg_loop(name, body, flag_pub):
        A(f"""
        s_mov_b32 s{S_R}, 0
        s_mov_b32 s{S_SEG}, s{S_GI}
        s_mov_b32 s{S_BUF}, 0
        """)
        xn_dma(S_SEG, S_BUF)
        A(f"""
        {name}_LOOP:
        s_waitcnt vmcnt(0)
        s_barrier
        """)
        flag_pub()
        A(f"""
        s_cmp_eq_u32 s{S_R}, s{S_NR}
        s_cbranch_scc1 {name}_END
        v_add_u32 v13, s{S_BUF}, v{V_L16}
        s_xor_b32 s{S_BUF}, s{S_BUF}, 0x8000
        s_add_u32 s{S_R}, s{S_R}, 1
        s_cmp_eq_u32 s{S_R}, s{S_NR}
        s_cbranch_scc1 {name}_NOPF
        s_add_u32 s{S_T3}, s{S_SEG}, 7
        """)
        xn_dma(S_T3, S_BUF)
        A(f"{name}_NOPF:")
        body()
        A(f"""
        s_add_u32 s{S_SEG}, s{S_SEG}, 7
        s_branch {name}_LOOP
        {name}_END:
        """)
    XF, AK, AV, PK = 16, 48, 64, 80
    NPF = 8
    def pub_kv():
        A(f"""
        s_cmp_eq_u32 s{S_W}, 0
        s_cbranch_scc0 P1_NOPUB
        v_mov_b32 v4, s{S_R}
        s_mov_b64 exec, 1
        buffer_store_dword v4, off, {srd(R_WS)}, s71 sc1
        s_mov_b64 exec, -1
        P1_NOPUB:
        """)
    def body1():
        for ks in range(NPF):
            A(f"ds_read_b128 v[{XF+4*ks}:{XF+4*ks+3}], v13 offset:{ks*1024}")
        for ks in range(32):
            x = XF + 4 * (ks % NPF)
            A(f"s_waitcnt lgkmcnt({min(NPF-1, 31-ks)})")
            ck = "0" if ks == 0 else v(AK, 16)
            cv = "0" if ks == 0 else v(AV, 16)
            A(f"v_mfma_f32_32x32x16_bf16 {v(AK,16)}, {a(4*ks,4)}, {v(x,4)}, {ck}")
            A(f"v_mfma_f32_32x32x16_bf16 {v(AV,16)}, {v(x,4)}, {a(128+4*ks,4)}, {cv}")
            if ks + NPF < 32:
                A(f"ds_read_b128 v[{x}:{x+3}], v13 offset:{(ks+NPF)*1024}")
        A(f"""
        s_lshl_b32 s{S_T0}, s{S_SEG}, 18
        s_add_u32 s{S_T0}, s{S_T0}, s{S_HOFF}
        s_add_u32 s{S_T1}, s{S_T0}, {WS_VX}
        s_add_u32 s{S_T0}, s{S_T0}, {WS_KX}
        """)
        for i in range(8):
            A(f"v_cvt_pk_bf16_f32 v{PK+i}, v{AK+2*i}, v{AK+2*i+1}")
        A(f"buffer_store_dwordx4 {v(PK,4)}, v{VKS}, {srd(R_WS)}, s{S_T0} offen sc1")
        A(f"buffer_store_dwordx4 {v(PK+4,4)}, v{VKS}, {srd(R_WS)}, s{S_T0} offen offset:512 sc1")
        for i, r in enumerate([0, 2, 8, 10, 4, 6, 12, 14]):
            A(f"v_cvt_pk_bf16_f32 v{PK+8+i}, v{AV+r}, v{AV+r+1}")
        A(f"buffer_store_dwordx4 {v(PK+8,4)}, v{VVS}, {srd(R_WS)}, s{S_T1} offen sc1")
        A(f"buffer_store_dwordx4 {v(PK+12,4)}, v{VVS}, {srd(R_WS)}, s{S_T1} offen offset:512 sc1")
    seg_loop("P1", body1, pub_kv)
    stamp(A, cfg, 3)
    if cfg.get("stop", 99) <= 1:
        A("s_branch EXIT")
        return
    VSF, VRF, VHS = 14, 15, 10
    A(f"""
    v_lshrrev_b32 v4, 1, v{V_L}
    v_mul_u32_u24 v{VSF}, 3584, v4
    v_and_b32 v5, 1, v{V_L}
    v_lshl_add_u32 v{VSF}, v5, 4, v{VSF}
    s_lshl_b32 s{S_T0}, s{S_H}, 7
    s_lshl_b32 s{S_T1}, s{S_W}, 5
    s_add_u32 s{S_T0}, s{S_T0}, s{S_T1}
    v_add_u32 v{VSF}, s{S_T0}, v{VSF}
    v_lshlrev_b32 v{VRF}, 4, v5
    v_bfe_u32 v5, v{V_L}, 1, 1
    v_lshl_add_u32 v{VRF}, v5, 3, v{VRF}
    v_bfe_u32 v5, v{V_L}, 2, 2
    v_lshl_add_u32 v{VRF}, v5, 5, v{VRF}
    v_lshrrev_b32 v5, 5, v{V_L}
    v_lshl_add_u32 v{VRF}, v5, 8, v{VRF}
    v_bfe_u32 v4, v{V_L}, 4, 1
    v_lshl_add_u32 v{VRF}, v4, 10, v{VRF}
    v_add_u32 v{VRF}, s{S_RING}, v{VRF}
    v_lshlrev_b32 v{VHS}, 16, v4
    v_lshl_add_u32 v{VHS}, v5, 8, v{VHS}
    v_and_b32 v5, 15, v{V_L}
    v_lshl_add_u32 v{VHS}, v5, 4, v{VHS}
    s_lshl_b32 s{S_T0}, s{S_T0}, 4
    v_add_u32 v{VHS}, s{S_T0}, v{VHS}
    """)
    st = Stager(A, S_RING, 32)
    for p in range(16):
        for kk in range(2):
            ks = 2 * p + kk
            st.add(R_WQ, VS, ks * 16 * 8192, rd32(lambda j, ks=ks: a(4*ks+j, 2), VRK))
        st.add(R_WG, VSF, p * 32 * 3584, [])
        rds = []
        for kk in range(2):
            for hb in range(2):
                rds.append(lambda o, p=p, kk=kk, hb=hb: f"ds_read_b64_tr_b16 {a(128+4*(2*p+kk)+2*hb, 2)}, v{VRF} offset:{o - 1024 + kk*512 + hb*128}")
        st.add(R_WU, VSF, p * 32 * 3584, rds)
    st.issue(32)
    st.run()
    A("s_barrier")
    stamp(A, cfg, 4)
    C1 = -2 * 1.4426950408889634 * 0.7978845608028654
    A(f"s_mov_b32 s73, {f2u(C1)}\ns_mov_b32 s74, {f2u(C1 * 0.044715)}")
    def body2():
        for ks in range(NPF):
            A(f"ds_read_b128 v[{XF+4*ks}:{XF+4*ks+3}], v13 offset:{ks*1024}")
        for ks in range(32):
            x = XF + 4 * (ks % NPF)
            A(f"s_waitcnt lgkmcnt({min(NPF-1, 31-ks)})")
            ck = "0" if ks == 0 else v(AK, 16)
            cv = "0" if ks == 0 else v(AV, 16)
            A(f"v_mfma_f32_32x32x16_bf16 {v(AV,16)}, {a(128+4*ks,4)}, {v(x,4)}, {cv}")
            A(f"v_mfma_f32_32x32x16_bf16 {v(AK,16)}, {a(4*ks,4)}, {v(x,4)}, {ck}")
            if ks + NPF < 32:
                A(f"ds_read_b128 v[{x}:{x+3}], v13 offset:{(ks+NPF)*1024}")
        A(f"""
        s_lshl_b32 s{S_T0}, s{S_SEG}, 18
        s_lshl_b32 s{S_T1}, s{S_SEG}, 17
        s_add_u32 s{S_T0}, s{S_T0}, s{S_HOFF}
        s_add_u32 s{S_T1}, s{S_T1}, {WS_H}
        s_add_u32 s{S_T0}, s{S_T0}, {WS_QX}
        v_mov_b32 v4, s73
        """)
        T = PK + 8
        for i in range(8): A(f"v_mul_f32 v{T+i}, v{AV+i}, v{AV+i}")
        for i in range(8): A(f"v_fma_f32 v{T+i}, v{T+i}, s74, v4")
        for i in range(8): A(f"v_mul_f32 v{T+i}, v{T+i}, v{AV+i}")
        for i in range(8):
            A(f"v_cvt_pk_bf16_f32 v{PK+i}, v{AK+2*i}, v{AK+2*i+1}")
        A(f"buffer_store_dwordx4 {v(PK,4)}, v{VKS}, {srd(R_WS)}, s{S_T0} offen")
        A(f"buffer_store_dwordx4 {v(PK+4,4)}, v{VKS}, {srd(R_WS)}, s{S_T0} offen offset:512")
        for i in range(8): A(f"v_exp_f32 v{T+i}, v{T+i}")
        for i in range(8): A(f"v_add_f32 v{T+i}, 1.0, v{T+i}")
        for i in range(8): A(f"v_rcp_f32 v{T+i}, v{T+i}")
        for i in range(8): A(f"v_mul_f32 v{T+i}, v{T+i}, v{AV+i}")
        for i in range(8): A(f"v_mul_f32 v{T+i}, v{T+i}, v{AV+8+i}")
        for i in range(4): A(f"v_cvt_pk_bf16_f32 v{T+8+i}, v{T+2*i}, v{T+2*i+1}")
        A(f"buffer_store_dwordx4 {v(T+8,4)}, v{VHS}, {srd(R_WS)}, s{S_T1} offen sc1")
    seg_loop("P2", body2, lambda: None)
    def pub_grp(tag, val):
        A(f"""
        s_cmp_eq_u32 s{S_W}, 0
        s_cbranch_scc0 NOPUB_{tag}
        v_mov_b32 v4, {val}
        s_mov_b64 exec, 1
        buffer_store_dword v4, off, {srd(R_WS)}, s72 sc1
        s_mov_b64 exec, -1
        NOPUB_{tag}:
        """)
    pub_grp("H", 1)
    stamp(A, cfg, 5)
    if cfg.get("stop", 99) <= 2:
        A("s_waitcnt vmcnt(0)\ns_branch EXIT")
        return
    VSD, VSO, VRT = 8, 9, 10
    A(f"""
    v_lshrrev_b32 v4, 2, v{V_L}
    v_and_b32 v5, 3, v{V_L}
    v_lshlrev_b32 v{VSD}, 10, v4
    v_lshl_add_u32 v{VSD}, v5, 4, v{VSD}
    s_lshr_b32 s{S_T0}, s{S_H}, 1
    s_lshl_b32 s{S_T0}, s{S_T0}, 6
    s_lshl_b32 s{S_T1}, s{S_W}, 20
    s_add_u32 s{S_T1}, s{S_T1}, s{S_T0}
    v_add_u32 v{VSO}, s{S_T1}, v{VSD}
    s_mul_i32 s{S_T1}, s{S_W}, {448*1024}
    s_add_u32 s{S_T1}, s{S_T1}, s{S_T0}
    v_add_u32 v{VSD}, s{S_T1}, v{VSD}
    v_lshlrev_b32 v{VRT}, 4, v5
    v_and_b32 v4, 3, v4
    v_lshl_add_u32 v{VRT}, v4, 6, v{VRT}
    v_lshrrev_b32 v4, 4, v{V_L}
    v_lshl_add_u32 v{VRT}, v4, 9, v{VRT}
    v_add_u32 v{VRT}, s{S_RING}, v{VRT}
    """)
    def rd16(regf):
        return [lambda o, T=T, hb=hb: f"ds_read_b64_tr_b16 {regf(4*T+2*hb)}, v{VRT} offset:{o - 1024 + T*8 + hb*256}" for T in range(2) for hb in range(2)]
    st = Stager(A, S_RING, 32)
    for kq in range(14):
        st.add(R_WD, VSD, kq * 32768, [])
        st.add(R_WD, VSD, kq * 32768 + 16384, rd16(lambda j, kq=kq: v(128 + 8*kq + j, 2)))
    for kq in range(32):
        st.add(R_WO, VSO, kq * 32768, [])
        st.add(R_WO, VSO, kq * 32768 + 16384, rd16(lambda j, kq=kq: a(8*kq + j, 2)))
    st.issue(32)
    st.run()
    stamp(A, cfg, 6)
    VFL, VPW, VPR, VG, VXO = 8, 9, 10, 11, 12
    PITCH = 144
    A(f"""
    v_and_b32 v4, 31, v{V_L}
    v_lshlrev_b32 v{VFL}, 2, v4
    s_lshl_b32 s73, s{S_G}, 7
    s_add_u32 s73, s73, {FL_GRP}
    v_and_b32 v4, 15, v{V_L}
    v_mul_u32_u24 v{VPW}, {PITCH}, v4
    v_lshrrev_b32 v5, 4, v{V_L}
    v_lshl_add_u32 v{VPW}, v5, 5, v{VPW}
    s_mul_i32 s{S_T0}, s{S_W}, {16*PITCH}
    v_add_u32 v{VPW}, s{S_T0}, v{VPW}
    v_mul_u32_u24 v{VPR}, {PITCH}, v5
    v_lshl_add_u32 v{VPR}, v4, 3, v{VPR}
    s_mul_i32 s{S_T0}, s{S_W}, {4*PITCH}
    v_add_u32 v{VPR}, s{S_T0}, v{VPR}
    v_lshlrev_b32 v{VG}, 2, v0
    v_add_u32 v{VG}, 0x20000, v{VG}
    v_lshlrev_b32 v{VXO}, 10, v5
    v_lshl_add_u32 v{VXO}, v4, 2, v{VXO}
    s_and_b32 s{S_T0}, s{S_H}, 1
    s_lshl_b32 s74, s{S_T0}, 16            ; rt*64KB
    s_lshl_b32 s{S_T0}, s{S_T0}, 14
    s_lshl_b32 s{S_T1}, s{S_W}, 12
    s_add_u32 s{S_T0}, s{S_T0}, s{S_T1}
    s_lshr_b32 s{S_T1}, s{S_H}, 1
    s_lshl_b32 s{S_T1}, s{S_T1}, 6
    s_add_u32 s{S_T0}, s{S_T0}, s{S_T1}
    v_add_u32 v{VXO}, s{S_T0}, v{VXO}
    """)
    def grp_wait(tag, s_val):
        A(f"""
        GW_{tag}:
        buffer_load_dword v4, v{VFL}, {srd(R_WS)}, s73 offen sc1
        """)
        spin_dec(A)
        A(f"""
        s_waitcnt vmcnt(0)
        v_cmp_gt_u32 vcc, {s_val}, v4
        s_cbranch_vccnz GW_{tag}
        """)
    grp_wait("H", 1)
    A("s_barrier")
    HF, DA = 16, 112
    A(f"""
    s_mul_i32 s{S_T0}, s{S_W}, {14*1024}
    s_add_u32 s74, s74, s{S_T0}
    s_lshl_b32 s{S_T0}, s{S_GI}, 17
    s_add_u32 s75, s74, s{S_T0}
    s_add_u32 s75, s75, {WS_H}
    s_mov_b32 s{S_R}, 0
    v_mov_b32 v13, v{VPW}
    DN_LOOP:
    """)
    for kq in range(14):
        if kq % 4 == 0: A(f"s_add_u32 s{S_T0}, s75, {kq*1024}")
        A(f"buffer_load_dwordx4 {v(HF+4*kq,4)}, v{V_L16}, {srd(R_WS)}, s{S_T0} offen offset:{(kq%4)*1024} sc1")
    for kq in range(14):
        A(f"s_waitcnt vmcnt({13-kq})")
        for T in range(2):
            cc = "0" if kq == 0 else v(DA+4*T, 4)
            A(f"v_mfma_f32_16x16x32_bf16 {v(DA+4*T,4)}, {v(128+8*kq+4*T,4)}, {v(HF+4*kq,4)}, {cc}")
    A(f"""
    s_add_u32 s75, s75, {7*131072}
    s_add_u32 s{S_R}, s{S_R}, 1
    s_cmp_lt_u32 s{S_R}, s{S_NR}
    ds_write_b128 v13, {v(DA,4)}
    ds_write_b128 v13, {v(DA+4,4)} offset:16
    v_add_u32 v13, {64*PITCH}, v13
    s_cbranch_scc1 DN_LOOP
    s_waitcnt lgkmcnt(0)
    s_barrier
    """)
    def red4(va, off, d):
        for i in range(4):
            A(f"ds_read_b64 v[{d+2*i}:{d+2*i+1}], v{va} offset:{off + i*16*PITCH}")
    NL = -1.4426950408889634
    A(f"v_add_u32 v13, {5*64*PITCH}, v{VPR}")
    for r in range(10):
        red4(VPR if r < 5 else 13, (r % 5) * 64 * PITCH, 16 + 8 * r)
    for r in range(10):
        d = 16 + 8 * r
        A(f"s_waitcnt lgkmcnt(0)" if r == 0 else "")
        A(f"""
        v_add_f32 v{d}, v{d}, v{d+2}
        v_add_f32 v{d+1}, v{d+1}, v{d+3}
        v_add_f32 v{d+4}, v{d+4}, v{d+6}
        v_add_f32 v{d+5}, v{d+5}, v{d+7}
        v_add_f32 v{d}, v{d}, v{d+4}
        v_add_f32 v{d+1}, v{d+1}, v{d+5}
        v_cvt_pk_bf16_f32 v{d}, v{d}, v{d+1}
        v_and_b32 v{d+1}, 0xffff0000, v{d}
        v_lshlrev_b32 v{d}, 16, v{d}
        v_mul_f32 v{d+2}, {f2u(NL)}, v{d}
        v_mul_f32 v{d+3}, {f2u(NL)}, v{d+1}
        v_exp_f32 v{d+2}, v{d+2}
        v_exp_f32 v{d+3}, v{d+3}
        v_add_f32 v{d+2}, 1.0, v{d+2}
        v_add_f32 v{d+3}, 1.0, v{d+3}
        v_rcp_f32 v{d+2}, v{d+2}
        v_rcp_f32 v{d+3}, v{d+3}
        v_mul_f32 v{d}, v{d}, v{d+2}
        v_mul_f32 v{d+1}, v{d+1}, v{d+3}
        v_cvt_pk_bf16_f32 v{d}, v{d}, v{d+1}
        ds_write_b32 v{VG}, v{d} offset:{r*1024}
        """)
    stamp(A, cfg, 7)
    KX, QX, VX, KM, VM, SS, OA = 16, 48, 64, 80, 96, 100, 112
    VKM, VVM, VQI = 13, 14, 15
    S_AT, S_OW, S_OR, S_FK, S_XO, S_CS, S_MK = 75, 76, 77, 78, 79, 80, 81
    S_LO, S_HI, S_MSK = 82, 84, 86
    A(f"""
    W5_H:
    buffer_load_dwordx2 v[4:5], off, {srd(R_DBG)}, 0 offset:{D_HIST} sc1
    """)
    spin_dec(A)
    A(f"""
    s_waitcnt vmcnt(0)
    v_sad_u8 v4, v4, 0, 0
    v_sad_u8 v4, v5, 0, v4
    v_cmp_gt_u32 vcc, 32, v4
    s_cbranch_vccnz W5_H
    v_and_b32 v4, 7, v{V_L}
    v_lshlrev_b32 v{VKM}, 4, v4
    v_lshrrev_b32 v5, 4, v{V_L}
    v_lshl_add_u32 v{VKM}, v5, 7, v{VKM}
    v_lshlrev_b32 v{VVM}, 3, v{V_L}
    s_lshr_b32 s{S_T0}, s{S_W}, 1
    s_lshl_b32 s{S_T1}, s{S_T0}, 10
    v_add_u32 v{VVM}, s{S_T1}, v{VVM}
    v_and_b32 v4, 15, v{V_L}
    s_and_b32 s{S_T2}, s{S_W}, 1
    s_lshl_b32 s{S_T3}, s{S_T2}, 4
    v_add_u32 v4, s{S_T3}, v4
    v_lshlrev_b32 v5, 2, v5
    v_sub_u32 v4, v4, v5
    """)
    for tl in range(2):
        for r in range(4):
            A(f"v_cmp_le_i32 s[{S_MSK+2*(4*tl+r)}:{S_MSK+2*(4*tl+r)+1}], {16*tl+r}, v4")
    A(f"""
    s_mov_b32 s{S_LO}, -1
    s_mov_b32 s{S_LO+1}, 0
    s_mov_b32 s{S_HI}, 0
    s_mov_b32 s{S_HI+1}, -1
    s_mov_b32 s{S_CS}, {f2u(128**-0.5 * 1.4426950408889634)}
    v_mov_b32 v{VQI}, {f2u(-1e9 * 128**0.5)}
    s_lshl_b32 s{S_OW}, s{S_T2}, 17
    s_lshl_b32 s{S_T1}, s{S_T0}, 11
    s_add_u32 s{S_OW}, s{S_OW}, s{S_T1}
    s_lshl_b32 s{S_T1}, s{S_H}, 12
    s_add_u32 s{S_OW}, s{S_OW}, s{S_T1}
    s_add_u32 s{S_OW}, s{S_OW}, {WS_O}
    s_and_b32 s{S_OR}, s{S_H}, 1
    s_lshl_b32 s{S_OR}, s{S_OR}, 17
    s_lshl_b32 s{S_T1}, s{S_W}, 15
    s_add_u32 s{S_OR}, s{S_OR}, s{S_T1}
    s_add_u32 s{S_OR}, s{S_OR}, {WS_O}
    s_lshl_b32 s{S_FK}, s{S_H}, 7
    s_add_u32 s{S_FK}, s{S_FK}, {FL_KVM}
    s_lshl_b32 s{S_AT}, s{S_T2}, 12         ; qt*4096
    s_lshl_b32 s{S_MK}, s{S_T0}, 12         ; eh*4096
    s_add_u32 s{S_AT}, s{S_AT}, {WS_QX - WS_KX}
    s_add_u32 s{S_MK}, s{S_MK}, {WS_VX - WS_KX}
    s_mov_b32 s{S_R}, 0
    s_mov_b32 s{S_SEG}, s{S_GI}
    """)
    def att_loads(sseg):
        A(f"""
        s_lshl_b32 s{S_T0}, s{sseg}, 18
        s_add_u32 s{S_T0}, s{S_T0}, s{S_HOFF}
        s_add_u32 s{S_T0}, s{S_T0}, {WS_KX}
        s_add_u32 s{S_T1}, s{S_T0}, s{S_AT}
        s_add_u32 s{S_T2}, s{S_T0}, 4096
        """)
        for c in range(4):
            A(f"buffer_load_dwordx4 {v(QX+4*c,4)}, v{V_L16}, {srd(R_WS)}, s{S_T1} offen offset:{c*1024} sc1")
            A(f"buffer_load_dwordx4 {v(KX+4*c,4)}, v{V_L16}, {srd(R_WS)}, s{S_T0} offen offset:{c*1024} sc1")
            A(f"buffer_load_dwordx4 {v(KX+16+4*c,4)}, v{V_L16}, {srd(R_WS)}, s{S_T2} offen offset:{c*1024} sc1")
        A(f"s_add_u32 s{S_T1}, s{S_T0}, s{S_MK}")
        for c in range(4):
            A(f"buffer_load_dwordx4 {v(VX+4*c,4)}, v{V_L16}, {srd(R_WS)}, s{S_T1} offen offset:{c*1024} sc1")
    att_loads(S_SEG)
    A("W5_LOOP:\ns_waitcnt vmcnt(0)")
    for c in range(4):
        for tl in range(2):
            cc = "0" if c == 0 else v(SS+4*tl, 4)
            A(f"v_mfma_f32_16x16x32_bf16 {v(SS+4*tl,4)}, {v(KX+16*tl+4*c,4)}, {v(QX+4*c,4)}, {cc}")
    A(f"""
    W5_KP:
    buffer_load_dwordx4 v[4:7], off, {srd(R_WS)}, s{S_FK} sc1
    """)
    spin_dec(A)
    A(f"""
    s_waitcnt vmcnt(0)
    v_min3_u32 v4, v4, v5, v6
    v_min_u32 v4, v4, v7
    v_cmp_ge_u32 vcc, s{S_SEG}, v4
    s_cbranch_vccnz W5_KP
    s_lshl_b32 s{S_T0}, s{S_SEG}, 18
    s_add_u32 s{S_T1}, s{S_T0}, s{S_HOFF}
    s_lshr_b32 s{S_T1}, s{S_T1}, 1
    s_add_u32 s{S_T1}, s{S_T1}, {WS_KVM}
    """)
    for c in range(4):
        A(f"buffer_load_dwordx4 {v(KM+4*c,4)}, v{VKM}, {srd(R_WS)}, s{S_T1} offen offset:{c*512} sc1")
    for i in range(2):
        A(f"buffer_load_dwordx2 {v(VM+2*i,2)}, v{VVM}, {srd(R_WS)}, s{S_T1} offen offset:{2048+i*512} sc1")
    A(f"s_lshl_b32 s{S_XO}, s{S_SEG}, 15")
    A(f"buffer_load_dword v3, v{VXO}, {srd(R_X)}, s{S_XO} offen")
    for i in range(8):
        A(f"v_cndmask_b32 v{SS+i}, v{VQI}, v{SS+i}, s[{S_MSK+2*i}:{S_MSK+2*i+1}]")
    A(f"""
    v_max3_f32 v4, v{SS}, v{SS+1}, v{SS+2}
    v_max3_f32 v5, v{SS+3}, v{SS+4}, v{SS+5}
    v_max3_f32 v4, v4, v{SS+6}, v{SS+7}
    """)
    for c in range(4):
        A(f"s_waitcnt vmcnt({6-c})")
        cc = "0" if c == 0 else v(SS+8, 4)
        A(f"v_mfma_f32_16x16x32_bf16 {v(SS+8,4)}, {v(KM+4*c,4)}, {v(QX+4*c,4)}, {cc}")
    A(f"""
    v_max3_f32 v5, v5, v{SS+8}, v{SS+9}
    v_max3_f32 v4, v4, v{SS+10}, v{SS+11}
    v_max_f32 v4, v4, v5
    """)
    xG(A, 4, 5, "v_max_f32")
    A(f"v_mul_f32 v4, s{S_CS}, v4")
    for i in range(12): A(f"v_fma_f32 v{SS+i}, v{SS+i}, s{S_CS}, -v4")
    for i in range(12): A(f"v_exp_f32 v{SS+i}, v{SS+i}")
    PX, PM = KM, KM + 4
    for i in range(4): A(f"v_cvt_pk_bf16_f32 v{PX+i}, v{SS+2*i}, v{SS+2*i+1}")
    A(f"""
    v_cvt_pk_bf16_f32 v6, v{SS+8}, v{SS+9}
    v_cvt_pk_bf16_f32 v7, v{SS+10}, v{SS+11}
    v_cndmask_b32 v{PM}, 0, v6, s[{S_LO}:{S_LO+1}]
    v_cndmask_b32 v{PM+1}, 0, v7, s[{S_LO}:{S_LO+1}]
    v_cndmask_b32 v{PM+2}, 0, v6, s[{S_HI}:{S_HI+1}]
    v_cndmask_b32 v{PM+3}, 0, v7, s[{S_HI}:{S_HI+1}]
    """)
    for i in range(4):
        A(f"v_mfma_f32_16x16x32_bf16 {v(OA+4*i,4)}, {v(VX+4*i,4)}, {v(PX,4)}, 0")
    A(f"""
    v_add_f32 v4, v{SS+8}, v{SS+9}
    v_add_f32 v5, v{SS+10}, v{SS+11}
    v_add_f32 v4, v4, v5
    v_fma_f32 v4, v4, 0.5, v{SS}
    v_add_f32 v5, v{SS+1}, v{SS+2}
    v_add_f32 v4, v4, v{SS+3}
    v_add_f32 v5, v5, v{SS+4}
    v_add_f32 v4, v4, v{SS+5}
    v_add_f32 v5, v5, v{SS+6}
    v_add_f32 v4, v4, v{SS+7}
    v_add_f32 v4, v4, v5
    s_waitcnt vmcnt(1)
    """)
    for i in range(4):
        A(f"v_mfma_f32_16x16x16_bf16 {v(OA+4*i,4)}, {v(VM+2*(i>>1),2)}, {v(PM+2*(i&1),2)}, {v(OA+4*i,4)}")
    xG(A, 4, 5, "v_add_f32")
    A("v_rcp_f32 v4, v4")
    A(f"s_add_u32 s{S_T0}, s{S_T0}, s{S_OW}")
    for hh in range(2):
        for i in range(8): A(f"v_mul_f32 v{OA+8*hh+i}, v{OA+8*hh+i}, v4")
        for i in range(4): A(f"v_cvt_pk_bf16_f32 v{SS+4*hh+i}, v{OA+8*hh+2*i}, v{OA+8*hh+2*i+1}")
        A(f"buffer_store_dwordx4 {v(SS+4*hh,4)}, v{V_L16}, {srd(R_WS)}, s{S_T0} offen offset:{hh*1024} sc1")
    A(f"""
    s_add_u32 s{S_R}, s{S_R}, 1
    s_add_u32 s{S_BUF}, s{S_R}, 1
    s_waitcnt vmcnt(0)
    s_barrier
    """)
    pub_grp("O", f"s{S_BUF}")
    grp_wait("O", f"s{S_BUF}")
    A(f"""
    s_lshl_b32 s{S_T3}, s{S_SEG}, 18
    s_add_u32 s{S_T3}, s{S_T3}, s{S_OR}
    """)
    for kq in range(32):
        if kq % 4 == 0 and kq: A(f"s_add_u32 s{S_T3}, s{S_T3}, 4096")
        A(f"buffer_load_dwordx4 {v(128+4*kq,4)}, v{V_L16}, {srd(R_WS)}, s{S_T3} offen offset:{(kq%4)*1024} sc1")
    A(f"s_add_u32 s{S_SEG}, s{S_SEG}, 7\ns_min_u32 s{S_T3}, s{S_SEG}, 63")
    att_loads(S_T3)
    A(f"ds_read_b32 v7, v{VG}\nv_add_u32 v{VG}, 1024, v{VG}")
    for kq in range(32):
        A(f"s_waitcnt vmcnt({31-kq+16})")
        for T in range(2):
            cc = "0" if kq == 0 else v(OA+4*T, 4)
            A(f"v_mfma_f32_16x16x32_bf16 {v(OA+4*T,4)}, {a(8*kq+4*T,4)}, {v(128+4*kq,4)}, {cc}")
    d = SS
    A(f"""
    ds_write_b128 v{VPW}, {v(OA,4)}
    ds_write_b128 v{VPW}, {v(OA+4,4)} offset:16
    v_and_b32 v6, 0xffff0000, v7
    v_lshlrev_b32 v7, 16, v7
    v_and_b32 v5, 0xffff0000, v3
    v_lshlrev_b32 v4, 16, v3
    s_waitcnt lgkmcnt(0)
    s_barrier
    """)
    red4(VPR, 0, d)
    A(f"""
    s_cmp_lt_u32 s{S_R}, s{S_NR}
    s_waitcnt lgkmcnt(2)
    v_add_f32 v{d}, v{d}, v{d+2}
    v_add_f32 v{d+1}, v{d+1}, v{d+3}
    s_waitcnt lgkmcnt(0)
    v_add_f32 v{d+4}, v{d+4}, v{d+6}
    v_add_f32 v{d+5}, v{d+5}, v{d+7}
    v_add_f32 v{d}, v{d}, v{d+4}
    v_add_f32 v{d+1}, v{d+1}, v{d+5}
    v_cvt_pk_bf16_f32 v{d}, v{d}, v{d+1}
    v_and_b32 v{d+1}, 0xffff0000, v{d}
    v_lshlrev_b32 v{d}, 16, v{d}
    v_mul_f32 v{d}, v{d}, v7
    v_mul_f32 v{d+1}, v{d+1}, v6
    v_cvt_pk_bf16_f32 v{d}, v{d}, v{d+1}
    v_and_b32 v{d+1}, 0xffff0000, v{d}
    v_lshlrev_b32 v{d}, 16, v{d}
    v_add_f32 v{d}, v{d}, v4
    v_add_f32 v{d+1}, v{d+1}, v5
    v_cvt_pk_bf16_f32 v4, v{d}, v{d+1}
    buffer_store_dword v4, v{VXO}, {srd(R_OUT)}, s{S_XO} offen
    """)
    if cfg.get("prof"):
        A(f"""
        s_memtime s[{S_TS}:{S_TS+1}]
        s_lshl_b32 s{S_T0}, s{S_R}, 2
        s_add_u32 s{S_T0}, s{S_T0}, s{S_PROF}
        s_waitcnt lgkmcnt(0)
        v_mov_b32 v5, s{S_TS}
        s_mov_b64 exec, 1
        buffer_store_dword v5, off, {srd(R_WS)}, s{S_T0} offset:28
        s_mov_b64 exec, -1
        s_cmp_lt_u32 s{S_R}, s{S_NR}
        """)
    A(f"""
    s_cbranch_scc1 W5_LOOP
    s_waitcnt vmcnt(0)
    """)
```

```python
import sys
from common import *
from worker import *

def prologue(A, cfg):
    A(f"""
    s_cmp_ge_u32 s2, 256
    s_cbranch_scc1 EXIT
    """)
    slots = {R_X: 0, R_M0: 8, R_WQ: 16, R_WK: 24, R_WV: 32, R_WO: 40, R_WG: 64, R_WU: 72, R_WD: 80, R_OUT: 88, R_DBG: 96, R_WS: 104}
    sizes = {R_X: 2*MB, R_M0: 8192, R_WQ: 4*MB, R_WK: 4*MB, R_WV: 4*MB, R_WO: 4*MB, R_WG: 512*3584, R_WU: 512*3584,
             R_WD: 1792*1024, R_OUT: 2*MB, R_DBG: 256, R_WS: WS_SIZE}
    for r in [R_DBG] + [r for r in slots if r != R_DBG]:
        A(f"s_load_dwordx2 s[{r}:{r+1}], s[0:1], {slots[r]}")
    for r in slots:
        A(f"s_mov_b32 s{r+2}, {sizes[r]}\ns_mov_b32 s{r+3}, 0x20000")
    A(f"""
    s_getreg_b32 s{S_XCC}, hwreg(HW_REG_XCC_ID)
    s_and_b32 s{S_XCC}, s{S_XCC}, 7
    v_lshrrev_b32 v3, 6, v0
    v_and_b32 v1, 63, v0
    v_readfirstlane_b32 s{S_W}, v3
    v_lshlrev_b32 v2, 4, v1
    s_mov_b32 s{S_SPIN}, {cfg.get('spin', 1<<17)}
    v_mov_b32 v5, 0
    s_waitcnt lgkmcnt(0)
    """)
    if cfg.get("prof"):
        A(f"s_memtime s[{S_TS+2}:{S_TS+3}]")
    if cfg.get("static_roles"):
        A(f"s_and_b32 s{S_H}, s2, 31\ns_lshr_b32 s{S_G}, s2, 5")
    else:
        A(f"""
        s_cmp_eq_u32 s{S_W}, 0
        s_cbranch_scc0 TK_DONE
        s_mov_b32 s{S_G}, s{S_XCC}
        s_mov_b32 s{S_T1}, 8
        s_mov_b64 exec, 1
        TK_LOOP:
        v_mov_b32 v4, 1
        s_lshl_b32 s{S_T0}, s{S_G}, 2
        buffer_atomic_add v4, off, {srd(R_DBG)}, s{S_T0} offset:{D_TICK} sc0
        s_waitcnt vmcnt(0)
        v_readfirstlane_b32 s{S_H}, v4
        s_cmp_lt_u32 s{S_H}, 32
        s_cbranch_scc1 TK_GOT
        s_add_u32 s{S_G}, s{S_G}, 1
        s_and_b32 s{S_G}, s{S_G}, 7
        s_sub_u32 s{S_T1}, s{S_T1}, 1
        s_cmp_lg_u32 s{S_T1}, 0
        s_cbranch_scc1 TK_LOOP
        s_mov_b32 s{S_G}, 8
        TK_GOT:
        s_lshl_b32 s{S_T0}, s{S_G}, 5
        s_add_u32 s{S_T0}, s{S_T0}, s{S_H}
        v_mov_b32 v4, s{S_T0}
        ds_write_b32 v5, v4
        s_mov_b64 exec, -1
        s_waitcnt lgkmcnt(0)
        TK_DONE:
        s_barrier
        ds_read_b32 v4, v5
        s_waitcnt lgkmcnt(0)
        v_readfirstlane_b32 s{S_T0}, v4
        s_barrier
        s_cmp_ge_u32 s{S_T0}, 256
        s_cbranch_scc1 EXIT
        s_and_b32 s{S_H}, s{S_T0}, 31
        s_lshr_b32 s{S_G}, s{S_T0}, 5
        """)
    if cfg.get("prof"):
        A(f"""
        s_lshl_b32 s{S_T0}, s{S_G}, 5
        s_add_u32 s{S_T0}, s{S_T0}, s{S_H}
        s_lshl_b32 s{S_T0}, s{S_T0}, 2
        s_add_u32 s{S_T0}, s{S_T0}, s{S_W}
        s_lshl_b32 s{S_PROF}, s{S_T0}, 10
        s_add_u32 s{S_PROF}, s{S_PROF}, {WS_PROF}
        s_waitcnt lgkmcnt(0)
        v_mov_b32 v4, s{S_TS+2}
        s_mov_b64 exec, 1
        buffer_store_dword v4, off, {srd(R_WS)}, s{S_PROF}
        s_mov_b64 exec, -1
        s_waitcnt vmcnt(0)
        """)
    A(f"""
    s_cmp_eq_u32 s{S_G}, 0
    s_cbranch_scc1 CHAIN
    """)

def build(cfg):
    A = Asm()
    prologue(A, cfg)
    worker(A, cfg)
    A("s_branch EXIT")
    try:
        from chain import chain
        chain(A, cfg)
    except ImportError:
        A("CHAIN:")
    A("EXIT:\ns_endpgm")
    n = A.fix()
    hdr = open("recurrent_scan__memory_aug_recurrent_mem_tr__glu_gated_geglu__prompt.s.ref").read().split("\n")
    top = [l for l in hdr if l.startswith(";") and "@launch" not in l]
    out = "\n".join(top) + "\n; @launch grid=(256,1,1) block=(256,1,1) lds=163840\n"
    out += f'.amdgcn_target "amdgcn-amd-amdhsa--gfx950"\n.text\n.globl {KNAME}\n.p2align 8\n.type {KNAME},@function\n{KNAME}:\n'
    out += A.text()
    out += f""".section .rodata,"a"
.p2align 6
.amdhsa_kernel {KNAME}
  .amdhsa_next_free_vgpr 512
  .amdhsa_next_free_sgpr 102
  .amdhsa_accum_offset 256
  .amdhsa_group_segment_fixed_size 0
  .amdhsa_kernarg_size 112
  .amdhsa_user_sgpr_count 2
  .amdhsa_user_sgpr_kernarg_segment_ptr 1
  .amdhsa_system_sgpr_workgroup_id_x 1
.end_amdhsa_kernel
"""
    return out, n

if __name__ == "__main__":
    cfg = {}
    for x in sys.argv[2:]:
        k, val = x.split("=")
        cfg[k] = int(val, 0)
    out, n = build(cfg)
    open(sys.argv[1], "w").write(out)
    print("wrote", sys.argv[1], len(out), "bytes; nop states added:", n)
```

```python
import re

TRANS = ("v_exp_", "v_log_", "v_rcp_", "v_rsq_", "v_sqrt_", "v_sin_", "v_cos_")

def regs_of(tok):
    tok = tok.strip()
    tok = tok.lstrip("-").strip("|")
    m = re.fullmatch(r"([vas])(\d+)", tok)
    if m:
        return [(m.group(1), int(m.group(2)))]
    m = re.fullmatch(r"([vas])\[(\d+):(\d+)\]", tok)
    if m:
        return [(m.group(1), i) for i in range(int(m.group(2)), int(m.group(3)) + 1)]
    if tok in ("vcc", "vcc_lo", "vcc_hi"):
        return [("s", "vcc")]
    if tok in ("exec", "exec_lo", "exec_hi"):
        return [("s", "exec")]
    if tok == "m0":
        return [("s", "m0")]
    return []

class Ins:
    def __init__(self, text):
        self.text = text
        body = text.split(";")[0].strip()
        parts = body.split(None, 1)
        self.op = parts[0]
        rest = parts[1] if len(parts) > 1 else ""
        ops = [t.strip() for t in rest.split(",")]
        self.mods = ""
        if ops and ops[-1]:
            m = re.match(r"(\S+)\s*(.*)", ops[-1])
            ops[-1] = m.group(1)
            self.mods = m.group(2)
        clean = []
        for i, t in enumerate(ops):
            if " " in t:
                a, b = t.split(None, 1)
                clean.append(a)
                self.mods = b + "," + ",".join(ops[i + 1:]) + " " + self.mods
                break
            clean.append(t)
        self.ops = clean
        op = self.op
        self.mfma = op.startswith("v_mfma") or op.startswith("v_smfmac")
        self.valu = op.startswith("v_") and not self.mfma
        self.vmem = op.startswith("global_") or op.startswith("buffer_")
        self.ds = op.startswith("ds_")
        self.salu = op.startswith("s_")
        self.trans = self.valu and op.startswith(TRANS)
        self.perm = op.startswith("v_permlane")
        self.dpp = self.valu and bool(re.search(r"row_|quad_perm|wave_|_dpp", self.mods + op))
        self.opsel = self.valu and (("dst_sel" in self.mods and "dst_sel:DWORD" not in self.mods) or
                                    (re.search(r"op_sel:\[[01],[01],1\]|op_sel:\[[01],[01],[01],1\]", self.mods) is not None and not op.startswith("v_pk")))
        self.w = set(); self.r = set(); self.srcC = set(); self.srcAB = set(); self.stdata = set()
        self.passes = 0
        R = [regs_of(t) for t in self.ops]
        if self.mfma:
            self.passes = 8 if "32x32" in op else 4
            self.w = set(R[0])
            if op.startswith("v_smfmac"):
                self.srcC = set(R[0]); self.srcAB = set(R[1]) | set(R[2]) | set(R[3])
            else:
                self.srcC = set(R[3]); self.srcAB = set(R[1]) | set(R[2])
            self.r = self.srcC | self.srcAB
            self.dkey = self.ops[0]
            self.ckey = self.ops[0] if op.startswith("v_smfmac") else self.ops[3]
        elif self.valu:
            if op.startswith("v_nop"):
                pass
            elif self.perm and "swap" in op:
                self.w = set(R[0]) | set(R[1]); self.r = set(self.w)
            elif op.startswith("v_swap"):
                self.w = set(R[0]) | set(R[1]); self.r = set(self.w)
            elif op.startswith("v_cmpx"):
                self.w = {("s", "exec")} | set(R[0])
                for x in R[1:]: self.r |= set(x)
            elif re.match(r"v_(add|sub|subrev)_co_u32|v_(addc|subb|subbrev)_co_u32|v_div_scale|v_mad_u64_u32", op):
                self.w = set(R[0]) | set(R[1])
                for x in R[2:]: self.r |= set(x)
            else:
                self.w = set(R[0])
                for x in R[1:]: self.r |= set(x)
                if op.startswith(("v_fmac", "v_mac", "v_pk_fmac", "v_dot2c", "v_writelane")) or self.dpp or "dst_unused:UNUSED_PRESERVE" in self.mods:
                    self.r |= set(R[0])
                if op.startswith("v_cndmask") and len(self.ops) == 3:
                    self.r.add(("s", "vcc"))
        elif self.vmem:
            lds = "_lds_" in op or re.search(r"\blds\b", self.mods) is not None
            self.ldsdma = lds
            if "store" in op:
                for x in R: self.r |= set(x)
                d = R[1] if op.startswith("global_") else R[0]
                if len(d) >= 3: self.stdata = set(d)
            elif "atomic" in op:
                ret = "sc0" in self.mods
                if op.startswith("global_") and ret:
                    self.w = set(R[0])
                    for x in R[1:]: self.r |= set(x)
                else:
                    for x in R: self.r |= set(x)
                    if ret: self.w = set(R[0])
            elif lds:
                for x in R: self.r |= set(x)
                self.r.add(("s", "m0"))
            elif op in ("buffer_inv", "buffer_wbl2"):
                pass
            else:
                self.w = set(R[0])
                for x in R[1:]: self.r |= set(x)
        elif self.ds:
            if op.startswith(("ds_read", "ds_bpermute", "ds_permute", "ds_swizzle")) or "_rtn" in op:
                self.w = set(R[0])
                for x in R[1:]: self.r |= set(x)
            else:
                for x in R: self.r |= set(x)
        elif self.salu:
            if op.startswith(("s_cmp", "s_cbranch", "s_branch", "s_waitcnt", "s_barrier", "s_nop", "s_endpgm", "s_setprio", "s_sleep", "s_bitcmp", "s_setpc")):
                for x in R: self.r |= set(x)
            else:
                self.w = set(R[0]) if R else set()
                for x in R[1:]: self.r |= set(x)
                if "saveexec" in op:
                    self.w.add(("s", "exec")); self.r.add(("s", "exec"))
        self.states = 1
        if op == "s_nop":
            self.states = int(self.ops[0], 0) + 1

def isv(x): return x[0] in ("v", "a")

def need(p, c):
    n = 0
    pw_v = {x for x in p.w if isv(x)}
    pw_s = {x for x in p.w if x[0] == "s"}
    if p.mfma:
        big = {4: 8, 8: 12}[p.passes]
        if c.mfma:
            if pw_v & c.srcAB: n = max(n, big)
            if pw_v & c.srcC:
                if not (c.ckey == p.dkey and c.passes == p.passes):
                    n = max(n, big - 2)
            elif pw_v & c.w:
                n = max(n, big - 2)
        elif c.valu or c.vmem or c.ds:
            if pw_v & (c.r | c.w): n = max(n, big)
        if c.valu and (p.srcC & c.w):
            n = max(n, {4: 3, 8: 7}[p.passes])
    if p.valu:
        if c.mfma and (pw_v & c.r): n = max(n, 2)
        if c.mfma and ("s", "exec") in pw_s: n = max(n, 4)
        if c.valu:
            if (c.perm or c.dpp) and (pw_v & c.r): n = max(n, 2)
            if c.op.startswith(("v_readlane", "v_readfirstlane")) and (pw_v & c.r): n = max(n, 1)
            if p.trans and (pw_v & c.r): n = max(n, 1)
            if p.opsel and (pw_v & (c.r | c.w)): n = max(n, 1)
            if pw_s & c.r:
                n = max(n, 4 if c.op.startswith(("v_readlane", "v_writelane", "v_div_fmas")) else 2)
            if ("s", "exec") in pw_s:
                if c.dpp: n = max(n, 5)
                if c.perm or c.op.startswith(("v_readlane", "v_readfirstlane", "v_writelane")): n = max(n, 4)
        if c.vmem and (pw_s & c.r): n = max(n, 5)
    if p.vmem and p.stdata:
        if p.stdata & c.w: n = max(n, 2 if c.valu or c.mfma else 1)
    if p.salu and ("s", "m0") in p.w and c.vmem and getattr(c, "ldsdma", False): n = max(n, 1)
    return n

class Asm:
    def __init__(self):
        self.items = []
        self.uid = 0
    def __call__(self, text):
        for line in text.split("\n"):
            line = line.strip()
            if not line: continue
            if line.startswith(";") or line.startswith(".") or line.endswith(":"):
                self.items.append(line)
            else:
                self.items.append(Ins(line))
    def label(self, base="L"):
        self.uid += 1
        return f"{base}_{self.uid}"
    def fix(self):
        out = []; added = 0
        def window():
            res = []
            for k in range(len(out) - 1, -1, -1):
                x = out[k]
                if isinstance(x, str): continue
                if x.op in ("s_branch", "s_endpgm", "s_setpc_b64"): break
                res.append(k)
                if len(res) >= 16: break
            return res
        def shortfall(it):
            dist = 0; pad = 0; who = None
            for k in window():
                if dist >= 12: break
                n = need(out[k], it) - dist
                if n > pad: pad = n; who = k
                dist += out[k].states
            return pad, who
        for it in self.items:
            if isinstance(it, str):
                out.append(it); continue
            while True:
                pad, who = shortfall(it)
                if pad <= 0: break
                placed = False
                idx = [k for k in range(who, len(out))]
                last = None; cnt = 0
                for k in idx:
                    x = out[k]
                    if isinstance(x, str):
                        if x.endswith(":"): last = None
                        continue
                    if x.mfma:
                        if last is not None and cnt < 3:
                            n = min(pad, 3 - cnt)
                            out.insert(k, Ins(f"s_nop {n-1}")); placed = True; break
                        last = k if x.passes == 4 else None; cnt = 0
                    elif x.valu or x.op.startswith(("s_cbranch", "s_barrier", "s_waitcnt")): last = None
                    else: cnt += x.states
                if not placed:
                    out.append(Ins(f"s_nop {pad-1}")); added += pad
            out.append(it)
        self.items = out
        labels = {it[:-1]: i for i, it in enumerate(out) if isinstance(it, str) and it.endswith(":")}
        for i, it in enumerate(out):
            if isinstance(it, Ins) and it.op.startswith(("s_branch", "s_cbranch")):
                tgt = labels[it.ops[0]]
                tail = [x for x in out[max(0, i - 16):i + 1] if isinstance(x, Ins)]
                head = [x for x in out[tgt:tgt + 24] if isinstance(x, Ins)]
                d0 = 0
                for c in head:
                    if d0 >= 12: break
                    dist = d0
                    for p in reversed(tail):
                        if dist >= 12: break
                        if need(p, c) > dist:
                            raise RuntimeError(f"hazard across branch {it.text}: {p.text} -> {c.text}")
                        dist += p.states
                    d0 += c.states
                    if c.op in ("s_branch", "s_endpgm"): break
        return added
    def text(self):
        o = []
        for it in self.items:
            if isinstance(it, str): o.append(it)
            else: o.append("  " + it.text)
        return "\n".join(o) + "\n"

def v(i, n=1): return f"v{i}" if n == 1 else f"v[{i}:{i+n-1}]"
def a(i, n=1): return f"a{i}" if n == 1 else f"a[{i}:{i+n-1}]"
def s(i, n=1): return f"s{i}" if n == 1 else f"s[{i}:{i+n-1}]"
```

```python
import re

TRANS = ("v_exp_", "v_log_", "v_rcp_", "v_rsq_", "v_sqrt_", "v_sin_", "v_cos_")

def regs_of(tok):
    tok = tok.strip()
    tok = tok.lstrip("-").strip("|")
    m = re.fullmatch(r"([vas])(\d+)", tok)
    if m:
        return [(m.group(1), int(m.group(2)))]
    m = re.fullmatch(r"([vas])\[(\d+):(\d+)\]", tok)
    if m:
        return [(m.group(1), i) for i in range(int(m.group(2)), int(m.group(3)) + 1)]
    if tok in ("vcc", "vcc_lo", "vcc_hi"):
        return [("s", "vcc")]
    if tok in ("exec", "exec_lo", "exec_hi"):
        return [("s", "exec")]
    if tok == "m0":
        return [("s", "m0")]
    return []

class Ins:
    def __init__(self, text):
        self.text = text
        body = text.split(";")[0].strip()
        parts = body.split(None, 1)
        self.op = parts[0]
        rest = parts[1] if len(parts) > 1 else ""
        ops = [t.strip() for t in rest.split(",")]
        self.mods = ""
        if ops and ops[-1]:
            m = re.match(r"(\S+)\s*(.*)", ops[-1])
            ops[-1] = m.group(1)
            self.mods = m.group(2)
        clean = []
        for i, t in enumerate(ops):
            if " " in t:
                a, b = t.split(None, 1)
                clean.append(a)
                self.mods = b + "," + ",".join(ops[i + 1:]) + " " + self.mods
                break
            clean.append(t)
        self.ops = clean
        op = self.op
        self.mfma = op.startswith("v_mfma") or op.startswith("v_smfmac")
        self.valu = op.startswith("v_") and not self.mfma
        self.vmem = op.startswith("global_") or op.startswith("buffer_")
        self.ds = op.startswith("ds_")
        self.salu = op.startswith("s_")
        self.trans = self.valu and op.startswith(TRANS)
        self.perm = op.startswith("v_permlane")
        self.dpp = self.valu and bool(re.search(r"row_|quad_perm|wave_|_dpp", self.mods + op))
        self.opsel = self.valu and (("dst_sel" in self.mods and "dst_sel:DWORD" not in self.mods) or
                                    (re.search(r"op_sel:\[[01],[01],1\]|op_sel:\[[01],[01],[01],1\]", self.mods) is not None and not op.startswith("v_pk")))
        self.w = set(); self.r = set(); self.srcC = set(); self.srcAB = set(); self.stdata = set()
        self.passes = 0
        R = [regs_of(t) for t in self.ops]
        if self.mfma:
            self.passes = 8 if "32x32" in op else 4
            self.w = set(R[0])
            if op.startswith("v_smfmac"):
                self.srcC = set(R[0]); self.srcAB = set(R[1]) | set(R[2]) | set(R[3])
            else:
                self.srcC = set(R[3]); self.srcAB = set(R[1]) | set(R[2])
            self.r = self.srcC | self.srcAB
            self.dkey = self.ops[0]
            self.ckey = self.ops[0] if op.startswith("v_smfmac") else self.ops[3]
        elif self.valu:
            if op.startswith("v_nop"):
                pass
            elif self.perm and "swap" in op:
                self.w = set(R[0]) | set(R[1]); self.r = set(self.w)
            elif op.startswith("v_swap"):
                self.w = set(R[0]) | set(R[1]); self.r = set(self.w)
            elif op.startswith("v_cmpx"):
                self.w = {("s", "exec")} | set(R[0])
                for x in R[1:]: self.r |= set(x)
            elif re.match(r"v_(add|sub|subrev)_co_u32|v_(addc|subb|subbrev)_co_u32|v_div_scale|v_mad_u64_u32", op):
                self.w = set(R[0]) | set(R[1])
                for x in R[2:]: self.r |= set(x)
            else:
                self.w = set(R[0])
                for x in R[1:]: self.r |= set(x)
                if op.startswith(("v_fmac", "v_mac", "v_pk_fmac", "v_dot2c", "v_writelane")) or self.dpp or "dst_unused:UNUSED_PRESERVE" in self.mods:
                    self.r |= set(R[0])
                if op.startswith("v_cndmask") and len(self.ops) == 3:
                    self.r.add(("s", "vcc"))
        elif self.vmem:
            lds = "_lds_" in op or re.search(r"\blds\b", self.mods) is not None
            self.ldsdma = lds
            if "store" in op:
                for x in R: self.r |= set(x)
                d = R[1] if op.startswith("global_") else R[0]
                if len(d) >= 3: self.stdata = set(d)
            elif "atomic" in op:
                ret = "sc0" in self.mods
                if op.startswith("global_") and ret:
                    self.w = set(R[0])
                    for x in R[1:]: self.r |= set(x)
                else:
                    for x in R: self.r |= set(x)
                    if ret: self.w = set(R[0])
            elif lds:
                for x in R: self.r |= set(x)
                self.r.add(("s", "m0"))
            elif op in ("buffer_inv", "buffer_wbl2"):
                pass
            else:
                self.w = set(R[0])
                for x in R[1:]: self.r |= set(x)
        elif self.ds:
            if op.startswith(("ds_read", "ds_bpermute", "ds_permute", "ds_swizzle")) or "_rtn" in op:
                self.w = set(R[0])
                for x in R[1:]: self.r |= set(x)
            else:
                for x in R: self.r |= set(x)
        elif self.salu:
            if op.startswith(("s_cmp", "s_cbranch", "s_branch", "s_waitcnt", "s_barrier", "s_nop", "s_endpgm", "s_setprio", "s_sleep", "s_bitcmp", "s_setpc")):
                for x in R: self.r |= set(x)
            else:
                self.w = set(R[0]) if R else set()
                for x in R[1:]: self.r |= set(x)
                if "saveexec" in op:
                    self.w.add(("s", "exec")); self.r.add(("s", "exec"))
        self.states = 1
        if op == "s_nop":
            self.states = int(self.ops[0], 0) + 1

def isv(x): return x[0] in ("v", "a")

def need(p, c):
    n = 0
    pw_v = {x for x in p.w if isv(x)}
    pw_s = {x for x in p.w if x[0] == "s"}
    if p.mfma:
        big = {4: 8, 8: 12}[p.passes]
        if c.mfma:
            if pw_v & c.srcAB: n = max(n, big)
            if pw_v & c.srcC:
                if not (c.ckey == p.dkey and c.op == p.op):
                    n = max(n, big - 2)
            elif pw_v & c.w:
                n = max(n, big - 2)
        elif c.valu or c.vmem or c.ds:
            if pw_v & (c.r | c.w): n = max(n, big)
        if c.valu and (p.srcC & c.w):
            n = max(n, {4: 3, 8: 7}[p.passes])
    if p.valu:
        if c.mfma and (pw_v & c.r): n = max(n, 2)
        if c.mfma and ("s", "exec") in pw_s: n = max(n, 4)
        if c.valu:
            if (c.perm or c.dpp) and (pw_v & c.r): n = max(n, 2)
            if c.op.startswith(("v_readlane", "v_readfirstlane")) and (pw_v & c.r): n = max(n, 1)
            if p.trans and (pw_v & c.r): n = max(n, 1)
            if p.opsel and (pw_v & (c.r | c.w)): n = max(n, 1)
            if pw_s & c.r:
                n = max(n, 4 if c.op.startswith(("v_readlane", "v_writelane", "v_div_fmas")) else 2)
            if ("s", "exec") in pw_s:
                if c.dpp: n = max(n, 5)
                if c.perm or c.op.startswith(("v_readlane", "v_readfirstlane", "v_writelane")): n = max(n, 4)
        if c.vmem and (pw_s & c.r): n = max(n, 5)
    if p.vmem and p.stdata:
        if p.stdata & c.w: n = max(n, 2 if c.valu or c.mfma else 1)
    if p.salu and ("s", "m0") in p.w and c.vmem and getattr(c, "ldsdma", False): n = max(n, 1)
    return n

class Asm:
    def __init__(self):
        self.items = []
        self.uid = 0
    def __call__(self, text):
        for line in text.split("\n"):
            line = line.strip()
            if not line: continue
            if line.startswith(";") or line.startswith(".") or line.endswith(":"):
                self.items.append(line)
            else:
                self.items.append(Ins(line))
    def label(self, base="L"):
        self.uid += 1
        return f"{base}_{self.uid}"
    def fix(self):
        out = []; added = 0
        def window():
            res = []
            for k in range(len(out) - 1, -1, -1):
                x = out[k]
                if isinstance(x, str): continue
                if x.op in ("s_branch", "s_endpgm", "s_setpc_b64"): break
                res.append(k)
                if len(res) >= 16: break
            return res
        def shortfall(it):
            dist = 0; pad = 0; who = None
            for k in window():
                if dist >= 12: break
                n = need(out[k], it) - dist
                if n > pad: pad = n; who = k
                dist += out[k].states
            return pad, who
        for it in self.items:
            if isinstance(it, str):
                out.append(it); continue
            while True:
                pad, who = shortfall(it)
                if pad <= 0: break
                placed = False
                last = None; cnt = 0
                for k in range(who, len(out)):
                    x = out[k]
                    if isinstance(x, str):
                        if x.endswith(":"): last = None
                        continue
                    if x.mfma or x.valu:
                        if last is not None:
                            lo = out[last].op
                            cap = 3 if x.mfma else (2 if lo.startswith("v_smfmac") else 1 if "x32_" in lo else 0)
                            if cnt < cap:
                                n = min(pad, cap - cnt)
                                out.insert(k, Ins(f"s_nop {n-1}")); placed = True; break
                        last = k if x.mfma and x.passes == 4 else None; cnt = 0
                    elif x.op.startswith(("s_barrier", "ds_write")) or "store" in x.op: last = None
                    else: cnt += x.states
                if not placed:
                    out.append(Ins(f"s_nop {pad-1}")); added += pad
            out.append(it)
        self.items = out
        labels = {it[:-1]: i for i, it in enumerate(out) if isinstance(it, str) and it.endswith(":")}
        for i, it in enumerate(out):
            if isinstance(it, Ins) and it.op.startswith(("s_branch", "s_cbranch")):
                tgt = labels[it.ops[0]]
                tail = [x for x in out[max(0, i - 16):i + 1] if isinstance(x, Ins)]
                head = [x for x in out[tgt:tgt + 24] if isinstance(x, Ins)]
                d0 = 0
                for c in head:
                    if d0 >= 12: break
                    dist = d0
                    for p in reversed(tail):
                        if dist >= 12: break
                        if need(p, c) > dist:
                            raise RuntimeError(f"hazard across branch {it.text}: {p.text} -> {c.text}")
                        dist += p.states
                    d0 += c.states
                    if c.op in ("s_branch", "s_endpgm"): break
        return added
    def text(self):
        o = []
        for it in self.items:
            if isinstance(it, str): o.append(it)
            else: o.append("  " + it.text)
        return "\n".join(o) + "\n"

def v(i, n=1): return f"v{i}" if n == 1 else f"v[{i}:{i+n-1}]"
def a(i, n=1): return f"a{i}" if n == 1 else f"a[{i}:{i+n-1}]"
def s(i, n=1): return f"s{i}" if n == 1 else f"s[{i}:{i+n-1}]"
```

```python
from common import *
from worker import stamp, spin_dec, xG

L_ZERO, L_ONES, L_SEL, L_DUMMY, L_F, L_REG, RP = 0, 0x400, 0x800, 0xC00, 0x1000, 0x2000, 0x8C00
O_WQ, O_WO, O_A, O_S = 0, 0x4000, 0x8000, 0x8800
V_IDX, V_MA, V_C, V_FW, V_FR, V_FO, V_PST, V_MST = 0, 1, 2, 3, 4, 5, 6, 7
V_R = [8, 9, 10, 11]
PUB = 12
RA, RE, RV, RQ, RK, ALT = 16, 48, 104, 112, 120, 40
RKX, RVX = 56, 64
S_S, S_RING, S_ROT = 64, 65, 66
S_RDY, S_PW, S_MB, S_KVB, S_MW, S_PUB, S_TAG, S_FKV = 70, 71, 72, 73, 74, 75, 76, 77
S_C, S_THR = 78, 79
S_B1, S_ON, S_HF = 80, 82, 90
S_SENT, S_PR0, S_PR1, S_W2K, S_MR = 84, 85, 86, 87, 88

def WQ(t, ab): return v(RE + 8 * ((2 * t + ab) % 7), 8) if t < 4 else v(128 + 8 * (2 * (t - 4) + ab), 8)
def WK(t, ab): return a(8 * (2 * t + ab), 8)
def WV(t, ab): return a(128 + 8 * (2 * t + ab), 8)
WOS = {(2, 0): 72, (3, 0): 80, (2, 1): 88, (3, 1): 48, (2, 2): 56, (3, 2): 96, (2, 3): 40, (3, 3): 16}
def WO(c, T): return v(192 + 8 * (4 * c + T), 8) if c < 2 else v(WOS[(c, T)], 8)
def SM(d, aa, b): return f"v_smfmac_f32_16x16x64_bf16 {v(d,4)}, {v(aa,4)}, {b}, v{V_IDX}"
def MF(d, aa, b, c): return f"v_mfma_f32_16x16x32_bf16 {v(d,4)}, {v(aa,4)}, {v(b,4)}, {c}"
def MH(d, aa, b, c): return f"v_mfma_f32_16x16x16_bf16 {v(d,4)}, {v(aa,2)}, {v(b,2)}, {c}"
DPP = lambda p: f"quad_perm:[{p}] row_mask:0xf bank_mask:0xf"

def chain_init(A, cfg):
    L, L16 = 20, 21
    vm = VM(A)
    A(f"""
    CHAIN:
    v_mov_b32 v{L}, v1
    v_mov_b32 v{L16}, v2
    s_mul_i32 s{S_RING}, s{S_W}, {RP}
    s_add_u32 s{S_RING}, s{S_RING}, {L_REG}
    s_lshl_b32 s{S_W2K}, s{S_W}, 11
    """)
    for i in range(4):
        A(f"s_add_u32 s{S_T0}, s{S_W}, {i}\ns_and_b32 s{S_ROT+i}, s{S_T0}, 3")
    A(f"""
    v_lshrrev_b32 v22, 4, v{L}
    v_bfe_u32 v23, v{L}, 2, 1
    v_lshlrev_b32 v{V_MST}, 8, v23
    v_bfe_u32 v23, v{L}, 1, 1
    v_lshl_add_u32 v{V_MST}, v23, 5, v{V_MST}
    v_and_b32 v23, 1, v{L}
    v_lshl_add_u32 v{V_MST}, v23, 3, v{V_MST}
    v_and_b32 v23, 1, v22
    v_lshl_add_u32 v{V_MST}, v23, 4, v{V_MST}
    v_lshrrev_b32 v24, 5, v{L}
    v_lshl_add_u32 v{V_MST}, v24, 2, v{V_MST}
    v_lshlrev_b32 v25, 10, v23
    v_lshl_add_u32 v25, v24, 2, v25
    v_and_b32 v24, 7, v{L}
    v_lshl_add_u32 v25, v24, 4, v25
    s_lshr_b32 s{S_T0}, s{S_H}, 3            ; w'
    s_bfe_u32 s{S_T1}, s{S_H}, 0x20001       ; G'
    s_and_b32 s{S_T2}, s{S_H}, 1             ; nh
    s_and_b32 s{S_T3}, s{S_W}, 1             ; sig
    s_lshl_b32 s{S_PW}, s{S_T0}, 11
    s_lshl_b32 s{S_MB}, s{S_T3}, 10
    s_add_u32 s{S_PW}, s{S_PW}, s{S_MB}
    s_lshl_b32 s{S_MB}, s{S_T2}, 9
    s_add_u32 s{S_PW}, s{S_PW}, s{S_MB}
    s_lshl_b32 s{S_MB}, s{S_T1}, 6
    s_add_u32 s{S_PW}, s{S_PW}, s{S_MB}
    v_add_u32 v{V_MST}, s{S_PW}, v{V_MST}
    s_lshl_b32 s{S_T1}, s{S_T1}, 11
    s_lshl_b32 s{S_PW}, s{S_T0}, 8
    s_add_u32 s{S_T1}, s{S_T1}, s{S_PW}
    s_lshl_b32 s{S_T2}, s{S_T2}, 7
    s_add_u32 s{S_T1}, s{S_T1}, s{S_T2}
    s_lshl_b32 s{S_T3}, s{S_T3}, 3
    s_add_u32 s{S_T1}, s{S_T1}, s{S_T3}
    """)
    m0l = vm.issue(f"buffer_load_dword v28, v25, {srd(R_M0)}, s{S_T1} offen")
    A(f"""
    v_lshrrev_b32 v23, 3, v{L}
    v_lshlrev_b32 v{V_PST}, 13, v23
    v_lshl_add_u32 v{V_PST}, v24, 4, v{V_PST}
    s_lshl_b32 s{S_T0}, s{S_T0}, 11
    s_and_b32 s{S_T1}, s{S_H}, 7
    s_lshl_b32 s{S_T1}, s{S_T1}, 7
    s_add_u32 s{S_T0}, s{S_T0}, s{S_T1}
    s_lshl_b32 s{S_T1}, s{S_W}, 16
    s_add_u32 s{S_T0}, s{S_T0}, s{S_T1}
    v_add_u32 v{V_PST}, s{S_T0}, v{V_PST}
    v_mov_b32 v24, -1
    v_mov_b32 v25, -1
    v_mov_b32 v26, -1
    v_mov_b32 v27, -1
    s_mov_b32 s{S_PW}, {WS_P}
    """)
    vm.issue(f"buffer_store_dwordx4 v[24:27], v{V_PST}, {srd(R_WS)}, s{S_PW} offen sc1")
    vm.issue(f"buffer_store_dwordx4 v[24:27], v{V_PST}, {srd(R_WS)}, s{S_PW} offen offset:1024 sc1")
    for i in range(1, 4):
        A(f"s_mov_b32 s{S_T0}, {WS_M + i*8192}")
        vm.issue(f"buffer_store_dword v24, v{V_MST}, {srd(R_WS)}, s{S_T0} offen sc1")
    A(f"""
    v_and_b32 v23, 15, v{L}
    v_lshlrev_b32 v30, 12, v22
    v_lshl_add_u32 v30, v23, 4, v30
    s_lshl_b32 s{S_T0}, s{S_H}, 17
    s_lshl_b32 s{S_T1}, s{S_W}, 8
    s_add_u32 s{S_T0}, s{S_T0}, s{S_T1}
    v_add_u32 v30, s{S_T0}, v30
    """)
    def wo_raw(cs):
        for ci, c in enumerate(cs):
            A(f"s_lshl_b32 s{S_T0}, s{S_ROT+c}, 15\ns_add_u32 s{S_T1}, s{S_T0}, 16384")
            for i in range(8):
                r = RE + 32 * ci + 4 * i
                k = vm.issue(f"buffer_load_dwordx4 {v(r,4)}, v30, {srd(R_WO)}, s{S_T0 if i < 4 else S_T1} offen offset:{(i&3)*1024}")
        return k
    wo1 = wo_raw([0, 1])
    A(f"""
    v_lshrrev_b32 v23, 2, v{L}               ; rho'
    v_and_b32 v31, 1, v23
    v_lshlrev_b32 v31, 4, v31
    v_bfe_u32 v32, v23, 1, 2
    v_add_u32 v31, v31, v32
    v_lshrrev_b32 v32, 5, v{L}
    v_lshl_add_u32 v31, v32, 3, v31
    v_and_b32 v32, 3, v{L}
    v_lshlrev_b32 v31, 13, v31
    v_lshl_add_u32 v31, v32, 4, v31
    s_lshl_b32 s{S_T0}, s{S_H}, 8
    s_lshl_b32 s{S_T1}, s{S_W}, 6
    s_add_u32 s{S_T0}, s{S_T0}, s{S_T1}
    v_add_u32 v31, s{S_T0}, v31
    """)
    for i in range(4):
        A(f"s_lshl_b32 s{S_T0}, s{S_ROT+i}, 20\nv_add_u32 v{16+i}, s{S_T0}, v31")
    A(f"""
    v_and_b32 v23, 3, v23
    v_lshlrev_b32 v31, 9, v22
    v_lshl_add_u32 v31, v23, 6, v31
    v_lshl_add_u32 v31, v32, 4, v31
    v_add_u32 v31, s{S_RING}, v31
    """)
    groups = [(R, t) for R in (R_WK, R_WV, R_WQ) for t in range(8)]
    gid = {}
    def g_issue(gi):
        R, t = groups[gi]
        for sg in range(4):
            A(f"s_add_u32 m0, s{S_RING}, {((gi % 8) * 4 + sg) * 1024}")
            A(f"s_mov_b32 s{S_T0}, {(4 * (t & 1) + 32 * sg) * 8192}")
            gid[gi] = vm.issue(f"buffer_load_dwordx4 v{16 + (t >> 1)}, {srd(R)}, s{S_T0} offen lds")
    def g_read(gi):
        R, t = groups[gi]
        regf = {R_WK: WK, R_WV: WV, R_WQ: lambda t, ab: WQ(t | 4, ab)}[R]
        vm.wait(gid[gi])
        for ab in range(2):
            kind, r0 = regs_of(regf(t, ab))[0]
            for m in range(4):
                A(f"ds_read_b64_tr_b16 {kind}[{r0+2*m}:{r0+2*m+1}], v31 offset:{(gi % 8) * 4096 + (32*(m>>1) + 4*(m&1))*64 + ab*8}")
    for gi in range(8): g_issue(gi)
    vm.wait(m0l)
    A(f"""
    v_min_u32 v28, -2, v28
    s_mov_b32 s{S_T0}, {WS_M}
    """)
    m0s = vm.issue(f"buffer_store_dword v28, v{V_MST}, {srd(R_WS)}, s{S_T0} offen sc1")
    lane_ma(A, V_MA, L, 23)
    A(f"""
    v_and_b32 v23, 2, v{L}
    v_cmp_eq_u32 vcc, 0, v23
    v_mov_b32 v23, 0xdddddddd
    v_mov_b32 v33, 0x88888888
    v_cndmask_b32 v{V_IDX}, v23, v33, vcc
    v_bfe_u32 v23, v{L}, 2, 2
    v_xor_b32 v23, v23, v22
    v_and_b32 v33, 15, v{L}
    v_lshlrev_b32 v33, 5, v33
    v_lshl_add_u32 v33, v23, 3, v33
    s_lshl_b32 s{S_T0}, s{S_W}, 10
    s_add_u32 s{S_T0}, s{S_T0}, {L_F}
    v_add_u32 v{V_FW}, s{S_T0}, v33
    v_xor_b32 v33, v{L}, v22
    v_lshlrev_b32 v33, 3, v33
    v_add_u32 v{V_FO}, s{S_T0}, v33
    v_add_u32 v{V_FR}, {L_F}, v33
    s_mov_b32 s{S_C}, {f2u(128**-0.5 * 1.4426950408889634)}
    v_mov_b32 v{V_C}, s{S_C}
    s_mov_b32 s{S_THR}, {f2u(2.0 ** cfg.get("thr", 32))}
    s_mov_b32 s{S_B1}, 0xcccccccc
    s_mov_b32 s{S_B1+1}, 0xcccccccc
    s_mov_b32 s{S_ON}, 0x3f803f80
    s_mov_b32 s{S_ON+1}, 0x3f803f80
    s_mov_b32 s{S_HF}, 0
    s_mov_b32 s{S_HF+1}, 0x3f003f00
    s_mov_b32 s{S_RDY}, 0
    s_mov_b32 s{S_S}, 0
    s_mov_b32 s{S_TAG}, 0
    s_lshl_b32 s{S_T0}, s{S_H}, 13
    s_and_b32 s{S_T1}, s{S_W}, 1
    s_lshl_b32 s{S_T1}, s{S_T1}, 10
    s_add_u32 s{S_T1}, s{S_T1}, s{S_T0}
    s_add_u32 s{S_PR0}, s{S_T1}, {WS_P}
    s_add_u32 s{S_PR1}, s{S_PR0}, 4096
    s_add_u32 s{S_T1}, s{S_T0}, s{S_W2K}       ; h*8K + w*2K
    s_lshl_b32 s{S_KVB}, s{S_T1}, 1
    s_add_u32 s{S_KVB}, s{S_KVB}, {WS_KV}
    s_lshr_b32 s{S_PUB}, s{S_T1}, 1
    s_add_u32 s{S_PUB}, s{S_PUB}, {WS_KVM - 131072}
    s_add_u32 s{S_MB}, s{S_W2K}, {WS_M}
    s_lshl_b32 s{S_FKV}, s{S_H}, 7
    s_add_u32 s{S_FKV}, s{S_FKV}, {FL_KV}
    """)
    for i in range(4):
        A(f"s_mul_i32 s{S_T0}, s{S_ROT+i}, {RP}\ns_add_u32 s{S_T0}, s{S_T0}, {L_REG}\nv_add_u32 v{V_R[i]}, s{S_T0}, v{L16}")
    A(f"""
    v_mov_b32 v36, 0
    v_mov_b32 v{PUB}, 0
    v_mov_b32 v{PUB+1}, 0
    v_mov_b32 v{PUB+2}, 0
    v_mov_b32 v{PUB+3}, 0
    ds_write2_b32 v{V_FW}, v36, v36 offset0:0 offset1:128
    v_lshlrev_b32 v23, 2, v{L}
    v_and_b32 v23, 16, v23
    v_mov_b32 v33, 0x3f80
    v_lshlrev_b32 v33, v23, v33
    v_bfe_u32 v23, v{L}, 3, 1
    v_and_b32 v34, 1, v{L}
    v_lshl_add_u32 v23, v23, 1, v34
    """)
    for i in range(4):
        A(f"v_cmp_eq_u32 vcc, {i}, v23\nv_cndmask_b32 v{44+i}, 0, v33, vcc")
    A(f"ds_write_b128 v{V_MA}, v[44:47] offset:{L_SEL}")
    vm.wait(wo1)
    for c in range(2):
        for T in range(4):
            for i in range(8):
                A(f"v_mov_b32 v{192 + 8*(4*c+T) + i}, v{RE + 32*c + 4*i + T}")
    wo2 = wo_raw([2, 3])
    stamp(A, cfg, 1); vm.n += bool(cfg.get("prof"))
    for gi in range(16):
        g_read(gi)
        A("s_waitcnt lgkmcnt(0)")
        g_issue(gi + 8)
        if gi == 8:
            assert vm.known >= m0s
            A(f"""
            s_and_b32 s{S_T0}, s{S_XCC}, 3
            s_lshl_b32 s{S_T0}, s{S_T0}, 3
            s_lshl_b32 s{S_T0}, 1, s{S_T0}
            s_and_b32 s{S_T1}, s{S_XCC}, 4
            v_mov_b32 v23, s{S_T0}
            s_mov_b64 exec, 1
            """)
            vm.issue(f"buffer_atomic_add v23, off, {srd(R_DBG)}, s{S_T1} offset:{D_HIST}")
            A("s_mov_b64 exec, -1")
    for gi in range(16, 20): g_read(gi)
    A("s_waitcnt lgkmcnt(0)")
    for f in range(16):
        A(f"ds_write_b128 v{V_R[0]}, {v(128 + 4*f, 4)} offset:{O_WQ + f*1024}")
    for gi in range(20, 24): g_read(gi)
    A("s_waitcnt lgkmcnt(0)")
    for fi, (c, T) in enumerate(WOS):
        for i in range(8):
            A(f"v_mov_b32 v{32 + 8*(fi&1) + i}, v{RE + 32*(c-2) + 4*i + T}")
        A(f"ds_write_b128 v{V_R[0]}, {v(32 + 8*(fi&1), 4)} offset:{O_WO + fi*2048}")
        A(f"ds_write_b128 v{V_R[0]}, {v(36 + 8*(fi&1), 4)} offset:{O_WO + fi*2048+1024}")
    wq_prefetch(A)
    for i in range(12): A(f"v_mov_b64 {v(RV+2*i,2)}, 0")
    stamp(A, cfg, 2)
    A(f"""
    s_mov_b32 m0, {L_DUMMY}
    C_W0:
    buffer_load_dwordx2 v[24:25], off, {srd(R_DBG)}, 0 offset:{D_HIST} sc1
    buffer_load_dwordx4 v[28:31], off, {srd(R_DBG)}, 0 offset:{D_ARR} sc1
    buffer_load_dwordx4 v[32:35], off, {srd(R_DBG)}, 0 offset:{D_ARR+16} sc1
    """)
    spin_dec(A)
    A(f"""
    s_waitcnt vmcnt(0)
    v_sad_u8 v26, v24, 0, 0
    v_sad_u8 v26, v25, 0, v26
    v_lshrrev_b32 v26, 2, v26
    v_min3_u32 v26, v26, v29, v30
    v_min3_u32 v26, v26, v31, v32
    v_min3_u32 v26, v26, v33, v34
    v_min_u32 v26, v26, v35
    v_readfirstlane_b32 s{S_T0}, v26
    s_cmp_lt_u32 s{S_T0}, 32
    s_cbranch_scc1 C_W0
    v_or_b32 v24, v24, v25
    v_and_b32 v24, 0x80808080, v24
    v_readfirstlane_b32 s{S_SENT}, v24
    """)

def kv_ready(A, s_target, tag):
    A(f"""
    s_cmp_gt_u32 s{S_RDY}, s{s_target}
    s_cbranch_scc1 RDY_OK{tag}
    RDY_P{tag}:
    buffer_load_dwordx4 v[24:27], off, {srd(R_WS)}, s{S_FKV} sc1
    buffer_load_dwordx4 v[28:31], off, {srd(R_WS)}, s{S_FKV} offset:16 sc1
    """)
    spin_dec(A)
    A("s_waitcnt vmcnt(0)")
    for g in range(7):
        A(f"v_mad_u32_u24 v{25+g}, v{25+g}, 7, {g}")
    A(f"""
    v_min3_u32 v24, v25, v26, v27
    v_min3_u32 v24, v24, v28, v29
    v_min3_u32 v24, v24, v30, v31
    s_nop 0
    v_readfirstlane_b32 s{S_RDY}, v24
    s_cmp_gt_u32 s{S_RDY}, s{s_target}
    s_cbranch_scc0 RDY_P{tag}
    RDY_OK{tag}:
    """)

def wq_prefetch(A):
    for f in range(14):
        A(f"ds_read_b128 {v(RE + 4*f, 4)}, v{V_R[0]} offset:{O_WQ + f*1024}")

def fold(A, acc, d0, d1):
    A(f"v_pk_add_f32 {v(acc,2)}, {v(acc,2)}, {v(acc+2,2)}")
    A(f"v_pk_add_f32 {v(acc+4,2)}, {v(acc+4,2)}, {v(acc+6,2)}")
    A(f"v_cvt_pk_bf16_f32 v{d0}, v{acc}, v{acc+1}")
    A(f"v_cvt_pk_bf16_f32 v{d1}, v{acc+4}, v{acc+5}")

def delay(A, n):
    while n > 0:
        A(f"s_nop {min(n,16)-1}"); n -= min(n, 16)

def chain_loop(A, cfg, tag, sc):
    fine = cfg.get("prof", 0) >= 2
    P = lambda i: A(f"s_memtime s[{4+2*i}:{5+2*i}]") if fine and (cfg.get("pm", -1) >> i) & 1 else None
    def sl(*ins):
        for x in ins: A(x)
    fr = lambda t, R=RA: R + 4 * t
    q = lambda t, ab, R=RA: SM(RQ + 4*ab, fr(t, R), WQ(t, ab))
    k = lambda t, ab, R=RA: SM(RK + 4*ab, fr(t, R), WK(t, ab))
    vv = lambda t, ab, R=RA: SM(RV + 4*ab, fr(t, R), WV(t, ab))
    rd = lambda t: f"ds_read_b128 {v(fr(t),4)}, v{V_R[t>>1]} offset:{O_A + (t&1)*1024}"
    def wo(c, T, hf):
        fi = list(WOS).index((c, T))
        return f"ds_read_b128 {v(WOS[(c, T)] + 4*hf, 4)}, v{V_R[0]} offset:{O_WO + fi*2048 + hf*1024}"
    add = lambda acc, i: f"v_add_f32 v{acc+i}, v{acc+i}, v{acc+2+i}"
    cvt = lambda d, s_: f"v_cvt_pk_bf16_f32 v{d}, v{s_}, v{s_+1}"
    z = lambda r: f"v_mov_b64 {v(r,2)}, 0"
    lg = lambda n: f"s_waitcnt lgkmcnt({n})"
    def m_loads(R):
        A(f"buffer_load_dwordx4 {v(R,4)}, v{V_MA}, {srd(R_WS)}, s{S_MB} offen sc1")
        A(f"buffer_load_dwordx4 {v(R+4,4)}, v{V_MA}, {srd(R_WS)}, s{S_MB} offen offset:1024 sc1")
    kvl = lambda i: f"buffer_load_dwordx4 {v(RKX+4*i,4)}, v{V_MA}, {srd(R_WS)}, s{S_KVB} offen offset:{i*1024} sc1"
    def ph1(R, fail):
        A("s_waitcnt vmcnt(2) lgkmcnt(0)")
        P(1)
        sl(q(0, 0, R), f"ds_write_b128 v{V_R[0]}, {v(R,4)} offset:{O_A}", f"v_max3_u32 v25, v{R}, v{R+1}, v{R+2}")
        sl(q(0, 1, R), f"ds_write_b128 v{V_R[0]}, {v(R+4,4)} offset:{O_A+1024}", f"v_max3_u32 v25, v25, v{R+3}, v{R+4}")
        sl(q(1, 0, R), f"v_max3_u32 v25, v25, v{R+5}, v{R+6}")
        sl(q(1, 1, R), f"v_max_u32 v25, v25, v{R+7}")
        sl(k(0, 0, R), f"v_cmp_eq_u32 vcc, -1, v25")
        sl(k(0, 1, R))
        sl(k(1, 0, R), f"s_cbranch_vccnz {fail}",
           f"ds_read_b128 {v(RE,4)}, v{V_R[0]} offset:{O_WQ + 14*1024}", f"ds_read_b128 {v(RE+4,4)}, v{V_R[0]} offset:{O_WQ + 15*1024}")
        sl(k(1, 1, R), lg(2)); P(2); A("s_barrier"); P(3)
        sl(rd(2), rd(3))
        sl(vv(0, 0, R), rd(4), rd(5), kvl(0))
        sl(vv(0, 1, R), kvl(1), kvl(2), kvl(3))
        sl(vv(1, 0, R), f"s_add_u32 s{S_KVB}, s{S_KVB}, 0x80000", f"s_mov_b64 vcc, s[{S_B1}:{S_B1+1}]",
           f"buffer_store_dwordx4 {v(PUB,4)}, v{V_MA}, {srd(R_WS)}, s{S_PUB} offen sc1")
        sl(vv(1, 1, R))
    A(f"LOOP{tag}:")
    nz = cfg.get("nz", 8)
    delay(A, cfg.get("dm0", 0))
    for i in range(nz): A(z(RQ + 2*i))
    m_loads(RA)
    if fine:
        P(18)
        A(f"s_cmp_eq_u32 s{S_S}, {cfg.get('pstep', 41)}\ns_cbranch_scc0 NODUMP{tag}\ns_waitcnt lgkmcnt(0)")
        for i in range(19): A(f"v_writelane_b32 v26, s{4+2*i}, {i}")
        A(f"v_lshrrev_b32 v27, 2, v{V_MA}\nbuffer_store_dword v26, v27, {srd(R_WS)}, s{S_PROF} offen offset:512\ns_waitcnt vmcnt(0)\nNODUMP{tag}:")
        P(0)
    delay(A, cfg.get("dm1", 16))
    m_loads(ALT)
    A(f"PA{tag}:")
    ph1(RA, f"FA{tag}")
    A(f"JQ{tag}:")
    TCH = 72
    sl(f"s_cmp_eq_u32 s{S_S}, 63", lg(3))
    sl(q(2, 0), "s_waitcnt vmcnt(5)", rd(6), rd(7))
    sl(q(2, 1), "s_cbranch_scc1 C_LAST", lg(4), f"v_lshlrev_b32 v{TCH}, 2, v{V_MA}")
    sl(q(3, 0), f"buffer_load_dword v{TCH}, {srd(R_WS)}, s{S_KVB} offen sc1 lds", wo(3, 0, 0), wo(3, 0, 1))
    sl(q(3, 1), f"s_add_u32 s{S_PUB}, s{S_PUB}, 0x20000", lg(5))
    sl(q(4, 0), lg(4))
    sl(q(5, 0), lg(3))
    sl(q(6, 0), lg(2))
    sl(q(7, 0), wo(2, 0, 0), wo(2, 0, 1))
    sl(q(4, 1), wo(2, 1, 0), wo(2, 1, 1))
    sl(q(5, 1), add(RQ, 0))
    sl(q(6, 1), add(RQ, 1))
    sl(q(7, 1), cvt(52, RQ))
    P(4)
    BP, ON, SX, X = 16, 20, 96, 100
    sl(k(2, 0), f"v_mov_b64 {v(ON,2)}, s[{S_ON}:{S_ON+1}]")
    sl(k(3, 0), add(RQ + 4, 0), add(RQ + 4, 1), cvt(53, RQ + 4),
       f"ds_write2_b32 v{V_FW}, v52, v53 offset0:1 offset1:129")
    sl(k(4, 0), f"ds_read_b64_tr_b16 v[48:49], v{V_FO}", f"ds_read_b64_tr_b16 v[50:51], v{V_FO} offset:512", z(RQ))
    sl(k(5, 0), z(RQ + 2))
    sl(k(6, 0), z(RQ + 4))
    sl(k(7, 0), z(RQ + 6))
    sl(k(2, 1), f"v_mov_b64 {v(ON+2,2)}, s[{S_HF}:{S_HF+1}]")
    sl(k(3, 1), "s_waitcnt vmcnt(4) lgkmcnt(0)", add(RK, 0))
    P(5)
    sl(MF(SX, RKX, 48, 0), add(RK, 1), cvt(PUB, RK))
    sl(MF(SX + 4, RKX + 4, 48, 0), z(RK), z(RK + 2))
    sl(k(4, 1), f"v_mov_b32 v{BP+2}, 0")
    mg = lambda r: f"v_cndmask_b32_dpp v{SX+r}, v{SX+r}, v{SX+4+r}, vcc {DPP('2,3,2,3')}"
    sl(k(5, 1), mg(0))
    sl(k(6, 1), mg(1))
    sl(k(7, 1), mg(2))
    sl(vv(2, 0), mg(3), f"ds_write_b128 v{V_R[0]}, {v(SX,4)} offset:{O_S}")
    sl(vv(3, 0), add(RK + 4, 0), add(RK + 4, 1), cvt(PUB + 2, RK + 4),
       f"ds_write2_b32 v{V_FW}, v{PUB}, v{PUB+2} offset0:0 offset1:128")
    P(6)
    for r in range(3): sl(vv(4 + r, 0), f"v_mul_f32 v{X+r}, s{S_C}, v{SX+r}")
    sl(f"v_mul_f32 v{X+3}, s{S_C}, v{SX+3}", vv(7, 0))
    sl(lg(0), "s_barrier"); P(7)
    SR = [None, 96, 124, 24]
    rs = lambda c: f"ds_read_b128 {v(SR[c],4)}, v{V_R[c]} offset:{O_S}"
    rf = lambda c: (f"ds_read_b64_tr_b16 v[{48+4*c}:{49+4*c}], v{V_FR} offset:{c*1024}\n"
                    f"ds_read_b64_tr_b16 v[{50+4*c}:{51+4*c}], v{V_FR} offset:{c*1024+512}")
    fm = lambda c, r: f"v_fmac_f32 v{X+r}, s{S_C}, v{SR[c]+r}"
    SA, LL, EX, PX, OP, O0, O1 = 28, 24, 96, 32, 36, 40, 44
    sl(rs(1), rs(2))
    sl(vv(2, 1), rs(3), rf(0))
    sl(vv(3, 1), rf(1), add(RV, 0))
    sl(vv(4, 1), rf(2), add(RV, 1))
    sl(vv(5, 1), rf(3), cvt(PUB + 1, RV))
    sl(vv(6, 1), lg(10), fm(1, 0))
    sl(vv(7, 1), fm(1, 1), fm(1, 2), fm(1, 3), lg(6))
    P(8)
    sl(MF(SA, 48, 48, 0), lg(4), fm(2, 0), fm(2, 1))
    sl(MF(SA, 52, 52, v(SA, 4)), lg(2), fm(2, 2), fm(2, 3))
    sl(MF(SA, 56, 56, v(SA, 4)), lg(0), fm(3, 0), fm(3, 1))
    sl(MF(SA, 60, 60, v(SA, 4)), wo(3, 1, 0), fm(3, 2), fm(3, 3))
    P(9)
    ex = lambda d, s_: f"v_exp_f32 v{d}, v{s_}"
    px = lambda i: f"v_mov_b32_dpp v{PX+i}, v{BP+(i&1)} {DPP('0,1,0,1' if i < 2 else '2,3,2,3')}"
    sl(ex(EX, X), ex(EX + 1, X + 1), ex(EX + 2, X + 2), ex(EX + 3, X + 3), "s_waitcnt vmcnt(2)")
    sl(f"v_mul_f32_dpp v{SA+2}, v{SA}, v{V_C} {DPP('2,3,2,3')}", f"v_mul_f32_dpp v{SA+3}, v{SA+1}, v{V_C} {DPP('2,3,2,3')}")
    def pv(fast):
        o = (lambda *x: x) if fast else (lambda *x: ())
        sl(ex(SA, SA + 2), ex(SA + 1, SA + 3), cvt(BP, EX), cvt(BP + 3, SA), cvt(BP + 1, EX + 2), px(0))
        if fast: P(10)
        sl(MH(O0, PUB, BP + 2, 0), px(2), px(1), px(3))
        sl(MF(LL, ON, BP, 0), *o(wo(3, 1, 1), add(RV + 4, 0), add(RV + 4, 1)))
        sl(MF(O1, RVX + 4, PX, 0), *o(wo(2, 2, 0), cvt(PUB + 3, RV + 4), z(RK + 4)))
        sl(MF(O0, RVX, PX, v(O0, 4)), *o(wo(2, 2, 1)), f"v_add_f32_dpp v{LL+1}, v{LL}, v{LL} {DPP('2,3,0,1')}", f"v_rcp_f32 v{LL+2}, v{LL+1}")
        sl(MH(O1, PUB + 2, BP + 2, v(O1, 4)), *o(z(RK + 6)))
        sl(*o(f"v_max_f32 v{LL}, v{LL+1}, v{LL+2}", f"v_cmp_lt_f32 vcc, s{S_THR}, v{LL}"))
        if cfg.get("pk0", 1):
            for i in range(2): A(f"v_pk_mul_f32 {v(O0+2*i,2)}, {v(O0+2*i,2)}, {v(LL+2,2)} op_sel_hi:[1,0]")
        else:
            for i in range(4): A(f"v_mul_f32 v{O0+i}, v{O0+i}, v{LL+2}")
        sl(cvt(OP, O0), cvt(OP + 1, O0 + 2))
        if fast: P(11)
        for i in range(2): A(f"v_pk_mul_f32 {v(O1+2*i,2)}, {v(O1+2*i,2)}, {v(LL+2,2)} op_sel_hi:[1,0]")
        sl(cvt(OP + 2, O1), cvt(OP + 3, O1 + 2), f"ds_write_b128 v{V_R[0]}, {v(OP,4)} offset:{O_A}")
    pv(True)
    A(f"s_cbranch_vccnz FBK{tag}\nFRET{tag}:")
    OF = [OP, 64, 68, 32]
    so = lambda c, T: SM(RQ + 4*T, OF[c], WO(c, T))
    sl(so(0, 0), f"s_add_u32 s{S_S}, s{S_S}, 1", f"s_and_b32 s{S_T0}, s{S_S}, 3", f"s_lshl_b32 s{S_T0}, s{S_T0}, 13")
    sl(so(0, 1), f"s_add_u32 s{S_MW}, s{S_T0}, {WS_M}", f"s_add_u32 s{S_MB}, s{S_MW}, s{S_W2K}", f"s_xor_b32 s{S_MR}, s{S_MW}, 0x4000")
    sl(so(0, 2), f"s_cmp_lt_u32 s{S_W}, 2")
    sl(so(0, 3), lg(0)); P(12); A("s_barrier"); P(13)
    for c in range(1, 4): A(f"ds_read_b128 {v(OF[c],4)}, v{V_R[c]} offset:{O_A}")
    sl(z(RV), wo(3, 2, 0), wo(3, 2, 1), z(RV + 2), wo(2, 3, 0), wo(2, 3, 1), z(RV + 4), wo(3, 3, 0), wo(3, 3, 1), z(RV + 6),
       f"v_min_u32 v{PUB}, -2, v{PUB}", lg(8))
    PK = 24
    pk = lambda i: cvt(PK + i, RQ + 2*i)
    tg = lambda sg: f"v_and_or_b32 v{PK+4*sg}, v{PK+4*sg}, -2, s{S_TAG}"
    ps = lambda sg: f"buffer_store_dwordx4 {v(PK+4*sg,4)}, v{V_PST}, {srd(R_WS)}, s{S_PW} offen offset:{sg*1024} {sc}"
    sl(so(1, 0), lg(7))
    sl(so(2, 0), lg(6))
    sl(so(3, 0))
    sl(so(1, 1))
    sl(so(2, 1), pk(0))
    sl(so(3, 1), tg(0))
    sl(so(1, 2), pk(1))
    sl(so(2, 2), lg(4), pk(2), pk(3), ps(0))
    P(14)
    sl(so(3, 2))
    sl(so(1, 3), lg(2))
    sl(so(2, 3), lg(0), pk(4))
    sl(so(3, 3), tg(1), pk(5))
    A(f"ds_read_b128 {v(16,4)}, v{V_MA} offset:{L_SEL}")
    A(f"v_mov_b32 v42, -1")
    sl(pk(6), pk(7), ps(1))
    P(15)
    wq_prefetch(A)
    for i in range(nz, 8): A(z(RQ + 2*i))
    A(f"""
    s_cbranch_scc1 RED{tag}
    buffer_store_dword v42, v{V_MST}, {srd(R_WS)}, s{S_MR} offen {sc}
    s_cmp_eq_u32 s{S_W}, 3
    s_cbranch_scc0 JOIN{tag}
    s_add_u32 s{S_T3}, s{S_S}, 1
    s_min_u32 s{S_T3}, s{S_T3}, 63
    """)
    kv_ready(A, S_T3, tag)
    A(f"""
    JOIN{tag}:
    s_xor_b32 s{S_TAG}, s{S_TAG}, 1
    s_waitcnt lgkmcnt(0)
    s_barrier
    s_branch LOOP{tag}
    """)
    A(f"FA{tag}:")
    m_loads(RA); spin_dec(A)
    A("s_nop 3")
    for i in range(8): A(z(RQ + 2*i))
    ph1(ALT, f"FB{tag}")
    A(f"s_branch JQ{tag}\nFB{tag}:")
    m_loads(ALT); spin_dec(A)
    A("s_nop 3")
    for i in range(8): A(z(RQ + 2*i))
    A(f"s_branch PA{tag}")
    A(f"""
    FBK{tag}:
    v_max3_f32 v{LL}, v{X}, v{X+1}, v{X+2}
    v_max3_f32 v{LL}, v{LL}, v{X+3}, v{SA+2}
    v_max_f32 v{LL}, v{LL}, v{SA+3}
    v_max_f32_dpp v{LL}, v{LL}, v{LL} {DPP('2,3,0,1')}
    """)
    xG(A, LL, LL + 1, "v_max_f32")
    for r in (X, X + 1, X + 2, X + 3, SA + 2, SA + 3): A(f"v_sub_f32 v{r}, v{r}, v{LL}")
    for i in range(4): A(ex(EX + i, X + i))
    pv(False)
    A(f"s_branch FRET{tag}")
    PB, PA = 24, 20
    A(f"""
    RED{tag}:
    s_cmp_eq_u32 s{S_W}, 0
    s_waitcnt lgkmcnt(14)
    """)
    if cfg.get("dp0", -1) >= 0:
        delay(A, cfg["dp0"])
        A(f"s_cbranch_scc1 PP{tag}")
        delay(A, cfg.get("dp1", 0))
    else:
        A(f"""
        s_waitcnt vmcnt(1)
        s_cbranch_scc1 PP{tag}
        s_waitcnt vmcnt(0)
        """)
    A(f"PP{tag}:")
    for i in range(4):
        A(f"buffer_load_dwordx4 {v(PB+4*i,4)}, v{V_MA}, {srd(R_WS)}, s{S_PR0 if i < 2 else S_PR1} offen offset:{(i&1)*2048} sc1")
    P(16)
    spin_dec(A)
    for i in range(4):
        A(f"s_waitcnt vmcnt({3-i})")
        A(MF(PA, 16, PB + 4*i, "0" if i == 0 else v(PA, 4)))
        if i == 1: A(f"v_bitop3_b32 v40, v{PB}, v{PB+4}, s{S_TAG} bitop3:0x7e")
    A(f"""
    v_bitop3_b32 v41, v{PB+8}, v{PB+12}, s{S_TAG} bitop3:0x7e
    v_bitop3_b32 v40, v40, 1, v41 bitop3:0xc8
    v_cmp_ne_u32 vcc, 0, v40
    v_add_f32_dpp v{PA}, v{PA}, v{PA} row_ror:8 row_mask:0xf bank_mask:0xf
    v_add_f32_dpp v{PA+1}, v{PA+1}, v{PA+1} row_ror:8 row_mask:0xf bank_mask:0xf
    v_cvt_pk_bf16_f32 v32, v{PA}, v{PA+1}
    v_min_u32 v32, -2, v32
    s_cbranch_vccnz PP{tag}
    buffer_store_dword v32, v{V_MST}, {srd(R_WS)}, s{S_MW} offen {sc}
    s_barrier
    s_xor_b32 s{S_TAG}, s{S_TAG}, 1
    """)
    P(17)
    if cfg.get("prof"):
        A(f"""
        s_memtime s[{S_TS}:{S_TS+1}]
        s_lshl_b32 s{S_T0}, s{S_S}, 2
        s_add_u32 s{S_T0}, s{S_T0}, s{S_PROF}
        s_waitcnt lgkmcnt(0)
        v_mov_b32 v33, s{S_TS}
        s_mov_b64 exec, 1
        buffer_store_dword v33, off, {srd(R_WS)}, s{S_T0} offset:64
        s_mov_b64 exec, -1
        """)
    A(f"s_branch LOOP{tag}")

def chain(A, cfg):
    cfg["vt"] = 23
    chain_init(A, cfg)
    A(f"s_mov_b32 s{S_T3}, 1")
    kv_ready(A, S_T3, "I")
    stamp(A, cfg, 3)
    A(f"s_waitcnt lgkmcnt(0)\ns_barrier\ns_cmp_eq_u32 s{S_SENT}, 0\ns_cbranch_scc1 LOOPS")
    chain_loop(A, cfg, "F", "")
    chain_loop(A, cfg, "S", "sc1")
    A("C_LAST:")
    A(f"s_add_u32 s{S_PUB}, s{S_PUB}, 0x20000")
    A("s_waitcnt lgkmcnt(0)")
    for t in range(2, 8):
        for ab in range(2): A(SM(RV + 4*ab, RA + 4*t, WV(t, ab)))
    for t in range(2, 8):
        for ab in range(2): A(SM(RK + 4*ab, RA + 4*t, WK(t, ab)))
    fold(A, RV, 73, 75)
    fold(A, RK, 72, 74)
    A(f"v_min_u32 v72, -2, v72")
    A(f"buffer_store_dwordx4 v[72:75], v{V_MA}, {srd(R_WS)}, s{S_PUB} offen sc1")
    cfg["vt"] = 76
    stamp(A, cfg, 4)
    A("s_waitcnt vmcnt(0)")
```

```python
from asm import *
KNAME = "recurrent_scan__memory_aug_recurrent_mem_tr__glu_gated_geglu__prompt_kernel"
MB = 1 << 20
WS_XN   = 0
WS_KV   = 2 * MB
WS_QX   = 34 * MB
WS_KVM  = 51 * MB
WS_H    = 59 * MB
WS_O    = 67 * MB
WS_P    = 83 * MB
WS_M    = 84 * MB
WS_FL   = 85 * MB
FL_KV   = WS_FL
FL_GRP  = WS_FL + 8192
WS_PROF = 86 * MB
WS_DBG  = 87 * MB
WS_SIZE = 256 * MB
R_X, R_M0, R_WQ, R_WK, R_WV, R_WO, R_WG, R_WU, R_WD, R_OUT, R_DBG, R_WS = [4 + 4 * i for i in range(12)]
def srd(r): return f"s[{r}:{r+3}]"
S_W, S_H, S_G, S_XCC = 52, 53, 54, 55
S_T0, S_T1, S_T2, S_T3 = 56, 57, 58, 59
S_SPIN = 60
S_PROF = 61
S_TS = 62
SPIN_MAX = 1 << 20
D_HIST, D_TICK, D_ARR = 0, 16, 128
import struct
def f2u(x): return struct.unpack('<I', struct.pack('<f', x))[0]
def lane_ma(A, d, l, t):
    A(f"v_lshlrev_b32 v{d}, 4, v{l}")
class VM:
    def __init__(self, A): self.A = A; self.n = 0; self.known = 0
    def issue(self, text):
        self.A(text); self.n += 1; return self.n
    def wait(self, k):
        if k <= self.known: return
        assert self.n - k <= 63
        self.A(f"s_waitcnt vmcnt({self.n - k})"); self.known = k
```

```python
from common import *

def stamp(A, cfg, idx):
    if not cfg.get("prof"): return
    A(f"""
    s_memtime s[{S_TS}:{S_TS+1}]
    s_waitcnt lgkmcnt(0)
    v_mov_b32 v{cfg['vt']}, s{S_TS}
    s_mov_b64 exec, 1
    buffer_store_dword v{cfg['vt']}, off, {srd(R_WS)}, s{S_PROF} offset:{idx*4}
    s_mov_b64 exec, -1
    """)

def spin_dec(A):
    A(f"s_sub_u32 s{S_SPIN}, s{S_SPIN}, 1\ns_cbranch_scc1 EXIT")

class Stager:
    def __init__(self, A, s_base, nring, batch=4):
        self.A = A; self.s_base = s_base; self.nring = nring; self.batch = batch
        self.slots = []
        self.issued = 0; self.done = 0
    def add(self, r, voff, soff, reads):
        self.slots.append((r, voff, soff, reads))
    def issue(self, n):
        A = self.A
        for _ in range(n):
            if self.issued >= len(self.slots): return
            r, voff, soff, _r = self.slots[self.issued]
            pos = self.issued % self.nring
            A(f"s_add_u32 m0, s{self.s_base}, {pos*1024}")
            A(f"s_mov_b32 s{S_T0}, {soff}")
            A(f"buffer_load_dwordx4 v{voff}, {srd(r)}, s{S_T0} offen lds")
            self.issued += 1
    def run(self, drained=False):
        A = self.A
        known = self.issued if drained else self.done
        while self.done < len(self.slots):
            n = min(self.batch, len(self.slots) - self.done)
            if self.done + n > known:
                A(f"s_waitcnt vmcnt({self.issued - self.done - n})")
            for i in range(self.done, self.done + n):
                pos = i % self.nring
                for f in self.slots[i][3]:
                    A(f(pos * 1024))
            self.done += n
            if self.issued < len(self.slots):
                A("s_waitcnt lgkmcnt(0)")
                self.issue(n)
        A("s_waitcnt lgkmcnt(0)")

def xlane_sum8(A, t, u, op="v_add_f32"):
    A(f"{op}_dpp v{t}, v{t}, v{t} row_ror:8 row_mask:0xf bank_mask:0xf")
    A(f"v_mov_b32 v{u}, v{t}")
    A(f"v_permlane16_swap_b32 v{t}, v{u}")
    A(f"{op} v{t}, v{t}, v{u}")
    A(f"v_mov_b32 v{u}, v{t}")
    A(f"v_permlane32_swap_b32 v{t}, v{u}")
    A(f"{op} v{t}, v{t}, v{u}")

def rnd_bf16(A, t):
    A(f"v_cvt_pk_bf16_f32 v{t}, v{t}, v{t}")
    A(f"v_and_b32 v{t}, 0xffff0000, v{t}")

def xG(A, t, u, op):
    A(f"v_mov_b32 v{u}, v{t}")
    A(f"v_permlane16_swap_b32 v{t}, v{u}")
    A(f"{op} v{t}, v{t}, v{u}")
    A(f"v_mov_b32 v{u}, v{t}")
    A(f"v_permlane32_swap_b32 v{t}, v{u}")
    A(f"{op} v{t}, v{t}, v{u}")

S_GI, S_NR, S_R, S_SEG, S_RING, S_BUF, S_HOFF = 64, 65, 66, 67, 68, 69, 70
V_L, V_L16, V_T = 1, 2, 3

def worker(A, cfg):
    cfg["vt"] = V_T
    A(f"""
    WORKER:
    s_sub_u32 s{S_GI}, s{S_G}, 1
    s_cmp_eq_u32 s{S_GI}, 0
    s_cselect_b32 s{S_NR}, 10, 9
    s_lshl_b32 s{S_RING}, s{S_W}, 15
    """)
    RAW, F = 16, 48
    A(f"""
    s_lshl_b32 s{S_T0}, s{S_W}, 5
    s_add_u32 s{S_T0}, s{S_T0}, s{S_H}      ; u
    s_lshl_b32 s{S_T1}, s{S_NR}, 2
    s_cmp_lt_u32 s{S_T0}, s{S_T1}
    s_cselect_b32 s{S_BUF}, 1, 0
    s_lshr_b32 s{S_T1}, s{S_T0}, 2
    s_mul_i32 s{S_T1}, s{S_T1}, 7
    s_add_u32 s{S_T1}, s{S_T1}, s{S_GI}     ; seg
    s_and_b32 s{S_T0}, s{S_T0}, 3           ; quarter
    s_lshl_b32 s{S_T2}, s{S_T1}, 15
    s_lshl_b32 s{S_T3}, s{S_T0}, 13
    s_add_u32 s{S_SEG}, s{S_T2}, s{S_T3}
    s_lshl_b32 s{S_T3}, s{S_T0}, 7
    s_add_u32 s{S_R}, s{S_T2}, s{S_T3}
    v_and_b32 v4, 7, v{V_L}
    v_lshrrev_b32 v5, 3, v{V_L}
    v_lshlrev_b32 v6, 10, v4
    v_lshl_add_u32 v6, v5, 4, v6            ; row*1024 + p*16
    v_lshlrev_b32 v7, 4, v4
    v_lshl_add_u32 v7, v5, 9, v7            ; p*512 + row*16
    s_cmp_eq_u32 s{S_BUF}, 0
    s_cbranch_scc1 W_NOLN0
    """)
    for i in range(8):
        A(f"buffer_load_dwordx4 v[{RAW+4*i}:{RAW+4*i+3}], v6, {srd(R_X)}, s{S_SEG} offen offset:{i*128}")
    A("W_NOLN0:")
    VS, VRK, VRV = 8, 9, 10
    A(f"""
    v_lshrrev_b32 v4, 2, v{V_L}
    v_and_b32 v5, 3, v{V_L}
    v_lshlrev_b32 v{VS}, 13, v4
    v_lshl_add_u32 v{VS}, v5, 4, v{VS}
    s_lshl_b32 s{S_T0}, s{S_H}, 8
    s_lshl_b32 s{S_T1}, s{S_W}, 6
    s_add_u32 s{S_T0}, s{S_T0}, s{S_T1}
    v_add_u32 v{VS}, s{S_T0}, v{VS}
    v_lshrrev_b32 v4, 5, v{V_L}              ; hf
    v_bfe_u32 v5, v{V_L}, 2, 2               ; r'
    v_lshlrev_b32 v4, 9, v4
    v_lshl_add_u32 v4, v5, 6, v4             ; (8hf + r')*64
    v_add_u32 v4, s{S_RING}, v4
    v_bfe_u32 v5, v{V_L}, 4, 1               ; colhalf
    v_and_b32 v11, 1, v{V_L}
    v_bfe_u32 v12, v{V_L}, 1, 1
    ; K/Q: e = 16*colhalf + 8*(c'&1) + 4*(c'>>1)
    v_lshl_add_u32 v{VRK}, v5, 5, v4
    v_lshl_add_u32 v{VRK}, v11, 4, v{VRK}
    v_lshl_add_u32 v{VRK}, v12, 3, v{VRK}
    ; V: e = 8*c' + 4*colhalf
    v_and_b32 v11, 3, v{V_L}
    v_lshl_add_u32 v{VRV}, v11, 4, v4
    v_lshl_add_u32 v{VRV}, v5, 3, v{VRV}
    """)
    def rd32(reg, va):
        return [lambda o, reg=reg: f"ds_read_b64_tr_b16 {reg(0)}, v{va} offset:{o}",
                lambda o, reg=reg: f"ds_read_b64_tr_b16 {reg(2)}, v{va} offset:{o+256}"]
    st = Stager(A, S_RING, 32)
    for ks in range(32):
        st.add(R_WK, VS, ks * 16 * 8192, rd32(lambda j, ks=ks: a(4*ks+j, 2), VRK))
        st.add(R_WV, VS, ks * 16 * 8192, rd32(lambda j, ks=ks: a(128+4*ks+j, 2), VRV))
    st.issue(32)
    A(f"s_cmp_eq_u32 s{S_BUF}, 0\ns_cbranch_scc1 W_NOLN1")
    A("s_waitcnt vmcnt(32)")
    for i in range(32):
        A(f"v_lshlrev_b32 v{F+2*i}, 16, v{RAW+i}")
        A(f"v_and_b32 v{F+2*i+1}, 0xffff0000, v{RAW+i}")
    A(f"v_add_f32 v12, v{F}, v{F+1}\nv_add_f32 v13, v{F+2}, v{F+3}")
    for i in range(4, 64, 2):
        A(f"v_add_f32 v12, v12, v{F+i}\nv_add_f32 v13, v13, v{F+i+1}")
    A("v_add_f32 v12, v12, v13")
    xlane_sum8(A, 12, 13)
    A("v_mul_f32 v12, 0x3b000000, v12      ; mean")
    A("v_mov_b32 v14, 0\nv_mov_b32 v15, 0")
    for i in range(0, 64, 2):
        A(f"v_sub_f32 v4, v{F+i}, v12\nv_sub_f32 v5, v{F+i+1}, v12")
        A("v_fmac_f32 v14, v4, v4\nv_fmac_f32 v15, v5, v5")
    A("v_add_f32 v14, v14, v15")
    xlane_sum8(A, 14, 13)
    A("v_mul_f32 v14, 0x3b000000, v14      ; var")
    rnd_bf16(A, 12); rnd_bf16(A, 14)
    A("v_add_f32 v14, 0x3727c5ac, v14")
    rnd_bf16(A, 14)
    A("v_sqrt_f32 v14, v14")
    rnd_bf16(A, 14)
    A("v_rcp_f32 v14, v14")
    for i in range(32):
        A(f"v_sub_f32 v4, v{F+2*i}, v12\nv_sub_f32 v5, v{F+2*i+1}, v12")
        A("v_cvt_pk_bf16_f32 v4, v4, v5")
        A("v_and_b32 v5, 0xffff0000, v4\nv_lshlrev_b32 v4, 16, v4")
        A("v_mul_f32 v5, v5, v14\nv_mul_f32 v4, v4, v14")
        A(f"v_cvt_pk_bf16_f32 v{RAW+i}, v4, v5")
    for i in range(8):
        A(f"s_add_u32 s{S_T0}, s{S_R}, {WS_XN + i*4096}")
        A(f"buffer_store_dwordx4 v[{RAW+4*i}:{RAW+4*i+3}], v7, {srd(R_WS)}, s{S_T0} offen sc1")
    A("W_NOLN1:")
    A(f"""
    v_mov_b32 v12, -1
    v_mov_b32 v13, -1
    v_mov_b32 v14, -1
    v_mov_b32 v15, -1
    s_lshl_b32 s{S_T0}, s{S_GI}, 17
    s_lshl_b32 s{S_T1}, s{S_H}, 12
    s_add_u32 s{S_T0}, s{S_T0}, s{S_T1}
    s_lshl_b32 s{S_T1}, s{S_W}, 10
    s_add_u32 s{S_T0}, s{S_T0}, s{S_T1}
    s_add_u32 s{S_T0}, s{S_T0}, {WS_KVM}
    s_mov_b32 s{S_T1}, s{S_NR}
    W_FILL:
    buffer_store_dwordx4 v[12:15], v{V_L16}, {srd(R_WS)}, s{S_T0} offen sc1
    s_add_u32 s{S_T0}, s{S_T0}, {7*131072}
    s_sub_u32 s{S_T1}, s{S_T1}, 1
    s_cmp_lg_u32 s{S_T1}, 0
    s_cbranch_scc1 W_FILL
    """)
    A(f"""
    s_lshl_b32 s{S_T0}, s{S_H}, 7
    s_lshl_b32 s{S_T1}, s{S_G}, 2
    s_add_u32 s71, s{S_T0}, s{S_T1}
    s_add_u32 s71, s71, {FL_KV}
    s_lshl_b32 s{S_T0}, s{S_G}, 7
    s_lshl_b32 s{S_T1}, s{S_H}, 2
    s_add_u32 s72, s{S_T0}, s{S_T1}
    s_add_u32 s72, s72, {FL_GRP}
    s_cmp_eq_u32 s{S_W}, 3
    s_cbranch_scc0 W_NOZ
    v_mov_b32 v4, 0
    s_mov_b64 exec, 1
    buffer_store_dword v4, off, {srd(R_WS)}, s71 sc1
    buffer_store_dword v4, off, {srd(R_WS)}, s72 sc1
    s_mov_b64 exec, -1
    W_NOZ:
    s_waitcnt vmcnt(0)
    s_barrier
    s_cmp_eq_u32 s{S_W}, 3
    s_cbranch_scc0 W_NOA
    v_mov_b32 v4, 1
    s_lshl_b32 s{S_T1}, s{S_G}, 2
    s_mov_b64 exec, 1
    buffer_atomic_add v4, off, {srd(R_DBG)}, s{S_T1} offset:{D_ARR}
    s_mov_b64 exec, -1
    s_waitcnt vmcnt(0)
    W_NOA:
    """)
    stamp(A, cfg, 1)
    if cfg.get("prof"): A("s_waitcnt vmcnt(0)")
    st.run(drained=True)
    stamp(A, cfg, 2)
    A(f"""
    s_cmp_eq_u32 s{S_W}, 0
    s_cbranch_scc0 W_LNOK
    s_lshl_b32 s{S_T1}, s{S_G}, 2
    W_LNP:
    buffer_load_dword v4, off, {srd(R_DBG)}, s{S_T1} offset:{D_ARR} sc1
    """)
    spin_dec(A)
    A(f"""
    s_waitcnt vmcnt(0)
    v_readfirstlane_b32 s{S_T0}, v4
    s_cmp_lt_u32 s{S_T0}, 32
    s_cbranch_scc1 W_LNP
    W_LNOK:
    s_barrier
    """)
    VKS = 11
    lane_ma(A, 4, V_L, 5)
    A(f"""
    v_and_b32 v4, 255, v4
    v_lshrrev_b32 v5, 5, v{V_L}
    v_lshl_add_u32 v4, v5, 8, v4
    v_bfe_u32 v5, v{V_L}, 4, 1
    v_lshl_add_u32 v{VKS}, v5, 10, v4
    s_lshl_b32 s{S_HOFF}, s{S_H}, 13
    s_lshl_b32 s{S_T0}, s{S_W}, 11
    s_add_u32 s75, s{S_HOFF}, s{S_T0}       ; h*8K + w*2K
    """)
    def xn_dma(sseg, sbuf):
        A(f"""
        s_lshl_b32 s{S_T0}, s{sseg}, 15
        s_lshl_b32 s{S_T1}, s{S_W}, 13
        s_add_u32 s{S_T0}, s{S_T0}, s{S_T1}
        s_add_u32 m0, s{sbuf}, s{S_T1}
        s_add_u32 s{S_T2}, s{S_T0}, 4096
        """)
        for i in range(4):
            A(f"buffer_load_dwordx4 v{V_L16}, {srd(R_WS)}, s{S_T0} offen offset:{i*1024} sc1 lds")
        A("s_add_u32 m0, m0, 4096")
        for i in range(4):
            A(f"buffer_load_dwordx4 v{V_L16}, {srd(R_WS)}, s{S_T2} offen offset:{i*1024} sc1 lds")
    def seg_loop(name, body, flag_pub):
        A(f"""
        s_mov_b32 s{S_R}, 0
        s_mov_b32 s{S_SEG}, s{S_GI}
        s_mov_b32 s{S_BUF}, 0
        """)
        xn_dma(S_SEG, S_BUF)
        A(f"""
        {name}_LOOP:
        s_waitcnt vmcnt(0)
        s_barrier
        """)
        flag_pub()
        A(f"""
        s_cmp_eq_u32 s{S_R}, s{S_NR}
        s_cbranch_scc1 {name}_END
        v_add_u32 v13, s{S_BUF}, v{V_L16}
        s_xor_b32 s{S_BUF}, s{S_BUF}, 0x8000
        s_add_u32 s{S_R}, s{S_R}, 1
        s_cmp_eq_u32 s{S_R}, s{S_NR}
        s_cbranch_scc1 {name}_NOPF
        s_add_u32 s{S_T3}, s{S_SEG}, 7
        """)
        xn_dma(S_T3, S_BUF)
        A(f"{name}_NOPF:")
        body()
        A(f"""
        s_add_u32 s{S_SEG}, s{S_SEG}, 7
        s_branch {name}_LOOP
        {name}_END:
        """)
    XF, AK, AV, PK = 16, 48, 64, 80
    NPF = 8
    def pub_kv():
        A(f"""
        s_cmp_eq_u32 s{S_W}, 0
        s_cbranch_scc0 P1_NOPUB
        v_mov_b32 v4, s{S_R}
        s_mov_b64 exec, 1
        buffer_store_dword v4, off, {srd(R_WS)}, s71 sc1
        s_mov_b64 exec, -1
        P1_NOPUB:
        """)
    def body1():
        for ks in range(NPF):
            A(f"ds_read_b128 v[{XF+4*ks}:{XF+4*ks+3}], v13 offset:{ks*1024}")
        for ks in range(32):
            x = XF + 4 * (ks % NPF)
            A(f"s_waitcnt lgkmcnt({min(NPF-1, 31-ks)})")
            ck = "0" if ks == 0 else v(AK, 16)
            cv = "0" if ks == 0 else v(AV, 16)
            A(f"v_mfma_f32_32x32x16_bf16 {v(AK,16)}, {a(4*ks,4)}, {v(x,4)}, {ck}")
            A(f"v_mfma_f32_32x32x16_bf16 {v(AV,16)}, {v(x,4)}, {a(128+4*ks,4)}, {cv}")
            if ks + NPF < 32:
                A(f"ds_read_b128 v[{x}:{x+3}], v13 offset:{(ks+NPF)*1024}")
        A(f"""
        s_lshl_b32 s{S_T0}, s{S_SEG}, 18
        s_add_u32 s{S_T0}, s{S_T0}, s75
        s_lshl_b32 s{S_T0}, s{S_T0}, 1
        s_add_u32 s{S_T0}, s{S_T0}, {WS_KV}
        """)
        for i in range(8):
            A(f"v_cvt_pk_bf16_f32 v{PK+i}, v{AK+2*i}, v{AK+2*i+1}")
        A(f"buffer_store_dwordx4 {v(PK,4)}, v{VKS}, {srd(R_WS)}, s{S_T0} offen sc1")
        A(f"buffer_store_dwordx4 {v(PK+4,4)}, v{VKS}, {srd(R_WS)}, s{S_T0} offen offset:512 sc1")
        for i, r in enumerate([0, 2, 8, 10, 4, 6, 12, 14]):
            A(f"v_cvt_pk_bf16_f32 v{PK+8+i}, v{AV+r}, v{AV+r+1}")
        A(f"buffer_store_dwordx4 {v(PK+8,4)}, v{VKS}, {srd(R_WS)}, s{S_T0} offen offset:2048 sc1")
        A(f"buffer_store_dwordx4 {v(PK+12,4)}, v{VKS}, {srd(R_WS)}, s{S_T0} offen offset:2560 sc1")
    seg_loop("P1", body1, pub_kv)
    stamp(A, cfg, 3)
    if cfg.get("stop", 99) <= 1:
        A("s_branch EXIT")
        return
    VSF, VRF, VHS = 14, 15, 10
    A(f"""
    v_lshrrev_b32 v4, 1, v{V_L}
    v_mul_u32_u24 v{VSF}, 3584, v4
    v_and_b32 v5, 1, v{V_L}
    v_lshl_add_u32 v{VSF}, v5, 4, v{VSF}
    s_lshl_b32 s{S_T0}, s{S_H}, 7
    s_lshl_b32 s{S_T1}, s{S_W}, 5
    s_add_u32 s{S_T0}, s{S_T0}, s{S_T1}
    v_add_u32 v{VSF}, s{S_T0}, v{VSF}
    v_lshlrev_b32 v{VRF}, 4, v5
    v_bfe_u32 v5, v{V_L}, 1, 1
    v_lshl_add_u32 v{VRF}, v5, 3, v{VRF}
    v_bfe_u32 v5, v{V_L}, 2, 2
    v_lshl_add_u32 v{VRF}, v5, 5, v{VRF}
    v_lshrrev_b32 v5, 5, v{V_L}
    v_lshl_add_u32 v{VRF}, v5, 8, v{VRF}
    v_bfe_u32 v4, v{V_L}, 4, 1
    v_lshl_add_u32 v{VRF}, v4, 10, v{VRF}
    v_add_u32 v{VRF}, s{S_RING}, v{VRF}
    v_lshlrev_b32 v{VHS}, 16, v4
    v_lshl_add_u32 v{VHS}, v5, 8, v{VHS}
    v_and_b32 v5, 15, v{V_L}
    v_lshl_add_u32 v{VHS}, v5, 4, v{VHS}
    s_lshl_b32 s{S_T0}, s{S_T0}, 4
    v_add_u32 v{VHS}, s{S_T0}, v{VHS}
    """)
    st = Stager(A, S_RING, 32)
    for p in range(16):
        for kk in range(2):
            ks = 2 * p + kk
            st.add(R_WQ, VS, ks * 16 * 8192, rd32(lambda j, ks=ks: a(4*ks+j, 2), VRK))
        st.add(R_WG, VSF, p * 32 * 3584, [])
        rds = []
        for kk in range(2):
            for hb in range(2):
                rds.append(lambda o, p=p, kk=kk, hb=hb: f"ds_read_b64_tr_b16 {a(128+4*(2*p+kk)+2*hb, 2)}, v{VRF} offset:{o - 1024 + kk*512 + hb*128}")
        st.add(R_WU, VSF, p * 32 * 3584, rds)
    st.issue(32)
    st.run()
    A("s_barrier")
    stamp(A, cfg, 4)
    C1 = -2 * 1.4426950408889634 * 0.7978845608028654
    A(f"s_mov_b32 s73, {f2u(C1)}\ns_mov_b32 s74, {f2u(C1 * 0.044715)}")
    def body2():
        for ks in range(NPF):
            A(f"ds_read_b128 v[{XF+4*ks}:{XF+4*ks+3}], v13 offset:{ks*1024}")
        for ks in range(32):
            x = XF + 4 * (ks % NPF)
            A(f"s_waitcnt lgkmcnt({min(NPF-1, 31-ks)})")
            ck = "0" if ks == 0 else v(AK, 16)
            cv = "0" if ks == 0 else v(AV, 16)
            A(f"v_mfma_f32_32x32x16_bf16 {v(AV,16)}, {a(128+4*ks,4)}, {v(x,4)}, {cv}")
            A(f"v_mfma_f32_32x32x16_bf16 {v(AK,16)}, {a(4*ks,4)}, {v(x,4)}, {ck}")
            if ks + NPF < 32:
                A(f"ds_read_b128 v[{x}:{x+3}], v13 offset:{(ks+NPF)*1024}")
        A(f"""
        s_lshl_b32 s{S_T0}, s{S_SEG}, 18
        s_lshl_b32 s{S_T1}, s{S_SEG}, 17
        s_add_u32 s{S_T0}, s{S_T0}, s75
        s_add_u32 s{S_T1}, s{S_T1}, {WS_H}
        s_add_u32 s{S_T0}, s{S_T0}, {WS_QX}
        v_mov_b32 v4, s73
        """)
        T = PK + 8
        for i in range(8): A(f"v_mul_f32 v{T+i}, v{AV+i}, v{AV+i}")
        for i in range(8): A(f"v_fma_f32 v{T+i}, v{T+i}, s74, v4")
        for i in range(8): A(f"v_mul_f32 v{T+i}, v{T+i}, v{AV+i}")
        for i in range(8):
            A(f"v_cvt_pk_bf16_f32 v{PK+i}, v{AK+2*i}, v{AK+2*i+1}")
        A(f"buffer_store_dwordx4 {v(PK,4)}, v{VKS}, {srd(R_WS)}, s{S_T0} offen")
        A(f"buffer_store_dwordx4 {v(PK+4,4)}, v{VKS}, {srd(R_WS)}, s{S_T0} offen offset:512")
        for i in range(8): A(f"v_exp_f32 v{T+i}, v{T+i}")
        for i in range(8): A(f"v_add_f32 v{T+i}, 1.0, v{T+i}")
        for i in range(8): A(f"v_rcp_f32 v{T+i}, v{T+i}")
        for i in range(8): A(f"v_mul_f32 v{T+i}, v{T+i}, v{AV+i}")
        for i in range(8): A(f"v_mul_f32 v{T+i}, v{T+i}, v{AV+8+i}")
        for i in range(4): A(f"v_cvt_pk_bf16_f32 v{T+8+i}, v{T+2*i}, v{T+2*i+1}")
        A(f"buffer_store_dwordx4 {v(T+8,4)}, v{VHS}, {srd(R_WS)}, s{S_T1} offen sc1")
    seg_loop("P2", body2, lambda: None)
    def pub_grp(tag, val):
        A(f"""
        s_cmp_eq_u32 s{S_W}, 0
        s_cbranch_scc0 NOPUB_{tag}
        v_mov_b32 v4, {val}
        s_mov_b64 exec, 1
        buffer_store_dword v4, off, {srd(R_WS)}, s72 sc1
        s_mov_b64 exec, -1
        NOPUB_{tag}:
        """)
    pub_grp("H", 1)
    stamp(A, cfg, 5)
    if cfg.get("stop", 99) <= 2:
        A("s_waitcnt vmcnt(0)\ns_branch EXIT")
        return
    VSD, VSO, VRT = 8, 9, 10
    A(f"""
    v_lshrrev_b32 v4, 2, v{V_L}
    v_and_b32 v5, 3, v{V_L}
    v_lshlrev_b32 v{VSD}, 10, v4
    v_lshl_add_u32 v{VSD}, v5, 4, v{VSD}
    s_lshr_b32 s{S_T0}, s{S_H}, 1
    s_lshl_b32 s{S_T0}, s{S_T0}, 6
    s_lshl_b32 s{S_T1}, s{S_W}, 20
    s_add_u32 s{S_T1}, s{S_T1}, s{S_T0}
    v_add_u32 v{VSO}, s{S_T1}, v{VSD}
    s_mul_i32 s{S_T1}, s{S_W}, {448*1024}
    s_add_u32 s{S_T1}, s{S_T1}, s{S_T0}
    v_add_u32 v{VSD}, s{S_T1}, v{VSD}
    v_lshlrev_b32 v{VRT}, 4, v5
    v_and_b32 v4, 3, v4
    v_lshl_add_u32 v{VRT}, v4, 6, v{VRT}
    v_lshrrev_b32 v4, 4, v{V_L}
    v_lshl_add_u32 v{VRT}, v4, 9, v{VRT}
    v_add_u32 v{VRT}, s{S_RING}, v{VRT}
    """)
    def rd16(regf):
        return [lambda o, T=T, hb=hb: f"ds_read_b64_tr_b16 {regf(4*T+2*hb)}, v{VRT} offset:{o - 1024 + T*8 + hb*256}" for T in range(2) for hb in range(2)]
    st = Stager(A, S_RING, 32)
    for kq in range(14):
        st.add(R_WD, VSD, kq * 32768, [])
        st.add(R_WD, VSD, kq * 32768 + 16384, rd16(lambda j, kq=kq: v(128 + 8*kq + j, 2)))
    for kq in range(32):
        st.add(R_WO, VSO, kq * 32768, [])
        st.add(R_WO, VSO, kq * 32768 + 16384, rd16(lambda j, kq=kq: a(8*kq + j, 2)))
    st.issue(32)
    st.run()
    stamp(A, cfg, 6)
    VFL, VPW, VPR, VG, VXO = 8, 9, 10, 11, 12
    PITCH = 144
    A(f"""
    v_and_b32 v4, 31, v{V_L}
    v_lshlrev_b32 v{VFL}, 2, v4
    s_lshl_b32 s73, s{S_G}, 7
    s_add_u32 s73, s73, {FL_GRP}
    v_and_b32 v4, 15, v{V_L}
    v_mul_u32_u24 v{VPW}, {PITCH}, v4
    v_lshrrev_b32 v5, 4, v{V_L}
    v_lshl_add_u32 v{VPW}, v5, 5, v{VPW}
    s_mul_i32 s{S_T0}, s{S_W}, {16*PITCH}
    v_add_u32 v{VPW}, s{S_T0}, v{VPW}
    v_mul_u32_u24 v{VPR}, {PITCH}, v5
    v_lshl_add_u32 v{VPR}, v4, 3, v{VPR}
    s_mul_i32 s{S_T0}, s{S_W}, {4*PITCH}
    v_add_u32 v{VPR}, s{S_T0}, v{VPR}
    v_lshlrev_b32 v{VG}, 2, v0
    v_add_u32 v{VG}, 0x20000, v{VG}
    v_lshlrev_b32 v{VXO}, 10, v5
    v_lshl_add_u32 v{VXO}, v4, 2, v{VXO}
    s_and_b32 s{S_T0}, s{S_H}, 1
    s_lshl_b32 s74, s{S_T0}, 16            ; rt*64KB
    s_lshl_b32 s{S_T0}, s{S_T0}, 14
    s_lshl_b32 s{S_T1}, s{S_W}, 12
    s_add_u32 s{S_T0}, s{S_T0}, s{S_T1}
    s_lshr_b32 s{S_T1}, s{S_H}, 1
    s_lshl_b32 s{S_T1}, s{S_T1}, 6
    s_add_u32 s{S_T0}, s{S_T0}, s{S_T1}
    v_add_u32 v{VXO}, s{S_T0}, v{VXO}
    """)
    def grp_wait(tag, s_val):
        A(f"""
        GW_{tag}:
        buffer_load_dword v4, v{VFL}, {srd(R_WS)}, s73 offen sc1
        """)
        spin_dec(A)
        A(f"""
        s_waitcnt vmcnt(0)
        v_cmp_gt_u32 vcc, {s_val}, v4
        s_cbranch_vccnz GW_{tag}
        """)
    grp_wait("H", 1)
    A("s_barrier")
    HF, DA = 16, 112
    A(f"""
    s_mul_i32 s{S_T0}, s{S_W}, {14*1024}
    s_add_u32 s74, s74, s{S_T0}
    s_lshl_b32 s{S_T0}, s{S_GI}, 17
    s_add_u32 s75, s74, s{S_T0}
    s_add_u32 s75, s75, {WS_H}
    s_mov_b32 s{S_R}, 0
    v_mov_b32 v13, v{VPW}
    DN_LOOP:
    """)
    for kq in range(14):
        if kq % 4 == 0: A(f"s_add_u32 s{S_T0}, s75, {kq*1024}")
        A(f"buffer_load_dwordx4 {v(HF+4*kq,4)}, v{V_L16}, {srd(R_WS)}, s{S_T0} offen offset:{(kq%4)*1024} sc1")
    for kq in range(14):
        A(f"s_waitcnt vmcnt({13-kq})")
        for T in range(2):
            cc = "0" if kq == 0 else v(DA+4*T, 4)
            A(f"v_mfma_f32_16x16x32_bf16 {v(DA+4*T,4)}, {v(128+8*kq+4*T,4)}, {v(HF+4*kq,4)}, {cc}")
    A(f"""
    s_add_u32 s75, s75, {7*131072}
    s_add_u32 s{S_R}, s{S_R}, 1
    s_cmp_lt_u32 s{S_R}, s{S_NR}
    ds_write_b128 v13, {v(DA,4)}
    ds_write_b128 v13, {v(DA+4,4)} offset:16
    v_add_u32 v13, {64*PITCH}, v13
    s_cbranch_scc1 DN_LOOP
    s_waitcnt lgkmcnt(0)
    s_barrier
    """)
    def red4(va, off, d):
        for i in range(4):
            A(f"ds_read_b64 v[{d+2*i}:{d+2*i+1}], v{va} offset:{off + i*16*PITCH}")
    NL = -1.4426950408889634
    A(f"v_add_u32 v13, {5*64*PITCH}, v{VPR}")
    for r in range(10):
        red4(VPR if r < 5 else 13, (r % 5) * 64 * PITCH, 16 + 8 * r)
    for r in range(10):
        d = 16 + 8 * r
        A(f"s_waitcnt lgkmcnt(0)" if r == 0 else "")
        A(f"""
        v_add_f32 v{d}, v{d}, v{d+2}
        v_add_f32 v{d+1}, v{d+1}, v{d+3}
        v_add_f32 v{d+4}, v{d+4}, v{d+6}
        v_add_f32 v{d+5}, v{d+5}, v{d+7}
        v_add_f32 v{d}, v{d}, v{d+4}
        v_add_f32 v{d+1}, v{d+1}, v{d+5}
        v_cvt_pk_bf16_f32 v{d}, v{d}, v{d+1}
        v_and_b32 v{d+1}, 0xffff0000, v{d}
        v_lshlrev_b32 v{d}, 16, v{d}
        v_mul_f32 v{d+2}, {f2u(NL)}, v{d}
        v_mul_f32 v{d+3}, {f2u(NL)}, v{d+1}
        v_exp_f32 v{d+2}, v{d+2}
        v_exp_f32 v{d+3}, v{d+3}
        v_add_f32 v{d+2}, 1.0, v{d+2}
        v_add_f32 v{d+3}, 1.0, v{d+3}
        v_rcp_f32 v{d+2}, v{d+2}
        v_rcp_f32 v{d+3}, v{d+3}
        v_mul_f32 v{d}, v{d}, v{d+2}
        v_mul_f32 v{d+1}, v{d+1}, v{d+3}
        v_cvt_pk_bf16_f32 v{d}, v{d}, v{d+1}
        ds_write_b32 v{VG}, v{d} offset:{r*1024}
        """)
    stamp(A, cfg, 7)
    KX, QX, VX, KM, FM, SS, OA = 16, 48, 64, 80, 16, 100, 112
    VMA, VKW, VQI, VKR = 13, 14, 15, 96
    S_AT, S_OW, S_OR, S_XO, S_CS, S_MK = 75, 76, 77, 79, 80, 81
    S_EH, S_MSK = 82, 86
    L_KT = 0x24000
    lane_ma(A, VMA, V_L, 4)
    A(f"""
    s_lshl_b32 s{S_T0}, s{S_W}, 12
    s_add_u32 s{S_T0}, s{S_T0}, {L_KT}
    v_and_b32 v4, 15, v{V_L}
    v_lshrrev_b32 v5, 4, v{V_L}
    v_lshlrev_b32 v{VKW}, 6, v4
    v_lshl_add_u32 v{VKW}, v5, 4, v{VKW}
    v_add_u32 v{VKW}, s{S_T0}, v{VKW}
    v_add_u32 v{VKR}, s{S_T0}, v{V_L16}
    s_lshr_b32 s{S_T0}, s{S_W}, 1
    s_and_b32 s{S_T2}, s{S_W}, 1
    s_lshl_b32 s{S_T3}, s{S_T2}, 4
    v_add_u32 v4, s{S_T3}, v4
    v_lshlrev_b32 v5, 2, v5
    v_sub_u32 v4, v4, v5
    """)
    for tl in range(2):
        for r in range(4):
            A(f"v_cmp_le_i32 s[{S_MSK+2*(4*tl+r)}:{S_MSK+2*(4*tl+r)+1}], {16*tl+r}, v4")
    A(f"""
    s_mov_b32 s{S_CS}, {f2u(128**-0.5 * 1.4426950408889634)}
    v_mov_b32 v{VQI}, {f2u(-1e9 * 128**0.5)}
    s_lshl_b32 s{S_OW}, s{S_T2}, 17
    s_lshl_b32 s{S_EH}, s{S_T0}, 11         ; eh*2048
    s_add_u32 s{S_OW}, s{S_OW}, s{S_EH}
    s_lshl_b32 s{S_T1}, s{S_H}, 12
    s_add_u32 s{S_OW}, s{S_OW}, s{S_T1}
    s_add_u32 s{S_OW}, s{S_OW}, {WS_O}
    s_and_b32 s{S_OR}, s{S_H}, 1
    s_lshl_b32 s{S_OR}, s{S_OR}, 17
    s_lshl_b32 s{S_T1}, s{S_W}, 15
    s_add_u32 s{S_OR}, s{S_OR}, s{S_T1}
    s_add_u32 s{S_OR}, s{S_OR}, {WS_O}
    s_lshl_b32 s{S_AT}, s{S_T2}, 10         ; qt*1024
    s_add_u32 s{S_AT}, s{S_AT}, {WS_QX}
    s_mov_b32 s{S_R}, 0
    s_mov_b32 s{S_SEG}, s{S_GI}
    """)
    def att_loads(sseg):
        A(f"""
        s_lshl_b32 s{S_T0}, s{sseg}, 18
        s_add_u32 s{S_T0}, s{S_T0}, s{S_HOFF}
        s_lshl_b32 s{S_T1}, s{S_EH}, 1
        s_add_u32 s{S_T0}, s{S_T0}, s{S_T1}
        s_add_u32 s{S_T1}, s{S_T0}, s{S_AT}
        s_lshl_b32 s{S_T0}, s{S_T0}, 1
        s_add_u32 s{S_T0}, s{S_T0}, {WS_KV}
        """)
        for c in range(4):
            if c == 2: A(f"s_xor_b32 s{S_T1}, s{S_T1}, 4096")
            A(f"buffer_load_dwordx4 {v(QX+4*c,4)}, v{VMA}, {srd(R_WS)}, s{S_T1} offen offset:{(c&1)*2048} sc1")
            A(f"buffer_load_dwordx4 {v(KX+4*c,4)}, v{VMA}, {srd(R_WS)}, s{S_T0} offen sc1")
            A(f"buffer_load_dwordx4 {v(KX+16+4*c,4)}, v{VMA}, {srd(R_WS)}, s{S_T0} offen offset:1024 sc1")
            if c < 2:
                A(f"buffer_load_dwordx4 {v(VX+8*c,4)}, v{VMA}, {srd(R_WS)}, s{S_T0} offen offset:2048 sc1")
                A(f"buffer_load_dwordx4 {v(VX+8*c+4,4)}, v{VMA}, {srd(R_WS)}, s{S_T0} offen offset:3072 sc1")
            A(f"s_xor_b32 s{S_T0}, s{S_T0}, {[4096, 12288, 4096, 0][c]}")
    att_loads(S_SEG)
    A("W5_LOOP:\ns_waitcnt vmcnt(0)")
    for c in range(4):
        for tl in range(2):
            cc = "0" if c == 0 else v(SS+4*tl, 4)
            A(f"v_mfma_f32_16x16x32_bf16 {v(SS+4*tl,4)}, {v(KX+16*tl+4*c,4)}, {v(QX+4*c,4)}, {cc}")
    A(f"""
    s_lshl_b32 s{S_T0}, s{S_SEG}, 18
    s_add_u32 s{S_T1}, s{S_T0}, s{S_HOFF}
    s_lshr_b32 s{S_T1}, s{S_T1}, 1
    s_add_u32 s{S_T1}, s{S_T1}, {WS_KVM}
    s_add_u32 s{S_T1}, s{S_T1}, s{S_EH}
    s_xor_b32 s{S_T2}, s{S_T1}, 2048
    s_lshl_b32 s{S_XO}, s{S_SEG}, 15
    buffer_load_dword v3, v{VXO}, {srd(R_X)}, s{S_XO} offen
    W5_KP:
    """)
    for c in range(4):
        A(f"buffer_load_dwordx4 {v(KM+4*c,4)}, v{VMA}, {srd(R_WS)}, s{S_T1 if c < 2 else S_T2} offen offset:{(c&1)*1024} sc1")
    spin_dec(A)
    A(f"""
    s_waitcnt vmcnt(0)
    v_max3_u32 v4, v{KM}, v{KM+4}, v{KM+8}
    v_max_u32 v4, v4, v{KM+12}
    v_cmp_eq_u32 vcc, -1, v4
    s_cbranch_vccnz W5_KP
    """)
    for c in range(4):
        A(f"ds_write_b128 v{VKW}, {v(KM+4*c,4)} offset:{c*1024}")
    for c in range(4):
        A(f"ds_read_b64_tr_b16 {v(FM+4*c,2)}, v{VKR} offset:{c*1024}")
        A(f"ds_read_b64_tr_b16 {v(FM+4*c+2,2)}, v{VKR} offset:{c*1024+8}")
    for i in range(8):
        A(f"v_cndmask_b32 v{SS+i}, v{VQI}, v{SS+i}, s[{S_MSK+2*i}:{S_MSK+2*i+1}]")
    A(f"""
    v_max3_f32 v4, v{SS}, v{SS+1}, v{SS+2}
    v_max3_f32 v5, v{SS+3}, v{SS+4}, v{SS+5}
    v_max3_f32 v4, v4, v{SS+6}, v{SS+7}
    v_max_f32 v4, v4, v5
    v_mov_b32 v6, 0
    """)
    for c in range(4):
        A(f"s_waitcnt lgkmcnt({6-2*c})")
        cc = "0" if c == 0 else v(SS+8, 4)
        A(f"v_mfma_f32_16x16x32_bf16 {v(SS+8,4)}, {v(FM+4*c,4)}, {v(QX+4*c,4)}, {cc}")
    A(f"v_max3_f32 v4, v4, v{SS+8}, v{SS+9}")
    xG(A, 4, 5, "v_max_f32")
    A(f"v_mul_f32 v4, s{S_CS}, v4")
    for i in range(10): A(f"v_fma_f32 v{SS+i}, v{SS+i}, s{S_CS}, -v4")
    for i in range(10): A(f"v_exp_f32 v{SS+i}, v{SS+i}")
    PX = KX + 16
    for i in range(4): A(f"v_cvt_pk_bf16_f32 v{PX+i}, v{SS+2*i}, v{SS+2*i+1}")
    A(f"v_cvt_pk_bf16_f32 v7, v{SS+8}, v{SS+9}")
    for i in range(4):
        A(f"v_mfma_f32_16x16x32_bf16 {v(OA+4*i,4)}, {v(VX+4*i,4)}, {v(PX,4)}, 0")
    A(f"""
    v_add_f32 v4, v{SS+8}, v{SS+9}
    v_add_f32 v4, v4, v{SS}
    v_add_f32 v5, v{SS+1}, v{SS+2}
    v_add_f32 v4, v4, v{SS+3}
    v_add_f32 v5, v5, v{SS+4}
    v_add_f32 v4, v4, v{SS+5}
    v_add_f32 v5, v5, v{SS+6}
    v_add_f32 v4, v4, v{SS+7}
    v_add_f32 v4, v4, v5
    """)
    for i in range(4):
        A(f"v_mfma_f32_16x16x16_bf16 {v(OA+4*i,4)}, {v(KM+2*i,2)}, v[6:7], {v(OA+4*i,4)}")
    xG(A, 4, 5, "v_add_f32")
    A("v_rcp_f32 v4, v4")
    A(f"s_add_u32 s{S_T0}, s{S_T0}, s{S_OW}")
    for hh in range(2):
        for i in range(8): A(f"v_mul_f32 v{OA+8*hh+i}, v{OA+8*hh+i}, v4")
        for i in range(4): A(f"v_cvt_pk_bf16_f32 v{SS+4*hh+i}, v{OA+8*hh+2*i}, v{OA+8*hh+2*i+1}")
        A(f"buffer_store_dwordx4 {v(SS+4*hh,4)}, v{V_L16}, {srd(R_WS)}, s{S_T0} offen offset:{hh*1024} sc1")
    A(f"""
    s_add_u32 s{S_R}, s{S_R}, 1
    s_add_u32 s{S_BUF}, s{S_R}, 1
    s_waitcnt vmcnt(0)
    s_barrier
    """)
    pub_grp("O", f"s{S_BUF}")
    grp_wait("O", f"s{S_BUF}")
    A(f"""
    s_lshl_b32 s{S_T3}, s{S_SEG}, 18
    s_add_u32 s{S_T3}, s{S_T3}, s{S_OR}
    """)
    for kq in range(32):
        if kq % 4 == 0 and kq: A(f"s_add_u32 s{S_T3}, s{S_T3}, 4096")
        A(f"buffer_load_dwordx4 {v(128+4*kq,4)}, v{V_L16}, {srd(R_WS)}, s{S_T3} offen offset:{(kq%4)*1024} sc1")
    A(f"s_add_u32 s{S_SEG}, s{S_SEG}, 7\ns_min_u32 s{S_T3}, s{S_SEG}, 63")
    att_loads(S_T3)
    A(f"ds_read_b32 v7, v{VG}\nv_add_u32 v{VG}, 1024, v{VG}")
    for kq in range(32):
        A(f"s_waitcnt vmcnt({31-kq+16})")
        for T in range(2):
            cc = "0" if kq == 0 else v(OA+4*T, 4)
            A(f"v_mfma_f32_16x16x32_bf16 {v(OA+4*T,4)}, {a(8*kq+4*T,4)}, {v(128+4*kq,4)}, {cc}")
    d = SS
    A(f"""
    ds_write_b128 v{VPW}, {v(OA,4)}
    ds_write_b128 v{VPW}, {v(OA+4,4)} offset:16
    v_and_b32 v6, 0xffff0000, v7
    v_lshlrev_b32 v7, 16, v7
    v_and_b32 v5, 0xffff0000, v3
    v_lshlrev_b32 v4, 16, v3
    s_waitcnt lgkmcnt(0)
    s_barrier
    """)
    red4(VPR, 0, d)
    A(f"""
    s_cmp_lt_u32 s{S_R}, s{S_NR}
    s_waitcnt lgkmcnt(2)
    v_add_f32 v{d}, v{d}, v{d+2}
    v_add_f32 v{d+1}, v{d+1}, v{d+3}
    s_waitcnt lgkmcnt(0)
    v_add_f32 v{d+4}, v{d+4}, v{d+6}
    v_add_f32 v{d+5}, v{d+5}, v{d+7}
    v_add_f32 v{d}, v{d}, v{d+4}
    v_add_f32 v{d+1}, v{d+1}, v{d+5}
    v_cvt_pk_bf16_f32 v{d}, v{d}, v{d+1}
    v_and_b32 v{d+1}, 0xffff0000, v{d}
    v_lshlrev_b32 v{d}, 16, v{d}
    v_mul_f32 v{d}, v{d}, v7
    v_mul_f32 v{d+1}, v{d+1}, v6
    v_cvt_pk_bf16_f32 v{d}, v{d}, v{d+1}
    v_and_b32 v{d+1}, 0xffff0000, v{d}
    v_lshlrev_b32 v{d}, 16, v{d}
    v_add_f32 v{d}, v{d}, v4
    v_add_f32 v{d+1}, v{d+1}, v5
    v_cvt_pk_bf16_f32 v4, v{d}, v{d+1}
    buffer_store_dword v4, v{VXO}, {srd(R_OUT)}, s{S_XO} offen
    """)
    if cfg.get("prof"):
        A(f"""
        s_memtime s[{S_TS}:{S_TS+1}]
        s_lshl_b32 s{S_T0}, s{S_R}, 2
        s_add_u32 s{S_T0}, s{S_T0}, s{S_PROF}
        s_waitcnt lgkmcnt(0)
        v_mov_b32 v5, s{S_TS}
        s_mov_b64 exec, 1
        buffer_store_dword v5, off, {srd(R_WS)}, s{S_T0} offset:28
        s_mov_b64 exec, -1
        s_cmp_lt_u32 s{S_R}, s{S_NR}
        """)
    A(f"""
    s_cbranch_scc1 W5_LOOP
    s_waitcnt vmcnt(0)
    """)
```

```python
import re
from common import *
from worker import stamp, spin_dec, xG

L_PX, L_SEL, L_F, L_REG, RP = 0, 0xC00, 0x1000, 0x2000, 0x8C00
O_WQ, O_WO, O_A, O_S = 0, 0x4000, 0x8000, 0x8800
L_DUMMY = L_REG + O_S
V_IDX, V_MA, V_KA, V_FW, V_FR, V_PW, V_PST, V_MST = 0, 1, 2, 3, 4, 5, 6, 7
V_R = [8, 9, 10, 11]
PUB = 12
RA, RE, RV, RQ, RK, ALT = 16, 48, 104, 112, 120, 40
RKX, RVX = 56, 64
S_S, S_RING, S_ROT = 64, 65, 66
S_RDY, S_PW, S_MB, S_KVB, S_MW, S_PUB, S_TAG, S_FKV = 70, 71, 72, 73, 74, 75, 76, 77
S_C, S_THR = 78, 79
S_B1, S_ON, S_HF = 80, 82, 90
S_SENT, S_PR0, S_PR1, S_W2K, S_MR = 84, 85, 86, 87, 88

def WQ(t, ab): return v(RE + 8 * ((2 * t + ab) % 7), 8) if t < 4 else v(128 + 8 * (2 * (t - 4) + ab), 8)
def WK(t, ab): return a(8 * (2 * t + ab), 8)
def WV(t, ab): return a(128 + 8 * (2 * t + ab), 8)
WOS = {(2, 0): 72, (3, 0): 80, (2, 1): 88, (3, 1): 48, (2, 2): 56, (3, 2): 104, (2, 3): 96, (3, 3): 16}
def WO(c, T): return v(192 + 8 * (4 * c + T), 8) if c < 2 else v(WOS[(c, T)], 8)
def SM(d, aa, b): return f"v_smfmac_f32_16x16x64_bf16 {v(d,4)}, {v(aa,4)}, {b}, v{V_IDX}"
def MF(d, aa, b, c): return f"v_mfma_f32_16x16x32_bf16 {v(d,4)}, {v(aa,4)}, {v(b,4)}, {c}"
def MH(d, aa, b, c): return f"v_mfma_f32_16x16x16_bf16 {v(d,4)}, {v(aa,2)}, {v(b,2)}, {c}"
DPP = lambda p: f"quad_perm:[{p}] row_mask:0xf bank_mask:0xf"

def chain_init(A, cfg):
    L, L16 = 20, 21
    vm = VM(A)
    A(f"""
    CHAIN:
    v_mov_b32 v{L}, v1
    v_mov_b32 v{L16}, v2
    s_mul_i32 s{S_RING}, s{S_W}, {RP}
    s_add_u32 s{S_RING}, s{S_RING}, {L_REG}
    s_lshl_b32 s{S_W2K}, s{S_W}, 11
    """)
    for i in range(4):
        A(f"s_add_u32 s{S_T0}, s{S_W}, {i}\ns_and_b32 s{S_ROT+i}, s{S_T0}, 3")
    A(f"""
    v_lshrrev_b32 v22, 4, v{L}
    v_bfe_u32 v23, v{L}, 2, 1
    v_lshlrev_b32 v{V_MST}, 8, v23
    v_bfe_u32 v23, v{L}, 1, 1
    v_lshl_add_u32 v{V_MST}, v23, 5, v{V_MST}
    v_and_b32 v23, 1, v{L}
    v_lshl_add_u32 v{V_MST}, v23, 3, v{V_MST}
    v_and_b32 v23, 1, v22
    v_lshl_add_u32 v{V_MST}, v23, 4, v{V_MST}
    v_lshrrev_b32 v24, 5, v{L}
    v_lshl_add_u32 v{V_MST}, v24, 2, v{V_MST}
    v_lshlrev_b32 v25, 10, v23
    v_lshl_add_u32 v25, v24, 2, v25
    v_and_b32 v24, 7, v{L}
    v_lshl_add_u32 v25, v24, 4, v25
    s_lshr_b32 s{S_T0}, s{S_H}, 3            ; w'
    s_bfe_u32 s{S_T1}, s{S_H}, 0x20001       ; G'
    s_and_b32 s{S_T2}, s{S_H}, 1             ; nh
    s_and_b32 s{S_T3}, s{S_W}, 1             ; sig
    s_lshl_b32 s{S_PW}, s{S_T0}, 11
    s_lshl_b32 s{S_MB}, s{S_T3}, 10
    s_add_u32 s{S_PW}, s{S_PW}, s{S_MB}
    s_lshl_b32 s{S_MB}, s{S_T2}, 9
    s_add_u32 s{S_PW}, s{S_PW}, s{S_MB}
    s_lshl_b32 s{S_MB}, s{S_T1}, 6
    s_add_u32 s{S_PW}, s{S_PW}, s{S_MB}
    v_add_u32 v{V_MST}, s{S_PW}, v{V_MST}
    s_lshl_b32 s{S_T1}, s{S_T1}, 11
    s_lshl_b32 s{S_PW}, s{S_T0}, 8
    s_add_u32 s{S_T1}, s{S_T1}, s{S_PW}
    s_lshl_b32 s{S_T2}, s{S_T2}, 7
    s_add_u32 s{S_T1}, s{S_T1}, s{S_T2}
    s_lshl_b32 s{S_T3}, s{S_T3}, 3
    s_add_u32 s{S_T1}, s{S_T1}, s{S_T3}
    """)
    m0l = vm.issue(f"buffer_load_dword v28, v25, {srd(R_M0)}, s{S_T1} offen")
    A(f"""
    v_lshrrev_b32 v23, 3, v{L}
    s_lshl_b32 s{S_T1}, s{S_W}, 3
    v_add_u32 v23, s{S_T1}, v23
    v_lshlrev_b32 v{V_PST}, 13, v23
    v_lshl_add_u32 v{V_PST}, v24, 4, v{V_PST}
    v_and_b32 v23, {cfg.get("swz", 31)}, v23
    v_xor_b32 v23, s{S_H}, v23
    v_lshl_add_u32 v{V_PST}, v23, 7, v{V_PST}
    v_mov_b32 v24, -1
    v_mov_b32 v25, -1
    v_mov_b32 v26, -1
    v_mov_b32 v27, -1
    s_mov_b32 s{S_PW}, {WS_P}
    s_mov_b32 s{S_PR1}, {WS_P + 4096}
    """)
    vm.issue(f"buffer_store_dwordx4 v[24:27], v{V_PST}, {srd(R_WS)}, s{S_PW} offen sc1")
    vm.issue(f"buffer_store_dwordx4 v[24:27], v{V_PST}, {srd(R_WS)}, s{S_PR1} offen sc1")
    for i in range(1, 4):
        A(f"s_mov_b32 s{S_T0}, {WS_M + i*8192}")
        vm.issue(f"buffer_store_dword v24, v{V_MST}, {srd(R_WS)}, s{S_T0} offen sc1")
    A(f"""
    v_and_b32 v23, 15, v{L}
    v_lshlrev_b32 v30, 12, v22
    v_lshl_add_u32 v30, v23, 4, v30
    s_lshl_b32 s{S_T0}, s{S_H}, 17
    s_lshl_b32 s{S_T1}, s{S_W}, 8
    s_add_u32 s{S_T0}, s{S_T0}, s{S_T1}
    v_add_u32 v30, s{S_T0}, v30
    """)
    def wo_raw(cs):
        for ci, c in enumerate(cs):
            A(f"s_lshl_b32 s{S_T0}, s{S_ROT+c}, 15\ns_add_u32 s{S_T1}, s{S_T0}, 16384")
            for i in range(8):
                r = RE + 32 * ci + 4 * i
                k = vm.issue(f"buffer_load_dwordx4 {v(r,4)}, v30, {srd(R_WO)}, s{S_T0 if i < 4 else S_T1} offen offset:{(i&3)*1024}")
        return k
    wo1 = wo_raw([0, 1])
    A(f"""
    v_lshrrev_b32 v23, 2, v{L}               ; rho'
    v_and_b32 v31, 1, v23
    v_lshlrev_b32 v31, 4, v31
    v_bfe_u32 v32, v23, 1, 2
    v_add_u32 v31, v31, v32
    v_lshrrev_b32 v32, 5, v{L}
    v_lshl_add_u32 v31, v32, 3, v31
    v_and_b32 v32, 3, v{L}
    v_lshlrev_b32 v31, 13, v31
    v_lshl_add_u32 v31, v32, 4, v31
    s_lshl_b32 s{S_T0}, s{S_H}, 8
    s_lshl_b32 s{S_T1}, s{S_W}, 6
    s_add_u32 s{S_T0}, s{S_T0}, s{S_T1}
    v_add_u32 v31, s{S_T0}, v31
    """)
    for i in range(4):
        A(f"s_lshl_b32 s{S_T0}, s{S_ROT+i}, 20\nv_add_u32 v{16+i}, s{S_T0}, v31")
    A(f"""
    v_and_b32 v23, 3, v23
    v_lshlrev_b32 v31, 9, v22
    v_lshl_add_u32 v31, v23, 6, v31
    v_lshl_add_u32 v31, v32, 4, v31
    v_add_u32 v31, s{S_RING}, v31
    """)
    groups = [(R, t) for R in (R_WK, R_WV, R_WQ) for t in range(8)]
    gid = {}
    def g_issue(gi):
        R, t = groups[gi]
        for sg in range(4):
            A(f"s_add_u32 m0, s{S_RING}, {((gi % 8) * 4 + sg) * 1024}")
            A(f"s_mov_b32 s{S_T0}, {(4 * (t & 1) + 32 * sg) * 8192}")
            gid[gi] = vm.issue(f"buffer_load_dwordx4 v{16 + (t >> 1)}, {srd(R)}, s{S_T0} offen lds")
    def g_read(gi):
        R, t = groups[gi]
        regf = {R_WK: WK, R_WV: WV, R_WQ: lambda t, ab: WQ(t | 4, ab)}[R]
        vm.wait(gid[gi])
        for ab in range(2):
            kind, r0 = regs_of(regf(t, ab))[0]
            for m in range(4):
                A(f"ds_read_b64_tr_b16 {kind}[{r0+2*m}:{r0+2*m+1}], v31 offset:{(gi % 8) * 4096 + (32*(m>>1) + 4*(m&1))*64 + ab*8}")
    for gi in range(8): g_issue(gi)
    vm.wait(m0l)
    A(f"""
    v_min_u32 v28, -2, v28
    s_mov_b32 s{S_T0}, {WS_M}
    """)
    m0s = vm.issue(f"buffer_store_dword v28, v{V_MST}, {srd(R_WS)}, s{S_T0} offen sc1")
    lane_ma(A, V_MA, L, 23)
    A(f"""
    v_and_b32 v23, 2, v{L}
    v_cmp_eq_u32 vcc, 0, v23
    v_mov_b32 v23, 0xdddddddd
    v_mov_b32 v33, 0x88888888
    v_cndmask_b32 v{V_IDX}, v23, v33, vcc
    v_bfe_u32 v23, v{L}, 2, 2
    v_xor_b32 v23, v23, v22
    v_and_b32 v33, 15, v{L}
    v_lshlrev_b32 v33, 5, v33
    v_lshl_add_u32 v33, v23, 3, v33
    s_and_b32 s{S_T0}, s{S_W}, 1
    s_lshl_b32 s{S_T0}, s{S_T0}, 10
    s_lshr_b32 s{S_T1}, s{S_W}, 1
    s_lshl2_add_u32 s{S_T0}, s{S_T1}, s{S_T0}
    s_add_u32 s{S_T0}, s{S_T0}, {L_F}
    v_add_u32 v{V_FW}, s{S_T0}, v33
    v_xor_b32 v33, v{L}, v22
    v_lshlrev_b32 v33, 3, v33
    v_add_u32 v{V_FR}, {L_F}, v33
    s_lshl_b32 s{S_T0}, s{S_W}, 2
    v_add_u32 v{V_PW}, s{S_T0}, v{L16}
    v_lshlrev_b32 v{V_KA}, 8, v22
    v_bfe_u32 v33, v{L}, 1, 1
    v_lshl_add_u32 v{V_KA}, v33, 7, v{V_KA}
    v_bfe_u32 v33, v{L}, 2, 2
    v_lshl_add_u32 v{V_KA}, v33, 5, v{V_KA}
    v_and_b32 v33, 1, v{L}
    v_lshl_add_u32 v{V_KA}, v33, 4, v{V_KA}
    s_mov_b32 s{S_C}, {f2u(128**-0.5 * 1.4426950408889634)}
    s_mov_b32 s{S_THR}, {f2u(2.0 ** cfg.get("thr", 32))}
    s_mov_b32 s{S_ON}, 0x3f803f80
    s_mov_b32 s{S_ON+1}, 0x3f803f80
    s_mov_b32 s{S_RDY}, 0
    s_mov_b32 s{S_S}, 0
    s_mov_b32 s{S_TAG}, 0
    s_lshl_b32 s{S_T0}, s{S_H}, 13
    s_and_b32 s{S_T1}, s{S_W}, 1
    s_lshl_b32 s{S_T1}, s{S_T1}, 12
    s_add_u32 s{S_T1}, s{S_T1}, s{S_T0}
    s_add_u32 s{S_PR0}, s{S_T1}, {WS_P}
    s_add_u32 s{S_T1}, s{S_T0}, s{S_W2K}       ; h*8K + w*2K
    s_lshl_b32 s{S_KVB}, s{S_T1}, 1
    s_add_u32 s{S_KVB}, s{S_KVB}, {WS_KV}
    s_lshr_b32 s{S_PUB}, s{S_T1}, 1
    s_add_u32 s{S_PUB}, s{S_PUB}, {WS_KVM - 131072}
    s_add_u32 s{S_MB}, s{S_W2K}, {WS_M}
    s_lshl_b32 s{S_FKV}, s{S_H}, 7
    s_add_u32 s{S_FKV}, s{S_FKV}, {FL_KV}
    """)
    for i in range(4):
        A(f"s_mul_i32 s{S_T0}, s{S_ROT+i}, {RP}\ns_add_u32 s{S_T0}, s{S_T0}, {L_REG}\nv_add_u32 v{V_R[i]}, s{S_T0}, v{L16}")
    A(f"""
    v_mov_b32 v{PUB}, 0
    v_mov_b32 v{PUB+1}, 0
    v_mov_b32 v{PUB+2}, 0
    v_mov_b32 v{PUB+3}, 0
    v_lshlrev_b32 v23, 2, v{L}
    v_and_b32 v23, 16, v23
    v_mov_b32 v33, 0x3f80
    v_lshlrev_b32 v33, v23, v33
    v_bfe_u32 v23, v{L}, 3, 1
    v_and_b32 v34, 1, v{L}
    v_lshl_add_u32 v23, v23, 1, v34
    """)
    for i in range(4):
        A(f"v_cmp_eq_u32 vcc, {i}, v23\nv_cndmask_b32 v{44+i}, 0, v33, vcc")
    A(f"ds_write_b128 v{V_MA}, v[44:47] offset:{L_SEL}")
    vm.wait(wo1)
    for c in range(2):
        for T in range(4):
            for i in range(8):
                A(f"v_mov_b32 v{192 + 8*(4*c+T) + i}, v{RE + 32*c + 4*i + T}")
    wo2 = wo_raw([2, 3])
    stamp(A, cfg, 1); vm.n += bool(cfg.get("prof"))
    for gi in range(16):
        g_read(gi)
        A("s_waitcnt lgkmcnt(0)")
        g_issue(gi + 8)
        if gi == 8:
            assert vm.known >= m0s
            A(f"""
            s_and_b32 s{S_T0}, s{S_XCC}, 3
            s_lshl_b32 s{S_T0}, s{S_T0}, 3
            s_lshl_b32 s{S_T0}, 1, s{S_T0}
            s_and_b32 s{S_T1}, s{S_XCC}, 4
            v_mov_b32 v23, s{S_T0}
            s_mov_b64 exec, 1
            """)
            vm.issue(f"buffer_atomic_add v23, off, {srd(R_DBG)}, s{S_T1} offset:{D_HIST}")
            A("s_mov_b64 exec, -1")
    for gi in range(16, 20): g_read(gi)
    A("s_waitcnt lgkmcnt(0)")
    for f in range(16):
        A(f"ds_write_b128 v{V_R[0]}, {v(128 + 4*f, 4)} offset:{O_WQ + f*1024}")
    for gi in range(20, 24): g_read(gi)
    A("s_waitcnt lgkmcnt(0)")
    for fi, (c, T) in enumerate(WOS):
        for i in range(8):
            A(f"v_mov_b32 v{32 + 8*(fi&1) + i}, v{RE + 32*(c-2) + 4*i + T}")
        A(f"ds_write_b128 v{V_R[0]}, {v(32 + 8*(fi&1), 4)} offset:{O_WO + fi*2048}")
        A(f"ds_write_b128 v{V_R[0]}, {v(36 + 8*(fi&1), 4)} offset:{O_WO + fi*2048+1024}")
    wq_prefetch(A)
    stamp(A, cfg, 2)
    A(f"""
    s_mov_b32 m0, {L_DUMMY}
    C_W0:
    buffer_load_dwordx2 v[24:25], off, {srd(R_DBG)}, 0 offset:{D_HIST} sc1
    buffer_load_dwordx4 v[28:31], off, {srd(R_DBG)}, 0 offset:{D_ARR} sc1
    buffer_load_dwordx4 v[32:35], off, {srd(R_DBG)}, 0 offset:{D_ARR+16} sc1
    """)
    spin_dec(A)
    A(f"""
    s_waitcnt vmcnt(0)
    v_sad_u8 v26, v24, 0, 0
    v_sad_u8 v26, v25, 0, v26
    v_lshrrev_b32 v26, 2, v26
    v_min3_u32 v26, v26, v29, v30
    v_min3_u32 v26, v26, v31, v32
    v_min3_u32 v26, v26, v33, v34
    v_min_u32 v26, v26, v35
    v_readfirstlane_b32 s{S_T0}, v26
    s_cmp_lt_u32 s{S_T0}, 32
    s_cbranch_scc1 C_W0
    v_or_b32 v24, v24, v25
    v_and_b32 v24, 0x80808080, v24
    v_readfirstlane_b32 s{S_SENT}, v24      ; nonzero -> all chain workgroups share one XCC
    """)

def kv_ready(A, s_target, tag):
    A(f"""
    s_cmp_gt_u32 s{S_RDY}, s{s_target}
    s_cbranch_scc1 RDY_OK{tag}
    RDY_P{tag}:
    buffer_load_dwordx4 v[24:27], off, {srd(R_WS)}, s{S_FKV} sc1
    buffer_load_dwordx4 v[28:31], off, {srd(R_WS)}, s{S_FKV} offset:16 sc1
    """)
    spin_dec(A)
    A("s_waitcnt vmcnt(0)")
    for g in range(7):
        A(f"v_mad_u32_u24 v{25+g}, v{25+g}, 7, {g}")
    A(f"""
    v_min3_u32 v24, v25, v26, v27
    v_min3_u32 v24, v24, v28, v29
    v_min3_u32 v24, v24, v30, v31
    s_nop 0
    v_readfirstlane_b32 s{S_RDY}, v24
    s_cmp_gt_u32 s{S_RDY}, s{s_target}
    s_cbranch_scc0 RDY_P{tag}
    RDY_OK{tag}:
    """)

def wq_prefetch(A, f0=0, f1=14):
    for f in range(f0, f1):
        A(f"ds_read_b128 {v(RE + 4*f, 4)}, v{V_R[0]} offset:{O_WQ + f*1024}")

def fold(A, acc, d0, d1):
    A(f"v_pk_add_f32 {v(acc,2)}, {v(acc,2)}, {v(acc+2,2)}")
    A(f"v_pk_add_f32 {v(acc+4,2)}, {v(acc+4,2)}, {v(acc+6,2)}")
    A(f"v_cvt_pk_bf16_f32 v{d0}, v{acc}, v{acc+1}")
    A(f"v_cvt_pk_bf16_f32 v{d1}, v{acc+4}, v{acc+5}")

def delay(A, n):
    while n > 0:
        A(f"s_nop {min(n,16)-1}"); n -= min(n, 16)

ABL = {1: r"buffer_load|buffer_store_dwordx4 v\[12", 2: r"v_mov_b64 v\[\d+:\d+\], 0", 3: r"ds_read_b128 .*offset:(16|17|18|19|2\d|30|31)\d\d\d$",
       4: r"v_smfmac_f32_16x16x64_bf16 v\[10[48]", 5: r"s_barrier", 6: r"v_fmac|v_mul_f32 v10", 7: r"s_waitcnt lgkmcnt",
       9: r"buffer_store_dwordx4 v\[12", 10: r"buffer_load_dword v100", 11: r"buffer_store_dwordx4 v\[12|buffer_load_dword v100",
       8: r"buffer_load|buffer_store_dwordx4 v\[12|v_mov_b64 v\[\d+:\d+\], 0|ds_read_b128 .*offset:(16|17|18|19|2\d|30|31)\d\d\d$"}
def chain_loop(A, cfg, tag, sc):
    fine = cfg.get("prof", 0) >= 2
    P = lambda i: A(f"s_memtime s[{4+2*i}:{5+2*i}]") if fine and (cfg.get("pm", -1) >> i) & 1 else None
    import os
    abl = ABL.get(cfg.get("abl", 0))
    cnt = [0, 2]
    def sl(*ins):
        if fine and "g0" in cfg and cnt[0] >= cfg["g0"] and (cnt[0] - cfg["g0"]) % cfg.get("gs", 4) == 0 and cnt[1] < 18:
            A(f"s_memtime s[{4+2*cnt[1]}:{5+2*cnt[1]}]"); cnt[1] += 1
        cnt[0] += 1
        for x in ins:
            for y in x.split("\n"):
                if abl and re.search(abl, y): continue
                A(y)
    fr = lambda t, R=RA: R + 4 * t
    q = lambda t, ab, R=RA: SM(RQ + 4*ab, fr(t, R), WQ(t, ab))
    k = lambda t, ab, R=RA: SM(RK + 4*ab, fr(t, R), WK(t, ab))
    vv = lambda t, ab, R=RA: SM(RV + 4*ab, fr(t, R), WV(t, ab))
    rd = lambda t: f"ds_read_b128 {v(fr(t),4)}, v{V_R[t>>1]} offset:{O_A + (t&1)*1024}"
    def wo(c, T, hf):
        fi = list(WOS).index((c, T))
        return f"ds_read_b128 {v(WOS[(c, T)] + 4*hf, 4)}, v{V_R[0]} offset:{O_WO + fi*2048 + hf*1024}"
    add = lambda acc, i: f"v_add_f32 v{acc+i}, v{acc+i}, v{acc+2+i}"
    cvt = lambda d, s_: f"v_cvt_pk_bf16_f32 v{d}, v{s_}, v{s_+1}"
    z = lambda r: f"v_mov_b64 {v(r,2)}, 0"
    lg = lambda n: f"s_waitcnt lgkmcnt({n})"
    def m_loads(R):
        A(f"buffer_load_dwordx4 {v(R,4)}, v{V_MA}, {srd(R_WS)}, s{S_MB} offen sc1")
        A(f"buffer_load_dwordx4 {v(R+4,4)}, v{V_MA}, {srd(R_WS)}, s{S_MB} offen offset:1024 sc1")
    kvl = lambda i: f"buffer_load_dwordx4 {v(RKX+4*i,4)}, v{V_KA if i < 2 else V_MA}, {srd(R_WS)}, s{S_KVB} offen offset:{i*1024} sc1"
    A(f"LOOP{tag}:")
    delay(A, cfg.get("dm0", 0))
    m_loads(RA)
    if fine:
        P(18)
        A(f"s_cmp_eq_u32 s{S_S}, {cfg.get('pstep', 41)}\ns_cbranch_scc0 NODUMP{tag}\ns_waitcnt lgkmcnt(0) vmcnt(0)")
        for i in range(19): A(f"v_writelane_b32 v26, s{4+2*i}, {i}")
        A(f"v_lshrrev_b32 v27, 2, v{V_MA}\nbuffer_store_dword v26, v27, {srd(R_WS)}, s{S_PROF} offen offset:512\ns_waitcnt vmcnt(0)\nNODUMP{tag}:")
        P(0)
    for i in range(4): A(z(RV + 2*i))
    A(f"s_waitcnt vmcnt({4 if cfg.get('prof') else 3}) lgkmcnt(0)")
    for i in range(4): A(z(RK + 2*i))
    delay(A, cfg.get("dm1", 16))
    A(f"MP{tag}:")
    m_loads(RA)
    spin_dec(A)
    A(f"s_cmp_eq_u32 s{S_S}, 63")
    for i in (2, 3, 0, 1): A(z(RQ + 2*i))
    A("s_waitcnt vmcnt(3)")
    sl(f"v_max3_u32 v25, v{RA}, v{RA+1}, v{RA+2}", f"v_max_u32 v25, v25, v{RA+3}")
    sl(q(0, 0), f"ds_write_b128 v{V_R[0]}, {v(RA,4)} offset:{O_A}", "s_waitcnt vmcnt(2)")
    P(1)
    sl(f"v_max3_u32 v25, v25, v{RA+4}, v{RA+5}", f"v_max3_u32 v25, v25, v{RA+6}, v{RA+7}", f"v_cmp_eq_u32 vcc, -1, v25")
    sl(q(0, 1), f"ds_write_b128 v{V_R[0]}, {v(RA+4,4)} offset:{O_A+1024}")
    sl(q(1, 0), f"s_cbranch_vccnz MP{tag}")
    sl(q(1, 1), f"ds_read_b128 {v(RE,4)}, v{V_R[0]} offset:{O_WQ + 14*1024}")
    sl(vv(0, 0), f"ds_read_b128 {v(RE+4,4)}, v{V_R[0]} offset:{O_WQ + 15*1024}")
    sl(vv(0, 1), lg(2)); P(2); A("s_barrier"); P(3)
    TCH, SX, PX, PM, ON, QF, KF = 100, 96, 100, 18, 20, 48, 56
    SA, LL, O0, O1, OP, SEL = 24, 28, 32, 36, 40, 44
    pub = f"buffer_store_dwordx4 {v(PUB,4)}, v{V_MA}, {srd(R_WS)}, s{S_PUB} offen sc1"
    mulc = lambda r: f"v_mul_f32 v{r}, s{S_C}, v{r}"
    fw = lambda r, off: f"ds_write_b32 v{V_FW}, v{r} offset:{off}"
    tr = lambda r, off: f"ds_read_b64_tr_b16 {v(r,2)}, v{V_FR} offset:{off}"
    ad = lambda r, i: f"v_add_f32_dpp v{r+2+i}, v{r+i}, v{r+2+i} {DPP('0,1,0,1')}"
    exd = lambda r, i: f"v_exp_f32_dpp v{r+i}, v{r+2+i} {DPP('2,3,2,3')}"
    sl(rd(2), rd(3))
    sl(vv(1, 0), rd(4), kvl(0))
    sl(vv(1, 1), rd(5))
    sl(k(0, 0), rd(6))
    sl(k(0, 1), rd(7), "s_cbranch_scc1 C_LAST", lg(5))
    sl(q(2, 0), kvl(1), lg(4))
    sl(q(3, 0), lg(3))
    sl(q(4, 0), lg(2))
    sl(q(5, 0), lg(1), f"v_lshlrev_b32 v{TCH}, 2, v{V_MA}")
    sl(q(6, 0), kvl(2), lg(0))
    sl(q(7, 0), wo(2, 0, 0))
    sl(q(2, 1), wo(2, 0, 1))
    sl(q(3, 1), wo(3, 0, 0), add(RQ, 0))
    sl(q(4, 1), kvl(3), add(RQ, 1))
    sl(q(5, 1), wo(3, 0, 1), f"s_add_u32 s{S_KVB}, s{S_KVB}, 0x80000", mulc(RQ))
    sl(q(6, 1), wo(2, 1, 0), mulc(RQ + 1))
    sl(q(7, 1), wo(2, 1, 1), cvt(RQ + 2, RQ))
    P(4)
    sl(k(1, 0), fw(RQ + 2, 2048), z(RQ))
    sl(k(2, 0), add(RQ + 4, 0), add(RQ + 4, 1), mulc(RQ + 4), mulc(RQ + 5), cvt(RQ + 6, RQ + 4), fw(RQ + 6, 2560))
    sl(k(3, 0), f"buffer_load_dword v{TCH}, {srd(R_WS)}, s{S_KVB} offen sc1 lds", z(RQ + 2))
    pe = cfg.get("pe", 1)
    sl(k(4, 0), z(RQ + 4))
    sl(k(5, 0), *([pub] if pe else []), z(RQ + 6))
    sl(k(6, 0), lg(0), "s_barrier", tr(QF, 2048), tr(QF + 2, 2560))
    P(5)
    sl(k(7, 0), tr(QF + 4, 3072), tr(QF + 6, 3584))
    sl(k(1, 1))
    sl(k(2, 1), add(RK, 0))
    sl(k(3, 1), f"s_waitcnt vmcnt({4 if pe else 3}) lgkmcnt(2)", add(RK, 1))
    sl(MF(SX, RKX, QF, 0), lg(0), cvt(RK + 2, RK), f"v_mov_b64 {v(ON,2)}, s[{S_ON}:{S_ON+1}]")
    sl(MF(SX, RKX + 4, QF + 4, v(SX, 4)), fw(RK + 2, 0), z(RK), f"v_mov_b64 {v(ON+2,2)}, s[{S_ON}:{S_ON+1}]")
    sl(k(4, 1), f"v_mov_b32 v{PM}, 0")
    sl(k(5, 1), ad(SX, 0))
    sl(k(6, 1), ad(SX, 1))
    sl(k(7, 1), exd(SX, 0))
    sl(vv(2, 0), exd(SX, 1))
    sl(vv(3, 0), add(RK + 4, 0), add(RK + 4, 1), cvt(RK + 6, RK + 4), fw(RK + 6, 512), cvt(SX, SX))
    P(6)
    sl(vv(4, 0), f"ds_write_b32 v{V_PW}, v{SX} offset:{L_PX}", z(RK + 4))
    sl(vv(5, 0))
    sl(vv(6, 0))
    sl(vv(7, 0))
    sl(vv(2, 1), lg(0), "s_barrier", tr(KF, 0), tr(KF + 2, 512))
    P(7)
    sl(vv(3, 1), tr(KF + 4, 1024), tr(KF + 6, 1536), add(RV, 0))
    sl(vv(4, 1), f"ds_read_b128 {v(PX,4)}, v{V_MA} offset:{L_PX}", add(RV, 1))
    sl(vv(5, 1), *([] if pe else [pub]))
    sl(vv(6, 1), f"s_add_u32 s{S_PUB}, s{S_PUB}, 0x20000", cvt(PUB + 1, RV))
    sl(vv(7, 1), lg(3), f"v_min_u32 v{PUB}, -2, v{RK+2}")
    P(8)
    sl(MF(SA, KF, QF, 0), lg(1), f"v_mov_b32 v{PUB+2}, v{RK+6}", z(RK + 2))
    sl(MF(SA, KF + 4, QF + 4, v(SA, 4)), "s_waitcnt vmcnt(2) lgkmcnt(0)", z(RK + 6), add(RV + 4, 0))
    P(9)
    def pv(fast):
        o = (lambda *x: x) if fast else (lambda *x: ())
        sl(MF(LL, ON, PX, 0), *o(wo(3, 1, 0), add(RV + 4, 1), cvt(PUB + 3, RV + 4), wo(3, 1, 1), ad(SA, 0), ad(SA, 1)))
        sl(MF(O0, RVX, PX, 0), exd(SA, 0), exd(SA, 1))
        sl(MF(O1, RVX + 4, PX, 0), cvt(PM + 1, SA), *o(wo(2, 2, 0), wo(2, 2, 1)))
        if fast: P(10)
        sl(MH(LL, ON, PM, v(LL, 4)), *o(wo(3, 2, 0)))
        sl(MH(O0, PUB, PM, v(O0, 4)), *o(wo(3, 2, 1)))
        sl(MH(O1, PUB + 2, PM, v(O1, 4)), f"v_rcp_f32 v{LL+2}, v{LL}")
        sl(*o(f"v_max_f32 v{LL}, v{LL}, v{LL+2}", f"v_cmp_lt_f32 vcc, s{S_THR}, v{LL}"))
        if cfg.get("pk0", 1):
            for i in range(2): A(f"v_pk_mul_f32 {v(O0+2*i,2)}, {v(O0+2*i,2)}, {v(LL+2,2)} op_sel_hi:[1,0]")
        else:
            for i in range(4): A(f"v_mul_f32 v{O0+i}, v{O0+i}, v{LL+2}")
        sl(cvt(OP, O0), cvt(OP + 1, O0 + 2))
        if fast: P(11)
        for i in range(2): A(f"v_pk_mul_f32 {v(O1+2*i,2)}, {v(O1+2*i,2)}, {v(LL+2,2)} op_sel_hi:[1,0]")
        sl(cvt(OP + 2, O1), cvt(OP + 3, O1 + 2), f"ds_write_b128 v{V_R[0]}, {v(OP,4)} offset:{O_A}")
    pv(True)
    A(f"s_cbranch_vccnz {'FRET' if abl else 'FBK'}{tag}\nFRET{tag}:")
    OF = [OP, 64, 68, 24]
    so = lambda c, T: SM(RQ + 4*T, OF[c], WO(c, T))
    sl(so(0, 0), f"s_add_u32 s{S_S}, s{S_S}, 1", f"s_and_b32 s{S_T0}, s{S_S}, 3", f"s_lshl_b32 s{S_T0}, s{S_T0}, 13")
    sl(so(0, 1), f"s_add_u32 s{S_MW}, s{S_T0}, {WS_M}", f"s_add_u32 s{S_MB}, s{S_MW}, s{S_W2K}", f"s_xor_b32 s{S_MR}, s{S_MW}, 0x4000")
    sl(so(0, 2), f"s_cmp_lt_u32 s{S_W}, 2", lg(0)); P(12); A("s_barrier"); P(13)
    for c in range(1, 4): A(f"ds_read_b128 {v(OF[c],4)}, v{V_R[c]} offset:{O_A}")
    sl(so(0, 3), wo(2, 3, 0), wo(2, 3, 1), lg(4))
    PK = 32
    pk = lambda i: cvt(PK + i, RQ + 2*i)
    tg = lambda sg: f"v_and_or_b32 v{PK+4*sg}, v{PK+4*sg}, -2, s{S_TAG}"
    ps = lambda sg: f"buffer_store_dwordx4 {v(PK+4*sg,4)}, v{V_PST}, {srd(R_WS)}, s{S_PR1 if sg else S_PW} offen {sc}"
    sl(so(1, 0), lg(3))
    sl(so(2, 0), lg(2), f"v_mov_b32 v42, -1")
    sl(so(3, 0), wo(3, 3, 0))
    sl(so(1, 1), wo(3, 3, 1))
    sl(so(2, 1), f"ds_read_b128 {v(SEL,4)}, v{V_MA} offset:{L_SEL}", pk(0))
    sl(so(3, 1), tg(0))
    sl(so(1, 2), pk(1))
    sl(so(2, 2), pk(2), pk(3), ps(0))
    P(14)
    sl(so(3, 2), lg(0))
    sl(so(1, 3))
    sl(so(2, 3), pk(4))
    sl(so(3, 3), tg(1), pk(5))
    sl(pk(6), pk(7), ps(1))
    P(15)
    n0 = cfg.get("n0", 14)
    wq_prefetch(A, 0, n0)
    A(f"s_cbranch_scc1 RED{tag}")
    wq_prefetch(A, n0, 14)
    A(f"""
    buffer_store_dword v42, v{V_MST}, {srd(R_WS)}, s{S_MR} offen {sc}
    s_cmp_eq_u32 s{S_W}, 3
    s_cbranch_scc0 JOIN{tag}
    s_add_u32 s{S_T3}, s{S_S}, 1
    s_min_u32 s{S_T3}, s{S_T3}, 63
    """)
    kv_ready(A, S_T3, tag)
    A(f"""
    JOIN{tag}:
    s_xor_b32 s{S_TAG}, s{S_TAG}, 1
    s_waitcnt lgkmcnt(0)
    s_barrier
    s_branch LOOP{tag}
    """)
    A(f"""
    FBK{tag}:
    """)
    X = 104 - 8 * 9
    for r in (SX + 2, SX + 3, SA + 2, SA + 3): A(f"v_mov_b32_dpp v{r}, v{r} {DPP('2,3,2,3')}")
    A(f"""
    ds_write_b32 v{V_PW}, v{SX+2} offset:{L_PX + 1024}
    ds_write_b32 v{V_PW}, v{SX+3} offset:{L_PX + 2048}
    s_waitcnt lgkmcnt(0)
    s_barrier
    ds_read_b128 {v(X,4)}, v{V_MA} offset:{L_PX + 1024}
    ds_read_b128 {v(X+4,4)}, v{V_MA} offset:{L_PX + 2048}
    v_max_f32 v{LL}, v{SA+2}, v{SA+3}
    s_waitcnt lgkmcnt(0)
    """)
    for i in range(4): A(f"v_max3_f32 v{LL}, v{LL}, v{X+2*i}, v{X+2*i+1}")
    xG(A, LL, LL + 1, "v_max_f32")
    for r in list(range(X, X + 8)) + [SA + 2, SA + 3]: A(f"v_sub_f32 v{r}, v{r}, v{LL}")
    for i in range(8): A(f"v_exp_f32 v{X+i}, v{X+i}")
    for i in range(4): A(f"v_cvt_pk_bf16_f32 v{PX+i}, v{X+i}, v{X+4+i}")
    pv(False)
    A(f"s_branch FRET{tag}")
    PB, PA = 24, 20
    A(f"""
    RED{tag}:
    s_cmp_eq_u32 s{S_W}, 0
    """)
    if cfg.get("dp0", -1) >= 0:
        delay(A, cfg["dp0"])
        A(f"s_cbranch_scc1 PP{tag}")
        delay(A, cfg.get("dp1", 0))
    else:
        A(f"""
        s_waitcnt vmcnt(1)
        s_cbranch_scc1 PP{tag}
        s_waitcnt vmcnt(0)
        """)
    def pl(B):
        for i in range(4):
            A(f"buffer_load_dwordx4 {v(B+4*i,4)}, v{V_MA}, {srd(R_WS)}, s{S_PR0} offen offset:{i*1024} sc1")
    def pr(B, nb):
        for i in range(4):
            A(f"s_waitcnt vmcnt({nb+3-i})")
            A(MF(PA, SEL, B + 4*i, "0" if i == 0 else v(PA, 4)))
            if i == 1: A(f"v_bitop3_b32 v40, v{B}, v{B+4}, s{S_TAG} bitop3:0x7e")
        A(f"""
        v_bitop3_b32 v41, v{B+8}, v{B+12}, s{S_TAG} bitop3:0x7e
        v_bitop3_b32 v40, v40, 1, v41 bitop3:0xc8
        v_cmp_ne_u32 vcc, 0, v40
        v_add_f32_dpp v{PA}, v{PA}, v{PA} row_ror:8 row_mask:0xf bank_mask:0xf
        v_add_f32_dpp v{PA+1}, v{PA+1}, v{PA+1} row_ror:8 row_mask:0xf bank_mask:0xf
        v_cvt_pk_bf16_f32 v41, v{PA}, v{PA+1}
        v_min_u32 v41, -2, v41
        """)
    A(f"PP{tag}:")
    if cfg.get("ps", 2) == 2:
        pl(PB)
        P(16)
        wq_prefetch(A, n0, 14)
        delay(A, cfg.get("dp2", 20))
        A(f"PQ{tag}:")
        pl(RQ)
        pr(PB, 4)
        A(f"s_cbranch_vccnz PF{tag}\nPD{tag}:")
    else:
        pl(PB)
        P(16)
        spin_dec(A)
        pr(PB, 0)
        A(f"s_cbranch_vccnz PP{tag}")
    A(f"""
    buffer_store_dword v41, v{V_MST}, {srd(R_WS)}, s{S_MW} offen {sc}
    s_barrier
    s_xor_b32 s{S_TAG}, s{S_TAG}, 1
    """)
    P(17)
    if cfg.get("prof"):
        A(f"""
        s_memtime s[{S_TS}:{S_TS+1}]
        s_lshl_b32 s{S_T0}, s{S_S}, 2
        s_add_u32 s{S_T0}, s{S_T0}, s{S_PROF}
        s_waitcnt lgkmcnt(0)
        v_mov_b32 v43, s{S_TS}
        s_mov_b64 exec, 1
        buffer_store_dword v43, off, {srd(R_WS)}, s{S_T0} offset:64
        s_mov_b64 exec, -1
        """)
    A(f"s_branch LOOP{tag}")
    if cfg.get("ps", 2) == 2:
        A(f"PF{tag}:")
        pl(PB)
        spin_dec(A)
        pr(RQ, 4)
        A(f"s_cbranch_vccz PD{tag}\ns_branch PQ{tag}")

def chain(A, cfg):
    cfg["vt"] = 23
    chain_init(A, cfg)
    A(f"s_mov_b32 s{S_T3}, 1")
    kv_ready(A, S_T3, "I")
    stamp(A, cfg, 3)
    A(f"s_waitcnt lgkmcnt(0)\ns_barrier\ns_cmp_eq_u32 s{S_SENT}, 0\ns_cbranch_scc1 LOOPS")
    chain_loop(A, cfg, "F", "")
    chain_loop(A, cfg, "S", "sc1")
    A("C_LAST:")
    A(f"buffer_store_dwordx4 {v(PUB,4)}, v{V_MA}, {srd(R_WS)}, s{S_PUB} offen sc1")
    A(f"s_add_u32 s{S_PUB}, s{S_PUB}, 0x20000")
    A("s_waitcnt lgkmcnt(0)")
    for t in range(2, 8):
        for ab in range(2): A(SM(RV + 4*ab, RA + 4*t, WV(t, ab)))
    for t in range(1, 8):
        for ab in range(2): A(SM(RK + 4*ab, RA + 4*t, WK(t, ab)))
    fold(A, RV, 73, 75)
    fold(A, RK, 72, 74)
    A(f"v_min_u32 v72, -2, v72")
    A(f"buffer_store_dwordx4 v[72:75], v{V_MA}, {srd(R_WS)}, s{S_PUB} offen sc1")
    cfg["vt"] = 76
    stamp(A, cfg, 4)
    A("s_waitcnt vmcnt(0)")
```

```python
from common import *

def stamp(A, cfg, idx):
    if not cfg.get("prof"): return
    A(f"""
    s_memtime s[{S_TS}:{S_TS+1}]
    s_waitcnt lgkmcnt(0)
    v_mov_b32 v{cfg['vt']}, s{S_TS}
    s_mov_b64 exec, 1
    buffer_store_dword v{cfg['vt']}, off, {srd(R_WS)}, s{S_PROF} offset:{idx*4}
    s_mov_b64 exec, -1
    """)

def spin_dec(A):
    A(f"s_sub_u32 s{S_SPIN}, s{S_SPIN}, 1\ns_cbranch_scc1 EXIT")

class Stager:
    def __init__(self, A, s_base, nring, batch=4):
        self.A = A; self.s_base = s_base; self.nring = nring; self.batch = batch
        self.slots = []
        self.issued = 0; self.done = 0
    def add(self, r, voff, soff, reads):
        self.slots.append((r, voff, soff, reads))
    def issue(self, n):
        A = self.A
        for _ in range(n):
            if self.issued >= len(self.slots): return
            r, voff, soff, _r = self.slots[self.issued]
            pos = self.issued % self.nring
            A(f"s_add_u32 m0, s{self.s_base}, {pos*1024}")
            A(f"s_mov_b32 s{S_T0}, {soff}")
            A(f"buffer_load_dwordx4 v{voff}, {srd(r)}, s{S_T0} offen lds")
            self.issued += 1
    def run(self, drained=False):
        A = self.A
        known = self.issued if drained else self.done
        while self.done < len(self.slots):
            n = min(self.batch, len(self.slots) - self.done)
            if self.done + n > known:
                A(f"s_waitcnt vmcnt({self.issued - self.done - n})")
            for i in range(self.done, self.done + n):
                pos = i % self.nring
                for f in self.slots[i][3]:
                    A(f(pos * 1024))
            self.done += n
            if self.issued < len(self.slots):
                A("s_waitcnt lgkmcnt(0)")
                self.issue(n)
        A("s_waitcnt lgkmcnt(0)")

def xlane_sum8(A, t, u, op="v_add_f32"):
    A(f"{op}_dpp v{t}, v{t}, v{t} row_ror:8 row_mask:0xf bank_mask:0xf")
    A(f"v_mov_b32 v{u}, v{t}")
    A(f"v_permlane16_swap_b32 v{t}, v{u}")
    A(f"{op} v{t}, v{t}, v{u}")
    A(f"v_mov_b32 v{u}, v{t}")
    A(f"v_permlane32_swap_b32 v{t}, v{u}")
    A(f"{op} v{t}, v{t}, v{u}")

def rnd_bf16(A, t):
    A(f"v_cvt_pk_bf16_f32 v{t}, v{t}, v{t}")
    A(f"v_and_b32 v{t}, 0xffff0000, v{t}")

def xG(A, t, u, op):
    A(f"v_mov_b32 v{u}, v{t}")
    A(f"v_permlane16_swap_b32 v{t}, v{u}")
    A(f"{op} v{t}, v{t}, v{u}")
    A(f"v_mov_b32 v{u}, v{t}")
    A(f"v_permlane32_swap_b32 v{t}, v{u}")
    A(f"{op} v{t}, v{t}, v{u}")

S_GI, S_NR, S_R, S_SEG, S_RING, S_BUF, S_HOFF = 64, 65, 66, 67, 68, 69, 70
S_G2, S_H2 = 83, 84
V_L, V_L16, V_T = 1, 2, 3

def worker(A, cfg):
    cfg["vt"] = V_T
    A(f"""
    WORKER:
    s_mov_b32 s{S_G2}, s{S_G}
    s_mov_b32 s{S_H2}, s{S_H}
    s_sub_u32 s{S_GI}, s{S_G}, 1
    s_lshl_b32 s{S_T0}, s{S_GI}, 5
    s_add_u32 s85, s{S_T0}, s{S_H}          ; r
    """)
    if cfg.get("remap", 1):
        A(f"""
        s_mul_i32 s{S_H}, s85, 293
        s_lshr_b32 s{S_H}, s{S_H}, 11
        s_mul_i32 s{S_T0}, s{S_H}, 7
        s_sub_u32 s{S_GI}, s85, s{S_T0}
        s_add_u32 s{S_G}, s{S_GI}, 1
        """)
    A(f"""
    s_cmp_eq_u32 s{S_GI}, 0
    s_cselect_b32 s{S_NR}, 10, 9
    s_lshl_b32 s{S_RING}, s{S_W}, 15
    """)
    RAW, F = 16, 48
    A(f"""
    s_lshl_b32 s{S_T0}, s{S_W}, 5
    s_add_u32 s{S_T0}, s{S_T0}, s{S_H}      ; u
    s_lshl_b32 s{S_T1}, s{S_NR}, 2
    s_cmp_lt_u32 s{S_T0}, s{S_T1}
    s_cselect_b32 s{S_BUF}, 1, 0
    s_lshr_b32 s{S_T1}, s{S_T0}, 2
    s_mul_i32 s{S_T1}, s{S_T1}, 7
    s_add_u32 s{S_T1}, s{S_T1}, s{S_GI}     ; seg
    s_and_b32 s{S_T0}, s{S_T0}, 3           ; quarter
    s_lshl_b32 s{S_T2}, s{S_T1}, 15
    s_lshl_b32 s{S_T3}, s{S_T0}, 13
    s_add_u32 s{S_SEG}, s{S_T2}, s{S_T3}
    s_lshl_b32 s{S_T3}, s{S_T0}, 7
    s_add_u32 s{S_R}, s{S_T2}, s{S_T3}
    v_and_b32 v4, 7, v{V_L}
    v_lshrrev_b32 v5, 3, v{V_L}
    v_lshlrev_b32 v6, 10, v4
    v_lshl_add_u32 v6, v5, 4, v6            ; row*1024 + p*16
    v_lshlrev_b32 v7, 4, v4
    v_lshl_add_u32 v7, v5, 9, v7            ; p*512 + row*16
    s_cmp_eq_u32 s{S_BUF}, 0
    s_cbranch_scc1 W_NOLN0
    """)
    for i in range(8):
        A(f"buffer_load_dwordx4 v[{RAW+4*i}:{RAW+4*i+3}], v6, {srd(R_X)}, s{S_SEG} offen offset:{i*128}")
    A("W_NOLN0:")
    ntouch = 0
    if cfg.get("touch", 1):
        A(f"""
        s_lshl_b32 s{S_T0}, s85, 2
        s_add_u32 s{S_T0}, s{S_T0}, s{S_W}
        s_mul_i32 s{S_T0}, s{S_T0}, {37*128}
        v_lshlrev_b32 v4, 7, v{V_L}
        s_mov_b32 exec_hi, 31
        """)
        for R in {1: (R_WO, R_WQ), 2: (R_WO, R_WK, R_WV, R_WQ), 3: (R_WO, R_WK, R_WV, R_WQ)}[cfg.get("touch", 1)]:
            for o in ((0,) if cfg.get("touch", 1) == 3 else (0, 64)):
                A(f"buffer_load_dword v{120+ntouch}, v4, {srd(R)}, s{S_T0} offen offset:{o}"); ntouch += 1
        A("s_mov_b32 exec_hi, -1")
    VS, VRK, VRV = 8, 9, 10
    A(f"""
    v_lshrrev_b32 v4, 2, v{V_L}
    v_and_b32 v5, 3, v{V_L}
    v_lshlrev_b32 v{VS}, 13, v4
    v_lshl_add_u32 v{VS}, v5, 4, v{VS}
    s_lshl_b32 s{S_T0}, s{S_H}, 8
    s_lshl_b32 s{S_T1}, s{S_W}, 6
    s_add_u32 s{S_T0}, s{S_T0}, s{S_T1}
    v_add_u32 v{VS}, s{S_T0}, v{VS}
    v_lshrrev_b32 v4, 5, v{V_L}              ; hf
    v_bfe_u32 v5, v{V_L}, 2, 2               ; r'
    v_lshlrev_b32 v4, 9, v4
    v_lshl_add_u32 v4, v5, 6, v4             ; (8hf + r')*64
    v_add_u32 v4, s{S_RING}, v4
    v_bfe_u32 v5, v{V_L}, 4, 1               ; colhalf
    v_and_b32 v11, 1, v{V_L}
    v_bfe_u32 v12, v{V_L}, 1, 1
    ; K/Q: e = 16*colhalf + 8*(c'&1) + 4*(c'>>1)
    v_lshl_add_u32 v{VRK}, v5, 5, v4
    v_lshl_add_u32 v{VRK}, v11, 4, v{VRK}
    v_lshl_add_u32 v{VRK}, v12, 3, v{VRK}
    ; V: e = 8*c' + 4*colhalf
    v_and_b32 v11, 3, v{V_L}
    v_lshl_add_u32 v{VRV}, v11, 4, v4
    v_lshl_add_u32 v{VRV}, v5, 3, v{VRV}
    """)
    def rd32(reg, va):
        return [lambda o, reg=reg: f"ds_read_b64_tr_b16 {reg(0)}, v{va} offset:{o}",
                lambda o, reg=reg: f"ds_read_b64_tr_b16 {reg(2)}, v{va} offset:{o+256}"]
    st = Stager(A, S_RING, 32)
    for ks in range(32):
        st.add(R_WK, VS, ks * 16 * 8192, rd32(lambda j, ks=ks: a(4*ks+j, 2), VRK))
        st.add(R_WV, VS, ks * 16 * 8192, rd32(lambda j, ks=ks: a(128+4*ks+j, 2), VRV))
    st.issue(32)
    A(f"s_cmp_eq_u32 s{S_BUF}, 0\ns_cbranch_scc1 W_NOLN1")
    A(f"s_waitcnt vmcnt({32+ntouch})")
    for i in range(32):
        A(f"v_lshlrev_b32 v{F+2*i}, 16, v{RAW+i}")
        A(f"v_and_b32 v{F+2*i+1}, 0xffff0000, v{RAW+i}")
    A(f"v_add_f32 v12, v{F}, v{F+1}\nv_add_f32 v13, v{F+2}, v{F+3}")
    for i in range(4, 64, 2):
        A(f"v_add_f32 v12, v12, v{F+i}\nv_add_f32 v13, v13, v{F+i+1}")
    A("v_add_f32 v12, v12, v13")
    xlane_sum8(A, 12, 13)
    A("v_mul_f32 v12, 0x3b000000, v12      ; mean")
    A("v_mov_b32 v14, 0\nv_mov_b32 v15, 0")
    for i in range(0, 64, 2):
        A(f"v_sub_f32 v4, v{F+i}, v12\nv_sub_f32 v5, v{F+i+1}, v12")
        A("v_fmac_f32 v14, v4, v4\nv_fmac_f32 v15, v5, v5")
    A("v_add_f32 v14, v14, v15")
    xlane_sum8(A, 14, 13)
    A("v_mul_f32 v14, 0x3b000000, v14      ; var")
    rnd_bf16(A, 12); rnd_bf16(A, 14)
    A("v_add_f32 v14, 0x3727c5ac, v14")
    rnd_bf16(A, 14)
    A("v_sqrt_f32 v14, v14")
    rnd_bf16(A, 14)
    A("v_rcp_f32 v14, v14")
    for i in range(32):
        A(f"v_sub_f32 v4, v{F+2*i}, v12\nv_sub_f32 v5, v{F+2*i+1}, v12")
        A("v_cvt_pk_bf16_f32 v4, v4, v5")
        A("v_and_b32 v5, 0xffff0000, v4\nv_lshlrev_b32 v4, 16, v4")
        A("v_mul_f32 v5, v5, v14\nv_mul_f32 v4, v4, v14")
        A(f"v_cvt_pk_bf16_f32 v{RAW+i}, v4, v5")
    for i in range(8):
        A(f"s_add_u32 s{S_T0}, s{S_R}, {WS_XN + i*4096}")
        A(f"buffer_store_dwordx4 v[{RAW+4*i}:{RAW+4*i+3}], v7, {srd(R_WS)}, s{S_T0} offen sc1")
    A("W_NOLN1:")
    A(f"""
    v_mov_b32 v12, -1
    v_mov_b32 v13, -1
    v_mov_b32 v14, -1
    v_mov_b32 v15, -1
    s_lshl_b32 s{S_T0}, s{S_GI}, 17
    s_lshl_b32 s{S_T1}, s{S_H}, 12
    s_add_u32 s{S_T0}, s{S_T0}, s{S_T1}
    s_lshl_b32 s{S_T1}, s{S_W}, 10
    s_add_u32 s{S_T0}, s{S_T0}, s{S_T1}
    s_add_u32 s{S_T0}, s{S_T0}, {WS_KVM}
    s_mov_b32 s{S_T1}, s{S_NR}
    W_FILL:
    buffer_store_dwordx4 v[12:15], v{V_L16}, {srd(R_WS)}, s{S_T0} offen sc1
    s_add_u32 s{S_T0}, s{S_T0}, {7*131072}
    s_sub_u32 s{S_T1}, s{S_T1}, 1
    s_cmp_lg_u32 s{S_T1}, 0
    s_cbranch_scc1 W_FILL
    """)
    A(f"""
    s_lshl_b32 s{S_T0}, s{S_H}, 7
    s_lshl_b32 s{S_T1}, s{S_G}, 2
    s_add_u32 s71, s{S_T0}, s{S_T1}
    s_add_u32 s71, s71, {FL_KV}
    s_lshl_b32 s{S_T0}, s{S_G}, 7
    s_lshl_b32 s{S_T1}, s{S_H}, 2
    s_add_u32 s72, s{S_T0}, s{S_T1}
    s_add_u32 s72, s72, {FL_GRP}
    s_cmp_eq_u32 s{S_W}, 3
    s_cbranch_scc0 W_NOZ
    v_mov_b32 v4, 0
    s_mov_b64 exec, 1
    buffer_store_dword v4, off, {srd(R_WS)}, s71 sc1
    buffer_store_dword v4, off, {srd(R_WS)}, s72 sc1
    s_mov_b64 exec, -1
    W_NOZ:
    s_waitcnt vmcnt(0)
    s_barrier
    s_cmp_eq_u32 s{S_W}, 3
    s_cbranch_scc0 W_NOA
    v_mov_b32 v4, 1
    s_lshl_b32 s{S_T1}, s{S_G}, 2
    s_mov_b64 exec, 1
    buffer_atomic_add v4, off, {srd(R_DBG)}, s{S_T1} offset:{D_ARR}
    s_mov_b64 exec, -1
    s_waitcnt vmcnt(0)
    W_NOA:
    """)
    stamp(A, cfg, 1)
    if cfg.get("prof"): A("s_waitcnt vmcnt(0)")
    st.run(drained=True)
    stamp(A, cfg, 2)
    A(f"""
    s_cmp_eq_u32 s{S_W}, 0
    s_cbranch_scc0 W_LNOK
    s_lshl_b32 s{S_T1}, s{S_G}, 2
    W_LNP:
    buffer_load_dword v4, off, {srd(R_DBG)}, s{S_T1} offset:{D_ARR} sc1
    """)
    spin_dec(A)
    A(f"""
    s_waitcnt vmcnt(0)
    v_readfirstlane_b32 s{S_T0}, v4
    s_cmp_lt_u32 s{S_T0}, 32
    s_cbranch_scc1 W_LNP
    W_LNOK:
    s_barrier
    """)
    VKK = 12
    VKS = 11
    lane_ma(A, 4, V_L, 5)
    A(f"""
    v_and_b32 v4, 255, v4
    v_lshrrev_b32 v5, 5, v{V_L}
    v_lshl_add_u32 v4, v5, 8, v4
    v_bfe_u32 v5, v{V_L}, 4, 1
    v_lshl_add_u32 v{VKS}, v5, 10, v4
    s_lshl_b32 s{S_HOFF}, s{S_H}, 13
    s_lshl_b32 s{S_T0}, s{S_W}, 11
    s_add_u32 s75, s{S_HOFF}, s{S_T0}       ; h*8K + w*2K
    v_lshlrev_b32 v{VKK}, 13, v5
    v_lshrrev_b32 v5, 5, v{V_L}
    v_lshl_add_u32 v{VKK}, v5, 8, v{VKK}
    v_bfe_u32 v5, v{V_L}, 1, 1
    v_lshl_add_u32 v{VKK}, v5, 12, v{VKK}
    v_bfe_u32 v5, v{V_L}, 2, 2
    v_lshl_add_u32 v{VKK}, v5, 5, v{VKK}
    v_and_b32 v5, 1, v{V_L}
    v_lshl_add_u32 v{VKK}, v5, 4, v{VKK}
    s_and_b32 s{S_T0}, s{S_W}, 1
    s_lshl_b32 s{S_T0}, s{S_T0}, 10
    s_lshr_b32 s{S_T1}, s{S_W}, 1
    s_lshl_b32 s{S_T1}, s{S_T1}, 7
    s_add_u32 s{S_T0}, s{S_T0}, s{S_T1}
    v_add_u32 v{VKK}, s{S_T0}, v{VKK}
    """)
    def xn_dma(sseg, sbuf):
        A(f"""
        s_lshl_b32 s{S_T0}, s{sseg}, 15
        s_lshl_b32 s{S_T1}, s{S_W}, 13
        s_add_u32 s{S_T0}, s{S_T0}, s{S_T1}
        s_add_u32 m0, s{sbuf}, s{S_T1}
        s_add_u32 s{S_T2}, s{S_T0}, 4096
        """)
        for i in range(4):
            A(f"buffer_load_dwordx4 v{V_L16}, {srd(R_WS)}, s{S_T0} offen offset:{i*1024} sc1 lds")
        A("s_add_u32 m0, m0, 4096")
        for i in range(4):
            A(f"buffer_load_dwordx4 v{V_L16}, {srd(R_WS)}, s{S_T2} offen offset:{i*1024} sc1 lds")
    def seg_loop(name, body, flag_pub, nst):
        A(f"""
        s_mov_b32 s{S_R}, 0
        s_mov_b32 s{S_SEG}, s{S_GI}
        s_mov_b32 s{S_BUF}, 0
        """)
        xn_dma(S_SEG, S_BUF)
        A(f"""
        s_waitcnt vmcnt(0)
        {name}_LOOP:
        s_barrier
        s_sub_u32 s{S_T0}, s{S_R}, 1
        s_max_i32 s{S_T0}, s{S_T0}, 0
        """)
        flag_pub(S_T0, "A")
        A(f"""
        v_add_u32 v13, s{S_BUF}, v{V_L16}
        s_xor_b32 s{S_BUF}, s{S_BUF}, 0x8000
        s_add_u32 s{S_R}, s{S_R}, 1
        s_cmp_eq_u32 s{S_R}, s{S_NR}
        s_cbranch_scc1 {name}_NOPF
        s_add_u32 s{S_T3}, s{S_SEG}, 7
        """)
        xn_dma(S_T3, S_BUF)
        A(f"{name}_NOPF:")
        body()
        A(f"""
        s_add_u32 s{S_SEG}, s{S_SEG}, 7
        s_cmp_eq_u32 s{S_R}, s{S_NR}
        s_waitcnt vmcnt({nst})
        s_cbranch_scc0 {name}_LOOP
        """)
    def seg_end(flag_pub):
        A("s_waitcnt vmcnt(0)\ns_barrier")
        flag_pub(S_R, "B")
    XF, AK, AV, PK = 16, 48, 64, 80
    NPF = 8
    def pub_kv(sv, tag):
        A(f"""
        s_cmp_eq_u32 s{S_W}, 0
        s_cbranch_scc0 P1_NOPUB{tag}
        v_mov_b32 v4, s{sv}
        s_mov_b64 exec, 1
        buffer_store_dword v4, off, {srd(R_WS)}, s71 sc1
        s_mov_b64 exec, -1
        P1_NOPUB{tag}:
        """)
    def body1():
        for ks in range(NPF):
            A(f"ds_read_b128 v[{XF+4*ks}:{XF+4*ks+3}], v13 offset:{ks*1024}")
        for ks in range(32):
            x = XF + 4 * (ks % NPF)
            A(f"s_waitcnt lgkmcnt({min(NPF-1, 31-ks)})")
            ck = "0" if ks == 0 else v(AK, 16)
            cv = "0" if ks == 0 else v(AV, 16)
            A(f"v_mfma_f32_32x32x16_bf16 {v(AK,16)}, {a(4*ks,4)}, {v(x,4)}, {ck}")
            A(f"v_mfma_f32_32x32x16_bf16 {v(AV,16)}, {v(x,4)}, {a(128+4*ks,4)}, {cv}")
            if ks + NPF < 32:
                A(f"ds_read_b128 v[{x}:{x+3}], v13 offset:{(ks+NPF)*1024}")
        A(f"""
        s_lshl_b32 s{S_T0}, s{S_SEG}, 18
        s_add_u32 s{S_T0}, s{S_T0}, s75
        s_lshl_b32 s{S_T0}, s{S_T0}, 1
        s_add_u32 s{S_T0}, s{S_T0}, {WS_KV}
        s_and_b32 s{S_T1}, s{S_T0}, 0xffffc000
        """)
        for i in range(8):
            A(f"v_cvt_pk_bf16_f32 v{PK+i}, v{AK+2*i}, v{AK+2*i+1}")
        A(f"buffer_store_dwordx4 {v(PK,4)}, v{VKK}, {srd(R_WS)}, s{S_T1} offen sc1")
        A(f"buffer_store_dwordx4 {v(PK+4,4)}, v{VKK}, {srd(R_WS)}, s{S_T1} offen offset:512 sc1")
        for i, r in enumerate([0, 2, 8, 10, 4, 6, 12, 14]):
            A(f"v_cvt_pk_bf16_f32 v{PK+8+i}, v{AV+r}, v{AV+r+1}")
        A(f"buffer_store_dwordx4 {v(PK+8,4)}, v{VKS}, {srd(R_WS)}, s{S_T0} offen offset:2048 sc1")
        A(f"buffer_store_dwordx4 {v(PK+12,4)}, v{VKS}, {srd(R_WS)}, s{S_T0} offen offset:2560 sc1")
    seg_loop("P1", body1, pub_kv, 4)
    seg_end(pub_kv)
    stamp(A, cfg, 3)
    if cfg.get("stop", 99) <= 1:
        A("s_branch EXIT")
        return
    VSF, VRF, VHS = 14, 15, 10
    A(f"""
    v_lshrrev_b32 v4, 1, v{V_L}
    v_mul_u32_u24 v{VSF}, 3584, v4
    v_and_b32 v5, 1, v{V_L}
    v_lshl_add_u32 v{VSF}, v5, 4, v{VSF}
    s_lshl_b32 s{S_T0}, s{S_H}, 7
    s_lshl_b32 s{S_T1}, s{S_W}, 5
    s_add_u32 s{S_T0}, s{S_T0}, s{S_T1}
    v_add_u32 v{VSF}, s{S_T0}, v{VSF}
    v_lshlrev_b32 v{VRF}, 4, v5
    v_bfe_u32 v5, v{V_L}, 1, 1
    v_lshl_add_u32 v{VRF}, v5, 3, v{VRF}
    v_bfe_u32 v5, v{V_L}, 2, 2
    v_lshl_add_u32 v{VRF}, v5, 5, v{VRF}
    v_lshrrev_b32 v5, 5, v{V_L}
    v_lshl_add_u32 v{VRF}, v5, 8, v{VRF}
    v_bfe_u32 v4, v{V_L}, 4, 1
    v_lshl_add_u32 v{VRF}, v4, 10, v{VRF}
    v_add_u32 v{VRF}, s{S_RING}, v{VRF}
    v_lshlrev_b32 v{VHS}, 16, v4
    v_lshl_add_u32 v{VHS}, v5, 8, v{VHS}
    v_and_b32 v5, 15, v{V_L}
    v_lshl_add_u32 v{VHS}, v5, 4, v{VHS}
    s_lshl_b32 s{S_T0}, s{S_T0}, 4
    v_add_u32 v{VHS}, s{S_T0}, v{VHS}
    """)
    st = Stager(A, S_RING, 32)
    for p in range(16):
        for kk in range(2):
            ks = 2 * p + kk
            st.add(R_WQ, VS, ks * 16 * 8192, rd32(lambda j, ks=ks: a(4*ks+j, 2), VRK))
        st.add(R_WG, VSF, p * 32 * 3584, [])
        rds = []
        for kk in range(2):
            for hb in range(2):
                rds.append(lambda o, p=p, kk=kk, hb=hb: f"ds_read_b64_tr_b16 {a(128+4*(2*p+kk)+2*hb, 2)}, v{VRF} offset:{o - 1024 + kk*512 + hb*128}")
        st.add(R_WU, VSF, p * 32 * 3584, rds)
    st.issue(32)
    st.run()
    A("s_barrier")
    stamp(A, cfg, 4)
    C1 = -2 * 1.4426950408889634 * 0.7978845608028654
    A(f"s_mov_b32 s73, {f2u(C1)}\ns_mov_b32 s74, {f2u(C1 * 0.044715)}")
    def body2():
        for ks in range(NPF):
            A(f"ds_read_b128 v[{XF+4*ks}:{XF+4*ks+3}], v13 offset:{ks*1024}")
        for ks in range(32):
            x = XF + 4 * (ks % NPF)
            A(f"s_waitcnt lgkmcnt({min(NPF-1, 31-ks)})")
            ck = "0" if ks == 0 else v(AK, 16)
            cv = "0" if ks == 0 else v(AV, 16)
            A(f"v_mfma_f32_32x32x16_bf16 {v(AV,16)}, {a(128+4*ks,4)}, {v(x,4)}, {cv}")
            A(f"v_mfma_f32_32x32x16_bf16 {v(AK,16)}, {a(4*ks,4)}, {v(x,4)}, {ck}")
            if ks + NPF < 32:
                A(f"ds_read_b128 v[{x}:{x+3}], v13 offset:{(ks+NPF)*1024}")
        A(f"""
        s_lshl_b32 s{S_T0}, s{S_SEG}, 18
        s_lshl_b32 s{S_T1}, s{S_SEG}, 17
        s_add_u32 s{S_T0}, s{S_T0}, s75
        s_add_u32 s{S_T1}, s{S_T1}, {WS_H}
        s_add_u32 s{S_T0}, s{S_T0}, {WS_QX}
        v_mov_b32 v4, s73
        """)
        T = PK + 8
        for i in range(8): A(f"v_mul_f32 v{T+i}, v{AV+i}, v{AV+i}")
        for i in range(8): A(f"v_fma_f32 v{T+i}, v{T+i}, s74, v4")
        for i in range(8): A(f"v_mul_f32 v{T+i}, v{T+i}, v{AV+i}")
        for i in range(8):
            A(f"v_cvt_pk_bf16_f32 v{PK+i}, v{AK+2*i}, v{AK+2*i+1}")
        A(f"buffer_store_dwordx4 {v(PK,4)}, v{VKS}, {srd(R_WS)}, s{S_T0} offen sc1")
        A(f"buffer_store_dwordx4 {v(PK+4,4)}, v{VKS}, {srd(R_WS)}, s{S_T0} offen offset:512 sc1")
        for i in range(8): A(f"v_exp_f32 v{T+i}, v{T+i}")
        for i in range(8): A(f"v_add_f32 v{T+i}, 1.0, v{T+i}")
        for i in range(8): A(f"v_rcp_f32 v{T+i}, v{T+i}")
        for i in range(8): A(f"v_mul_f32 v{T+i}, v{T+i}, v{AV+i}")
        for i in range(8): A(f"v_mul_f32 v{T+i}, v{T+i}, v{AV+8+i}")
        for i in range(4): A(f"v_cvt_pk_bf16_f32 v{T+8+i}, v{T+2*i}, v{T+2*i+1}")
        A(f"buffer_store_dwordx4 {v(T+8,4)}, v{VHS}, {srd(R_WS)}, s{S_T1} offen sc1")
    seg_loop("P2", body2, lambda a_, b_: None, 3)
    seg_end(lambda a_, b_: None)
    def pub_grp(tag, val):
        A(f"""
        s_cmp_eq_u32 s{S_W}, 0
        s_cbranch_scc0 NOPUB_{tag}
        v_mov_b32 v4, {val}
        s_mov_b64 exec, 1
        buffer_store_dword v4, off, {srd(R_WS)}, s72 sc1
        s_mov_b64 exec, -1
        NOPUB_{tag}:
        """)
    pub_grp("H", 1)
    stamp(A, cfg, 5)
    if cfg.get("stop", 99) <= 2:
        A("s_waitcnt vmcnt(0)\ns_branch EXIT")
        return
    VSD, VSO, VRT = 8, 9, 10
    A(f"""
    s_mov_b32 s{S_G}, s{S_G2}
    s_mov_b32 s{S_H}, s{S_H2}
    s_sub_u32 s{S_GI}, s{S_G}, 1
    s_cmp_eq_u32 s{S_GI}, 0
    s_cselect_b32 s{S_NR}, 10, 9
    s_lshl_b32 s{S_HOFF}, s{S_H}, 13
    s_lshl_b32 s{S_T0}, s{S_G}, 7
    s_lshl_b32 s{S_T1}, s{S_H}, 2
    s_add_u32 s72, s{S_T0}, s{S_T1}
    s_add_u32 s72, s72, {FL_GRP}
    v_lshrrev_b32 v4, 2, v{V_L}
    v_and_b32 v5, 3, v{V_L}
    v_lshlrev_b32 v{VSD}, 10, v4
    v_lshl_add_u32 v{VSD}, v5, 4, v{VSD}
    s_lshr_b32 s{S_T0}, s{S_H}, 1
    s_lshl_b32 s{S_T0}, s{S_T0}, 6
    s_lshl_b32 s{S_T1}, s{S_W}, 20
    s_add_u32 s{S_T1}, s{S_T1}, s{S_T0}
    v_add_u32 v{VSO}, s{S_T1}, v{VSD}
    s_mul_i32 s{S_T1}, s{S_W}, {448*1024}
    s_add_u32 s{S_T1}, s{S_T1}, s{S_T0}
    v_add_u32 v{VSD}, s{S_T1}, v{VSD}
    v_lshlrev_b32 v{VRT}, 4, v5
    v_and_b32 v4, 3, v4
    v_lshl_add_u32 v{VRT}, v4, 6, v{VRT}
    v_lshrrev_b32 v4, 4, v{V_L}
    v_lshl_add_u32 v{VRT}, v4, 9, v{VRT}
    v_add_u32 v{VRT}, s{S_RING}, v{VRT}
    """)
    def rd16(regf):
        return [lambda o, T=T, hb=hb: f"ds_read_b64_tr_b16 {regf(4*T+2*hb)}, v{VRT} offset:{o - 1024 + T*8 + hb*256}" for T in range(2) for hb in range(2)]
    st = Stager(A, S_RING, 32)
    for kq in range(14):
        st.add(R_WD, VSD, kq * 32768, [])
        st.add(R_WD, VSD, kq * 32768 + 16384, rd16(lambda j, kq=kq: v(128 + 8*kq + j, 2)))
    for kq in range(32):
        st.add(R_WO, VSO, kq * 32768, [])
        st.add(R_WO, VSO, kq * 32768 + 16384, rd16(lambda j, kq=kq: a(8*kq + j, 2)))
    st.issue(32)
    st.run()
    stamp(A, cfg, 6)
    VFL, VPW, VPR, VG, VXO = 8, 9, 10, 11, 12
    PITCH = 144
    A(f"""
    v_and_b32 v4, 31, v{V_L}
    v_lshlrev_b32 v{VFL}, 2, v4
    s_lshl_b32 s73, s{S_G}, 7
    s_add_u32 s73, s73, {FL_GRP}
    v_and_b32 v4, 15, v{V_L}
    v_mul_u32_u24 v{VPW}, {PITCH}, v4
    v_lshrrev_b32 v5, 4, v{V_L}
    v_lshl_add_u32 v{VPW}, v5, 5, v{VPW}
    s_mul_i32 s{S_T0}, s{S_W}, {16*PITCH}
    v_add_u32 v{VPW}, s{S_T0}, v{VPW}
    v_mul_u32_u24 v{VPR}, {PITCH}, v5
    v_lshl_add_u32 v{VPR}, v4, 3, v{VPR}
    s_mul_i32 s{S_T0}, s{S_W}, {4*PITCH}
    v_add_u32 v{VPR}, s{S_T0}, v{VPR}
    v_lshlrev_b32 v{VG}, 2, v0
    v_add_u32 v{VG}, 0x20000, v{VG}
    v_lshlrev_b32 v{VXO}, 10, v5
    v_lshl_add_u32 v{VXO}, v4, 2, v{VXO}
    s_and_b32 s{S_T0}, s{S_H}, 1
    s_lshl_b32 s74, s{S_T0}, 16            ; rt*64KB
    s_lshl_b32 s{S_T0}, s{S_T0}, 14
    s_lshl_b32 s{S_T1}, s{S_W}, 12
    s_add_u32 s{S_T0}, s{S_T0}, s{S_T1}
    s_lshr_b32 s{S_T1}, s{S_H}, 1
    s_lshl_b32 s{S_T1}, s{S_T1}, 6
    s_add_u32 s{S_T0}, s{S_T0}, s{S_T1}
    v_add_u32 v{VXO}, s{S_T0}, v{VXO}
    """)
    def grp_wait(tag, s_val):
        A(f"""
        GW_{tag}:
        buffer_load_dword v4, v{VFL}, {srd(R_WS)}, s73 offen sc1
        """)
        spin_dec(A)
        A(f"""
        s_waitcnt vmcnt(0)
        v_cmp_gt_u32 vcc, {s_val}, v4
        s_cbranch_vccnz GW_{tag}
        """)
    A(f"""
    s_lshl_b32 s{S_T1}, s{S_G}, 2
    W_ARR2:
    buffer_load_dword v4, off, {srd(R_DBG)}, s{S_T1} offset:{D_ARR} sc1
    """)
    spin_dec(A)
    A(f"""
    s_waitcnt vmcnt(0)
    v_cmp_gt_u32 vcc, 32, v4
    s_cbranch_vccnz W_ARR2
    """)
    grp_wait("H", 1)
    A("s_barrier")
    HF, DA = 16, 112
    A(f"""
    s_mul_i32 s{S_T0}, s{S_W}, {14*1024}
    s_add_u32 s74, s74, s{S_T0}
    s_lshl_b32 s{S_T0}, s{S_GI}, 17
    s_add_u32 s75, s74, s{S_T0}
    s_add_u32 s75, s75, {WS_H}
    s_mov_b32 s{S_R}, 0
    v_mov_b32 v13, v{VPW}
    DN_LOOP:
    """)
    for kq in range(14):
        if kq % 4 == 0: A(f"s_add_u32 s{S_T0}, s75, {kq*1024}")
        A(f"buffer_load_dwordx4 {v(HF+4*kq,4)}, v{V_L16}, {srd(R_WS)}, s{S_T0} offen offset:{(kq%4)*1024} sc1")
    for kq in range(14):
        A(f"s_waitcnt vmcnt({13-kq})")
        for T in range(2):
            cc = "0" if kq == 0 else v(DA+4*T, 4)
            A(f"v_mfma_f32_16x16x32_bf16 {v(DA+4*T,4)}, {v(128+8*kq+4*T,4)}, {v(HF+4*kq,4)}, {cc}")
    A(f"""
    s_add_u32 s75, s75, {7*131072}
    s_add_u32 s{S_R}, s{S_R}, 1
    s_cmp_lt_u32 s{S_R}, s{S_NR}
    ds_write_b128 v13, {v(DA,4)}
    ds_write_b128 v13, {v(DA+4,4)} offset:16
    v_add_u32 v13, {64*PITCH}, v13
    s_cbranch_scc1 DN_LOOP
    s_waitcnt lgkmcnt(0)
    s_barrier
    """)
    def red4(va, off, d):
        for i in range(4):
            A(f"ds_read_b64 v[{d+2*i}:{d+2*i+1}], v{va} offset:{off + i*16*PITCH}")
    NL = -1.4426950408889634
    A(f"v_add_u32 v13, {5*64*PITCH}, v{VPR}")
    for r in range(10):
        red4(VPR if r < 5 else 13, (r % 5) * 64 * PITCH, 16 + 8 * r)
    for r in range(10):
        d = 16 + 8 * r
        A(f"s_waitcnt lgkmcnt(0)" if r == 0 else "")
        A(f"""
        v_add_f32 v{d}, v{d}, v{d+2}
        v_add_f32 v{d+1}, v{d+1}, v{d+3}
        v_add_f32 v{d+4}, v{d+4}, v{d+6}
        v_add_f32 v{d+5}, v{d+5}, v{d+7}
        v_add_f32 v{d}, v{d}, v{d+4}
        v_add_f32 v{d+1}, v{d+1}, v{d+5}
        v_cvt_pk_bf16_f32 v{d}, v{d}, v{d+1}
        v_and_b32 v{d+1}, 0xffff0000, v{d}
        v_lshlrev_b32 v{d}, 16, v{d}
        v_mul_f32 v{d+2}, {f2u(NL)}, v{d}
        v_mul_f32 v{d+3}, {f2u(NL)}, v{d+1}
        v_exp_f32 v{d+2}, v{d+2}
        v_exp_f32 v{d+3}, v{d+3}
        v_add_f32 v{d+2}, 1.0, v{d+2}
        v_add_f32 v{d+3}, 1.0, v{d+3}
        v_rcp_f32 v{d+2}, v{d+2}
        v_rcp_f32 v{d+3}, v{d+3}
        v_mul_f32 v{d}, v{d}, v{d+2}
        v_mul_f32 v{d+1}, v{d+1}, v{d+3}
        v_cvt_pk_bf16_f32 v{d}, v{d}, v{d+1}
        ds_write_b32 v{VG}, v{d} offset:{r*1024}
        """)
    stamp(A, cfg, 7)
    KX, QX, VX, KM, FM, SS, OA = 16, 48, 64, 80, 16, 100, 112
    VMA, VKW, VQI, VKR, VKL = 13, 14, 15, 96, 97
    S_AT, S_OW, S_OR, S_XO, S_CS, S_MK = 75, 76, 77, 79, 80, 81
    S_EH, S_MSK = 82, 86
    L_KT = 0x24000
    lane_ma(A, VMA, V_L, 4)
    A(f"""
    s_lshl_b32 s{S_T0}, s{S_W}, 12
    s_add_u32 s{S_T0}, s{S_T0}, {L_KT}
    v_and_b32 v4, 15, v{V_L}
    v_lshrrev_b32 v5, 4, v{V_L}
    v_lshlrev_b32 v{VKW}, 6, v4
    v_lshl_add_u32 v{VKW}, v5, 4, v{VKW}
    v_add_u32 v{VKW}, s{S_T0}, v{VKW}
    v_add_u32 v{VKR}, s{S_T0}, v{V_L16}
    s_lshr_b32 s{S_T0}, s{S_W}, 1
    v_lshlrev_b32 v{VKL}, 8, v5
    v_bfe_u32 v6, v{V_L}, 1, 1
    v_lshl_add_u32 v{VKL}, v6, 12, v{VKL}
    v_bfe_u32 v6, v{V_L}, 2, 2
    v_lshl_add_u32 v{VKL}, v6, 5, v{VKL}
    v_and_b32 v6, 1, v{V_L}
    v_lshl_add_u32 v{VKL}, v6, 4, v{VKL}
    s_lshl_b32 s{S_T1}, s{S_T0}, 7
    v_add_u32 v{VKL}, s{S_T1}, v{VKL}
    v_xor_b32 v{VKL+1}, 128, v{VKL}
    s_and_b32 s{S_T2}, s{S_W}, 1
    s_lshl_b32 s{S_T3}, s{S_T2}, 4
    v_add_u32 v4, s{S_T3}, v4
    v_lshlrev_b32 v5, 2, v5
    v_sub_u32 v4, v4, v5
    """)
    for tl in range(2):
        for r in range(4):
            A(f"v_cmp_le_i32 s[{S_MSK+2*(4*tl+r)}:{S_MSK+2*(4*tl+r)+1}], {16*tl+r}, v4")
    A(f"""
    s_mov_b32 s{S_CS}, {f2u(128**-0.5 * 1.4426950408889634)}
    v_mov_b32 v{VQI}, {f2u(-1e9 * 128**0.5)}
    s_lshl_b32 s{S_OW}, s{S_T2}, 17
    s_lshl_b32 s{S_EH}, s{S_T0}, 11         ; eh*2048
    s_add_u32 s{S_OW}, s{S_OW}, s{S_EH}
    s_lshl_b32 s{S_T1}, s{S_H}, 12
    s_add_u32 s{S_OW}, s{S_OW}, s{S_T1}
    s_add_u32 s{S_OW}, s{S_OW}, {WS_O}
    s_and_b32 s{S_OR}, s{S_H}, 1
    s_lshl_b32 s{S_OR}, s{S_OR}, 17
    s_lshl_b32 s{S_T1}, s{S_W}, 15
    s_add_u32 s{S_OR}, s{S_OR}, s{S_T1}
    s_add_u32 s{S_OR}, s{S_OR}, {WS_O}
    s_lshl_b32 s{S_AT}, s{S_T2}, 10         ; qt*1024
    s_add_u32 s{S_AT}, s{S_AT}, {WS_QX}
    s_mov_b32 s{S_R}, 0
    s_mov_b32 s{S_SEG}, s{S_GI}
    """)
    def att_loads(sseg):
        A(f"""
        s_lshl_b32 s{S_T0}, s{sseg}, 18
        s_add_u32 s{S_T0}, s{S_T0}, s{S_HOFF}
        s_lshl_b32 s{S_T1}, s{S_EH}, 1
        s_add_u32 s{S_T0}, s{S_T0}, s{S_T1}
        s_add_u32 s{S_T1}, s{S_T0}, s{S_AT}
        s_lshl_b32 s{S_T0}, s{S_T0}, 1
        s_add_u32 s{S_T0}, s{S_T0}, {WS_KV}
        s_and_b32 s{S_T2}, s{S_T0}, 0xffffc000
        s_add_u32 s78, s{S_T2}, 8192
        """)
        for c in range(4):
            if c == 2: A(f"s_xor_b32 s{S_T1}, s{S_T1}, 4096")
            A(f"buffer_load_dwordx4 {v(QX+4*c,4)}, v{VMA}, {srd(R_WS)}, s{S_T1} offen offset:{(c&1)*2048} sc1")
            A(f"buffer_load_dwordx4 {v(KX+4*c,4)}, v{VKL+(c>>1)}, {srd(R_WS)}, s{S_T2} offen offset:{(c&1)*1024} sc1")
            A(f"buffer_load_dwordx4 {v(KX+16+4*c,4)}, v{VKL+(c>>1)}, {srd(R_WS)}, s78 offen offset:{(c&1)*1024} sc1")
            if c < 2:
                A(f"buffer_load_dwordx4 {v(VX+8*c,4)}, v{VMA}, {srd(R_WS)}, s{S_T0} offen offset:2048 sc1")
                A(f"buffer_load_dwordx4 {v(VX+8*c+4,4)}, v{VMA}, {srd(R_WS)}, s{S_T0} offen offset:3072 sc1")
            if c == 0: A(f"s_xor_b32 s{S_T0}, s{S_T0}, 4096")
    att_loads(S_SEG)
    fine = cfg.get("prof", 0) >= 2
    P = lambda i: A(f"s_memtime s[{8+2*i}:{9+2*i}]") if fine else None
    A("W5_LOOP:")
    P(0)
    A("s_waitcnt vmcnt(0)")
    P(1)
    for c in range(4):
        for tl in range(2):
            cc = "0" if c == 0 else v(SS+4*tl, 4)
            A(f"v_mfma_f32_16x16x32_bf16 {v(SS+4*tl,4)}, {v(KX+16*tl+4*c,4)}, {v(QX+4*c,4)}, {cc}")
    A(f"""
    s_lshl_b32 s{S_T0}, s{S_SEG}, 18
    s_add_u32 s{S_T1}, s{S_T0}, s{S_HOFF}
    s_lshr_b32 s{S_T1}, s{S_T1}, 1
    s_add_u32 s{S_T1}, s{S_T1}, {WS_KVM}
    s_add_u32 s{S_T1}, s{S_T1}, s{S_EH}
    s_xor_b32 s{S_T2}, s{S_T1}, 2048
    s_lshl_b32 s{S_XO}, s{S_SEG}, 15
    buffer_load_dword v3, v{VXO}, {srd(R_X)}, s{S_XO} offen
    W5_KP:
    """)
    for c in range(4):
        A(f"buffer_load_dwordx4 {v(KM+4*c,4)}, v{VMA}, {srd(R_WS)}, s{S_T1 if c < 2 else S_T2} offen offset:{(c&1)*1024} sc1")
    spin_dec(A)
    A(f"""
    s_waitcnt vmcnt(0)
    v_max3_u32 v4, v{KM}, v{KM+4}, v{KM+8}
    v_max_u32 v4, v4, v{KM+12}
    v_cmp_eq_u32 vcc, -1, v4
    s_cbranch_vccnz W5_KP
    """)
    P(2)
    for c in range(4):
        A(f"ds_write_b128 v{VKW}, {v(KM+4*c,4)} offset:{c*1024}")
    for c in range(4):
        A(f"ds_read_b64_tr_b16 {v(FM+4*c,2)}, v{VKR} offset:{c*1024}")
        A(f"ds_read_b64_tr_b16 {v(FM+4*c+2,2)}, v{VKR} offset:{c*1024+8}")
    for i in range(8):
        A(f"v_cndmask_b32 v{SS+i}, v{VQI}, v{SS+i}, s[{S_MSK+2*i}:{S_MSK+2*i+1}]")
    A(f"""
    v_max3_f32 v4, v{SS}, v{SS+1}, v{SS+2}
    v_max3_f32 v5, v{SS+3}, v{SS+4}, v{SS+5}
    v_max3_f32 v4, v4, v{SS+6}, v{SS+7}
    v_max_f32 v4, v4, v5
    v_mov_b32 v6, 0
    """)
    for c in range(4):
        A(f"s_waitcnt lgkmcnt({6-2*c})")
        cc = "0" if c == 0 else v(SS+8, 4)
        A(f"v_mfma_f32_16x16x32_bf16 {v(SS+8,4)}, {v(FM+4*c,4)}, {v(QX+4*c,4)}, {cc}")
    A(f"v_max3_f32 v4, v4, v{SS+8}, v{SS+9}")
    xG(A, 4, 5, "v_max_f32")
    A(f"v_mul_f32 v4, s{S_CS}, v4")
    for i in range(10): A(f"v_fma_f32 v{SS+i}, v{SS+i}, s{S_CS}, -v4")
    for i in range(10): A(f"v_exp_f32 v{SS+i}, v{SS+i}")
    PX = KX + 16
    for i in range(4): A(f"v_cvt_pk_bf16_f32 v{PX+i}, v{SS+2*i}, v{SS+2*i+1}")
    A(f"v_cvt_pk_bf16_f32 v7, v{SS+8}, v{SS+9}")
    for i in range(4):
        A(f"v_mfma_f32_16x16x32_bf16 {v(OA+4*i,4)}, {v(VX+4*i,4)}, {v(PX,4)}, 0")
    A(f"""
    v_add_f32 v4, v{SS+8}, v{SS+9}
    v_add_f32 v4, v4, v{SS}
    v_add_f32 v5, v{SS+1}, v{SS+2}
    v_add_f32 v4, v4, v{SS+3}
    v_add_f32 v5, v5, v{SS+4}
    v_add_f32 v4, v4, v{SS+5}
    v_add_f32 v5, v5, v{SS+6}
    v_add_f32 v4, v4, v{SS+7}
    v_add_f32 v4, v4, v5
    """)
    for i in range(4):
        A(f"v_mfma_f32_16x16x16_bf16 {v(OA+4*i,4)}, {v(KM+2*i,2)}, v[6:7], {v(OA+4*i,4)}")
    xG(A, 4, 5, "v_add_f32")
    A("v_rcp_f32 v4, v4")
    A(f"s_add_u32 s{S_T0}, s{S_T0}, s{S_OW}")
    for hh in range(2):
        for i in range(8): A(f"v_mul_f32 v{OA+8*hh+i}, v{OA+8*hh+i}, v4")
        for i in range(4): A(f"v_cvt_pk_bf16_f32 v{SS+4*hh+i}, v{OA+8*hh+2*i}, v{OA+8*hh+2*i+1}")
        A(f"buffer_store_dwordx4 {v(SS+4*hh,4)}, v{V_L16}, {srd(R_WS)}, s{S_T0} offen offset:{hh*1024} sc1")
    P(3)
    A(f"""
    s_add_u32 s{S_R}, s{S_R}, 1
    s_add_u32 s{S_BUF}, s{S_R}, 1
    s_waitcnt vmcnt(0)
    """)
    P(4)
    A("s_barrier")
    P(5)
    pub_grp("O", f"s{S_BUF}")
    grp_wait("O", f"s{S_BUF}")
    P(6)
    A(f"""
    s_lshl_b32 s{S_T3}, s{S_SEG}, 18
    s_add_u32 s{S_T3}, s{S_T3}, s{S_OR}
    """)
    for kq in range(32):
        if kq % 4 == 0 and kq: A(f"s_add_u32 s{S_T3}, s{S_T3}, 4096")
        A(f"buffer_load_dwordx4 {v(128+4*kq,4)}, v{V_L16}, {srd(R_WS)}, s{S_T3} offen offset:{(kq%4)*1024} sc1")
    A(f"s_add_u32 s{S_SEG}, s{S_SEG}, 7\ns_min_u32 s{S_T3}, s{S_SEG}, 63")
    att_loads(S_T3)
    A(f"ds_read_b32 v7, v{VG}\nv_add_u32 v{VG}, 1024, v{VG}")
    P(7)
    for kq in range(32):
        A(f"s_waitcnt vmcnt({31-kq+16})")
        if kq == 0: P(8)
        if kq == 16: P(9)
        for T in range(2):
            cc = "0" if kq == 0 else v(OA+4*T, 4)
            A(f"v_mfma_f32_16x16x32_bf16 {v(OA+4*T,4)}, {a(8*kq+4*T,4)}, {v(128+4*kq,4)}, {cc}")
    d = SS
    P(10)
    A(f"""
    ds_write_b128 v{VPW}, {v(OA,4)}
    ds_write_b128 v{VPW}, {v(OA+4,4)} offset:16
    v_and_b32 v6, 0xffff0000, v7
    v_lshlrev_b32 v7, 16, v7
    v_and_b32 v5, 0xffff0000, v3
    v_lshlrev_b32 v4, 16, v3
    s_waitcnt lgkmcnt(0)
    s_barrier
    """)
    red4(VPR, 0, d)
    A(f"""
    s_cmp_lt_u32 s{S_R}, s{S_NR}
    s_waitcnt lgkmcnt(2)
    v_add_f32 v{d}, v{d}, v{d+2}
    v_add_f32 v{d+1}, v{d+1}, v{d+3}
    s_waitcnt lgkmcnt(0)
    v_add_f32 v{d+4}, v{d+4}, v{d+6}
    v_add_f32 v{d+5}, v{d+5}, v{d+7}
    v_add_f32 v{d}, v{d}, v{d+4}
    v_add_f32 v{d+1}, v{d+1}, v{d+5}
    v_cvt_pk_bf16_f32 v{d}, v{d}, v{d+1}
    v_and_b32 v{d+1}, 0xffff0000, v{d}
    v_lshlrev_b32 v{d}, 16, v{d}
    v_mul_f32 v{d}, v{d}, v7
    v_mul_f32 v{d+1}, v{d+1}, v6
    v_cvt_pk_bf16_f32 v{d}, v{d}, v{d+1}
    v_and_b32 v{d+1}, 0xffff0000, v{d}
    v_lshlrev_b32 v{d}, 16, v{d}
    v_add_f32 v{d}, v{d}, v4
    v_add_f32 v{d+1}, v{d+1}, v5
    v_cvt_pk_bf16_f32 v4, v{d}, v{d+1}
    buffer_store_dword v4, v{VXO}, {srd(R_OUT)}, s{S_XO} offen
    """)
    if fine:
        P(11)
        A(f"s_cmp_eq_u32 s{S_R}, {cfg.get('pr', 4)}\ns_cbranch_scc0 W5_ND\ns_waitcnt lgkmcnt(0)")
        for i in range(12): A(f"v_writelane_b32 v5, s{8+2*i}, {i}")
        A(f"v_lshrrev_b32 v6, 2, v{V_L16}\nbuffer_store_dword v5, v6, {srd(R_WS)}, s{S_PROF} offen offset:512\nW5_ND:")
    if cfg.get("prof"):
        A(f"""
        s_memtime s[{S_TS}:{S_TS+1}]
        s_lshl_b32 s{S_T0}, s{S_R}, 2
        s_add_u32 s{S_T0}, s{S_T0}, s{S_PROF}
        s_waitcnt lgkmcnt(0)
        v_mov_b32 v5, s{S_TS}
        s_mov_b64 exec, 1
        buffer_store_dword v5, off, {srd(R_WS)}, s{S_T0} offset:28
        s_mov_b64 exec, -1
        s_cmp_lt_u32 s{S_R}, s{S_NR}
        """)
    A(f"""
    s_cbranch_scc1 W5_LOOP
    s_waitcnt vmcnt(0)
    """)
```

```python
import sys
from common import *
from worker import *

def prologue(A, cfg):
    A(f"""
    s_cmp_ge_u32 s2, 256
    s_cbranch_scc1 EXIT
    """)
    slots = {R_X: 0, R_M0: 8, R_WQ: 16, R_WK: 24, R_WV: 32, R_WO: 40, R_WG: 64, R_WU: 72, R_WD: 80, R_OUT: 88, R_DBG: 96, R_WS: 104}
    sizes = {R_X: 2*MB, R_M0: 8192, R_WQ: 4*MB, R_WK: 4*MB, R_WV: 4*MB, R_WO: 4*MB, R_WG: 512*3584, R_WU: 512*3584,
             R_WD: 1792*1024, R_OUT: 2*MB, R_DBG: 256, R_WS: WS_SIZE}
    for r in [R_DBG] + [r for r in slots if r != R_DBG]:
        A(f"s_load_dwordx2 s[{r}:{r+1}], s[0:1], {slots[r]}")
    for r in slots:
        A(f"s_mov_b32 s{r+2}, {sizes[r]}\ns_mov_b32 s{r+3}, 0x20000")
    A(f"""
    s_getreg_b32 s{S_XCC}, hwreg(HW_REG_XCC_ID)
    s_and_b32 s{S_XCC}, s{S_XCC}, 7
    v_lshrrev_b32 v3, 6, v0
    v_and_b32 v1, 63, v0
    v_readfirstlane_b32 s{S_W}, v3
    v_lshlrev_b32 v2, 4, v1
    s_mov_b32 s{S_SPIN}, {cfg.get('spin', 1<<17)}
    v_mov_b32 v5, 0
    s_waitcnt lgkmcnt(0)
    """)
    if cfg.get("prof"):
        A(f"s_memtime s[{S_TS+2}:{S_TS+3}]\ns_memrealtime s[{S_TS+4}:{S_TS+5}]")
    if cfg.get("static_roles"):
        A(f"s_and_b32 s{S_H}, s2, 31\ns_lshr_b32 s{S_G}, s2, 5" if cfg["static_roles"] == 1 else f"s_and_b32 s{S_G}, s2, 7\ns_lshr_b32 s{S_H}, s2, 3")
    else:
        A(f"""
        s_cmp_eq_u32 s{S_W}, 0
        s_cbranch_scc0 TK_DONE
        s_mov_b32 s{S_G}, s{S_XCC}
        s_mov_b32 s{S_T1}, 8
        s_mov_b64 exec, 1
        TK_LOOP:
        v_mov_b32 v4, 1
        s_lshl_b32 s{S_T0}, s{S_G}, 2
        buffer_atomic_add v4, off, {srd(R_DBG)}, s{S_T0} offset:{D_TICK} sc0
        s_waitcnt vmcnt(0)
        v_readfirstlane_b32 s{S_H}, v4
        s_cmp_lt_u32 s{S_H}, 32
        s_cbranch_scc1 TK_GOT
        s_add_u32 s{S_G}, s{S_G}, 1
        s_and_b32 s{S_G}, s{S_G}, 7
        s_sub_u32 s{S_T1}, s{S_T1}, 1
        s_cmp_lg_u32 s{S_T1}, 0
        s_cbranch_scc1 TK_LOOP
        s_mov_b32 s{S_G}, 8
        TK_GOT:
        s_lshl_b32 s{S_T0}, s{S_G}, 5
        s_add_u32 s{S_T0}, s{S_T0}, s{S_H}
        v_mov_b32 v4, s{S_T0}
        ds_write_b32 v5, v4
        s_mov_b64 exec, -1
        s_waitcnt lgkmcnt(0)
        TK_DONE:
        s_barrier
        ds_read_b32 v4, v5
        s_waitcnt lgkmcnt(0)
        v_readfirstlane_b32 s{S_T0}, v4
        s_barrier
        s_cmp_ge_u32 s{S_T0}, 256
        s_cbranch_scc1 EXIT
        s_and_b32 s{S_H}, s{S_T0}, 31
        s_lshr_b32 s{S_G}, s{S_T0}, 5
        """)
    if cfg.get("prof"):
        A(f"""
        s_lshl_b32 s{S_T0}, s{S_G}, 5
        s_add_u32 s{S_T0}, s{S_T0}, s{S_H}
        s_lshl_b32 s{S_T0}, s{S_T0}, 2
        s_add_u32 s{S_T0}, s{S_T0}, s{S_W}
        s_lshl_b32 s{S_PROF}, s{S_T0}, 10
        s_add_u32 s{S_PROF}, s{S_PROF}, {WS_PROF}
        s_waitcnt lgkmcnt(0)
        v_mov_b32 v4, s{S_TS+2}
        s_mov_b64 exec, 1
        buffer_store_dword v4, off, {srd(R_WS)}, s{S_PROF}
        v_mov_b32 v4, s{S_TS+4}
        buffer_store_dword v4, off, {srd(R_WS)}, s{S_PROF} offset:1000
        s_memtime s[{S_TS}:{S_TS+1}]
        s_waitcnt lgkmcnt(0)
        v_mov_b32 v4, s{S_TS}
        buffer_store_dword v4, off, {srd(R_WS)}, s{S_PROF} offset:1012
        s_mov_b64 exec, -1
        """)
    A(f"""
    s_cmp_eq_u32 s{S_G}, 0
    s_cbranch_scc1 CHAIN
    """)

def build(cfg):
    A = Asm()
    prologue(A, cfg)
    worker(A, cfg)
    A("s_branch EXITP" if cfg.get("prof") else "s_branch EXIT")
    try:
        from chain import chain
        chain(A, cfg)
    except ImportError:
        A("CHAIN:")
    if cfg.get("prof"):
        A(f"""
        EXITP:
        s_memrealtime s[{S_TS}:{S_TS+1}]
        s_memtime s[{S_TS+2}:{S_TS+3}]
        s_waitcnt lgkmcnt(0)
        v_mov_b32 v4, s{S_TS}
        v_mov_b32 v5, s{S_TS+2}
        s_mov_b64 exec, 1
        buffer_store_dwordx2 v[4:5], off, {srd(R_WS)}, s{S_PROF} offset:1004
        s_waitcnt vmcnt(0)
        """)
    A("EXIT:\ns_endpgm")
    n = A.fix()
    hdr = open("recurrent_scan__memory_aug_recurrent_mem_tr__glu_gated_geglu__prompt.s.ref").read().split("\n")
    top = [l for l in hdr if l.startswith(";") and "@launch" not in l]
    out = "\n".join(top) + "\n; @launch grid=(256,1,1) block=(256,1,1) lds=163840\n"
    out += f'.amdgcn_target "amdgcn-amd-amdhsa--gfx950"\n.text\n.globl {KNAME}\n.p2align 8\n.type {KNAME},@function\n{KNAME}:\n'
    out += A.text()
    out += f""".section .rodata,"a"
.p2align 6
.amdhsa_kernel {KNAME}
  .amdhsa_next_free_vgpr 512
  .amdhsa_next_free_sgpr 102
  .amdhsa_accum_offset 256
  .amdhsa_group_segment_fixed_size 0
  .amdhsa_kernarg_size 112
  .amdhsa_user_sgpr_count 2
  .amdhsa_user_sgpr_kernarg_segment_ptr 1
  .amdhsa_system_sgpr_workgroup_id_x 1
.end_amdhsa_kernel
"""
    return out, n

if __name__ == "__main__":
    cfg = {"dm1": 0, "n0": 8, "dp2": 0, "static_roles": 2}
    for x in sys.argv[2:]:
        k, val = x.split("=")
        cfg[k] = int(val, 0)
    out, n = build(cfg)
    open(sys.argv[1], "w").write(out)
    print("wrote", sys.argv[1], len(out), "bytes; nop states added:", n)
```

```python
from common import *

def stamp(A, cfg, idx):
    if not cfg.get("prof"): return
    A(f"""
    s_memtime s[{S_TS}:{S_TS+1}]
    s_waitcnt lgkmcnt(0)
    v_mov_b32 v{cfg['vt']}, s{S_TS}
    s_mov_b64 exec, 1
    buffer_store_dword v{cfg['vt']}, off, {srd(R_WS)}, s{S_PROF} offset:{idx*4}
    s_mov_b64 exec, -1
    """)

def spin_dec(A):
    A(f"s_sub_u32 s{S_SPIN}, s{S_SPIN}, 1\ns_cbranch_scc1 EXIT")

class Stager:
    def __init__(self, A, s_base, nring, batch=4):
        self.A = A; self.s_base = s_base; self.nring = nring; self.batch = batch
        self.slots = []
        self.issued = 0; self.done = 0
    def add(self, r, voff, soff, reads):
        self.slots.append((r, voff, soff, reads))
    def issue(self, n):
        A = self.A
        for _ in range(n):
            if self.issued >= len(self.slots): return
            r, voff, soff, _r = self.slots[self.issued]
            pos = self.issued % self.nring
            A(f"s_add_u32 m0, s{self.s_base}, {pos*1024}")
            A(f"s_mov_b32 s{S_T0}, {soff}")
            A(f"buffer_load_dwordx4 v{voff}, {srd(r)}, s{S_T0} offen lds")
            self.issued += 1
    def run(self, drained=False):
        A = self.A
        known = self.issued if drained else self.done
        while self.done < len(self.slots):
            n = min(self.batch, len(self.slots) - self.done)
            if self.done + n > known:
                A(f"s_waitcnt vmcnt({self.issued - self.done - n})")
            for i in range(self.done, self.done + n):
                pos = i % self.nring
                for f in self.slots[i][3]:
                    A(f(pos * 1024))
            self.done += n
            if self.issued < len(self.slots):
                A("s_waitcnt lgkmcnt(0)")
                self.issue(n)
        A("s_waitcnt lgkmcnt(0)")

def xlane_sum8(A, t, u, op="v_add_f32"):
    A(f"{op}_dpp v{t}, v{t}, v{t} row_ror:8 row_mask:0xf bank_mask:0xf")
    A(f"v_mov_b32 v{u}, v{t}")
    A(f"v_permlane16_swap_b32 v{t}, v{u}")
    A(f"{op} v{t}, v{t}, v{u}")
    A(f"v_mov_b32 v{u}, v{t}")
    A(f"v_permlane32_swap_b32 v{t}, v{u}")
    A(f"{op} v{t}, v{t}, v{u}")

def rnd_bf16(A, t):
    A(f"v_cvt_pk_bf16_f32 v{t}, v{t}, v{t}")
    A(f"v_and_b32 v{t}, 0xffff0000, v{t}")

def xG(A, t, u, op):
    A(f"v_mov_b32 v{u}, v{t}")
    A(f"v_permlane16_swap_b32 v{t}, v{u}")
    A(f"{op} v{t}, v{t}, v{u}")
    A(f"v_mov_b32 v{u}, v{t}")
    A(f"v_permlane32_swap_b32 v{t}, v{u}")
    A(f"{op} v{t}, v{t}, v{u}")

S_GI, S_NR, S_R, S_SEG, S_RING, S_BUF, S_HOFF = 64, 65, 66, 67, 68, 69, 70
S_G2, S_H2 = 83, 84
V_L, V_L16, V_T = 1, 2, 3

def worker(A, cfg):
    cfg["vt"] = V_T
    A(f"""
    WORKER:
    s_mov_b32 s{S_G2}, s{S_G}
    s_mov_b32 s{S_H2}, s{S_H}
    s_sub_u32 s{S_GI}, s{S_G}, 1
    s_lshl_b32 s{S_T0}, s{S_GI}, 5
    s_add_u32 s85, s{S_T0}, s{S_H}          ; r
    """)
    if cfg.get("remap", 1):
        A(f"""
        s_mul_i32 s{S_H}, s85, 293
        s_lshr_b32 s{S_H}, s{S_H}, 11
        s_mul_i32 s{S_T0}, s{S_H}, 7
        s_sub_u32 s{S_GI}, s85, s{S_T0}
        s_add_u32 s{S_G}, s{S_GI}, 1
        """)
    A(f"""
    s_cmp_eq_u32 s{S_GI}, 0
    s_cselect_b32 s{S_NR}, 10, 9
    s_lshl_b32 s{S_RING}, s{S_W}, 15
    """)
    RAW, F = 16, 48
    A(f"""
    s_lshl_b32 s{S_T0}, s{S_W}, 5
    s_add_u32 s{S_T0}, s{S_T0}, s{S_H}      ; u
    s_lshl_b32 s{S_T1}, s{S_NR}, 2
    s_cmp_lt_u32 s{S_T0}, s{S_T1}
    s_cselect_b32 s{S_BUF}, 1, 0
    s_lshr_b32 s{S_T1}, s{S_T0}, 2
    s_mul_i32 s{S_T1}, s{S_T1}, 7
    s_add_u32 s{S_T1}, s{S_T1}, s{S_GI}     ; seg
    s_and_b32 s{S_T0}, s{S_T0}, 3           ; quarter
    s_lshl_b32 s{S_T2}, s{S_T1}, 15
    s_lshl_b32 s{S_T3}, s{S_T0}, 13
    s_add_u32 s{S_SEG}, s{S_T2}, s{S_T3}
    s_lshl_b32 s{S_T3}, s{S_T0}, 7
    s_add_u32 s{S_R}, s{S_T2}, s{S_T3}
    v_and_b32 v4, 7, v{V_L}
    v_lshrrev_b32 v5, 3, v{V_L}
    v_lshlrev_b32 v6, 10, v4
    v_lshl_add_u32 v6, v5, 4, v6            ; row*1024 + p*16
    v_lshlrev_b32 v7, 4, v4
    v_lshl_add_u32 v7, v5, 9, v7            ; p*512 + row*16
    s_cmp_eq_u32 s{S_BUF}, 0
    s_cbranch_scc1 W_NOLN0
    """)
    for i in range(8):
        A(f"buffer_load_dwordx4 v[{RAW+4*i}:{RAW+4*i+3}], v6, {srd(R_X)}, s{S_SEG} offen offset:{i*128}")
    A("W_NOLN0:")
    ntouch = 0
    if cfg.get("touch", 1):
        A(f"""
        s_lshl_b32 s{S_T0}, s85, 2
        s_add_u32 s{S_T0}, s{S_T0}, s{S_W}
        s_mul_i32 s{S_T0}, s{S_T0}, {37*128}
        v_lshlrev_b32 v4, 7, v{V_L}
        s_mov_b32 exec_hi, 31
        """)
        for R in {1: (R_WO, R_WQ), 2: (R_WO, R_WK, R_WV, R_WQ), 3: (R_WO, R_WK, R_WV, R_WQ)}[cfg.get("touch", 1)]:
            for o in ((0,) if cfg.get("touch", 1) == 3 else (0, 64)):
                A(f"buffer_load_dword v{120+ntouch}, v4, {srd(R)}, s{S_T0} offen offset:{o}"); ntouch += 1
        A("s_mov_b32 exec_hi, -1")
    VS, VRK, VRV = 8, 9, 10
    A(f"""
    v_lshrrev_b32 v4, 2, v{V_L}
    v_and_b32 v5, 3, v{V_L}
    v_lshlrev_b32 v{VS}, 13, v4
    v_lshl_add_u32 v{VS}, v5, 4, v{VS}
    s_lshl_b32 s{S_T0}, s{S_H}, 8
    s_lshl_b32 s{S_T1}, s{S_W}, 6
    s_add_u32 s{S_T0}, s{S_T0}, s{S_T1}
    v_add_u32 v{VS}, s{S_T0}, v{VS}
    v_lshrrev_b32 v4, 5, v{V_L}              ; hf
    v_bfe_u32 v5, v{V_L}, 2, 2               ; r'
    v_lshlrev_b32 v4, 9, v4
    v_lshl_add_u32 v4, v5, 6, v4             ; (8hf + r')*64
    v_add_u32 v4, s{S_RING}, v4
    v_bfe_u32 v5, v{V_L}, 4, 1               ; colhalf
    v_and_b32 v11, 1, v{V_L}
    v_bfe_u32 v12, v{V_L}, 1, 1
    ; K/Q: e = 16*colhalf + 8*(c'&1) + 4*(c'>>1)
    v_lshl_add_u32 v{VRK}, v5, 5, v4
    v_lshl_add_u32 v{VRK}, v11, 4, v{VRK}
    v_lshl_add_u32 v{VRK}, v12, 3, v{VRK}
    ; V: e = 8*c' + 4*colhalf
    v_and_b32 v11, 3, v{V_L}
    v_lshl_add_u32 v{VRV}, v11, 4, v4
    v_lshl_add_u32 v{VRV}, v5, 3, v{VRV}
    """)
    def rd32(reg, va):
        return [lambda o, reg=reg: f"ds_read_b64_tr_b16 {reg(0)}, v{va} offset:{o}",
                lambda o, reg=reg: f"ds_read_b64_tr_b16 {reg(2)}, v{va} offset:{o+256}"]
    st = Stager(A, S_RING, 32)
    for ks in range(32):
        st.add(R_WK, VS, ks * 16 * 8192, rd32(lambda j, ks=ks: a(4*ks+j, 2), VRK))
        st.add(R_WV, VS, ks * 16 * 8192, rd32(lambda j, ks=ks: a(128+4*ks+j, 2), VRV))
    st.issue(32)
    A(f"s_cmp_eq_u32 s{S_BUF}, 0\ns_cbranch_scc1 W_NOLN1")
    A(f"s_waitcnt vmcnt({32+ntouch})")
    for i in range(32):
        A(f"v_lshlrev_b32 v{F+2*i}, 16, v{RAW+i}")
        A(f"v_and_b32 v{F+2*i+1}, 0xffff0000, v{RAW+i}")
    A(f"v_add_f32 v12, v{F}, v{F+1}\nv_add_f32 v13, v{F+2}, v{F+3}")
    for i in range(4, 64, 2):
        A(f"v_add_f32 v12, v12, v{F+i}\nv_add_f32 v13, v13, v{F+i+1}")
    A("v_add_f32 v12, v12, v13")
    xlane_sum8(A, 12, 13)
    A("v_mul_f32 v12, 0x3b000000, v12      ; mean")
    A("v_mov_b32 v14, 0\nv_mov_b32 v15, 0")
    for i in range(0, 64, 2):
        A(f"v_sub_f32 v4, v{F+i}, v12\nv_sub_f32 v5, v{F+i+1}, v12")
        A("v_fmac_f32 v14, v4, v4\nv_fmac_f32 v15, v5, v5")
    A("v_add_f32 v14, v14, v15")
    xlane_sum8(A, 14, 13)
    A("v_mul_f32 v14, 0x3b000000, v14      ; var")
    rnd_bf16(A, 12); rnd_bf16(A, 14)
    A("v_add_f32 v14, 0x3727c5ac, v14")
    rnd_bf16(A, 14)
    A("v_sqrt_f32 v14, v14")
    rnd_bf16(A, 14)
    A("v_rcp_f32 v14, v14")
    for i in range(32):
        A(f"v_sub_f32 v4, v{F+2*i}, v12\nv_sub_f32 v5, v{F+2*i+1}, v12")
        A("v_cvt_pk_bf16_f32 v4, v4, v5")
        A("v_and_b32 v5, 0xffff0000, v4\nv_lshlrev_b32 v4, 16, v4")
        A("v_mul_f32 v5, v5, v14\nv_mul_f32 v4, v4, v14")
        A(f"v_cvt_pk_bf16_f32 v{RAW+i}, v4, v5")
    for i in range(8):
        A(f"s_add_u32 s{S_T0}, s{S_R}, {WS_XN + i*4096}")
        A(f"buffer_store_dwordx4 v[{RAW+4*i}:{RAW+4*i+3}], v7, {srd(R_WS)}, s{S_T0} offen sc1")
    A("W_NOLN1:")
    A(f"""
    v_mov_b32 v12, -1
    v_mov_b32 v13, -1
    v_mov_b32 v14, -1
    v_mov_b32 v15, -1
    s_lshl_b32 s{S_T0}, s{S_GI}, 17
    s_lshl_b32 s{S_T1}, s{S_H}, 12
    s_add_u32 s{S_T0}, s{S_T0}, s{S_T1}
    s_lshl_b32 s{S_T1}, s{S_W}, 10
    s_add_u32 s{S_T0}, s{S_T0}, s{S_T1}
    s_add_u32 s{S_T0}, s{S_T0}, {WS_KVM}
    s_mov_b32 s{S_T1}, s{S_NR}
    W_FILL:
    buffer_store_dwordx4 v[12:15], v{V_L16}, {srd(R_WS)}, s{S_T0} offen sc1
    s_add_u32 s{S_T0}, s{S_T0}, {7*131072}
    s_sub_u32 s{S_T1}, s{S_T1}, 1
    s_cmp_lg_u32 s{S_T1}, 0
    s_cbranch_scc1 W_FILL
    """)
    A(f"""
    s_lshl_b32 s{S_T0}, s{S_H}, 7
    s_lshl_b32 s{S_T1}, s{S_G}, 2
    s_add_u32 s71, s{S_T0}, s{S_T1}
    s_add_u32 s71, s71, {FL_KV}
    s_lshl_b32 s{S_T0}, s{S_G}, 12
    s_lshl_b32 s{S_T1}, s{S_H}, 7
    s_add_u32 s72, s{S_T0}, s{S_T1}
    s_add_u32 s72, s72, {FL_GRP}
    s_cmp_eq_u32 s{S_W}, 3
    s_cbranch_scc0 W_NOZ
    v_mov_b32 v4, 0
    s_mov_b64 exec, 1
    buffer_store_dword v4, off, {srd(R_WS)}, s71 sc1
    buffer_store_dword v4, off, {srd(R_WS)}, s72 sc1
    s_mov_b64 exec, -1
    W_NOZ:
    s_waitcnt vmcnt(0)
    s_barrier
    s_cmp_eq_u32 s{S_W}, 3
    s_cbranch_scc0 W_NOA
    v_mov_b32 v4, 1
    s_lshl_b32 s{S_T1}, s{S_G}, 2
    s_mov_b64 exec, 1
    buffer_atomic_add v4, off, {srd(R_DBG)}, s{S_T1} offset:{D_ARR}
    s_mov_b64 exec, -1
    s_waitcnt vmcnt(0)
    W_NOA:
    """)
    stamp(A, cfg, 1)
    if cfg.get("prof"): A("s_waitcnt vmcnt(0)")
    st.run(drained=True)
    stamp(A, cfg, 2)
    A(f"""
    s_cmp_eq_u32 s{S_W}, 0
    s_cbranch_scc0 W_LNOK
    s_lshl_b32 s{S_T1}, s{S_G}, 2
    W_LNP:
    buffer_load_dword v4, off, {srd(R_DBG)}, s{S_T1} offset:{D_ARR} sc1
    """)
    spin_dec(A)
    A(f"""
    s_waitcnt vmcnt(0)
    v_readfirstlane_b32 s{S_T0}, v4
    s_cmp_lt_u32 s{S_T0}, 32
    s_cbranch_scc1 W_LNP
    W_LNOK:
    s_barrier
    """)
    VKK = 12
    VKS = 11
    lane_ma(A, 4, V_L, 5)
    A(f"""
    v_and_b32 v4, 255, v4
    v_lshrrev_b32 v5, 5, v{V_L}
    v_lshl_add_u32 v4, v5, 8, v4
    v_bfe_u32 v5, v{V_L}, 4, 1
    v_lshl_add_u32 v{VKS}, v5, 10, v4
    s_lshl_b32 s{S_HOFF}, s{S_H}, 13
    s_lshl_b32 s{S_T0}, s{S_W}, 11
    s_add_u32 s75, s{S_HOFF}, s{S_T0}       ; h*8K + w*2K
    v_lshlrev_b32 v{VKK}, 13, v5
    v_lshrrev_b32 v5, 5, v{V_L}
    v_lshl_add_u32 v{VKK}, v5, 8, v{VKK}
    v_bfe_u32 v5, v{V_L}, 1, 1
    v_lshl_add_u32 v{VKK}, v5, 12, v{VKK}
    v_bfe_u32 v5, v{V_L}, 2, 2
    v_lshl_add_u32 v{VKK}, v5, 5, v{VKK}
    v_and_b32 v5, 1, v{V_L}
    v_lshl_add_u32 v{VKK}, v5, 4, v{VKK}
    s_and_b32 s{S_T0}, s{S_W}, 1
    s_lshl_b32 s{S_T0}, s{S_T0}, 10
    s_lshr_b32 s{S_T1}, s{S_W}, 1
    s_lshl_b32 s{S_T1}, s{S_T1}, 7
    s_add_u32 s{S_T0}, s{S_T0}, s{S_T1}
    v_add_u32 v{VKK}, s{S_T0}, v{VKK}
    """)
    def xn_dma(sseg, sbuf):
        A(f"""
        s_lshl_b32 s{S_T0}, s{sseg}, 15
        s_lshl_b32 s{S_T1}, s{S_W}, 13
        s_add_u32 s{S_T0}, s{S_T0}, s{S_T1}
        s_add_u32 m0, s{sbuf}, s{S_T1}
        s_add_u32 s{S_T2}, s{S_T0}, 4096
        """)
        for i in range(4):
            A(f"buffer_load_dwordx4 v{V_L16}, {srd(R_WS)}, s{S_T0} offen offset:{i*1024} sc1 lds")
        A("s_add_u32 m0, m0, 4096")
        for i in range(4):
            A(f"buffer_load_dwordx4 v{V_L16}, {srd(R_WS)}, s{S_T2} offen offset:{i*1024} sc1 lds")
    def seg_loop(name, body, flag_pub, nst):
        A(f"""
        s_mov_b32 s{S_R}, 0
        s_mov_b32 s{S_SEG}, s{S_GI}
        s_mov_b32 s{S_BUF}, 0
        """)
        xn_dma(S_SEG, S_BUF)
        A(f"""
        s_waitcnt vmcnt(0)
        {name}_LOOP:
        s_barrier
        s_sub_u32 s{S_T0}, s{S_R}, 1
        s_max_i32 s{S_T0}, s{S_T0}, 0
        """)
        flag_pub(S_T0, "A")
        A(f"""
        v_add_u32 v13, s{S_BUF}, v{V_L16}
        s_xor_b32 s{S_BUF}, s{S_BUF}, 0x8000
        s_add_u32 s{S_R}, s{S_R}, 1
        s_cmp_eq_u32 s{S_R}, s{S_NR}
        s_cbranch_scc1 {name}_NOPF
        s_add_u32 s{S_T3}, s{S_SEG}, 7
        """)
        xn_dma(S_T3, S_BUF)
        A(f"{name}_NOPF:")
        body()
        A(f"""
        s_add_u32 s{S_SEG}, s{S_SEG}, 7
        s_cmp_eq_u32 s{S_R}, s{S_NR}
        s_waitcnt vmcnt({nst})
        s_cbranch_scc0 {name}_LOOP
        """)
    def seg_end(flag_pub):
        A("s_waitcnt vmcnt(0)\ns_barrier")
        flag_pub(S_R, "B")
    XF, AK, AV, PK = 16, 48, 64, 80
    NPF = 8
    def pub_kv(sv, tag):
        A(f"""
        s_cmp_eq_u32 s{S_W}, 0
        s_cbranch_scc0 P1_NOPUB{tag}
        v_mov_b32 v4, s{sv}
        s_mov_b64 exec, 1
        buffer_store_dword v4, off, {srd(R_WS)}, s71 sc1
        s_mov_b64 exec, -1
        P1_NOPUB{tag}:
        """)
    def body1():
        for ks in range(NPF):
            A(f"ds_read_b128 v[{XF+4*ks}:{XF+4*ks+3}], v13 offset:{ks*1024}")
        for ks in range(32):
            x = XF + 4 * (ks % NPF)
            A(f"s_waitcnt lgkmcnt({min(NPF-1, 31-ks)})")
            ck = "0" if ks == 0 else v(AK, 16)
            cv = "0" if ks == 0 else v(AV, 16)
            A(f"v_mfma_f32_32x32x16_bf16 {v(AK,16)}, {a(4*ks,4)}, {v(x,4)}, {ck}")
            A(f"v_mfma_f32_32x32x16_bf16 {v(AV,16)}, {v(x,4)}, {a(128+4*ks,4)}, {cv}")
            if ks + NPF < 32:
                A(f"ds_read_b128 v[{x}:{x+3}], v13 offset:{(ks+NPF)*1024}")
        A(f"""
        s_lshl_b32 s{S_T0}, s{S_SEG}, 18
        s_add_u32 s{S_T0}, s{S_T0}, s75
        s_lshl_b32 s{S_T0}, s{S_T0}, 1
        s_add_u32 s{S_T0}, s{S_T0}, {WS_KV}
        s_and_b32 s{S_T1}, s{S_T0}, 0xffffc000
        """)
        for i in range(8):
            A(f"v_cvt_pk_bf16_f32 v{PK+i}, v{AK+2*i}, v{AK+2*i+1}")
        A(f"buffer_store_dwordx4 {v(PK,4)}, v{VKK}, {srd(R_WS)}, s{S_T1} offen sc1")
        A(f"buffer_store_dwordx4 {v(PK+4,4)}, v{VKK}, {srd(R_WS)}, s{S_T1} offen offset:512 sc1")
        for i, r in enumerate([0, 2, 8, 10, 4, 6, 12, 14]):
            A(f"v_cvt_pk_bf16_f32 v{PK+8+i}, v{AV+r}, v{AV+r+1}")
        A(f"buffer_store_dwordx4 {v(PK+8,4)}, v{VKS}, {srd(R_WS)}, s{S_T0} offen offset:2048 sc1")
        A(f"buffer_store_dwordx4 {v(PK+12,4)}, v{VKS}, {srd(R_WS)}, s{S_T0} offen offset:2560 sc1")
    seg_loop("P1", body1, pub_kv, 4)
    seg_end(pub_kv)
    stamp(A, cfg, 3)
    if cfg.get("stop", 99) <= 1:
        A("s_branch EXIT")
        return
    VSF, VRF, VHS = 14, 15, 10
    A(f"""
    v_lshrrev_b32 v4, 1, v{V_L}
    v_mul_u32_u24 v{VSF}, 3584, v4
    v_and_b32 v5, 1, v{V_L}
    v_lshl_add_u32 v{VSF}, v5, 4, v{VSF}
    s_lshl_b32 s{S_T0}, s{S_H}, 7
    s_lshl_b32 s{S_T1}, s{S_W}, 5
    s_add_u32 s{S_T0}, s{S_T0}, s{S_T1}
    v_add_u32 v{VSF}, s{S_T0}, v{VSF}
    v_lshlrev_b32 v{VRF}, 4, v5
    v_bfe_u32 v5, v{V_L}, 1, 1
    v_lshl_add_u32 v{VRF}, v5, 3, v{VRF}
    v_bfe_u32 v5, v{V_L}, 2, 2
    v_lshl_add_u32 v{VRF}, v5, 5, v{VRF}
    v_lshrrev_b32 v5, 5, v{V_L}
    v_lshl_add_u32 v{VRF}, v5, 8, v{VRF}
    v_bfe_u32 v4, v{V_L}, 4, 1
    v_lshl_add_u32 v{VRF}, v4, 10, v{VRF}
    v_add_u32 v{VRF}, s{S_RING}, v{VRF}
    v_lshlrev_b32 v{VHS}, 16, v4
    v_lshl_add_u32 v{VHS}, v5, 8, v{VHS}
    v_and_b32 v5, 15, v{V_L}
    v_lshl_add_u32 v{VHS}, v5, 4, v{VHS}
    s_lshl_b32 s{S_T0}, s{S_T0}, 4
    v_add_u32 v{VHS}, s{S_T0}, v{VHS}
    """)
    st = Stager(A, S_RING, 32)
    for p in range(16):
        for kk in range(2):
            ks = 2 * p + kk
            st.add(R_WQ, VS, ks * 16 * 8192, rd32(lambda j, ks=ks: a(4*ks+j, 2), VRK))
        st.add(R_WG, VSF, p * 32 * 3584, [])
        rds = []
        for kk in range(2):
            for hb in range(2):
                rds.append(lambda o, p=p, kk=kk, hb=hb: f"ds_read_b64_tr_b16 {a(128+4*(2*p+kk)+2*hb, 2)}, v{VRF} offset:{o - 1024 + kk*512 + hb*128}")
        st.add(R_WU, VSF, p * 32 * 3584, rds)
    st.issue(32)
    st.run()
    A("s_barrier")
    stamp(A, cfg, 4)
    C1 = -2 * 1.4426950408889634 * 0.7978845608028654
    A(f"s_mov_b32 s73, {f2u(C1)}\ns_mov_b32 s74, {f2u(C1 * 0.044715)}")
    def body2():
        for ks in range(NPF):
            A(f"ds_read_b128 v[{XF+4*ks}:{XF+4*ks+3}], v13 offset:{ks*1024}")
        for ks in range(32):
            x = XF + 4 * (ks % NPF)
            A(f"s_waitcnt lgkmcnt({min(NPF-1, 31-ks)})")
            ck = "0" if ks == 0 else v(AK, 16)
            cv = "0" if ks == 0 else v(AV, 16)
            A(f"v_mfma_f32_32x32x16_bf16 {v(AV,16)}, {a(128+4*ks,4)}, {v(x,4)}, {cv}")
            A(f"v_mfma_f32_32x32x16_bf16 {v(AK,16)}, {a(4*ks,4)}, {v(x,4)}, {ck}")
            if ks + NPF < 32:
                A(f"ds_read_b128 v[{x}:{x+3}], v13 offset:{(ks+NPF)*1024}")
        A(f"""
        s_lshl_b32 s{S_T0}, s{S_SEG}, 18
        s_lshl_b32 s{S_T1}, s{S_SEG}, 17
        s_add_u32 s{S_T0}, s{S_T0}, s75
        s_add_u32 s{S_T1}, s{S_T1}, {WS_H}
        s_add_u32 s{S_T0}, s{S_T0}, {WS_QX}
        v_mov_b32 v4, s73
        """)
        T = PK + 8
        for i in range(8): A(f"v_mul_f32 v{T+i}, v{AV+i}, v{AV+i}")
        for i in range(8): A(f"v_fma_f32 v{T+i}, v{T+i}, s74, v4")
        for i in range(8): A(f"v_mul_f32 v{T+i}, v{T+i}, v{AV+i}")
        for i in range(8):
            A(f"v_cvt_pk_bf16_f32 v{PK+i}, v{AK+2*i}, v{AK+2*i+1}")
        A(f"buffer_store_dwordx4 {v(PK,4)}, v{VKS}, {srd(R_WS)}, s{S_T0} offen sc1")
        A(f"buffer_store_dwordx4 {v(PK+4,4)}, v{VKS}, {srd(R_WS)}, s{S_T0} offen offset:512 sc1")
        for i in range(8): A(f"v_exp_f32 v{T+i}, v{T+i}")
        for i in range(8): A(f"v_add_f32 v{T+i}, 1.0, v{T+i}")
        for i in range(8): A(f"v_rcp_f32 v{T+i}, v{T+i}")
        for i in range(8): A(f"v_mul_f32 v{T+i}, v{T+i}, v{AV+i}")
        for i in range(8): A(f"v_mul_f32 v{T+i}, v{T+i}, v{AV+8+i}")
        for i in range(4): A(f"v_cvt_pk_bf16_f32 v{T+8+i}, v{T+2*i}, v{T+2*i+1}")
        A(f"buffer_store_dwordx4 {v(T+8,4)}, v{VHS}, {srd(R_WS)}, s{S_T1} offen sc1")
    seg_loop("P2", body2, lambda a_, b_: None, 3)
    seg_end(lambda a_, b_: None)
    def pub_grp(tag, val):
        A(f"""
        s_cmp_eq_u32 s{S_W}, 0
        s_cbranch_scc0 NOPUB_{tag}
        v_mov_b32 v4, {val}
        s_mov_b64 exec, 1
        buffer_store_dword v4, off, {srd(R_WS)}, s72 sc1
        s_mov_b64 exec, -1
        NOPUB_{tag}:
        """)
    pub_grp("H", 1)
    stamp(A, cfg, 5)
    if cfg.get("stop", 99) <= 2:
        A("s_waitcnt vmcnt(0)\ns_branch EXIT")
        return
    VSD, VSO, VRT = 8, 9, 10
    A(f"""
    s_mov_b32 s{S_G}, s{S_G2}
    s_mov_b32 s{S_H}, s{S_H2}
    s_sub_u32 s{S_GI}, s{S_G}, 1
    s_cmp_eq_u32 s{S_GI}, 0
    s_cselect_b32 s{S_NR}, 10, 9
    s_lshl_b32 s{S_HOFF}, s{S_H}, 13
    s_lshl_b32 s{S_T0}, s{S_G}, 12
    s_lshl_b32 s{S_T1}, s{S_H}, 7
    s_add_u32 s72, s{S_T0}, s{S_T1}
    s_add_u32 s72, s72, {FL_GRP}
    v_lshrrev_b32 v4, 2, v{V_L}
    v_and_b32 v5, 3, v{V_L}
    v_lshlrev_b32 v{VSD}, 10, v4
    v_lshl_add_u32 v{VSD}, v5, 4, v{VSD}
    s_lshr_b32 s{S_T0}, s{S_H}, 1
    s_lshl_b32 s{S_T0}, s{S_T0}, 6
    s_lshl_b32 s{S_T1}, s{S_W}, 20
    s_add_u32 s{S_T1}, s{S_T1}, s{S_T0}
    v_add_u32 v{VSO}, s{S_T1}, v{VSD}
    s_mul_i32 s{S_T1}, s{S_W}, {448*1024}
    s_add_u32 s{S_T1}, s{S_T1}, s{S_T0}
    v_add_u32 v{VSD}, s{S_T1}, v{VSD}
    v_lshlrev_b32 v{VRT}, 4, v5
    v_and_b32 v4, 3, v4
    v_lshl_add_u32 v{VRT}, v4, 6, v{VRT}
    v_lshrrev_b32 v4, 4, v{V_L}
    v_lshl_add_u32 v{VRT}, v4, 9, v{VRT}
    v_add_u32 v{VRT}, s{S_RING}, v{VRT}
    """)
    def rd16(regf):
        return [lambda o, T=T, hb=hb: f"ds_read_b64_tr_b16 {regf(4*T+2*hb)}, v{VRT} offset:{o - 1024 + T*8 + hb*256}" for T in range(2) for hb in range(2)]
    st = Stager(A, S_RING, 32)
    for kq in range(14):
        st.add(R_WD, VSD, kq * 32768, [])
        st.add(R_WD, VSD, kq * 32768 + 16384, rd16(lambda j, kq=kq: v(128 + 8*kq + j, 2)))
    for kq in range(32):
        st.add(R_WO, VSO, kq * 32768, [])
        st.add(R_WO, VSO, kq * 32768 + 16384, rd16(lambda j, kq=kq: a(8*kq + j, 2)))
    st.issue(32)
    st.run()
    stamp(A, cfg, 6)
    VFL, VPW, VPR, VG, VXO = 8, 9, 10, 11, 12
    PITCH = 144
    A(f"""
    v_and_b32 v4, 31, v{V_L}
    v_lshlrev_b32 v{VFL}, 7, v4
    s_lshl_b32 s73, s{S_G}, 12
    s_add_u32 s73, s73, {FL_GRP}
    v_and_b32 v4, 15, v{V_L}
    v_mul_u32_u24 v{VPW}, {PITCH}, v4
    v_lshrrev_b32 v5, 4, v{V_L}
    v_lshl_add_u32 v{VPW}, v5, 5, v{VPW}
    s_mul_i32 s{S_T0}, s{S_W}, {16*PITCH}
    v_add_u32 v{VPW}, s{S_T0}, v{VPW}
    v_mul_u32_u24 v{VPR}, {PITCH}, v5
    v_lshl_add_u32 v{VPR}, v4, 3, v{VPR}
    s_mul_i32 s{S_T0}, s{S_W}, {4*PITCH}
    v_add_u32 v{VPR}, s{S_T0}, v{VPR}
    v_lshlrev_b32 v{VG}, 2, v0
    v_add_u32 v{VG}, 0x20000, v{VG}
    v_lshlrev_b32 v{VXO}, 10, v5
    v_lshl_add_u32 v{VXO}, v4, 2, v{VXO}
    s_and_b32 s{S_T0}, s{S_H}, 1
    s_lshl_b32 s74, s{S_T0}, 16            ; rt*64KB
    s_lshl_b32 s{S_T0}, s{S_T0}, 14
    s_lshl_b32 s{S_T1}, s{S_W}, 12
    s_add_u32 s{S_T0}, s{S_T0}, s{S_T1}
    s_lshr_b32 s{S_T1}, s{S_H}, 1
    s_lshl_b32 s{S_T1}, s{S_T1}, 6
    s_add_u32 s{S_T0}, s{S_T0}, s{S_T1}
    v_add_u32 v{VXO}, s{S_T0}, v{VXO}
    """)
    def grp_wait(tag, s_val):
        A(f"""
        GW_{tag}:
        buffer_load_dword v4, v{VFL}, {srd(R_WS)}, s73 offen sc1
        """)
        spin_dec(A)
        A(f"""
        s_waitcnt vmcnt(0)
        v_cmp_gt_u32 vcc, {s_val}, v4
        s_cbranch_vccnz GW_{tag}
        """)
    A(f"""
    s_lshl_b32 s{S_T1}, s{S_G}, 2
    W_ARR2:
    buffer_load_dword v4, off, {srd(R_DBG)}, s{S_T1} offset:{D_ARR} sc1
    """)
    spin_dec(A)
    A(f"""
    s_waitcnt vmcnt(0)
    v_cmp_gt_u32 vcc, 32, v4
    s_cbranch_vccnz W_ARR2
    """)
    grp_wait("H", 1)
    A("s_barrier")
    HF, DA = 16, 112
    A(f"""
    s_mul_i32 s{S_T0}, s{S_W}, {14*1024}
    s_add_u32 s74, s74, s{S_T0}
    s_lshl_b32 s{S_T0}, s{S_GI}, 17
    s_add_u32 s75, s74, s{S_T0}
    s_add_u32 s75, s75, {WS_H}
    s_mov_b32 s{S_R}, 0
    v_mov_b32 v13, v{VPW}
    DN_LOOP:
    """)
    for kq in range(14):
        if kq % 4 == 0: A(f"s_add_u32 s{S_T0}, s75, {kq*1024}")
        A(f"buffer_load_dwordx4 {v(HF+4*kq,4)}, v{V_L16}, {srd(R_WS)}, s{S_T0} offen offset:{(kq%4)*1024} sc1")
    for kq in range(14):
        A(f"s_waitcnt vmcnt({13-kq})")
        for T in range(2):
            cc = "0" if kq == 0 else v(DA+4*T, 4)
            A(f"v_mfma_f32_16x16x32_bf16 {v(DA+4*T,4)}, {v(128+8*kq+4*T,4)}, {v(HF+4*kq,4)}, {cc}")
    A(f"""
    s_add_u32 s75, s75, {7*131072}
    s_add_u32 s{S_R}, s{S_R}, 1
    s_cmp_lt_u32 s{S_R}, s{S_NR}
    ds_write_b128 v13, {v(DA,4)}
    ds_write_b128 v13, {v(DA+4,4)} offset:16
    v_add_u32 v13, {64*PITCH}, v13
    s_cbranch_scc1 DN_LOOP
    s_waitcnt lgkmcnt(0)
    s_barrier
    """)
    def red4(va, off, d):
        for i in range(4):
            A(f"ds_read_b64 v[{d+2*i}:{d+2*i+1}], v{va} offset:{off + i*16*PITCH}")
    NL = -1.4426950408889634
    A(f"v_add_u32 v13, {5*64*PITCH}, v{VPR}")
    for r in range(10):
        red4(VPR if r < 5 else 13, (r % 5) * 64 * PITCH, 16 + 8 * r)
    for r in range(10):
        d = 16 + 8 * r
        A(f"s_waitcnt lgkmcnt(0)" if r == 0 else "")
        A(f"""
        v_add_f32 v{d}, v{d}, v{d+2}
        v_add_f32 v{d+1}, v{d+1}, v{d+3}
        v_add_f32 v{d+4}, v{d+4}, v{d+6}
        v_add_f32 v{d+5}, v{d+5}, v{d+7}
        v_add_f32 v{d}, v{d}, v{d+4}
        v_add_f32 v{d+1}, v{d+1}, v{d+5}
        v_cvt_pk_bf16_f32 v{d}, v{d}, v{d+1}
        v_and_b32 v{d+1}, 0xffff0000, v{d}
        v_lshlrev_b32 v{d}, 16, v{d}
        v_mul_f32 v{d+2}, {f2u(NL)}, v{d}
        v_mul_f32 v{d+3}, {f2u(NL)}, v{d+1}
        v_exp_f32 v{d+2}, v{d+2}
        v_exp_f32 v{d+3}, v{d+3}
        v_add_f32 v{d+2}, 1.0, v{d+2}
        v_add_f32 v{d+3}, 1.0, v{d+3}
        v_rcp_f32 v{d+2}, v{d+2}
        v_rcp_f32 v{d+3}, v{d+3}
        v_mul_f32 v{d}, v{d}, v{d+2}
        v_mul_f32 v{d+1}, v{d+1}, v{d+3}
        v_cvt_pk_bf16_f32 v{d}, v{d}, v{d+1}
        ds_write_b32 v{VG}, v{d} offset:{r*1024}
        """)
    stamp(A, cfg, 7)
    KX, QX, VX, KM, FM, SS, OA = 16, 48, 64, 80, 16, 100, 112
    VMA, VKW, VQI, VKR, VKL = 13, 14, 15, 96, 97
    S_AT, S_OW, S_OR, S_XO, S_CS, S_MK = 75, 76, 77, 79, 80, 81
    S_EH, S_MSK = 82, 86
    L_KT = 0x24000
    lane_ma(A, VMA, V_L, 4)
    A(f"""
    s_lshl_b32 s{S_T0}, s{S_W}, 12
    s_add_u32 s{S_T0}, s{S_T0}, {L_KT}
    v_and_b32 v4, 15, v{V_L}
    v_lshrrev_b32 v5, 4, v{V_L}
    v_lshlrev_b32 v{VKW}, 6, v4
    v_lshl_add_u32 v{VKW}, v5, 4, v{VKW}
    v_add_u32 v{VKW}, s{S_T0}, v{VKW}
    v_add_u32 v{VKR}, s{S_T0}, v{V_L16}
    s_lshr_b32 s{S_T0}, s{S_W}, 1
    v_lshlrev_b32 v{VKL}, 8, v5
    v_bfe_u32 v6, v{V_L}, 1, 1
    v_lshl_add_u32 v{VKL}, v6, 12, v{VKL}
    v_bfe_u32 v6, v{V_L}, 2, 2
    v_lshl_add_u32 v{VKL}, v6, 5, v{VKL}
    v_and_b32 v6, 1, v{V_L}
    v_lshl_add_u32 v{VKL}, v6, 4, v{VKL}
    s_lshl_b32 s{S_T1}, s{S_T0}, 7
    v_add_u32 v{VKL}, s{S_T1}, v{VKL}
    v_xor_b32 v{VKL+1}, 128, v{VKL}
    s_and_b32 s{S_T2}, s{S_W}, 1
    s_lshl_b32 s{S_T3}, s{S_T2}, 4
    v_add_u32 v4, s{S_T3}, v4
    v_lshlrev_b32 v5, 2, v5
    v_sub_u32 v4, v4, v5
    """)
    for tl in range(2):
        for r in range(4):
            A(f"v_cmp_le_i32 s[{S_MSK+2*(4*tl+r)}:{S_MSK+2*(4*tl+r)+1}], {16*tl+r}, v4")
    A(f"""
    s_mov_b32 s{S_CS}, {f2u(128**-0.5 * 1.4426950408889634)}
    v_mov_b32 v{VQI}, {f2u(-1e9 * 128**0.5)}
    s_lshl_b32 s{S_OW}, s{S_T2}, 17
    s_lshl_b32 s{S_EH}, s{S_T0}, 11         ; eh*2048
    s_add_u32 s{S_OW}, s{S_OW}, s{S_EH}
    s_lshl_b32 s{S_T1}, s{S_H}, 12
    s_add_u32 s{S_OW}, s{S_OW}, s{S_T1}
    s_add_u32 s{S_OW}, s{S_OW}, {WS_O}
    s_and_b32 s{S_OR}, s{S_H}, 1
    s_lshl_b32 s{S_OR}, s{S_OR}, 17
    s_lshl_b32 s{S_T1}, s{S_W}, 15
    s_add_u32 s{S_OR}, s{S_OR}, s{S_T1}
    s_add_u32 s{S_OR}, s{S_OR}, {WS_O}
    s_lshl_b32 s{S_AT}, s{S_T2}, 10         ; qt*1024
    s_add_u32 s{S_AT}, s{S_AT}, {WS_QX}
    s_mov_b32 s{S_R}, 0
    s_mov_b32 s{S_SEG}, s{S_GI}
    """)
    def att_loads(sseg):
        A(f"""
        s_lshl_b32 s{S_T0}, s{sseg}, 18
        s_add_u32 s{S_T0}, s{S_T0}, s{S_HOFF}
        s_lshl_b32 s{S_T1}, s{S_EH}, 1
        s_add_u32 s{S_T0}, s{S_T0}, s{S_T1}
        s_add_u32 s{S_T1}, s{S_T0}, s{S_AT}
        s_lshl_b32 s{S_T0}, s{S_T0}, 1
        s_add_u32 s{S_T0}, s{S_T0}, {WS_KV}
        s_and_b32 s{S_T2}, s{S_T0}, 0xffffc000
        s_add_u32 s78, s{S_T2}, 8192
        """)
        for c in range(4):
            if c == 2: A(f"s_xor_b32 s{S_T1}, s{S_T1}, 4096")
            A(f"buffer_load_dwordx4 {v(QX+4*c,4)}, v{VMA}, {srd(R_WS)}, s{S_T1} offen offset:{(c&1)*2048} sc1")
            A(f"buffer_load_dwordx4 {v(KX+4*c,4)}, v{VKL+(c>>1)}, {srd(R_WS)}, s{S_T2} offen offset:{(c&1)*1024} sc1")
            A(f"buffer_load_dwordx4 {v(KX+16+4*c,4)}, v{VKL+(c>>1)}, {srd(R_WS)}, s78 offen offset:{(c&1)*1024} sc1")
            if c < 2:
                A(f"buffer_load_dwordx4 {v(VX+8*c,4)}, v{VMA}, {srd(R_WS)}, s{S_T0} offen offset:2048 sc1")
                A(f"buffer_load_dwordx4 {v(VX+8*c+4,4)}, v{VMA}, {srd(R_WS)}, s{S_T0} offen offset:3072 sc1")
            if c == 0: A(f"s_xor_b32 s{S_T0}, s{S_T0}, 4096")
    att_loads(S_SEG)
    fine = cfg.get("prof", 0) >= 2
    P = lambda i: A(f"s_memtime s[{8+2*i}:{9+2*i}]") if fine else None
    A(f"""
    v_and_b32 v{VFL}, 0x380, v{VFL}
    s_lshl_b32 s{S_T0}, s{S_W}, 10
    s_add_u32 s73, s73, s{S_T0}
    W5_LOOP:
    """)
    P(0)
    MX, LX, PX = 36, 37, KX + 16
    def km_loads():
        for c in range(4):
            A(f"buffer_load_dwordx4 {v(KM+4*c,4)}, v{VMA}, {srd(R_WS)}, s{S_T1 if c < 2 else S_T2} offen offset:{(c&1)*1024} sc1")
    A(f"""
    s_lshl_b32 s{S_T0}, s{S_SEG}, 18
    s_add_u32 s{S_T1}, s{S_T0}, s{S_HOFF}
    s_lshr_b32 s{S_T1}, s{S_T1}, 1
    s_add_u32 s{S_T1}, s{S_T1}, {WS_KVM}
    s_add_u32 s{S_T1}, s{S_T1}, s{S_EH}
    s_xor_b32 s{S_T2}, s{S_T1}, 2048
    s_lshl_b32 s{S_XO}, s{S_SEG}, 15
    s_add_u32 s{S_T3}, s{S_T0}, s{S_OR}
    s_add_u32 s{S_T0}, s{S_T0}, s{S_OW}
    buffer_load_dword v3, v{VXO}, {srd(R_X)}, s{S_XO} offen
    """)
    km_loads()
    A("s_waitcnt vmcnt(5)")
    P(1)
    for c in range(4):
        for tl in range(2):
            cc = "0" if c == 0 else v(SS+4*tl, 4)
            A(f"v_mfma_f32_16x16x32_bf16 {v(SS+4*tl,4)}, {v(KX+16*tl+4*c,4)}, {v(QX+4*c,4)}, {cc}")
    for i in range(8):
        A(f"v_cndmask_b32 v{SS+i}, v{VQI}, v{SS+i}, s[{S_MSK+2*i}:{S_MSK+2*i+1}]")
    A(f"""
    v_max3_f32 v{MX}, v{SS}, v{SS+1}, v{SS+2}
    v_max3_f32 v5, v{SS+3}, v{SS+4}, v{SS+5}
    v_max3_f32 v{MX}, v{MX}, v{SS+6}, v{SS+7}
    v_max_f32 v{MX}, v{MX}, v5
    v_mov_b32 v6, 0
    """)
    xG(A, MX, 5, "v_max_f32")
    A(f"v_mul_f32 v{MX}, s{S_CS}, v{MX}")
    for i in range(8): A(f"v_fma_f32 v{SS+i}, v{SS+i}, s{S_CS}, -v{MX}")
    for i in range(8): A(f"v_exp_f32 v{SS+i}, v{SS+i}")
    for i in range(4): A(f"v_cvt_pk_bf16_f32 v{PX+i}, v{SS+2*i}, v{SS+2*i+1}")
    for i in range(4):
        A(f"v_mfma_f32_16x16x32_bf16 {v(OA+4*i,4)}, {v(VX+4*i,4)}, {v(PX,4)}, 0")
    A(f"""
    v_add_f32 v{LX}, v{SS}, v{SS+1}
    v_add_f32 v5, v{SS+2}, v{SS+3}
    v_add_f32 v{LX}, v{LX}, v{SS+4}
    v_add_f32 v5, v5, v{SS+5}
    v_add_f32 v{LX}, v{LX}, v{SS+6}
    v_add_f32 v5, v5, v{SS+7}
    v_add_f32 v{LX}, v{LX}, v5
    s_branch W5_KC
    W5_KP:
    """)
    if cfg.get("wsl"): A(f"s_sleep {cfg['wsl']}")
    km_loads()
    spin_dec(A)
    A(f"""
    W5_KC:
    s_waitcnt vmcnt(0)
    v_max3_u32 v4, v{KM}, v{KM+4}, v{KM+8}
    v_max_u32 v4, v4, v{KM+12}
    v_cmp_eq_u32 vcc, -1, v4
    s_cbranch_vccnz W5_KP
    """)
    P(2)
    for c in range(4):
        A(f"ds_write_b128 v{VKW}, {v(KM+4*c,4)} offset:{c*1024}")
        A(f"ds_read_b64_tr_b16 {v(FM+4*c,2)}, v{VKR} offset:{c*1024}")
        A(f"ds_read_b64_tr_b16 {v(FM+4*c+2,2)}, v{VKR} offset:{c*1024+8}")
    for c in range(4):
        A(f"s_waitcnt lgkmcnt({9-3*c})")
        cc = "0" if c == 0 else v(SS+8, 4)
        A(f"v_mfma_f32_16x16x32_bf16 {v(SS+8,4)}, {v(FM+4*c,4)}, {v(QX+4*c,4)}, {cc}")
    A(f"""
    s_add_u32 s{S_R}, s{S_R}, 1
    s_add_u32 s{S_BUF}, s{S_R}, 1
    v_mul_f32 v{SS+8}, s{S_CS}, v{SS+8}
    v_mul_f32 v{SS+9}, s{S_CS}, v{SS+9}
    v_max3_f32 v4, v{MX}, v{SS+8}, v{SS+9}
    """)
    xG(A, 4, 5, "v_max_f32")
    A(f"""
    v_sub_f32 v{MX}, v{MX}, v4
    v_sub_f32 v{SS+8}, v{SS+8}, v4
    v_sub_f32 v{SS+9}, v{SS+9}, v4
    v_exp_f32 v{MX}, v{MX}
    v_exp_f32 v{SS+8}, v{SS+8}
    v_exp_f32 v{SS+9}, v{SS+9}
    v_fma_f32 v4, v{LX}, v{MX}, v{SS+8}
    v_add_f32 v4, v4, v{SS+9}
    """)
    xG(A, 4, 5, "v_add_f32")
    A(f"""
    v_rcp_f32 v4, v4
    v_mul_f32 v{MX}, v{MX}, v4
    v_mul_f32 v{SS+8}, v{SS+8}, v4
    v_mul_f32 v{SS+9}, v{SS+9}, v4
    v_cvt_pk_bf16_f32 v7, v{SS+8}, v{SS+9}
    """)
    for i in range(8): A(f"v_pk_mul_f32 {v(OA+2*i,2)}, {v(OA+2*i,2)}, {v(MX,2)} op_sel_hi:[1,0]")
    for i in range(4):
        A(f"v_mfma_f32_16x16x16_bf16 {v(OA+4*i,4)}, {v(KM+2*i,2)}, v[6:7], {v(OA+4*i,4)}")
    for hh in range(2):
        for i in range(4): A(f"v_cvt_pk_bf16_f32 v{SS+4*hh+i}, v{OA+8*hh+2*i}, v{OA+8*hh+2*i+1}")
        A(f"buffer_store_dwordx4 {v(SS+4*hh,4)}, v{V_L16}, {srd(R_WS)}, s{S_T0} offen offset:{hh*1024} sc1")
    P(3)
    A(f"ds_read_b32 v7, v{VG}\nv_add_u32 v{VG}, 1024, v{VG}")
    A("s_waitcnt vmcnt(0)")
    P(4)
    A("s_barrier")
    P(5)
    pub_grp("O", f"s{S_BUF}")
    grp_wait("O", f"s{S_BUF}")
    P(6)
    NB = cfg.get("nb", 16)
    def o_load(kq):
        if kq % 4 == 0 and kq: A(f"s_add_u32 s{S_T3}, s{S_T3}, 4096")
        A(f"buffer_load_dwordx4 {v(128+4*kq,4)}, v{V_L16}, {srd(R_WS)}, s{S_T3} offen offset:{(kq%4)*1024} sc1")
    for kq in range(NB): o_load(kq)
    P(7)
    for kq in range(32):
        A(f"s_waitcnt vmcnt({min(NB-1, 31-kq)})")
        if kq == 0: P(8)
        if kq == 16: P(9)
        for T in range(2):
            cc = "0" if kq == 0 else v(OA+4*T, 4)
            A(f"v_mfma_f32_16x16x32_bf16 {v(OA+4*T,4)}, {a(8*kq+4*T,4)}, {v(128+4*kq,4)}, {cc}")
        if kq + NB < 32: o_load(kq + NB)
    d = SS
    P(10)
    A(f"""
    s_waitcnt lgkmcnt(0)
    v_and_b32 v6, 0xffff0000, v7
    v_lshlrev_b32 v7, 16, v7
    v_and_b32 v5, 0xffff0000, v3
    v_lshlrev_b32 v4, 16, v3
    s_add_u32 s{S_SEG}, s{S_SEG}, 7
    ds_write_b128 v{VPW}, {v(OA,4)}
    ds_write_b128 v{VPW}, {v(OA+4,4)} offset:16
    s_waitcnt lgkmcnt(0)
    s_barrier
    """)
    red4(VPR, 0, d)
    A(f"""
    s_waitcnt lgkmcnt(2)
    v_add_f32 v{d}, v{d}, v{d+2}
    v_add_f32 v{d+1}, v{d+1}, v{d+3}
    s_waitcnt lgkmcnt(0)
    v_add_f32 v{d+4}, v{d+4}, v{d+6}
    v_add_f32 v{d+5}, v{d+5}, v{d+7}
    v_add_f32 v{d}, v{d}, v{d+4}
    v_add_f32 v{d+1}, v{d+1}, v{d+5}
    v_cvt_pk_bf16_f32 v{d}, v{d}, v{d+1}
    v_and_b32 v{d+1}, 0xffff0000, v{d}
    v_lshlrev_b32 v{d}, 16, v{d}
    v_mul_f32 v{d}, v{d}, v7
    v_mul_f32 v{d+1}, v{d+1}, v6
    v_cvt_pk_bf16_f32 v{d}, v{d}, v{d+1}
    v_and_b32 v{d+1}, 0xffff0000, v{d}
    v_lshlrev_b32 v{d}, 16, v{d}
    v_add_f32 v{d}, v{d}, v4
    v_add_f32 v{d+1}, v{d+1}, v5
    v_cvt_pk_bf16_f32 v4, v{d}, v{d+1}
    buffer_store_dword v4, v{VXO}, {srd(R_OUT)}, s{S_XO} offen
    """)
    if fine:
        P(11)
        A(f"s_cmp_eq_u32 s{S_R}, {cfg.get('pr', 4)}\ns_cbranch_scc0 W5_ND\ns_waitcnt lgkmcnt(0)")
        for i in range(12): A(f"v_writelane_b32 v5, s{8+2*i}, {i}")
        A(f"v_lshrrev_b32 v6, 2, v{V_L16}\nbuffer_store_dword v5, v6, {srd(R_WS)}, s{S_PROF} offen offset:512\nW5_ND:")
    if cfg.get("prof"):
        A(f"""
        s_memtime s[{S_TS}:{S_TS+1}]
        s_lshl_b32 s{S_T0}, s{S_R}, 2
        s_add_u32 s{S_T0}, s{S_T0}, s{S_PROF}
        s_waitcnt lgkmcnt(0)
        v_mov_b32 v5, s{S_TS}
        s_mov_b64 exec, 1
        buffer_store_dword v5, off, {srd(R_WS)}, s{S_T0} offset:28
        s_mov_b64 exec, -1
        """)
    A(f"""
    s_cmp_lt_u32 s{S_R}, s{S_NR}
    s_cbranch_scc0 W5_END
    """)
    att_loads(S_SEG)
    A(f"""
    s_branch W5_LOOP
    W5_END:
    """)
```

```python
import sys
from common import *
from worker import *

def prologue(A, cfg):
    A(f"""
    s_cmp_ge_u32 s2, 256
    s_cbranch_scc1 EXIT
    """)
    if cfg.get("ctouch", 0):
        A(f"""
        s_getpc_b64 s[64:65]
        CODE0:
        s_mov_b32 s66, EXIT-CODE0
        s_mov_b32 s67, 0x20000
        v_lshlrev_b32 v4, 7, v0
        s_mov_b32 s68, 0x8000
        buffer_load_dword v126, v4, s[64:67], 0 offen
        buffer_load_dword v127, v4, s[64:67], s68 offen
        """)
    slots = {R_X: 0, R_M0: 8, R_WQ: 16, R_WK: 24, R_WV: 32, R_WO: 40, R_WG: 64, R_WU: 72, R_WD: 80, R_OUT: 88, R_DBG: 96, R_WS: 104}
    sizes = {R_X: 2*MB, R_M0: 8192, R_WQ: 4*MB, R_WK: 4*MB, R_WV: 4*MB, R_WO: 4*MB, R_WG: 512*3584, R_WU: 512*3584,
             R_WD: 1792*1024, R_OUT: 2*MB, R_DBG: 256, R_WS: WS_SIZE}
    for r in [R_DBG] + [r for r in slots if r != R_DBG]:
        A(f"s_load_dwordx2 s[{r}:{r+1}], s[0:1], {slots[r]}")
    for r in slots:
        A(f"s_mov_b32 s{r+2}, {sizes[r]}\ns_mov_b32 s{r+3}, 0x20000")
    A(f"""
    s_getreg_b32 s{S_XCC}, hwreg(HW_REG_XCC_ID)
    s_and_b32 s{S_XCC}, s{S_XCC}, 7
    v_lshrrev_b32 v3, 6, v0
    v_and_b32 v1, 63, v0
    v_readfirstlane_b32 s{S_W}, v3
    v_lshlrev_b32 v2, 4, v1
    s_mov_b32 s{S_SPIN}, {cfg.get('spin', 1<<17)}
    v_mov_b32 v5, 0
    s_waitcnt lgkmcnt(0)
    """)
    if cfg.get("prof"):
        A(f"s_memtime s[{S_TS+2}:{S_TS+3}]\ns_memrealtime s[{S_TS+4}:{S_TS+5}]")
    if cfg.get("static_roles"):
        A(f"s_and_b32 s{S_H}, s2, 31\ns_lshr_b32 s{S_G}, s2, 5" if cfg["static_roles"] == 1 else f"s_xor_b32 s{S_G}, s2, {cfg.get('cx', 0)}\ns_and_b32 s{S_G}, s{S_G}, 7\ns_lshr_b32 s{S_H}, s2, 3")
    else:
        A(f"""
        s_cmp_eq_u32 s{S_W}, 0
        s_cbranch_scc0 TK_DONE
        s_mov_b32 s{S_G}, s{S_XCC}
        s_mov_b32 s{S_T1}, 8
        s_mov_b64 exec, 1
        TK_LOOP:
        v_mov_b32 v4, 1
        s_lshl_b32 s{S_T0}, s{S_G}, 2
        buffer_atomic_add v4, off, {srd(R_DBG)}, s{S_T0} offset:{D_TICK} sc0
        s_waitcnt vmcnt(0)
        v_readfirstlane_b32 s{S_H}, v4
        s_cmp_lt_u32 s{S_H}, 32
        s_cbranch_scc1 TK_GOT
        s_add_u32 s{S_G}, s{S_G}, 1
        s_and_b32 s{S_G}, s{S_G}, 7
        s_sub_u32 s{S_T1}, s{S_T1}, 1
        s_cmp_lg_u32 s{S_T1}, 0
        s_cbranch_scc1 TK_LOOP
        s_mov_b32 s{S_G}, 8
        TK_GOT:
        s_lshl_b32 s{S_T0}, s{S_G}, 5
        s_add_u32 s{S_T0}, s{S_T0}, s{S_H}
        v_mov_b32 v4, s{S_T0}
        ds_write_b32 v5, v4
        s_mov_b64 exec, -1
        s_waitcnt lgkmcnt(0)
        TK_DONE:
        s_barrier
        ds_read_b32 v4, v5
        s_waitcnt lgkmcnt(0)
        v_readfirstlane_b32 s{S_T0}, v4
        s_barrier
        s_cmp_ge_u32 s{S_T0}, 256
        s_cbranch_scc1 EXIT
        s_and_b32 s{S_H}, s{S_T0}, 31
        s_lshr_b32 s{S_G}, s{S_T0}, 5
        """)
    if cfg.get("prof"):
        A(f"""
        s_lshl_b32 s{S_T0}, s{S_G}, 5
        s_add_u32 s{S_T0}, s{S_T0}, s{S_H}
        s_lshl_b32 s{S_T0}, s{S_T0}, 2
        s_add_u32 s{S_T0}, s{S_T0}, s{S_W}
        s_lshl_b32 s{S_PROF}, s{S_T0}, 10
        s_add_u32 s{S_PROF}, s{S_PROF}, {WS_PROF}
        s_waitcnt lgkmcnt(0)
        v_mov_b32 v4, s{S_TS+2}
        s_mov_b64 exec, 1
        buffer_store_dword v4, off, {srd(R_WS)}, s{S_PROF}
        v_mov_b32 v4, s{S_TS+4}
        buffer_store_dword v4, off, {srd(R_WS)}, s{S_PROF} offset:1000
        s_memtime s[{S_TS}:{S_TS+1}]
        s_waitcnt lgkmcnt(0)
        v_mov_b32 v4, s{S_TS}
        buffer_store_dword v4, off, {srd(R_WS)}, s{S_PROF} offset:1012
        s_mov_b64 exec, -1
        """)
    A(f"""
    s_cmp_eq_u32 s{S_G}, 0
    s_cbranch_scc1 CHAIN
    """)

def build(cfg):
    A = Asm()
    prologue(A, cfg)
    worker(A, cfg)
    A("s_branch EXITP" if cfg.get("prof") else "s_branch EXIT")
    try:
        from chain import chain
        chain(A, cfg)
    except ImportError:
        A("CHAIN:")
    if cfg.get("prof"):
        A(f"""
        EXITP:
        s_memrealtime s[{S_TS}:{S_TS+1}]
        s_memtime s[{S_TS+2}:{S_TS+3}]
        s_waitcnt lgkmcnt(0)
        v_mov_b32 v4, s{S_TS}
        v_mov_b32 v5, s{S_TS+2}
        s_mov_b64 exec, 1
        buffer_store_dwordx2 v[4:5], off, {srd(R_WS)}, s{S_PROF} offset:1004
        s_waitcnt vmcnt(0)
        """)
    A("EXIT:\ns_endpgm")
    n = A.fix()
    hdr = open("recurrent_scan__memory_aug_recurrent_mem_tr__glu_gated_geglu__prompt.s.ref").read().split("\n")
    top = [l for l in hdr if l.startswith(";") and "@launch" not in l]
    out = "\n".join(top) + "\n; @launch grid=(256,1,1) block=(256,1,1) lds=163840\n"
    out += f'.amdgcn_target "amdgcn-amd-amdhsa--gfx950"\n.text\n.globl {KNAME}\n.p2align 8\n.type {KNAME},@function\n{KNAME}:\n'
    out += A.text()
    out += f""".section .rodata,"a"
.p2align 6
.amdhsa_kernel {KNAME}
  .amdhsa_next_free_vgpr 512
  .amdhsa_next_free_sgpr 102
  .amdhsa_accum_offset 256
  .amdhsa_group_segment_fixed_size 0
  .amdhsa_kernarg_size 112
  .amdhsa_user_sgpr_count 2
  .amdhsa_user_sgpr_kernarg_segment_ptr 1
  .amdhsa_system_sgpr_workgroup_id_x 1
.end_amdhsa_kernel
"""
    return out, n

if __name__ == "__main__":
    cfg = {"dm1": 0, "n0": 8, "dp2": 0, "static_roles": 2, "touch": 0, "cx": 1, "nt": 3, "ctouch": 0, "kd": 1, "pe": 2, "dpos": 4, "ep": 18, "tP1": 0, "tP2": 2, "sP2": 2}
    for x in sys.argv[2:]:
        k, val = x.split("=")
        cfg[k] = int(val, 0)
    out, n = build(cfg)
    open(sys.argv[1], "w").write(out)
    print("wrote", sys.argv[1], len(out), "bytes; nop states added:", n)
```

```python
import re
from common import *
from worker import stamp, spin_dec, xG

L_PX, L_SEL, L_F, L_REG, RP = 0, 0xC00, 0x1000, 0x2000, 0x8C00
O_WQ, O_WO, O_A, O_S = 0, 0x4000, 0x8000, 0x8800
L_DUMMY = L_REG + O_S
V_IDX, V_MA, V_KA, V_FW, V_FR, V_PW, V_PST, V_MST = 0, 1, 2, 3, 4, 5, 6, 7
V_R = [8, 9, 10, 11]
PUB = 12
RA, RE, RV, RQ, RK, ALT = 16, 48, 104, 112, 120, 40
RKX, RVX = 56, 64
S_S, S_RING, S_ROT = 64, 65, 66
S_RDY, S_PW, S_MB, S_KVB, S_MW, S_PUB, S_TAG, S_FKV = 70, 71, 72, 73, 74, 75, 76, 77
S_C, S_THR = 78, 79
S_B1, S_ON, S_HF = 80, 82, 90
S_SENT, S_PR0, S_PR1, S_W2K, S_MR = 84, 85, 86, 87, 88

def WQ(t, ab): return v(RE + 8 * ((2 * t + ab) % 7), 8) if t < 4 else v(128 + 8 * (2 * (t - 4) + ab), 8)
def WK(t, ab): return a(8 * (2 * t + ab), 8)
def WV(t, ab): return a(128 + 8 * (2 * t + ab), 8)
WOS = {(2, 0): 72, (3, 0): 80, (2, 1): 88, (3, 1): 48, (2, 2): 56, (3, 2): 104, (2, 3): 96, (3, 3): 16}
def WO(c, T): return v(192 + 8 * (4 * c + T), 8) if c < 2 else v(WOS[(c, T)], 8)
def SM(d, aa, b): return f"v_smfmac_f32_16x16x64_bf16 {v(d,4)}, {v(aa,4)}, {b}, v{V_IDX}"
def MF(d, aa, b, c): return f"v_mfma_f32_16x16x32_bf16 {v(d,4)}, {v(aa,4)}, {v(b,4)}, {c}"
def MH(d, aa, b, c): return f"v_mfma_f32_16x16x16_bf16 {v(d,4)}, {v(aa,2)}, {v(b,2)}, {c}"
DPP = lambda p: f"quad_perm:[{p}] row_mask:0xf bank_mask:0xf"

def chain_init(A, cfg):
    L, L16 = 20, 21
    vm = VM(A)
    A(f"""
    CHAIN:
    v_mov_b32 v{L}, v1
    v_mov_b32 v{L16}, v2
    s_mul_i32 s{S_RING}, s{S_W}, {RP}
    s_add_u32 s{S_RING}, s{S_RING}, {L_REG}
    s_lshl_b32 s{S_W2K}, s{S_W}, 11
    """)
    for i in range(4):
        A(f"s_add_u32 s{S_T0}, s{S_W}, {i}\ns_and_b32 s{S_ROT+i}, s{S_T0}, 3")
    A(f"""
    v_lshrrev_b32 v22, 4, v{L}
    v_bfe_u32 v23, v{L}, 2, 1
    v_lshlrev_b32 v{V_MST}, 8, v23
    v_bfe_u32 v23, v{L}, 1, 1
    v_lshl_add_u32 v{V_MST}, v23, 5, v{V_MST}
    v_and_b32 v23, 1, v{L}
    v_lshl_add_u32 v{V_MST}, v23, 3, v{V_MST}
    v_and_b32 v23, 1, v22
    v_lshl_add_u32 v{V_MST}, v23, 4, v{V_MST}
    v_lshrrev_b32 v24, 5, v{L}
    v_lshl_add_u32 v{V_MST}, v24, 2, v{V_MST}
    v_lshlrev_b32 v25, 10, v23
    v_lshl_add_u32 v25, v24, 2, v25
    v_and_b32 v24, 7, v{L}
    v_lshl_add_u32 v25, v24, 4, v25
    s_lshr_b32 s{S_T0}, s{S_H}, 3            ; w'
    s_bfe_u32 s{S_T1}, s{S_H}, 0x20001       ; G'
    s_and_b32 s{S_T2}, s{S_H}, 1             ; nh
    s_and_b32 s{S_T3}, s{S_W}, 1             ; sig
    s_lshl_b32 s{S_PW}, s{S_T0}, 11
    s_lshl_b32 s{S_MB}, s{S_T3}, 10
    s_add_u32 s{S_PW}, s{S_PW}, s{S_MB}
    s_lshl_b32 s{S_MB}, s{S_T2}, 9
    s_add_u32 s{S_PW}, s{S_PW}, s{S_MB}
    s_lshl_b32 s{S_MB}, s{S_T1}, 6
    s_add_u32 s{S_PW}, s{S_PW}, s{S_MB}
    v_add_u32 v{V_MST}, s{S_PW}, v{V_MST}
    s_lshl_b32 s{S_T1}, s{S_T1}, 11
    s_lshl_b32 s{S_PW}, s{S_T0}, 8
    s_add_u32 s{S_T1}, s{S_T1}, s{S_PW}
    s_lshl_b32 s{S_T2}, s{S_T2}, 7
    s_add_u32 s{S_T1}, s{S_T1}, s{S_T2}
    s_lshl_b32 s{S_T3}, s{S_T3}, 3
    s_add_u32 s{S_T1}, s{S_T1}, s{S_T3}
    """)
    m0l = vm.issue(f"buffer_load_dword v28, v25, {srd(R_M0)}, s{S_T1} offen")
    A(f"""
    v_lshrrev_b32 v23, 3, v{L}
    s_lshl_b32 s{S_T1}, s{S_W}, 3
    v_add_u32 v23, s{S_T1}, v23
    v_lshlrev_b32 v{V_PST}, 13, v23
    v_lshl_add_u32 v{V_PST}, v24, 4, v{V_PST}
    v_and_b32 v23, {cfg.get("swz", 31)}, v23
    v_xor_b32 v23, s{S_H}, v23
    v_lshl_add_u32 v{V_PST}, v23, 7, v{V_PST}
    v_mov_b32 v24, -1
    v_mov_b32 v25, -1
    v_mov_b32 v26, -1
    v_mov_b32 v27, -1
    s_mov_b32 s{S_PW}, {WS_P}
    s_mov_b32 s{S_PR1}, {WS_P + 4096}
    """)
    vm.issue(f"buffer_store_dwordx4 v[24:27], v{V_PST}, {srd(R_WS)}, s{S_PW} offen sc1")
    vm.issue(f"buffer_store_dwordx4 v[24:27], v{V_PST}, {srd(R_WS)}, s{S_PR1} offen sc1")
    for i in range(1, 4):
        A(f"s_mov_b32 s{S_T0}, {WS_M + i*8192}")
        vm.issue(f"buffer_store_dword v24, v{V_MST}, {srd(R_WS)}, s{S_T0} offen sc1")
    A(f"""
    v_and_b32 v23, 15, v{L}
    v_lshlrev_b32 v30, 12, v22
    v_lshl_add_u32 v30, v23, 4, v30
    s_lshl_b32 s{S_T0}, s{S_H}, 17
    s_lshl_b32 s{S_T1}, s{S_W}, 8
    s_add_u32 s{S_T0}, s{S_T0}, s{S_T1}
    v_add_u32 v30, s{S_T0}, v30
    """)
    def wo_raw(cs):
        for ci, c in enumerate(cs):
            A(f"s_lshl_b32 s{S_T0}, s{S_ROT+c}, 15\ns_add_u32 s{S_T1}, s{S_T0}, 16384")
            for i in range(8):
                r = RE + 32 * ci + 4 * i
                k = vm.issue(f"buffer_load_dwordx4 {v(r,4)}, v30, {srd(R_WO)}, s{S_T0 if i < 4 else S_T1} offen offset:{(i&3)*1024}{' nt' if cfg.get('nt', 0) & 2 else ''}")
        return k
    wo1 = wo_raw([0, 1])
    NT = " nt" if cfg.get("nt", 0) & 1 else ""
    VG, VA = 16, 112
    A(f"""
    v_and_b32 v31, 1, v22
    v_lshlrev_b32 v31, 4, v31
    v_lshrrev_b32 v32, 5, v{L}
    v_add_u32 v31, v31, v32                  ; 16(j&1) + (j>>1)
    v_lshlrev_b32 v31, 13, v31
    v_lshlrev_b32 v32, 2, v22
    v_xor_b32 v32, v32, v23
    v_lshl_add_u32 v31, v32, 4, v31
    s_lshl_b32 s{S_T0}, s{S_H}, 8
    s_lshl_b32 s{S_T1}, s{S_W}, 20
    s_add_u32 s{S_T0}, s{S_T0}, s{S_T1}
    v_add_u32 v{VG}, s{S_T0}, v31
    s_lshl_b32 s{S_MR}, s{S_W}, 12
    s_add_u32 s{S_MR}, s{S_MR}, {L_REG + O_WO}
    """)
    qpos = cfg.get('qpos', 0)
    units = [(R, par, m) for R in [(R_WQ, R_WK, R_WV), (R_WK, R_WQ, R_WV)][qpos] for par in range(2) for m in range(4)]
    uid = {}
    def u_issue(u):
        R, par, m = units[u]
        for G in range(4):
            A(f"s_add_u32 m0, s{S_MR}, {(u & 3) * RP + G * 1024}")
            A(f"s_mov_b32 s{S_T0}, {(2*(m&1) + 64*(m>>1) + 4*par + 8*(G&1) + 32*(G>>1)) * 8192}")
            uid[u] = vm.issue(f"buffer_load_dwordx4 v{VG}, {srd(R)}, s{S_T0} offen{' nt' if cfg.get('nt', 0) & (1 if R == R_WQ else 8) else ''} lds")
    def u_read(u):
        R, par, m = units[u]
        regf = {R_WK: WK, R_WV: WV, R_WQ: lambda t, ab: WQ(t, ab) if t >= 4 else v(RE + 8 * (2*t + ab), 8)}[R]
        for i in range(4):
            for ab in range(2):
                kind, r0 = regs_of(regf(2*i + par, ab))[0]
                A(f"ds_read_b64_tr_b16 {kind}[{r0+2*m}:{r0+2*m+1}], v{VA + i + 4*((u&3)>>1)} offset:{(u & 1) * RP + ab*8}")
    for u in range(4): u_issue(u)
    A(f"""
    v_bfe_u32 v23, v{L}, 2, 2
    v_and_b32 v32, 3, v{L}
    v_lshlrev_b32 v31, 10, v22
    v_lshl_add_u32 v31, v23, 8, v31
    v_lshl_add_u32 v31, v32, 4, v31
    v_xor_b32 v23, s{S_W}, v23
    v_lshl_add_u32 v31, v23, 6, v31
    """)
    for i in range(4):
        A(f"""
        s_lshl_b32 s{S_T0}, s{S_ROT+i}, 12
        s_add_u32 s{S_T0}, s{S_T0}, {L_REG + O_WO}
        v_add_u32 v{VA+i}, s{S_T0}, v31
        v_add_u32 v{VA+4+i}, {2*RP}, v{VA+i}
        """)
    vm.wait(m0l)
    A(f"""
    v_min_u32 v28, -2, v28
    s_mov_b32 s{S_T0}, {WS_M}
    """)
    m0s = vm.issue(f"buffer_store_dword v28, v{V_MST}, {srd(R_WS)}, s{S_T0} offen sc1")
    lane_ma(A, V_MA, L, 23)
    A(f"""
    v_and_b32 v23, 2, v{L}
    v_cmp_eq_u32 vcc, 0, v23
    v_mov_b32 v23, 0xdddddddd
    v_mov_b32 v33, 0x88888888
    v_cndmask_b32 v{V_IDX}, v23, v33, vcc
    v_bfe_u32 v23, v{L}, 2, 2
    v_xor_b32 v23, v23, v22
    v_and_b32 v33, 15, v{L}
    v_lshlrev_b32 v33, 5, v33
    v_lshl_add_u32 v33, v23, 3, v33
    s_and_b32 s{S_T0}, s{S_W}, 1
    s_lshl_b32 s{S_T0}, s{S_T0}, 10
    s_lshr_b32 s{S_T1}, s{S_W}, 1
    s_lshl2_add_u32 s{S_T0}, s{S_T1}, s{S_T0}
    s_add_u32 s{S_T0}, s{S_T0}, {L_F}
    v_add_u32 v{V_FW}, s{S_T0}, v33
    v_xor_b32 v33, v{L}, v22
    v_lshlrev_b32 v33, 3, v33
    v_add_u32 v{V_FR}, {L_F}, v33
    s_lshl_b32 s{S_T0}, s{S_W}, 2
    v_add_u32 v{V_PW}, s{S_T0}, v{L16}
    v_lshlrev_b32 v{V_KA}, 8, v22
    v_bfe_u32 v33, v{L}, 1, 1
    v_lshl_add_u32 v{V_KA}, v33, 7, v{V_KA}
    v_bfe_u32 v33, v{L}, 2, 2
    v_lshl_add_u32 v{V_KA}, v33, 5, v{V_KA}
    v_and_b32 v33, 1, v{L}
    v_lshl_add_u32 v{V_KA}, v33, 4, v{V_KA}
    s_mov_b32 s{S_C}, {f2u(128**-0.5 * 1.4426950408889634)}
    s_mov_b32 s{S_THR}, {f2u(2.0 ** cfg.get("thr", 32))}
    s_mov_b32 s{S_ON}, 0x3f803f80
    s_mov_b32 s{S_ON+1}, 0x3f803f80
    s_mov_b32 s{S_RDY}, 0
    s_mov_b32 s{S_S}, 0
    s_mov_b32 s{S_TAG}, 0
    s_lshl_b32 s{S_T0}, s{S_H}, 13
    s_and_b32 s{S_T1}, s{S_W}, 1
    s_lshl_b32 s{S_T1}, s{S_T1}, 12
    s_add_u32 s{S_T1}, s{S_T1}, s{S_T0}
    s_add_u32 s{S_PR0}, s{S_T1}, {WS_P}
    s_add_u32 s{S_T1}, s{S_T0}, s{S_W2K}       ; h*8K + w*2K
    s_lshl_b32 s{S_KVB}, s{S_T1}, 1
    s_add_u32 s{S_KVB}, s{S_KVB}, {WS_KV}
    s_lshr_b32 s{S_PUB}, s{S_T1}, 1
    s_add_u32 s{S_PUB}, s{S_PUB}, {WS_KVM - 131072}
    s_add_u32 s{S_MB}, s{S_W2K}, {WS_M}
    s_lshl_b32 s{S_FKV}, s{S_H}, 7
    s_add_u32 s{S_FKV}, s{S_FKV}, {FL_KV}
    """)
    for i in range(4):
        A(f"s_mul_i32 s{S_T0}, s{S_ROT+i}, {RP}\ns_add_u32 s{S_T0}, s{S_T0}, {L_REG}\nv_add_u32 v{V_R[i]}, s{S_T0}, v{L16}")
    A(f"""
    v_mov_b32 v{PUB}, 0
    v_mov_b32 v{PUB+1}, 0
    v_mov_b32 v{PUB+2}, 0
    v_mov_b32 v{PUB+3}, 0
    v_lshlrev_b32 v23, 2, v{L}
    v_and_b32 v23, 16, v23
    v_mov_b32 v33, 0x3f80
    v_lshlrev_b32 v33, v23, v33
    v_bfe_u32 v23, v{L}, 3, 1
    v_and_b32 v34, 1, v{L}
    v_lshl_add_u32 v23, v23, 1, v34
    """)
    for i in range(4):
        A(f"v_cmp_eq_u32 vcc, {i}, v23\nv_cndmask_b32 v{44+i}, 0, v33, vcc")
    A(f"ds_write_b128 v{V_MA}, v[44:47] offset:{L_SEL}")
    vm.wait(wo1)
    for c in range(2):
        for T in range(4):
            for i in range(8):
                A(f"v_mov_b32 v{192 + 8*(4*c+T) + i}, v{RE + 32*c + 4*i + T}")
    stamp(A, cfg, 1); vm.n += bool(cfg.get("prof"))
    for u in range(24):
        vm.wait(uid[u])
        if u == 4: vm.wait(m0s)
        A("s_waitcnt lgkmcnt(0)\ns_barrier")
        if u >= 1 and u + 3 < 24: u_issue(u + 3)
        if u == 9 + 8 * qpos: wo2 = wo_raw([2, 3])
        u_read(u)
        if u == 4:
            A(f"""
            s_cmp_eq_u32 s{S_W}, 3
            s_cbranch_scc0 C_NOH
            s_and_b32 s{S_T0}, s{S_XCC}, 3
            s_lshl_b32 s{S_T0}, s{S_T0}, 3
            s_lshl_b32 s{S_T0}, 4, s{S_T0}
            s_and_b32 s{S_T1}, s{S_XCC}, 4
            v_mov_b32 v23, s{S_T0}
            s_mov_b64 exec, 1
            buffer_atomic_add v23, off, {srd(R_DBG)}, s{S_T1} offset:{D_HIST}
            s_mov_b64 exec, -1
            C_NOH:
            """)
        if u == 8 + 8 * qpos:
            for f in range(16):
                A(f"ds_write_b128 v{V_R[0]}, {v(RE + 4*f, 4)} offset:{O_WQ + f*1024}")
    assert vm.known >= wo2
    A("s_waitcnt lgkmcnt(0)\ns_barrier")
    for fi, (c, T) in enumerate(WOS):
        for i in range(8):
            A(f"v_mov_b32 v{32 + 8*(fi&1) + i}, v{RE + 32*(c-2) + 4*i + T}")
        A(f"ds_write_b128 v{V_R[0]}, {v(32 + 8*(fi&1), 4)} offset:{O_WO + fi*2048}")
        A(f"ds_write_b128 v{V_R[0]}, {v(36 + 8*(fi&1), 4)} offset:{O_WO + fi*2048+1024}")
    wq_prefetch(A)
    stamp(A, cfg, 2)
    A(f"""
    s_mov_b32 m0, {L_DUMMY}
    C_W0:
    buffer_load_dwordx2 v[24:25], off, {srd(R_DBG)}, 0 offset:{D_HIST} sc1
    buffer_load_dwordx4 v[28:31], off, {srd(R_DBG)}, 0 offset:{D_ARR} sc1
    buffer_load_dwordx4 v[32:35], off, {srd(R_DBG)}, 0 offset:{D_ARR+16} sc1
    """)
    spin_dec(A)
    A(f"""
    s_waitcnt vmcnt(0)
    v_sad_u8 v26, v24, 0, 0
    v_sad_u8 v26, v25, 0, v26
    v_lshrrev_b32 v26, 2, v26
    v_min3_u32 v26, v26, v29, v30
    v_min3_u32 v26, v26, v31, v32
    v_min3_u32 v26, v26, v33, v34
    v_min_u32 v26, v26, v35
    v_readfirstlane_b32 s{S_T0}, v26
    s_cmp_lt_u32 s{S_T0}, 32
    s_cbranch_scc1 C_W0
    v_or_b32 v24, v24, v25
    v_and_b32 v24, 0x80808080, v24
    v_readfirstlane_b32 s{S_SENT}, v24      ; nonzero -> all chain workgroups share one XCC
    """)

def kv_ready(A, s_target, tag):
    A(f"""
    s_cmp_gt_u32 s{S_RDY}, s{s_target}
    s_cbranch_scc1 RDY_OK{tag}
    RDY_P{tag}:
    buffer_load_dwordx4 v[24:27], off, {srd(R_WS)}, s{S_FKV} sc1
    buffer_load_dwordx4 v[28:31], off, {srd(R_WS)}, s{S_FKV} offset:16 sc1
    """)
    spin_dec(A)
    A("s_waitcnt vmcnt(0)")
    for g in range(7):
        A(f"v_mad_u32_u24 v{25+g}, v{25+g}, 7, {g}")
    A(f"""
    v_min3_u32 v24, v25, v26, v27
    v_min3_u32 v24, v24, v28, v29
    v_min3_u32 v24, v24, v30, v31
    s_nop 0
    v_readfirstlane_b32 s{S_RDY}, v24
    s_cmp_gt_u32 s{S_RDY}, s{s_target}
    s_cbranch_scc0 RDY_P{tag}
    RDY_OK{tag}:
    """)

def wq_prefetch(A, f0=0, f1=14):
    for f in range(f0, f1):
        A(f"ds_read_b128 {v(RE + 4*f, 4)}, v{V_R[0]} offset:{O_WQ + f*1024}")

def fold(A, acc, d0, d1):
    A(f"v_pk_add_f32 {v(acc,2)}, {v(acc,2)}, {v(acc+2,2)}")
    A(f"v_pk_add_f32 {v(acc+4,2)}, {v(acc+4,2)}, {v(acc+6,2)}")
    A(f"v_cvt_pk_bf16_f32 v{d0}, v{acc}, v{acc+1}")
    A(f"v_cvt_pk_bf16_f32 v{d1}, v{acc+4}, v{acc+5}")

def delay(A, n):
    while n > 0:
        A(f"s_nop {min(n,16)-1}"); n -= min(n, 16)

ABL = {1: r"buffer_load|buffer_store_dwordx4 v\[12", 2: r"v_mov_b64 v\[\d+:\d+\], 0", 3: r"ds_read_b128 .*offset:(16|17|18|19|2\d|30|31)\d\d\d$",
       4: r"v_smfmac_f32_16x16x64_bf16 v\[10[48]", 5: r"s_barrier", 6: r"v_fmac|v_mul_f32 v10", 7: r"s_waitcnt lgkmcnt",
       9: r"buffer_store_dwordx4 v\[12", 10: r"buffer_load_dword v100", 11: r"buffer_store_dwordx4 v\[12|buffer_load_dword v100",
       8: r"buffer_load|buffer_store_dwordx4 v\[12|v_mov_b64 v\[\d+:\d+\], 0|ds_read_b128 .*offset:(16|17|18|19|2\d|30|31)\d\d\d$"}
def chain_loop(A, cfg, tag, sc):
    fine = cfg.get("prof", 0) >= 2
    P = lambda i: A(f"s_memtime s[{4+2*i}:{5+2*i}]") if fine and (cfg.get("pm", -1) >> i) & 1 else None
    import os
    abl = ABL.get(cfg.get("abl", 0))
    cnt = [0, 2]
    def sl(*ins):
        if fine and "g0" in cfg and cnt[0] >= cfg["g0"] and (cnt[0] - cfg["g0"]) % cfg.get("gs", 4) == 0 and cnt[1] < 18:
            A(f"s_memtime s[{4+2*cnt[1]}:{5+2*cnt[1]}]"); cnt[1] += 1
        cnt[0] += 1
        for x in ins:
            for y in x.split("\n"):
                if abl and re.search(abl, y): continue
                A(y)
    fr = lambda t, R=RA: R + 4 * t
    q = lambda t, ab, R=RA: SM(RQ + 4*ab, fr(t, R), WQ(t, ab))
    k = lambda t, ab, R=RA: SM(RK + 4*ab, fr(t, R), WK(t, ab))
    vv = lambda t, ab, R=RA: SM(RV + 4*ab, fr(t, R), WV(t, ab))
    rd = lambda t: f"ds_read_b128 {v(fr(t),4)}, v{V_R[t>>1]} offset:{O_A + (t&1)*1024}"
    def wo(c, T, hf):
        fi = list(WOS).index((c, T))
        return f"ds_read_b128 {v(WOS[(c, T)] + 4*hf, 4)}, v{V_R[0]} offset:{O_WO + fi*2048 + hf*1024}"
    add = lambda acc, i: f"v_add_f32 v{acc+i}, v{acc+i}, v{acc+2+i}"
    cvt = lambda d, s_: f"v_cvt_pk_bf16_f32 v{d}, v{s_}, v{s_+1}"
    z = lambda r: f"v_mov_b64 {v(r,2)}, 0"
    lg = lambda n: f"s_waitcnt lgkmcnt({n})"
    def m_loads(R):
        A(f"buffer_load_dwordx4 {v(R,4)}, v{V_MA}, {srd(R_WS)}, s{S_MB} offen sc1")
        A(f"buffer_load_dwordx4 {v(R+4,4)}, v{V_MA}, {srd(R_WS)}, s{S_MB} offen offset:1024 sc1")
    kvl = lambda i: f"buffer_load_dwordx4 {v(RKX+4*i,4)}, v{V_KA if i < 2 else V_MA}, {srd(R_WS)}, s{S_KVB} offen offset:{i*1024} sc1"
    A(f"LOOP{tag}:")
    delay(A, cfg.get("dm0", 0))
    m_loads(RA)
    if fine:
        P(18)
        A(f"s_cmp_eq_u32 s{S_S}, {cfg.get('pstep', 41)}\ns_cbranch_scc0 NODUMP{tag}\ns_waitcnt lgkmcnt(0) vmcnt(0)")
        for i in range(19): A(f"v_writelane_b32 v26, s{4+2*i}, {i}")
        A(f"v_lshrrev_b32 v27, 2, v{V_MA}\nbuffer_store_dword v26, v27, {srd(R_WS)}, s{S_PROF} offen offset:512\ns_waitcnt vmcnt(0)\nNODUMP{tag}:")
        P(0)
    for i in range(4): A(z(RV + 2*i))
    A(f"s_waitcnt vmcnt({4 if cfg.get('prof') else 3}) lgkmcnt(0)")
    for i in range(4): A(z(RK + 2*i))
    delay(A, cfg.get("dm1", 16))
    A(f"MP{tag}:")
    m_loads(RA)
    spin_dec(A)
    A(f"s_cmp_eq_u32 s{S_S}, 63")
    for i in (2, 3, 0, 1): A(z(RQ + 2*i))
    A("s_waitcnt vmcnt(3)")
    sl(f"v_max3_u32 v25, v{RA}, v{RA+1}, v{RA+2}", f"v_max_u32 v25, v25, v{RA+3}")
    sl(q(0, 0), f"ds_write_b128 v{V_R[0]}, {v(RA,4)} offset:{O_A}", "s_waitcnt vmcnt(2)")
    P(1)
    sl(f"v_max3_u32 v25, v25, v{RA+4}, v{RA+5}", f"v_max3_u32 v25, v25, v{RA+6}, v{RA+7}", f"v_cmp_eq_u32 vcc, -1, v25")
    sl(q(0, 1), f"ds_write_b128 v{V_R[0]}, {v(RA+4,4)} offset:{O_A+1024}")
    sl(q(1, 0), f"s_cbranch_vccnz MP{tag}")
    sl(q(1, 1), f"ds_read_b128 {v(RE,4)}, v{V_R[0]} offset:{O_WQ + 14*1024}")
    sl(vv(0, 0), f"ds_read_b128 {v(RE+4,4)}, v{V_R[0]} offset:{O_WQ + 15*1024}")
    sl(vv(0, 1), lg(2)); P(2); A("s_barrier"); P(3)
    TCH, SX, PX, PM, ON, QF, KF = 100, 96, 100, 18, 20, 48, 56
    SA, LL, O0, O1, OP, SEL = 24, 28, 32, 36, 40, 44
    pub = f"buffer_store_dwordx4 {v(PUB,4)}, v{V_MA}, {srd(R_WS)}, s{S_PUB} offen sc1"
    mulc = lambda r: f"v_mul_f32 v{r}, s{S_C}, v{r}"
    fw = lambda r, off: f"ds_write_b32 v{V_FW}, v{r} offset:{off}"
    tr = lambda r, off: f"ds_read_b64_tr_b16 {v(r,2)}, v{V_FR} offset:{off}"
    ad = lambda r, i: f"v_add_f32_dpp v{r+2+i}, v{r+i}, v{r+2+i} {DPP('0,1,0,1')}"
    exd = lambda r, i: f"v_exp_f32_dpp v{r+i}, v{r+2+i} {DPP('2,3,2,3')}"
    sl(rd(2), rd(3))
    sl(vv(1, 0), rd(4), kvl(0))
    sl(vv(1, 1), rd(5))
    sl(k(0, 0), rd(6))
    sl(k(0, 1), rd(7), "s_cbranch_scc1 C_LAST", lg(5))
    sl(q(2, 0), kvl(1), lg(4))
    sl(q(3, 0), lg(3))
    sl(q(4, 0), lg(2))
    sl(q(5, 0), lg(1), f"v_lshlrev_b32 v{TCH}, 2, v{V_MA}")
    sl(q(6, 0), kvl(2), lg(0))
    sl(q(7, 0), wo(2, 0, 0))
    sl(q(2, 1), wo(2, 0, 1))
    sl(q(3, 1), wo(3, 0, 0), add(RQ, 0))
    sl(q(4, 1), kvl(3), add(RQ, 1))
    sl(q(5, 1), wo(3, 0, 1), f"s_add_u32 s{S_KVB}, s{S_KVB}, 0x80000", mulc(RQ))
    sl(q(6, 1), wo(2, 1, 0), mulc(RQ + 1))
    sl(q(7, 1), wo(2, 1, 1), cvt(RQ + 2, RQ))
    P(4)
    sl(k(1, 0), fw(RQ + 2, 2048), z(RQ))
    sl(k(2, 0), add(RQ + 4, 0), add(RQ + 4, 1), mulc(RQ + 4), mulc(RQ + 5), cvt(RQ + 6, RQ + 4), fw(RQ + 6, 2560))
    sl(k(3, 0), f"buffer_load_dword v{TCH}, {srd(R_WS)}, s{S_KVB} offen sc1 lds", z(RQ + 2))
    pe = cfg.get("pe", 1)
    sl(k(4, 0), z(RQ + 4))
    sl(k(5, 0), *([pub] if pe else []), z(RQ + 6))
    sl(k(6, 0), lg(0), "s_barrier", tr(QF, 2048), tr(QF + 2, 2560))
    P(5)
    sl(k(7, 0), tr(QF + 4, 3072), tr(QF + 6, 3584))
    sl(k(1, 1))
    sl(k(2, 1), add(RK, 0))
    sl(k(3, 1), f"s_waitcnt vmcnt({4 if pe else 3}) lgkmcnt(2)", add(RK, 1))
    sl(MF(SX, RKX, QF, 0), lg(0), cvt(RK + 2, RK), f"v_mov_b64 {v(ON,2)}, s[{S_ON}:{S_ON+1}]")
    sl(MF(SX, RKX + 4, QF + 4, v(SX, 4)), fw(RK + 2, 0), z(RK), f"v_mov_b64 {v(ON+2,2)}, s[{S_ON}:{S_ON+1}]")
    sl(k(4, 1), f"v_mov_b32 v{PM}, 0")
    sl(k(5, 1), ad(SX, 0))
    sl(k(6, 1), ad(SX, 1))
    sl(k(7, 1), exd(SX, 0))
    sl(vv(2, 0), exd(SX, 1))
    sl(vv(3, 0), add(RK + 4, 0), add(RK + 4, 1), cvt(RK + 6, RK + 4), fw(RK + 6, 512), cvt(SX, SX))
    P(6)
    sl(vv(4, 0), f"ds_write_b32 v{V_PW}, v{SX} offset:{L_PX}", z(RK + 4))
    sl(vv(5, 0))
    sl(vv(6, 0))
    sl(vv(7, 0))
    sl(vv(2, 1), lg(0), "s_barrier", tr(KF, 0), tr(KF + 2, 512))
    P(7)
    sl(vv(3, 1), tr(KF + 4, 1024), tr(KF + 6, 1536), add(RV, 0))
    sl(vv(4, 1), f"ds_read_b128 {v(PX,4)}, v{V_MA} offset:{L_PX}", add(RV, 1))
    sl(vv(5, 1), *([] if pe else [pub]))
    sl(vv(6, 1), f"s_add_u32 s{S_PUB}, s{S_PUB}, 0x20000", cvt(PUB + 1, RV))
    sl(vv(7, 1), lg(3), f"v_min_u32 v{PUB}, -2, v{RK+2}")
    P(8)
    sl(MF(SA, KF, QF, 0), lg(1), f"v_mov_b32 v{PUB+2}, v{RK+6}", z(RK + 2))
    sl(MF(SA, KF + 4, QF + 4, v(SA, 4)), "s_waitcnt vmcnt(2) lgkmcnt(0)", z(RK + 6), add(RV + 4, 0))
    P(9)
    def pv(fast):
        o = (lambda *x: x) if fast else (lambda *x: ())
        sl(MF(LL, ON, PX, 0), *o(wo(3, 1, 0), add(RV + 4, 1), cvt(PUB + 3, RV + 4), wo(3, 1, 1), ad(SA, 0), ad(SA, 1)))
        sl(MF(O0, RVX, PX, 0), exd(SA, 0), exd(SA, 1))
        sl(MF(O1, RVX + 4, PX, 0), cvt(PM + 1, SA), *o(wo(2, 2, 0), wo(2, 2, 1)))
        if fast: P(10)
        sl(MH(LL, ON, PM, v(LL, 4)), *o(wo(3, 2, 0)))
        sl(MH(O0, PUB, PM, v(O0, 4)), *o(wo(3, 2, 1)))
        sl(MH(O1, PUB + 2, PM, v(O1, 4)), f"v_rcp_f32 v{LL+2}, v{LL}")
        sl(*o(f"v_max_f32 v{LL}, v{LL}, v{LL+2}", f"v_cmp_lt_f32 vcc, s{S_THR}, v{LL}"))
        if cfg.get("pk0", 1):
            for i in range(2): A(f"v_pk_mul_f32 {v(O0+2*i,2)}, {v(O0+2*i,2)}, {v(LL+2,2)} op_sel_hi:[1,0]")
        else:
            for i in range(4): A(f"v_mul_f32 v{O0+i}, v{O0+i}, v{LL+2}")
        sl(cvt(OP, O0), cvt(OP + 1, O0 + 2))
        if fast: P(11)
        for i in range(2): A(f"v_pk_mul_f32 {v(O1+2*i,2)}, {v(O1+2*i,2)}, {v(LL+2,2)} op_sel_hi:[1,0]")
        sl(cvt(OP + 2, O1), cvt(OP + 3, O1 + 2), f"ds_write_b128 v{V_R[0]}, {v(OP,4)} offset:{O_A}")
    pv(True)
    A(f"s_cbranch_vccnz {'FRET' if abl else 'FBK'}{tag}\nFRET{tag}:")
    OF = [OP, 64, 68, 24]
    so = lambda c, T: SM(RQ + 4*T, OF[c], WO(c, T))
    sl(so(0, 0), f"s_add_u32 s{S_S}, s{S_S}, 1", f"s_and_b32 s{S_T0}, s{S_S}, 3", f"s_lshl_b32 s{S_T0}, s{S_T0}, 13")
    sl(so(0, 1), f"s_add_u32 s{S_MW}, s{S_T0}, {WS_M}", f"s_add_u32 s{S_MB}, s{S_MW}, s{S_W2K}", f"s_xor_b32 s{S_MR}, s{S_MW}, 0x4000")
    sl(so(0, 2), f"s_cmp_lt_u32 s{S_W}, 2", lg(0)); P(12); A("s_barrier"); P(13)
    for c in range(1, 4): A(f"ds_read_b128 {v(OF[c],4)}, v{V_R[c]} offset:{O_A}")
    sl(so(0, 3), wo(2, 3, 0), wo(2, 3, 1), lg(4))
    PK = 32
    pk = lambda i: cvt(PK + i, RQ + 2*i)
    tg = lambda sg: f"v_and_or_b32 v{PK+4*sg}, v{PK+4*sg}, -2, s{S_TAG}"
    ps = lambda sg: f"buffer_store_dwordx4 {v(PK+4*sg,4)}, v{V_PST}, {srd(R_WS)}, s{S_PR1 if sg else S_PW} offen {sc}"
    sl(so(1, 0), lg(3))
    sl(so(2, 0), lg(2), f"v_mov_b32 v42, -1")
    sl(so(3, 0), wo(3, 3, 0))
    sl(so(1, 1), wo(3, 3, 1))
    sl(so(2, 1), f"ds_read_b128 {v(SEL,4)}, v{V_MA} offset:{L_SEL}", pk(0))
    sl(so(3, 1), tg(0))
    sl(so(1, 2), pk(1))
    sl(so(2, 2), pk(2), pk(3), ps(0))
    P(14)
    sl(so(3, 2), lg(0))
    sl(so(1, 3))
    sl(so(2, 3), pk(4))
    sl(so(3, 3), tg(1), pk(5))
    sl(pk(6), pk(7), ps(1))
    P(15)
    n0 = cfg.get("n0", 14)
    wq_prefetch(A, 0, n0)
    A(f"s_cbranch_scc1 RED{tag}")
    wq_prefetch(A, n0, 14)
    A(f"""
    buffer_store_dword v42, v{V_MST}, {srd(R_WS)}, s{S_MR} offen {sc}
    s_cmp_eq_u32 s{S_W}, 3
    s_cbranch_scc0 JOIN{tag}
    s_add_u32 s{S_T3}, s{S_S}, 1
    s_min_u32 s{S_T3}, s{S_T3}, 63
    """)
    kv_ready(A, S_T3, tag)
    A(f"""
    JOIN{tag}:
    s_xor_b32 s{S_TAG}, s{S_TAG}, 1
    s_waitcnt lgkmcnt(0)
    s_barrier
    s_branch LOOP{tag}
    """)
    A(f"""
    FBK{tag}:
    """)
    X = 104 - 8 * 9
    for r in (SX + 2, SX + 3, SA + 2, SA + 3): A(f"v_mov_b32_dpp v{r}, v{r} {DPP('2,3,2,3')}")
    A(f"""
    ds_write_b32 v{V_PW}, v{SX+2} offset:{L_PX + 1024}
    ds_write_b32 v{V_PW}, v{SX+3} offset:{L_PX + 2048}
    s_waitcnt lgkmcnt(0)
    s_barrier
    ds_read_b128 {v(X,4)}, v{V_MA} offset:{L_PX + 1024}
    ds_read_b128 {v(X+4,4)}, v{V_MA} offset:{L_PX + 2048}
    v_max_f32 v{LL}, v{SA+2}, v{SA+3}
    s_waitcnt lgkmcnt(0)
    """)
    for i in range(4): A(f"v_max3_f32 v{LL}, v{LL}, v{X+2*i}, v{X+2*i+1}")
    xG(A, LL, LL + 1, "v_max_f32")
    for r in list(range(X, X + 8)) + [SA + 2, SA + 3]: A(f"v_sub_f32 v{r}, v{r}, v{LL}")
    for i in range(8): A(f"v_exp_f32 v{X+i}, v{X+i}")
    for i in range(4): A(f"v_cvt_pk_bf16_f32 v{PX+i}, v{X+i}, v{X+4+i}")
    pv(False)
    A(f"s_branch FRET{tag}")
    PB, PA = 24, 20
    A(f"""
    RED{tag}:
    s_cmp_eq_u32 s{S_W}, 0
    """)
    if cfg.get("dp0", -1) >= 0:
        delay(A, cfg["dp0"])
        A(f"s_cbranch_scc1 PP{tag}")
        delay(A, cfg.get("dp1", 0))
    else:
        A(f"""
        s_waitcnt vmcnt(1)
        s_cbranch_scc1 PP{tag}
        s_waitcnt vmcnt(0)
        """)
    def pl(B):
        for i in range(4):
            A(f"buffer_load_dwordx4 {v(B+4*i,4)}, v{V_MA}, {srd(R_WS)}, s{S_PR0} offen offset:{i*1024} sc1")
    def pr(B, nb):
        for i in range(4):
            A(f"s_waitcnt vmcnt({nb+3-i})")
            A(MF(PA, SEL, B + 4*i, "0" if i == 0 else v(PA, 4)))
            if i == 1: A(f"v_bitop3_b32 v40, v{B}, v{B+4}, s{S_TAG} bitop3:0x7e")
        A(f"""
        v_bitop3_b32 v41, v{B+8}, v{B+12}, s{S_TAG} bitop3:0x7e
        v_bitop3_b32 v40, v40, 1, v41 bitop3:0xc8
        v_cmp_ne_u32 vcc, 0, v40
        v_add_f32_dpp v{PA}, v{PA}, v{PA} row_ror:8 row_mask:0xf bank_mask:0xf
        v_add_f32_dpp v{PA+1}, v{PA+1}, v{PA+1} row_ror:8 row_mask:0xf bank_mask:0xf
        v_cvt_pk_bf16_f32 v41, v{PA}, v{PA+1}
        v_min_u32 v41, -2, v41
        """)
    A(f"PP{tag}:")
    if cfg.get("ps", 2) == 2:
        pl(PB)
        P(16)
        wq_prefetch(A, n0, 14)
        delay(A, cfg.get("dp2", 20))
        A(f"PQ{tag}:")
        pl(RQ)
        pr(PB, 4)
        A(f"s_cbranch_vccnz PF{tag}\nPD{tag}:")
    else:
        pl(PB)
        P(16)
        spin_dec(A)
        pr(PB, 0)
        A(f"s_cbranch_vccnz PP{tag}")
    A(f"""
    buffer_store_dword v41, v{V_MST}, {srd(R_WS)}, s{S_MW} offen {sc}
    s_barrier
    s_xor_b32 s{S_TAG}, s{S_TAG}, 1
    """)
    P(17)
    if cfg.get("prof"):
        A(f"""
        s_memtime s[{S_TS}:{S_TS+1}]
        s_lshl_b32 s{S_T0}, s{S_S}, 2
        s_add_u32 s{S_T0}, s{S_T0}, s{S_PROF}
        s_waitcnt lgkmcnt(0)
        v_mov_b32 v43, s{S_TS}
        s_mov_b64 exec, 1
        buffer_store_dword v43, off, {srd(R_WS)}, s{S_T0} offset:64
        s_mov_b64 exec, -1
        """)
    A(f"s_branch LOOP{tag}")
    if cfg.get("ps", 2) == 2:
        A(f"PF{tag}:")
        pl(PB)
        spin_dec(A)
        pr(RQ, 4)
        A(f"s_cbranch_vccz PD{tag}\ns_branch PQ{tag}")

def chain(A, cfg):
    cfg["vt"] = 23
    chain_init(A, cfg)
    A(f"s_mov_b32 s{S_T3}, 1")
    kv_ready(A, S_T3, "I")
    stamp(A, cfg, 3)
    A(f"s_waitcnt lgkmcnt(0)\ns_barrier\ns_cmp_eq_u32 s{S_SENT}, 0\ns_cbranch_scc1 LOOPS")
    chain_loop(A, cfg, "F", "")
    chain_loop(A, cfg, "S", "sc1")
    A("C_LAST:")
    A(f"buffer_store_dwordx4 {v(PUB,4)}, v{V_MA}, {srd(R_WS)}, s{S_PUB} offen sc1")
    A(f"s_add_u32 s{S_PUB}, s{S_PUB}, 0x20000")
    A("s_waitcnt lgkmcnt(0)")
    for t in range(2, 8):
        for ab in range(2): A(SM(RV + 4*ab, RA + 4*t, WV(t, ab)))
    for t in range(1, 8):
        for ab in range(2): A(SM(RK + 4*ab, RA + 4*t, WK(t, ab)))
    fold(A, RV, 73, 75)
    fold(A, RK, 72, 74)
    A(f"v_min_u32 v72, -2, v72")
    A(f"buffer_store_dwordx4 v[72:75], v{V_MA}, {srd(R_WS)}, s{S_PUB} offen sc1")
    cfg["vt"] = 76
    stamp(A, cfg, 4)
    A("s_waitcnt vmcnt(0)")
```

```python
from common import *

def stamp(A, cfg, idx):
    if not cfg.get("prof"): return
    A(f"""
    s_memtime s[{S_TS}:{S_TS+1}]
    s_waitcnt lgkmcnt(0)
    v_mov_b32 v{cfg['vt']}, s{S_TS}
    s_mov_b64 exec, 1
    buffer_store_dword v{cfg['vt']}, off, {srd(R_WS)}, s{S_PROF} offset:{idx*4}
    s_mov_b64 exec, -1
    """)

def spin_dec(A):
    A(f"s_sub_u32 s{S_SPIN}, s{S_SPIN}, 1\ns_cbranch_scc1 EXIT")

class Stager:
    def __init__(self, A, s_base, nring, batch=4):
        self.A = A; self.s_base = s_base; self.nring = nring; self.batch = batch
        self.slots = []
        self.issued = 0; self.done = 0
    def add(self, r, voff, soff, reads):
        self.slots.append((r, voff, soff, reads))
    def issue(self, n):
        A = self.A
        for _ in range(n):
            if self.issued >= len(self.slots): return
            r, voff, soff, _r = self.slots[self.issued]
            pos = self.issued % self.nring
            A(f"s_add_u32 m0, s{self.s_base}, {pos*1024}")
            A(f"s_mov_b32 s{S_T0}, {soff}")
            A(f"buffer_load_dwordx4 v{voff}, {srd(r)}, s{S_T0} offen lds")
            self.issued += 1
    def run(self, drained=False):
        A = self.A
        known = self.issued if drained else self.done
        while self.done < len(self.slots):
            n = min(self.batch, len(self.slots) - self.done)
            if self.done + n > known:
                A(f"s_waitcnt vmcnt({self.issued - self.done - n})")
            for i in range(self.done, self.done + n):
                pos = i % self.nring
                for f in self.slots[i][3]:
                    A(f(pos * 1024))
            self.done += n
            if self.issued < len(self.slots):
                A("s_waitcnt lgkmcnt(0)")
                self.issue(n)
        A("s_waitcnt lgkmcnt(0)")

def xlane_sum8(A, t, u, op="v_add_f32"):
    A(f"{op}_dpp v{t}, v{t}, v{t} row_ror:8 row_mask:0xf bank_mask:0xf")
    A(f"v_mov_b32 v{u}, v{t}")
    A(f"v_permlane16_swap_b32 v{t}, v{u}")
    A(f"{op} v{t}, v{t}, v{u}")
    A(f"v_mov_b32 v{u}, v{t}")
    A(f"v_permlane32_swap_b32 v{t}, v{u}")
    A(f"{op} v{t}, v{t}, v{u}")

def rnd_bf16(A, t):
    A(f"v_cvt_pk_bf16_f32 v{t}, v{t}, v{t}")
    A(f"v_and_b32 v{t}, 0xffff0000, v{t}")

def xG(A, t, u, op):
    A(f"v_mov_b32 v{u}, v{t}")
    A(f"v_permlane16_swap_b32 v{t}, v{u}")
    A(f"{op} v{t}, v{t}, v{u}")
    A(f"v_mov_b32 v{u}, v{t}")
    A(f"v_permlane32_swap_b32 v{t}, v{u}")
    A(f"{op} v{t}, v{t}, v{u}")

S_GI, S_NR, S_R, S_SEG, S_RING, S_BUF, S_HOFF = 64, 65, 66, 67, 68, 69, 70
S_G2, S_H2 = 83, 84
V_L, V_L16, V_T = 1, 2, 3

def worker(A, cfg):
    cfg["vt"] = V_T
    A(f"""
    WORKER:
    s_mov_b32 s{S_G2}, s{S_G}
    s_mov_b32 s{S_H2}, s{S_H}
    s_sub_u32 s{S_GI}, s{S_G}, 1
    s_lshl_b32 s{S_T0}, s{S_GI}, 5
    s_add_u32 s85, s{S_T0}, s{S_H}          ; r
    """)
    if cfg.get("remap", 1):
        A(f"""
        s_mul_i32 s{S_H}, s85, 293
        s_lshr_b32 s{S_H}, s{S_H}, 11
        s_mul_i32 s{S_T0}, s{S_H}, 7
        s_sub_u32 s{S_GI}, s85, s{S_T0}
        s_add_u32 s{S_G}, s{S_GI}, 1
        """)
    A(f"""
    s_cmp_eq_u32 s{S_GI}, 0
    s_cselect_b32 s{S_NR}, 10, 9
    s_lshl_b32 s{S_RING}, s{S_W}, 15
    """)
    RAW, F, RAW2, L_X0 = 16, 48, 128, 0x20000
    A(f"""
    v_and_b32 v4, 7, v{V_L}
    v_lshrrev_b32 v5, 3, v{V_L}
    v_lshlrev_b32 v6, 10, v4
    v_lshl_add_u32 v6, v5, 4, v6            ; row*1024 + p*16
    s_lshl_b32 s{S_T2}, s{S_GI}, 15
    s_lshl_b32 s{S_T3}, s{S_W}, 13
    s_add_u32 s{S_T2}, s{S_T2}, s{S_T3}
    """)
    for i in range(8):
        A(f"buffer_load_dwordx4 v[{RAW+4*i}:{RAW+4*i+3}], v6, {srd(R_X)}, s{S_T2} offen offset:{i*128}")
    A(f"""
    s_lshl_b32 s{S_T0}, s{S_W}, 5
    s_add_u32 s{S_T0}, s{S_T0}, s{S_H}
    s_add_u32 s{S_T0}, s{S_T0}, 4           ; u + 4
    s_lshl_b32 s{S_T1}, s{S_NR}, 2
    s_cmp_lt_u32 s{S_T0}, s{S_T1}
    s_cselect_b32 s{S_BUF}, 1, 0
    s_lshr_b32 s{S_T1}, s{S_T0}, 2
    s_mul_i32 s{S_T1}, s{S_T1}, 7
    s_add_u32 s{S_T1}, s{S_T1}, s{S_GI}     ; seg
    s_and_b32 s{S_T0}, s{S_T0}, 3           ; quarter
    s_lshl_b32 s{S_T2}, s{S_T1}, 15
    s_lshl_b32 s{S_T3}, s{S_T0}, 13
    s_add_u32 s{S_SEG}, s{S_T2}, s{S_T3}
    s_lshl_b32 s{S_T3}, s{S_T0}, 7
    s_add_u32 s{S_R}, s{S_T2}, s{S_T3}
    v_lshlrev_b32 v7, 4, v4
    v_lshl_add_u32 v7, v5, 9, v7            ; p*512 + row*16
    s_cmp_eq_u32 s{S_BUF}, 0
    s_cbranch_scc1 W_NOLN0
    """)
    for i in range(8):
        A(f"buffer_load_dwordx4 v[{RAW2+4*i}:{RAW2+4*i+3}], v6, {srd(R_X)}, s{S_SEG} offen offset:{i*128}")
    A("W_NOLN0:")
    ntouch = 0
    if cfg.get("touch", 1):
        A(f"""
        s_lshl_b32 s{S_T0}, s85, 2
        s_add_u32 s{S_T0}, s{S_T0}, s{S_W}
        s_mul_i32 s{S_T0}, s{S_T0}, {37*128}
        v_lshlrev_b32 v4, 7, v{V_L}
        s_mov_b32 exec_hi, 31
        """)
        for R in {1: (R_WO, R_WQ), 2: (R_WO, R_WK, R_WV, R_WQ), 3: (R_WO, R_WK, R_WV, R_WQ)}[cfg.get("touch", 1)]:
            for o in ((0,) if cfg.get("touch", 1) == 3 else (0, 64)):
                A(f"buffer_load_dword v{120+ntouch}, v4, {srd(R)}, s{S_T0} offen offset:{o}"); ntouch += 1
        A("s_mov_b32 exec_hi, -1")
    VS, VRK, VRV = 8, 9, 10
    A(f"""
    v_lshrrev_b32 v4, 2, v{V_L}
    v_and_b32 v5, 3, v{V_L}
    v_lshlrev_b32 v{VS}, 13, v4
    v_lshl_add_u32 v{VS}, v5, 4, v{VS}
    s_lshl_b32 s{S_T0}, s{S_H}, 8
    s_lshl_b32 s{S_T1}, s{S_W}, 6
    s_add_u32 s{S_T0}, s{S_T0}, s{S_T1}
    v_add_u32 v{VS}, s{S_T0}, v{VS}
    v_lshrrev_b32 v4, 5, v{V_L}              ; hf
    v_bfe_u32 v5, v{V_L}, 2, 2               ; r'
    v_lshlrev_b32 v4, 9, v4
    v_lshl_add_u32 v4, v5, 6, v4             ; (8hf + r')*64
    v_add_u32 v4, s{S_RING}, v4
    v_bfe_u32 v5, v{V_L}, 4, 1               ; colhalf
    v_and_b32 v11, 1, v{V_L}
    v_bfe_u32 v12, v{V_L}, 1, 1
    ; K/Q: e = 16*colhalf + 8*(c'&1) + 4*(c'>>1)
    v_lshl_add_u32 v{VRK}, v5, 5, v4
    v_lshl_add_u32 v{VRK}, v11, 4, v{VRK}
    v_lshl_add_u32 v{VRK}, v12, 3, v{VRK}
    ; V: e = 8*c' + 4*colhalf
    v_and_b32 v11, 3, v{V_L}
    v_lshl_add_u32 v{VRV}, v11, 4, v4
    v_lshl_add_u32 v{VRV}, v5, 3, v{VRV}
    """)
    def rd32(reg, va):
        return [lambda o, reg=reg: f"ds_read_b64_tr_b16 {reg(0)}, v{va} offset:{o}",
                lambda o, reg=reg: f"ds_read_b64_tr_b16 {reg(2)}, v{va} offset:{o+256}"]
    VS2, VK2, VV2 = 112, 113, 115
    NT = " nt" if cfg.get("nt", 0) & 4 else ""
    A(f"""
    v_lshrrev_b32 v4, 4, v{V_L}
    v_and_b32 v5, 15, v{V_L}
    v_lshlrev_b32 v{VS2}, 13, v4
    v_lshlrev_b32 v4, 2, v4
    v_xor_b32 v4, v4, v5
    v_lshl_add_u32 v{VS2}, v4, 4, v{VS2}
    s_lshl_b32 s{S_T0}, s{S_H}, 8
    s_add_u32 s{S_T0}, s{S_T0}, s{S_RING}    ; 4w*8192
    v_add_u32 v{VS2}, s{S_T0}, v{VS2}
    s_lshl_b32 s74, s{S_W}, 10
    """)
    vm = VM(A); uid = {}
    def u_issue(u):
        for i in range(4):
            A(f"s_add_u32 m0, s74, {((4*u + i) & 31) * 4096}")
            A(f"s_mov_b32 s{S_T0}, {(2*u + (i >> 1)) * 16 * 8192}")
            uid[u] = vm.issue(f"buffer_load_dwordx4 v{VS2}, {srd(R_WV if i & 1 else R_WK)}, s{S_T0} offen{NT} lds")
    def u_read(u):
        for i in range(4):
            pos = (4*u + i) & 31; ks = 2*u + (i >> 1)
            for j in range(2):
                A(f"ds_read_b64_tr_b16 {a(128*(i&1) + 4*ks + 2*j, 2)}, v{(VV2 if i & 1 else VK2) + (pos >> 4)} offset:{(pos & 15) * 4096 + j*1024}")
    for u in range(8): u_issue(u)
    A(f"""
    v_lshrrev_b32 v4, 5, v{V_L}              ; hf
    v_bfe_u32 v5, v{V_L}, 2, 2               ; r'
    v_lshlrev_b32 v4, 11, v4
    v_lshl_add_u32 v4, v5, 8, v4
    v_xor_b32 v5, s{S_W}, v5
    v_lshl_add_u32 v4, v5, 6, v4
    v_and_b32 v5, 63, v{VRK}
    v_add_u32 v{VK2}, v4, v5
    v_add_u32 v{VK2+1}, 0x10000, v{VK2}
    v_and_b32 v5, 63, v{VRV}
    v_add_u32 v{VV2}, v4, v5
    v_add_u32 v{VV2+1}, 0x10000, v{VV2}
    s_lshl_b32 s{S_T0}, s{S_W}, 7
    s_add_u32 s{S_T0}, s{S_T0}, {L_X0}
    v_add_u32 v6, s{S_T0}, v7
    s_lshl_b32 s{S_T0}, s{S_H}, 7
    s_lshl_b32 s{S_T1}, s{S_G}, 2
    s_add_u32 s71, s{S_T0}, s{S_T1}
    s_add_u32 s71, s71, {FL_KV}
    s_lshl_b32 s{S_T0}, s{S_G}, 12
    s_lshl_b32 s{S_T1}, s{S_H}, 7
    s_add_u32 s72, s{S_T0}, s{S_T1}
    s_add_u32 s72, s72, {FL_GRP}
    """)
    A(f"s_waitcnt vmcnt({32+ntouch})")
    def unpack(R):
        for i in range(32):
            A(f"v_lshlrev_b32 v{F+2*i}, 16, v{R+i}")
            A(f"v_and_b32 v{F+2*i+1}, 0xffff0000, v{R+i}")
    A(f"s_mov_b32 s73, s{S_BUF}\ns_cmp_eq_u32 s{S_BUF}, 0\ns_cbranch_scc1 W_LNL")
    unpack(RAW2)
    for i in range(16): A(f"v_mov_b64 {v(RAW2+2*i,2)}, {v(RAW+2*i,2)}")
    A("s_branch W_LN\nW_LNL:")
    unpack(RAW)
    A("W_LN:")
    A(f"v_add_f32 v12, v{F}, v{F+1}\nv_add_f32 v13, v{F+2}, v{F+3}")
    for i in range(4, 64, 2):
        A(f"v_add_f32 v12, v12, v{F+i}\nv_add_f32 v13, v13, v{F+i+1}")
    A("v_add_f32 v12, v12, v13")
    xlane_sum8(A, 12, 13)
    A("v_mul_f32 v12, 0x3b000000, v12      ; mean")
    A("v_mov_b32 v14, 0\nv_mov_b32 v15, 0")
    for i in range(0, 64, 2):
        A(f"v_sub_f32 v4, v{F+i}, v12\nv_sub_f32 v5, v{F+i+1}, v12")
        A("v_fmac_f32 v14, v4, v4\nv_fmac_f32 v15, v5, v5")
    A("v_add_f32 v14, v14, v15")
    xlane_sum8(A, 14, 13)
    A("v_mul_f32 v14, 0x3b000000, v14      ; var")
    rnd_bf16(A, 12); rnd_bf16(A, 14)
    A("v_add_f32 v14, 0x3727c5ac, v14")
    rnd_bf16(A, 14)
    A("v_sqrt_f32 v14, v14")
    rnd_bf16(A, 14)
    A("v_rcp_f32 v14, v14")
    for i in range(32):
        A(f"v_sub_f32 v4, v{F+2*i}, v12\nv_sub_f32 v5, v{F+2*i+1}, v12")
        A("v_cvt_pk_bf16_f32 v4, v4, v5")
        A("v_and_b32 v5, 0xffff0000, v4\nv_lshlrev_b32 v4, 16, v4")
        A("v_mul_f32 v5, v5, v14\nv_mul_f32 v4, v4, v14")
        A(f"v_cvt_pk_bf16_f32 v{RAW+i}, v4, v5")
    A("s_cmp_eq_u32 s73, 1\ns_cbranch_scc0 W_LN1")
    for i in range(8):
        A(f"s_add_u32 s{S_T0}, s{S_R}, {WS_XN + i*4096}")
        A(f"buffer_store_dwordx4 v[{RAW+4*i}:{RAW+4*i+3}], v7, {srd(R_WS)}, s{S_T0} offen sc1")
    A("s_branch W_NOZ\nW_LN1:")
    for i in range(8):
        A(f"ds_write_b128 v6, v[{RAW+4*i}:{RAW+4*i+3}] offset:{i*4096}")
    A("s_cmp_eq_u32 s73, 2\ns_cbranch_scc1 W_NOLN1")
    A(f"""
    s_cmp_eq_u32 s{S_W}, 3
    s_cbranch_scc0 W_NOZ
    v_mov_b32 v4, 0
    s_mov_b64 exec, 1
    buffer_store_dword v4, off, {srd(R_WS)}, s71 sc1
    buffer_store_dword v4, off, {srd(R_WS)}, s72 sc1
    s_mov_b64 exec, -1
    W_NOZ:
    """)
    stamp(A, cfg, 1)
    for u in range(16):
        vm.wait(uid[u])
        A("s_waitcnt lgkmcnt(0)\ns_barrier")
        if 1 <= u <= 8: u_issue(u + 7)
        u_read(u)
        if u == 8:
            A(f"""
            s_cmp_eq_u32 s{S_W}, 3
            s_cbranch_scc0 W_NOA
            v_mov_b32 v4, 1
            s_lshl_b32 s{S_T1}, s{S_G}, 2
            s_mov_b64 exec, 1
            buffer_atomic_add v4, off, {srd(R_DBG)}, s{S_T1} offset:{D_ARR}
            s_mov_b64 exec, -1
            s_branch W_NOLN1
            W_NOA:
            buffer_load_dword v117, off, {srd(R_X)}, 0
            s_cmp_eq_u32 s{S_BUF}, 0
            s_cbranch_scc1 W_NOLN1
            s_mov_b32 s73, 2
            """)
            vm.n += 1
            unpack(RAW2)
            A("s_branch W_LN\nW_NOLN1:")
    A("s_waitcnt lgkmcnt(0)\ns_barrier")
    stamp(A, cfg, 2)
    VKK = 12
    VKS = 11
    lane_ma(A, 4, V_L, 5)
    A(f"""
    v_and_b32 v4, 255, v4
    v_lshrrev_b32 v5, 5, v{V_L}
    v_lshl_add_u32 v4, v5, 8, v4
    v_bfe_u32 v5, v{V_L}, 4, 1
    v_lshl_add_u32 v{VKS}, v5, 10, v4
    s_lshl_b32 s{S_HOFF}, s{S_H}, 13
    s_lshl_b32 s{S_T0}, s{S_W}, 11
    s_add_u32 s75, s{S_HOFF}, s{S_T0}       ; h*8K + w*2K
    v_lshlrev_b32 v{VKK}, 13, v5
    v_lshrrev_b32 v5, 5, v{V_L}
    v_lshl_add_u32 v{VKK}, v5, 8, v{VKK}
    v_bfe_u32 v5, v{V_L}, 1, 1
    v_lshl_add_u32 v{VKK}, v5, 12, v{VKK}
    v_bfe_u32 v5, v{V_L}, 2, 2
    v_lshl_add_u32 v{VKK}, v5, 5, v{VKK}
    v_and_b32 v5, 1, v{V_L}
    v_lshl_add_u32 v{VKK}, v5, 4, v{VKK}
    s_and_b32 s{S_T0}, s{S_W}, 1
    s_lshl_b32 s{S_T0}, s{S_T0}, 10
    s_lshr_b32 s{S_T1}, s{S_W}, 1
    s_lshl_b32 s{S_T1}, s{S_T1}, 7
    s_add_u32 s{S_T0}, s{S_T0}, s{S_T1}
    v_add_u32 v{VKK}, s{S_T0}, v{VKK}
    """)
    def xn_dma(sseg, sbuf):
        A(f"""
        s_lshl_b32 s{S_T0}, s{sseg}, 15
        s_lshl_b32 s{S_T1}, s{S_W}, 13
        s_add_u32 s{S_T0}, s{S_T0}, s{S_T1}
        s_add_u32 m0, s{sbuf}, s{S_T1}
        s_add_u32 s{S_T2}, s{S_T0}, 4096
        """)
        for i in range(4):
            A(f"buffer_load_dwordx4 v{V_L16}, {srd(R_WS)}, s{S_T0} offen offset:{i*1024} sc1 lds")
        A("s_add_u32 m0, m0, 4096")
        for i in range(4):
            A(f"buffer_load_dwordx4 v{V_L16}, {srd(R_WS)}, s{S_T2} offen offset:{i*1024} sc1 lds")
    def seg_loop(name, body, flag_pub, nst, first):
        A(f"""
        s_mov_b32 s{S_R}, 1
        s_mov_b32 s{S_SEG}, s{S_GI}
        s_mov_b32 s{S_BUF}, 0
        v_add_u32 v13, {L_X0}, v{V_L16}
        """)
        if first:
            body()
            A(f"s_add_u32 s{S_SEG}, s{S_SEG}, 7")
            first()
            xn_dma(S_SEG, S_BUF)
            A("s_waitcnt vmcnt(0)")
        else:
            A(f"s_branch {name}_PF")
        A(f"""
        {name}_LOOP:
        s_barrier
        s_sub_u32 s{S_T0}, s{S_R}, 1
        s_max_i32 s{S_T0}, s{S_T0}, 1
        """)
        flag_pub(S_T0, "A")
        A(f"""
        v_add_u32 v13, s{S_BUF}, v{V_L16}
        s_xor_b32 s{S_BUF}, s{S_BUF}, 0x8000
        s_add_u32 s{S_R}, s{S_R}, 1
        s_cmp_eq_u32 s{S_R}, s{S_NR}
        s_cbranch_scc1 {name}_NOPF
        {name}_PF:
        s_add_u32 s{S_T3}, s{S_SEG}, 7
        """)
        xn_dma(S_T3, S_BUF)
        A(f"{name}_NOPF:")
        body()
        A(f"""
        s_add_u32 s{S_SEG}, s{S_SEG}, 7
        s_cmp_eq_u32 s{S_R}, s{S_NR}
        s_waitcnt vmcnt({nst})
        s_cbranch_scc0 {name}_LOOP
        """)
    def seg_end(flag_pub):
        A("s_waitcnt vmcnt(0)\ns_barrier")
        flag_pub(S_R, "B")
    XF, AK, AV, PK = 16, 48, 64, 80
    NPF = 8
    def pub_kv(sv, tag):
        A(f"""
        s_cmp_eq_u32 s{S_W}, 0
        s_cbranch_scc0 P1_NOPUB{tag}
        v_mov_b32 v4, s{sv}
        s_mov_b64 exec, 1
        buffer_store_dword v4, off, {srd(R_WS)}, s71 sc1
        s_mov_b64 exec, -1
        P1_NOPUB{tag}:
        """)
    def body1():
        for ks in range(NPF):
            A(f"ds_read_b128 v[{XF+4*ks}:{XF+4*ks+3}], v13 offset:{ks*1024}")
        for ks in range(32):
            x = XF + 4 * (ks % NPF)
            A(f"s_waitcnt lgkmcnt({min(NPF-1, 31-ks)})")
            ck = "0" if ks == 0 else v(AK, 16)
            cv = "0" if ks == 0 else v(AV, 16)
            A(f"v_mfma_f32_32x32x16_bf16 {v(AK,16)}, {a(4*ks,4)}, {v(x,4)}, {ck}")
            A(f"v_mfma_f32_32x32x16_bf16 {v(AV,16)}, {v(x,4)}, {a(128+4*ks,4)}, {cv}")
            if ks + NPF < 32:
                A(f"ds_read_b128 v[{x}:{x+3}], v13 offset:{(ks+NPF)*1024}")
        A(f"""
        s_lshl_b32 s{S_T0}, s{S_SEG}, 18
        s_add_u32 s{S_T0}, s{S_T0}, s75
        s_lshr_b32 s{S_T1}, s{S_T0}, 1
        s_add_u32 s{S_T1}, s{S_T1}, {WS_KVM}
        buffer_store_dwordx4 v[96:99], v{V_L16}, {srd(R_WS)}, s{S_T1} offen sc1
        s_lshl_b32 s{S_T0}, s{S_T0}, 1
        s_add_u32 s{S_T0}, s{S_T0}, {WS_KV}
        s_and_b32 s{S_T1}, s{S_T0}, 0xffffc000
        """)
        for i in range(8):
            A(f"v_cvt_pk_bf16_f32 v{PK+i}, v{AK+2*i}, v{AK+2*i+1}")
        A(f"buffer_store_dwordx4 {v(PK,4)}, v{VKK}, {srd(R_WS)}, s{S_T1} offen sc1")
        A(f"buffer_store_dwordx4 {v(PK+4,4)}, v{VKK}, {srd(R_WS)}, s{S_T1} offen offset:512 sc1")
        for i, r in enumerate([0, 2, 8, 10, 4, 6, 12, 14]):
            A(f"v_cvt_pk_bf16_f32 v{PK+8+i}, v{AV+r}, v{AV+r+1}")
        A(f"buffer_store_dwordx4 {v(PK+8,4)}, v{VKS}, {srd(R_WS)}, s{S_T0} offen offset:2048 sc1")
        A(f"buffer_store_dwordx4 {v(PK+12,4)}, v{VKS}, {srd(R_WS)}, s{S_T0} offen offset:2560 sc1")
    def first1():
        A("s_waitcnt vmcnt(0)\ns_barrier")
        pub_kv(S_R, "F")
        A(f"""
        s_cmp_eq_u32 s{S_W}, 1
        s_cbranch_scc0 W_LNOK
        s_lshl_b32 s{S_T1}, s{S_G}, 2
        W_LNP:
        buffer_load_dword v4, off, {srd(R_DBG)}, s{S_T1} offset:{D_ARR} sc1
        """)
        spin_dec(A)
        A(f"""
        s_waitcnt vmcnt(0)
        v_cmp_gt_u32 vcc, 32, v4
        s_cbranch_vccnz W_LNP
        W_LNOK:
        s_barrier
        """)
    for i in range(4): A(f"v_mov_b32 v{96+i}, -1")
    seg_loop("P1", body1, pub_kv, 5, first1)
    seg_end(pub_kv)
    stamp(A, cfg, 3)
    if cfg.get("stop", 99) <= 1:
        A("s_branch EXIT")
        return
    VSF, VRF, VHS = 14, 15, 10
    A(f"""
    v_lshrrev_b32 v4, 1, v{V_L}
    v_mul_u32_u24 v{VSF}, 3584, v4
    v_and_b32 v5, 1, v{V_L}
    v_lshl_add_u32 v{VSF}, v5, 4, v{VSF}
    s_lshl_b32 s{S_T0}, s{S_H}, 7
    s_lshl_b32 s{S_T1}, s{S_W}, 5
    s_add_u32 s{S_T0}, s{S_T0}, s{S_T1}
    v_add_u32 v{VSF}, s{S_T0}, v{VSF}
    v_lshlrev_b32 v{VRF}, 4, v5
    v_bfe_u32 v5, v{V_L}, 1, 1
    v_lshl_add_u32 v{VRF}, v5, 3, v{VRF}
    v_bfe_u32 v5, v{V_L}, 2, 2
    v_lshl_add_u32 v{VRF}, v5, 5, v{VRF}
    v_lshrrev_b32 v5, 5, v{V_L}
    v_lshl_add_u32 v{VRF}, v5, 8, v{VRF}
    v_bfe_u32 v4, v{V_L}, 4, 1
    v_lshl_add_u32 v{VRF}, v4, 10, v{VRF}
    v_add_u32 v{VRF}, s{S_RING}, v{VRF}
    v_lshlrev_b32 v{VHS}, 16, v4
    v_lshl_add_u32 v{VHS}, v5, 8, v{VHS}
    v_and_b32 v5, 15, v{V_L}
    v_lshl_add_u32 v{VHS}, v5, 4, v{VHS}
    s_lshl_b32 s{S_T0}, s{S_T0}, 4
    v_add_u32 v{VHS}, s{S_T0}, v{VHS}
    """)
    st = Stager(A, S_RING, 32)
    for p in range(16):
        for kk in range(2):
            ks = 2 * p + kk
            st.add(R_WQ, VS, ks * 16 * 8192, rd32(lambda j, ks=ks: a(4*ks+j, 2), VRK))
        st.add(R_WG, VSF, p * 32 * 3584, [])
        rds = []
        for kk in range(2):
            for hb in range(2):
                rds.append(lambda o, p=p, kk=kk, hb=hb: f"ds_read_b64_tr_b16 {a(128+4*(2*p+kk)+2*hb, 2)}, v{VRF} offset:{o - 1024 + kk*512 + hb*128}")
        st.add(R_WU, VSF, p * 32 * 3584, rds)
    st.issue(32)
    st.run()
    A("s_barrier")
    stamp(A, cfg, 4)
    C1 = -2 * 1.4426950408889634 * 0.7978845608028654
    A(f"s_mov_b32 s73, {f2u(C1)}\ns_mov_b32 s74, {f2u(C1 * 0.044715)}")
    def body2():
        for ks in range(NPF):
            A(f"ds_read_b128 v[{XF+4*ks}:{XF+4*ks+3}], v13 offset:{ks*1024}")
        for ks in range(32):
            x = XF + 4 * (ks % NPF)
            A(f"s_waitcnt lgkmcnt({min(NPF-1, 31-ks)})")
            ck = "0" if ks == 0 else v(AK, 16)
            cv = "0" if ks == 0 else v(AV, 16)
            A(f"v_mfma_f32_32x32x16_bf16 {v(AV,16)}, {a(128+4*ks,4)}, {v(x,4)}, {cv}")
            A(f"v_mfma_f32_32x32x16_bf16 {v(AK,16)}, {a(4*ks,4)}, {v(x,4)}, {ck}")
            if ks + NPF < 32:
                A(f"ds_read_b128 v[{x}:{x+3}], v13 offset:{(ks+NPF)*1024}")
        A(f"""
        s_lshl_b32 s{S_T0}, s{S_SEG}, 18
        s_lshl_b32 s{S_T1}, s{S_SEG}, 17
        s_add_u32 s{S_T0}, s{S_T0}, s75
        s_add_u32 s{S_T1}, s{S_T1}, {WS_H}
        s_add_u32 s{S_T0}, s{S_T0}, {WS_QX}
        v_mov_b32 v4, s73
        """)
        T = PK + 8
        for i in range(8): A(f"v_mul_f32 v{T+i}, v{AV+i}, v{AV+i}")
        for i in range(8): A(f"v_fma_f32 v{T+i}, v{T+i}, s74, v4")
        for i in range(8): A(f"v_mul_f32 v{T+i}, v{T+i}, v{AV+i}")
        for i in range(8):
            A(f"v_cvt_pk_bf16_f32 v{PK+i}, v{AK+2*i}, v{AK+2*i+1}")
        A(f"buffer_store_dwordx4 {v(PK,4)}, v{VKS}, {srd(R_WS)}, s{S_T0} offen sc1")
        A(f"buffer_store_dwordx4 {v(PK+4,4)}, v{VKS}, {srd(R_WS)}, s{S_T0} offen offset:512 sc1")
        for i in range(8): A(f"v_exp_f32 v{T+i}, v{T+i}")
        for i in range(8): A(f"v_add_f32 v{T+i}, 1.0, v{T+i}")
        for i in range(8): A(f"v_rcp_f32 v{T+i}, v{T+i}")
        for i in range(8): A(f"v_mul_f32 v{T+i}, v{T+i}, v{AV+i}")
        for i in range(8): A(f"v_mul_f32 v{T+i}, v{T+i}, v{AV+8+i}")
        for i in range(4): A(f"v_cvt_pk_bf16_f32 v{T+8+i}, v{T+2*i}, v{T+2*i+1}")
        A(f"buffer_store_dwordx4 {v(T+8,4)}, v{VHS}, {srd(R_WS)}, s{S_T1} offen sc1")
    seg_loop("P2", body2, lambda a_, b_: None, 3, None)
    seg_end(lambda a_, b_: None)
    def pub_grp(tag, val):
        A(f"""
        s_cmp_eq_u32 s{S_W}, 0
        s_cbranch_scc0 NOPUB_{tag}
        v_mov_b32 v4, {val}
        s_mov_b64 exec, 1
        buffer_store_dword v4, off, {srd(R_WS)}, s72 sc1
        s_mov_b64 exec, -1
        NOPUB_{tag}:
        """)
    pub_grp("H", 1)
    stamp(A, cfg, 5)
    if cfg.get("stop", 99) <= 2:
        A("s_waitcnt vmcnt(0)\ns_branch EXIT")
        return
    VSD, VSO, VRT = 8, 9, 10
    A(f"""
    s_mov_b32 s{S_G}, s{S_G2}
    s_mov_b32 s{S_H}, s{S_H2}
    s_sub_u32 s{S_GI}, s{S_G}, 1
    s_cmp_eq_u32 s{S_GI}, 0
    s_cselect_b32 s{S_NR}, 10, 9
    s_lshl_b32 s{S_HOFF}, s{S_H}, 13
    s_lshl_b32 s{S_T0}, s{S_G}, 12
    s_lshl_b32 s{S_T1}, s{S_H}, 7
    s_add_u32 s72, s{S_T0}, s{S_T1}
    s_add_u32 s72, s72, {FL_GRP}
    v_lshrrev_b32 v4, 2, v{V_L}
    v_and_b32 v5, 3, v{V_L}
    v_lshlrev_b32 v{VSD}, 10, v4
    v_lshl_add_u32 v{VSD}, v5, 4, v{VSD}
    s_lshr_b32 s{S_T0}, s{S_H}, 1
    s_lshl_b32 s{S_T0}, s{S_T0}, 6
    s_lshl_b32 s{S_T1}, s{S_W}, 20
    s_add_u32 s{S_T1}, s{S_T1}, s{S_T0}
    v_add_u32 v{VSO}, s{S_T1}, v{VSD}
    s_mul_i32 s{S_T1}, s{S_W}, {448*1024}
    s_add_u32 s{S_T1}, s{S_T1}, s{S_T0}
    v_add_u32 v{VSD}, s{S_T1}, v{VSD}
    v_lshlrev_b32 v{VRT}, 4, v5
    v_and_b32 v4, 3, v4
    v_lshl_add_u32 v{VRT}, v4, 6, v{VRT}
    v_lshrrev_b32 v4, 4, v{V_L}
    v_lshl_add_u32 v{VRT}, v4, 9, v{VRT}
    v_add_u32 v{VRT}, s{S_RING}, v{VRT}
    """)
    def rd16(regf):
        return [lambda o, T=T, hb=hb: f"ds_read_b64_tr_b16 {regf(4*T+2*hb)}, v{VRT} offset:{o - 1024 + T*8 + hb*256}" for T in range(2) for hb in range(2)]
    st = Stager(A, S_RING, 32)
    for kq in range(14):
        st.add(R_WD, VSD, kq * 32768, [])
        st.add(R_WD, VSD, kq * 32768 + 16384, rd16(lambda j, kq=kq: v(128 + 8*kq + j, 2)))
    for kq in range(32):
        st.add(R_WO, VSO, kq * 32768, [])
        st.add(R_WO, VSO, kq * 32768 + 16384, rd16(lambda j, kq=kq: a(8*kq + j, 2)))
    st.issue(32)
    st.run()
    stamp(A, cfg, 6)
    VFL, VPW, VPR, VG, VXO = 8, 9, 10, 11, 12
    PITCH = 144
    A(f"""
    v_and_b32 v4, 31, v{V_L}
    v_lshlrev_b32 v{VFL}, 7, v4
    s_lshl_b32 s73, s{S_G}, 12
    s_add_u32 s73, s73, {FL_GRP}
    v_and_b32 v4, 15, v{V_L}
    v_mul_u32_u24 v{VPW}, {PITCH}, v4
    v_lshrrev_b32 v5, 4, v{V_L}
    v_lshl_add_u32 v{VPW}, v5, 5, v{VPW}
    s_mul_i32 s{S_T0}, s{S_W}, {16*PITCH}
    v_add_u32 v{VPW}, s{S_T0}, v{VPW}
    v_mul_u32_u24 v{VPR}, {PITCH}, v5
    v_lshl_add_u32 v{VPR}, v4, 3, v{VPR}
    s_mul_i32 s{S_T0}, s{S_W}, {4*PITCH}
    v_add_u32 v{VPR}, s{S_T0}, v{VPR}
    v_lshlrev_b32 v{VG}, 2, v0
    v_add_u32 v{VG}, 0x20000, v{VG}
    v_lshlrev_b32 v{VXO}, 10, v5
    v_lshl_add_u32 v{VXO}, v4, 2, v{VXO}
    s_and_b32 s{S_T0}, s{S_H}, 1
    s_lshl_b32 s74, s{S_T0}, 16            ; rt*64KB
    s_lshl_b32 s{S_T0}, s{S_T0}, 14
    s_lshl_b32 s{S_T1}, s{S_W}, 12
    s_add_u32 s{S_T0}, s{S_T0}, s{S_T1}
    s_lshr_b32 s{S_T1}, s{S_H}, 1
    s_lshl_b32 s{S_T1}, s{S_T1}, 6
    s_add_u32 s{S_T0}, s{S_T0}, s{S_T1}
    v_add_u32 v{VXO}, s{S_T0}, v{VXO}
    """)
    def grp_wait(tag, s_val):
        A(f"""
        GW_{tag}:
        buffer_load_dword v4, v{VFL}, {srd(R_WS)}, s73 offen sc1
        """)
        spin_dec(A)
        A(f"""
        s_waitcnt vmcnt(0)
        v_cmp_gt_u32 vcc, {s_val}, v4
        s_cbranch_vccnz GW_{tag}
        """)
    A(f"""
    s_lshl_b32 s{S_T1}, s{S_G}, 2
    W_ARR2:
    buffer_load_dword v4, off, {srd(R_DBG)}, s{S_T1} offset:{D_ARR} sc1
    """)
    spin_dec(A)
    A(f"""
    s_waitcnt vmcnt(0)
    v_cmp_gt_u32 vcc, 32, v4
    s_cbranch_vccnz W_ARR2
    """)
    grp_wait("H", 1)
    A("s_barrier")
    HF, DA = 16, 112
    A(f"""
    s_mul_i32 s{S_T0}, s{S_W}, {14*1024}
    s_add_u32 s74, s74, s{S_T0}
    s_lshl_b32 s{S_T0}, s{S_GI}, 17
    s_add_u32 s75, s74, s{S_T0}
    s_add_u32 s75, s75, {WS_H}
    s_mov_b32 s{S_R}, 0
    v_mov_b32 v13, v{VPW}
    DN_LOOP:
    """)
    for kq in range(14):
        if kq % 4 == 0: A(f"s_add_u32 s{S_T0}, s75, {kq*1024}")
        A(f"buffer_load_dwordx4 {v(HF+4*kq,4)}, v{V_L16}, {srd(R_WS)}, s{S_T0} offen offset:{(kq%4)*1024} sc1")
    for kq in range(14):
        A(f"s_waitcnt vmcnt({13-kq})")
        for T in range(2):
            cc = "0" if kq == 0 else v(DA+4*T, 4)
            A(f"v_mfma_f32_16x16x32_bf16 {v(DA+4*T,4)}, {v(128+8*kq+4*T,4)}, {v(HF+4*kq,4)}, {cc}")
    A(f"""
    s_add_u32 s75, s75, {7*131072}
    s_add_u32 s{S_R}, s{S_R}, 1
    s_cmp_lt_u32 s{S_R}, s{S_NR}
    ds_write_b128 v13, {v(DA,4)}
    ds_write_b128 v13, {v(DA+4,4)} offset:16
    v_add_u32 v13, {64*PITCH}, v13
    s_cbranch_scc1 DN_LOOP
    s_waitcnt lgkmcnt(0)
    s_barrier
    """)
    def red4(va, off, d):
        for i in range(4):
            A(f"ds_read_b64 v[{d+2*i}:{d+2*i+1}], v{va} offset:{off + i*16*PITCH}")
    NL = -1.4426950408889634
    A(f"v_add_u32 v13, {5*64*PITCH}, v{VPR}")
    for r in range(10):
        red4(VPR if r < 5 else 13, (r % 5) * 64 * PITCH, 16 + 8 * r)
    for r in range(10):
        d = 16 + 8 * r
        A(f"s_waitcnt lgkmcnt(0)" if r == 0 else "")
        A(f"""
        v_add_f32 v{d}, v{d}, v{d+2}
        v_add_f32 v{d+1}, v{d+1}, v{d+3}
        v_add_f32 v{d+4}, v{d+4}, v{d+6}
        v_add_f32 v{d+5}, v{d+5}, v{d+7}
        v_add_f32 v{d}, v{d}, v{d+4}
        v_add_f32 v{d+1}, v{d+1}, v{d+5}
        v_cvt_pk_bf16_f32 v{d}, v{d}, v{d+1}
        v_and_b32 v{d+1}, 0xffff0000, v{d}
        v_lshlrev_b32 v{d}, 16, v{d}
        v_mul_f32 v{d+2}, {f2u(NL)}, v{d}
        v_mul_f32 v{d+3}, {f2u(NL)}, v{d+1}
        v_exp_f32 v{d+2}, v{d+2}
        v_exp_f32 v{d+3}, v{d+3}
        v_add_f32 v{d+2}, 1.0, v{d+2}
        v_add_f32 v{d+3}, 1.0, v{d+3}
        v_rcp_f32 v{d+2}, v{d+2}
        v_rcp_f32 v{d+3}, v{d+3}
        v_mul_f32 v{d}, v{d}, v{d+2}
        v_mul_f32 v{d+1}, v{d+1}, v{d+3}
        v_cvt_pk_bf16_f32 v{d}, v{d}, v{d+1}
        ds_write_b32 v{VG}, v{d} offset:{r*1024}
        """)
    stamp(A, cfg, 7)
    KX, QX, VX, KM, FM, SS, OA = 16, 48, 64, 80, 16, 100, 112
    VMA, VKW, VQI, VKR, VKL = 13, 14, 15, 96, 97
    S_AT, S_OW, S_OR, S_XO, S_CS, S_MK = 75, 76, 77, 79, 80, 81
    S_EH, S_MSK = 82, 86
    L_KT = 0x24000
    lane_ma(A, VMA, V_L, 4)
    A(f"""
    s_lshl_b32 s{S_T0}, s{S_W}, 12
    s_add_u32 s{S_T0}, s{S_T0}, {L_KT}
    v_and_b32 v4, 15, v{V_L}
    v_lshrrev_b32 v5, 4, v{V_L}
    v_lshlrev_b32 v{VKW}, 6, v4
    v_lshl_add_u32 v{VKW}, v5, 4, v{VKW}
    v_add_u32 v{VKW}, s{S_T0}, v{VKW}
    v_add_u32 v{VKR}, s{S_T0}, v{V_L16}
    s_lshr_b32 s{S_T0}, s{S_W}, 1
    v_lshlrev_b32 v{VKL}, 8, v5
    v_bfe_u32 v6, v{V_L}, 1, 1
    v_lshl_add_u32 v{VKL}, v6, 12, v{VKL}
    v_bfe_u32 v6, v{V_L}, 2, 2
    v_lshl_add_u32 v{VKL}, v6, 5, v{VKL}
    v_and_b32 v6, 1, v{V_L}
    v_lshl_add_u32 v{VKL}, v6, 4, v{VKL}
    s_lshl_b32 s{S_T1}, s{S_T0}, 7
    v_add_u32 v{VKL}, s{S_T1}, v{VKL}
    v_xor_b32 v{VKL+1}, 128, v{VKL}
    s_and_b32 s{S_T2}, s{S_W}, 1
    s_lshl_b32 s{S_T3}, s{S_T2}, 4
    v_add_u32 v4, s{S_T3}, v4
    v_lshlrev_b32 v5, 2, v5
    v_sub_u32 v4, v4, v5
    """)
    for tl in range(2):
        for r in range(4):
            A(f"v_cmp_le_i32 s[{S_MSK+2*(4*tl+r)}:{S_MSK+2*(4*tl+r)+1}], {16*tl+r}, v4")
    A(f"""
    s_mov_b32 s{S_CS}, {f2u(128**-0.5 * 1.4426950408889634)}
    v_mov_b32 v{VQI}, {f2u(-1e9 * 128**0.5)}
    s_lshl_b32 s{S_OW}, s{S_T2}, 17
    s_lshl_b32 s{S_EH}, s{S_T0}, 11         ; eh*2048
    s_add_u32 s{S_OW}, s{S_OW}, s{S_EH}
    s_lshl_b32 s{S_T1}, s{S_H}, 12
    s_add_u32 s{S_OW}, s{S_OW}, s{S_T1}
    s_add_u32 s{S_OW}, s{S_OW}, {WS_O}
    s_and_b32 s{S_OR}, s{S_H}, 1
    s_lshl_b32 s{S_OR}, s{S_OR}, 17
    s_lshl_b32 s{S_T1}, s{S_W}, 15
    s_add_u32 s{S_OR}, s{S_OR}, s{S_T1}
    s_add_u32 s{S_OR}, s{S_OR}, {WS_O}
    s_lshl_b32 s{S_AT}, s{S_T2}, 10         ; qt*1024
    s_add_u32 s{S_AT}, s{S_AT}, {WS_QX}
    s_mov_b32 s{S_R}, 0
    s_mov_b32 s{S_SEG}, s{S_GI}
    """)
    def att_loads(sseg):
        A(f"""
        s_lshl_b32 s{S_T0}, s{sseg}, 18
        s_add_u32 s{S_T0}, s{S_T0}, s{S_HOFF}
        s_lshl_b32 s{S_T1}, s{S_EH}, 1
        s_add_u32 s{S_T0}, s{S_T0}, s{S_T1}
        s_add_u32 s{S_T1}, s{S_T0}, s{S_AT}
        s_lshl_b32 s{S_T0}, s{S_T0}, 1
        s_add_u32 s{S_T0}, s{S_T0}, {WS_KV}
        s_and_b32 s{S_T2}, s{S_T0}, 0xffffc000
        s_add_u32 s78, s{S_T2}, 8192
        """)
        for c in range(4):
            if c == 2: A(f"s_xor_b32 s{S_T1}, s{S_T1}, 4096")
            A(f"buffer_load_dwordx4 {v(QX+4*c,4)}, v{VMA}, {srd(R_WS)}, s{S_T1} offen offset:{(c&1)*2048} sc1")
            A(f"buffer_load_dwordx4 {v(KX+4*c,4)}, v{VKL+(c>>1)}, {srd(R_WS)}, s{S_T2} offen offset:{(c&1)*1024} sc1")
            A(f"buffer_load_dwordx4 {v(KX+16+4*c,4)}, v{VKL+(c>>1)}, {srd(R_WS)}, s78 offen offset:{(c&1)*1024} sc1")
            if c < 2:
                A(f"buffer_load_dwordx4 {v(VX+8*c,4)}, v{VMA}, {srd(R_WS)}, s{S_T0} offen offset:2048 sc1")
                A(f"buffer_load_dwordx4 {v(VX+8*c+4,4)}, v{VMA}, {srd(R_WS)}, s{S_T0} offen offset:3072 sc1")
            if c == 0: A(f"s_xor_b32 s{S_T0}, s{S_T0}, 4096")
    att_loads(S_SEG)
    fine = cfg.get("prof", 0) >= 2
    P = lambda i: A(f"s_memtime s[{8+2*i}:{9+2*i}]") if fine else None
    A(f"""
    v_and_b32 v{VFL}, 0x380, v{VFL}
    s_lshl_b32 s{S_T0}, s{S_W}, 10
    s_add_u32 s73, s73, s{S_T0}
    W5_LOOP:
    """)
    P(0)
    MX, LX, PX = 36, 37, KX + 16
    def km_loads():
        for c in range(4):
            A(f"buffer_load_dwordx4 {v(KM+4*c,4)}, v{VMA}, {srd(R_WS)}, s{S_T1 if c < 2 else S_T2} offen offset:{(c&1)*1024} sc1")
    A(f"""
    s_lshl_b32 s{S_T0}, s{S_SEG}, 18
    s_add_u32 s{S_T1}, s{S_T0}, s{S_HOFF}
    s_lshr_b32 s{S_T1}, s{S_T1}, 1
    s_add_u32 s{S_T1}, s{S_T1}, {WS_KVM}
    s_add_u32 s{S_T1}, s{S_T1}, s{S_EH}
    s_xor_b32 s{S_T2}, s{S_T1}, 2048
    s_lshl_b32 s{S_XO}, s{S_SEG}, 15
    s_add_u32 s{S_T3}, s{S_T0}, s{S_OR}
    s_add_u32 s{S_T0}, s{S_T0}, s{S_OW}
    buffer_load_dword v3, v{VXO}, {srd(R_X)}, s{S_XO} offen
    """)
    km_loads()
    A("s_waitcnt vmcnt(5)")
    P(1)
    for c in range(4):
        for tl in range(2):
            cc = "0" if c == 0 else v(SS+4*tl, 4)
            A(f"v_mfma_f32_16x16x32_bf16 {v(SS+4*tl,4)}, {v(KX+16*tl+4*c,4)}, {v(QX+4*c,4)}, {cc}")
    for i in range(8):
        A(f"v_cndmask_b32 v{SS+i}, v{VQI}, v{SS+i}, s[{S_MSK+2*i}:{S_MSK+2*i+1}]")
    A(f"""
    v_max3_f32 v{MX}, v{SS}, v{SS+1}, v{SS+2}
    v_max3_f32 v5, v{SS+3}, v{SS+4}, v{SS+5}
    v_max3_f32 v{MX}, v{MX}, v{SS+6}, v{SS+7}
    v_max_f32 v{MX}, v{MX}, v5
    v_mov_b32 v6, 0
    """)
    xG(A, MX, 5, "v_max_f32")
    A(f"v_mul_f32 v{MX}, s{S_CS}, v{MX}")
    for i in range(8): A(f"v_fma_f32 v{SS+i}, v{SS+i}, s{S_CS}, -v{MX}")
    for i in range(8): A(f"v_exp_f32 v{SS+i}, v{SS+i}")
    for i in range(4): A(f"v_cvt_pk_bf16_f32 v{PX+i}, v{SS+2*i}, v{SS+2*i+1}")
    for i in range(4):
        A(f"v_mfma_f32_16x16x32_bf16 {v(OA+4*i,4)}, {v(VX+4*i,4)}, {v(PX,4)}, 0")
    A(f"""
    v_add_f32 v{LX}, v{SS}, v{SS+1}
    v_add_f32 v5, v{SS+2}, v{SS+3}
    v_add_f32 v{LX}, v{LX}, v{SS+4}
    v_add_f32 v5, v5, v{SS+5}
    v_add_f32 v{LX}, v{LX}, v{SS+6}
    v_add_f32 v5, v5, v{SS+7}
    v_add_f32 v{LX}, v{LX}, v5
    s_branch W5_KC
    W5_KP:
    """)
    if cfg.get("wsl"): A(f"s_sleep {cfg['wsl']}")
    km_loads()
    spin_dec(A)
    A(f"""
    W5_KC:
    s_waitcnt vmcnt(0)
    v_max3_u32 v4, v{KM}, v{KM+4}, v{KM+8}
    v_max_u32 v4, v4, v{KM+12}
    v_cmp_eq_u32 vcc, -1, v4
    s_cbranch_vccnz W5_KP
    """)
    P(2)
    for c in range(4):
        A(f"ds_write_b128 v{VKW}, {v(KM+4*c,4)} offset:{c*1024}")
        A(f"ds_read_b64_tr_b16 {v(FM+4*c,2)}, v{VKR} offset:{c*1024}")
        A(f"ds_read_b64_tr_b16 {v(FM+4*c+2,2)}, v{VKR} offset:{c*1024+8}")
    for c in range(4):
        A(f"s_waitcnt lgkmcnt({9-3*c})")
        cc = "0" if c == 0 else v(SS+8, 4)
        A(f"v_mfma_f32_16x16x32_bf16 {v(SS+8,4)}, {v(FM+4*c,4)}, {v(QX+4*c,4)}, {cc}")
    A(f"""
    s_add_u32 s{S_R}, s{S_R}, 1
    s_add_u32 s{S_BUF}, s{S_R}, 1
    v_mul_f32 v{SS+8}, s{S_CS}, v{SS+8}
    v_mul_f32 v{SS+9}, s{S_CS}, v{SS+9}
    v_max3_f32 v4, v{MX}, v{SS+8}, v{SS+9}
    """)
    xG(A, 4, 5, "v_max_f32")
    A(f"""
    v_sub_f32 v{MX}, v{MX}, v4
    v_sub_f32 v{SS+8}, v{SS+8}, v4
    v_sub_f32 v{SS+9}, v{SS+9}, v4
    v_exp_f32 v{MX}, v{MX}
    v_exp_f32 v{SS+8}, v{SS+8}
    v_exp_f32 v{SS+9}, v{SS+9}
    v_fma_f32 v4, v{LX}, v{MX}, v{SS+8}
    v_add_f32 v4, v4, v{SS+9}
    """)
    xG(A, 4, 5, "v_add_f32")
    A(f"""
    v_rcp_f32 v4, v4
    v_mul_f32 v{MX}, v{MX}, v4
    v_mul_f32 v{SS+8}, v{SS+8}, v4
    v_mul_f32 v{SS+9}, v{SS+9}, v4
    v_cvt_pk_bf16_f32 v7, v{SS+8}, v{SS+9}
    """)
    for i in range(8): A(f"v_pk_mul_f32 {v(OA+2*i,2)}, {v(OA+2*i,2)}, {v(MX,2)} op_sel_hi:[1,0]")
    for i in range(4):
        A(f"v_mfma_f32_16x16x16_bf16 {v(OA+4*i,4)}, {v(KM+2*i,2)}, v[6:7], {v(OA+4*i,4)}")
    for hh in range(2):
        for i in range(4): A(f"v_cvt_pk_bf16_f32 v{SS+4*hh+i}, v{OA+8*hh+2*i}, v{OA+8*hh+2*i+1}")
        A(f"buffer_store_dwordx4 {v(SS+4*hh,4)}, v{V_L16}, {srd(R_WS)}, s{S_T0} offen offset:{hh*1024} sc1")
    P(3)
    A(f"ds_read_b32 v7, v{VG}\nv_add_u32 v{VG}, 1024, v{VG}")
    A("s_waitcnt vmcnt(0)")
    P(4)
    A("s_barrier")
    P(5)
    pub_grp("O", f"s{S_BUF}")
    grp_wait("O", f"s{S_BUF}")
    P(6)
    NB = cfg.get("nb", 16)
    def o_load(kq):
        if kq % 4 == 0 and kq: A(f"s_add_u32 s{S_T3}, s{S_T3}, 4096")
        A(f"buffer_load_dwordx4 {v(128+4*kq,4)}, v{V_L16}, {srd(R_WS)}, s{S_T3} offen offset:{(kq%4)*1024} sc1")
    for kq in range(NB): o_load(kq)
    P(7)
    for kq in range(32):
        A(f"s_waitcnt vmcnt({min(NB-1, 31-kq)})")
        if kq == 0: P(8)
        if kq == 16: P(9)
        for T in range(2):
            cc = "0" if kq == 0 else v(OA+4*T, 4)
            A(f"v_mfma_f32_16x16x32_bf16 {v(OA+4*T,4)}, {a(8*kq+4*T,4)}, {v(128+4*kq,4)}, {cc}")
        if kq + NB < 32: o_load(kq + NB)
    d = SS
    P(10)
    A(f"""
    s_waitcnt lgkmcnt(0)
    v_and_b32 v6, 0xffff0000, v7
    v_lshlrev_b32 v7, 16, v7
    v_and_b32 v5, 0xffff0000, v3
    v_lshlrev_b32 v4, 16, v3
    s_add_u32 s{S_SEG}, s{S_SEG}, 7
    ds_write_b128 v{VPW}, {v(OA,4)}
    ds_write_b128 v{VPW}, {v(OA+4,4)} offset:16
    s_waitcnt lgkmcnt(0)
    s_barrier
    """)
    red4(VPR, 0, d)
    A(f"""
    s_waitcnt lgkmcnt(2)
    v_add_f32 v{d}, v{d}, v{d+2}
    v_add_f32 v{d+1}, v{d+1}, v{d+3}
    s_waitcnt lgkmcnt(0)
    v_add_f32 v{d+4}, v{d+4}, v{d+6}
    v_add_f32 v{d+5}, v{d+5}, v{d+7}
    v_add_f32 v{d}, v{d}, v{d+4}
    v_add_f32 v{d+1}, v{d+1}, v{d+5}
    v_cvt_pk_bf16_f32 v{d}, v{d}, v{d+1}
    v_and_b32 v{d+1}, 0xffff0000, v{d}
    v_lshlrev_b32 v{d}, 16, v{d}
    v_mul_f32 v{d}, v{d}, v7
    v_mul_f32 v{d+1}, v{d+1}, v6
    v_cvt_pk_bf16_f32 v{d}, v{d}, v{d+1}
    v_and_b32 v{d+1}, 0xffff0000, v{d}
    v_lshlrev_b32 v{d}, 16, v{d}
    v_add_f32 v{d}, v{d}, v4
    v_add_f32 v{d+1}, v{d+1}, v5
    v_cvt_pk_bf16_f32 v4, v{d}, v{d+1}
    buffer_store_dword v4, v{VXO}, {srd(R_OUT)}, s{S_XO} offen
    """)
    if fine:
        P(11)
        A(f"s_cmp_eq_u32 s{S_R}, {cfg.get('pr', 4)}\ns_cbranch_scc0 W5_ND\ns_waitcnt lgkmcnt(0)")
        for i in range(12): A(f"v_writelane_b32 v5, s{8+2*i}, {i}")
        A(f"v_lshrrev_b32 v6, 2, v{V_L16}\nbuffer_store_dword v5, v6, {srd(R_WS)}, s{S_PROF} offen offset:512\nW5_ND:")
    if cfg.get("prof"):
        A(f"""
        s_memtime s[{S_TS}:{S_TS+1}]
        s_lshl_b32 s{S_T0}, s{S_R}, 2
        s_add_u32 s{S_T0}, s{S_T0}, s{S_PROF}
        s_waitcnt lgkmcnt(0)
        v_mov_b32 v5, s{S_TS}
        s_mov_b64 exec, 1
        buffer_store_dword v5, off, {srd(R_WS)}, s{S_T0} offset:28
        s_mov_b64 exec, -1
        """)
    A(f"""
    s_cmp_lt_u32 s{S_R}, s{S_NR}
    s_cbranch_scc0 W5_END
    """)
    att_loads(S_SEG)
    A(f"""
    s_branch W5_LOOP
    W5_END:
    """)
```

```python
import re
from common import *
from worker import stamp, spin_dec, xG

L_PX, L_SEL, L_F, L_REG, RP = 0, 0xC00, 0x1000, 0x2000, 0x9800
O_WQ, O_WO, O_A, O_S = 0, 0x4000, 0x8000, 0x8800
L_DUMMY = L_REG + O_S
V_IDX, V_MA, V_KA, V_FW, V_FR, V_PW, V_PST, V_MST = 0, 1, 2, 3, 4, 5, 6, 7
V_R = [8, 9, 10, 11]
PUB = 12
RA, RE, RV, RQ, RK, ALT = 16, 48, 104, 112, 120, 40
RKX, RVX = 56, 64
S_S, S_RING, S_ROT = 64, 65, 66
S_RDY, S_PW, S_MB, S_KVB, S_MW, S_PUB, S_TAG, S_FKV = 70, 71, 72, 73, 74, 75, 76, 77
S_C, S_THR = 78, 79
S_B1, S_ON, S_HF = 80, 82, 90
S_SENT, S_PR0, S_PR1, S_W2K, S_MR = 84, 85, 86, 87, 88
S_TX, S_TB = 92, 93

KD = [0]
WQS = [48, 88, 96, 72, 80, 88, 96, 48]
PFO = list(range(10))
def WQ(t, ab): return v(WQS[2 * t + ab] if KD[0] else RE + 8 * ((2 * t + ab) % 7), 8) if t < 4 else v(128 + 8 * (2 * (t - 4) + ab), 8)
def WK(t, ab): return a(8 * (2 * t + ab), 8)
def WV(t, ab): return a(128 + 8 * (2 * t + ab), 8)
WOS = {(2, 0): 72, (3, 0): 80, (2, 1): 88, (3, 1): 48, (2, 2): 56, (3, 2): 104, (2, 3): 96, (3, 3): 16}
def WO(c, T): return v(192 + 8 * (4 * c + T), 8) if c < 2 else v(WOS[(c, T)], 8)
def SM(d, aa, b): return f"v_smfmac_f32_16x16x64_bf16 {v(d,4)}, {v(aa,4)}, {b}, v{V_IDX}"
def MF(d, aa, b, c): return f"v_mfma_f32_16x16x32_bf16 {v(d,4)}, {v(aa,4)}, {v(b,4)}, {c}"
def MH(d, aa, b, c): return f"v_mfma_f32_16x16x16_bf16 {v(d,4)}, {v(aa,2)}, {v(b,2)}, {c}"
DPP = lambda p: f"quad_perm:[{p}] row_mask:0xf bank_mask:0xf"

def chain_init(A, cfg):
    L, L16 = 20, 21
    vm = VM(A)
    A(f"""
    CHAIN:
    v_mov_b32 v{L}, v1
    v_mov_b32 v{L16}, v2
    s_mul_i32 s{S_RING}, s{S_W}, {RP}
    s_add_u32 s{S_RING}, s{S_RING}, {L_REG}
    s_lshl_b32 s{S_W2K}, s{S_W}, 11
    """)
    for i in range(4):
        A(f"s_add_u32 s{S_T0}, s{S_W}, {i}\ns_and_b32 s{S_ROT+i}, s{S_T0}, 3")
    A(f"""
    v_lshrrev_b32 v22, 4, v{L}
    v_bfe_u32 v23, v{L}, 2, 1
    v_lshlrev_b32 v{V_MST}, 8, v23
    v_bfe_u32 v23, v{L}, 1, 1
    v_lshl_add_u32 v{V_MST}, v23, 5, v{V_MST}
    v_and_b32 v23, 1, v{L}
    v_lshl_add_u32 v{V_MST}, v23, 3, v{V_MST}
    v_and_b32 v23, 1, v22
    v_lshl_add_u32 v{V_MST}, v23, 4, v{V_MST}
    v_lshrrev_b32 v24, 5, v{L}
    v_lshl_add_u32 v{V_MST}, v24, 2, v{V_MST}
    v_lshlrev_b32 v25, 10, v23
    v_lshl_add_u32 v25, v24, 2, v25
    v_and_b32 v24, 7, v{L}
    v_lshl_add_u32 v25, v24, 4, v25
    s_lshr_b32 s{S_T0}, s{S_H}, 3            ; w'
    s_bfe_u32 s{S_T1}, s{S_H}, 0x20001       ; G'
    s_and_b32 s{S_T2}, s{S_H}, 1             ; nh
    s_and_b32 s{S_T3}, s{S_W}, 1             ; sig
    s_lshl_b32 s{S_PW}, s{S_T0}, 11
    s_lshl_b32 s{S_MB}, s{S_T3}, 10
    s_add_u32 s{S_PW}, s{S_PW}, s{S_MB}
    s_lshl_b32 s{S_MB}, s{S_T2}, 9
    s_add_u32 s{S_PW}, s{S_PW}, s{S_MB}
    s_lshl_b32 s{S_MB}, s{S_T1}, 6
    s_add_u32 s{S_PW}, s{S_PW}, s{S_MB}
    v_add_u32 v{V_MST}, s{S_PW}, v{V_MST}
    s_lshl_b32 s{S_T1}, s{S_T1}, 11
    s_lshl_b32 s{S_PW}, s{S_T0}, 8
    s_add_u32 s{S_T1}, s{S_T1}, s{S_PW}
    s_lshl_b32 s{S_T2}, s{S_T2}, 7
    s_add_u32 s{S_T1}, s{S_T1}, s{S_T2}
    s_lshl_b32 s{S_T3}, s{S_T3}, 3
    s_add_u32 s{S_T1}, s{S_T1}, s{S_T3}
    """)
    m0l = vm.issue(f"buffer_load_dword v28, v25, {srd(R_M0)}, s{S_T1} offen")
    A(f"""
    v_lshrrev_b32 v23, 3, v{L}
    s_lshl_b32 s{S_T1}, s{S_W}, 3
    v_add_u32 v23, s{S_T1}, v23
    v_lshlrev_b32 v{V_PST}, 13, v23
    v_lshl_add_u32 v{V_PST}, v24, 4, v{V_PST}
    v_and_b32 v23, {cfg.get("swz", 31)}, v23
    v_xor_b32 v23, s{S_H}, v23
    v_lshl_add_u32 v{V_PST}, v23, 7, v{V_PST}
    v_mov_b32 v24, -1
    v_mov_b32 v25, -1
    v_mov_b32 v26, -1
    v_mov_b32 v27, -1
    s_mov_b32 s{S_PW}, {WS_P}
    s_mov_b32 s{S_PR1}, {WS_P + 4096}
    """)
    vm.issue(f"buffer_store_dwordx4 v[24:27], v{V_PST}, {srd(R_WS)}, s{S_PW} offen sc1")
    vm.issue(f"buffer_store_dwordx4 v[24:27], v{V_PST}, {srd(R_WS)}, s{S_PR1} offen sc1")
    for i in range(1, 4):
        A(f"s_mov_b32 s{S_T0}, {WS_M + i*8192}")
        vm.issue(f"buffer_store_dword v24, v{V_MST}, {srd(R_WS)}, s{S_T0} offen sc1")
    A(f"""
    v_and_b32 v23, 15, v{L}
    v_lshlrev_b32 v30, 12, v22
    v_lshl_add_u32 v30, v23, 4, v30
    s_lshl_b32 s{S_T0}, s{S_H}, 17
    s_lshl_b32 s{S_T1}, s{S_W}, 8
    s_add_u32 s{S_T0}, s{S_T0}, s{S_T1}
    v_add_u32 v30, s{S_T0}, v30
    """)
    def wo_raw(cs):
        for ci, c in enumerate(cs):
            A(f"s_lshl_b32 s{S_T0}, s{S_ROT+c}, 15\ns_add_u32 s{S_T1}, s{S_T0}, 16384")
            for i in range(8):
                r = RE + 32 * ci + 4 * i
                k = vm.issue(f"buffer_load_dwordx4 {v(r,4)}, v30, {srd(R_WO)}, s{S_T0 if i < 4 else S_T1} offen offset:{(i&3)*1024}{' nt' if cfg.get('nt', 0) & 2 else ''}")
        return k
    wo1 = wo_raw([0, 1])
    NT = " nt" if cfg.get("nt", 0) & 1 else ""
    VG, VA = 16, 112
    A(f"""
    v_and_b32 v31, 1, v22
    v_lshlrev_b32 v31, 4, v31
    v_lshrrev_b32 v32, 5, v{L}
    v_add_u32 v31, v31, v32                  ; 16(j&1) + (j>>1)
    v_lshlrev_b32 v31, 13, v31
    v_lshlrev_b32 v32, 2, v22
    v_xor_b32 v32, v32, v23
    v_lshl_add_u32 v31, v32, 4, v31
    s_lshl_b32 s{S_T0}, s{S_H}, 8
    s_lshl_b32 s{S_T1}, s{S_W}, 20
    s_add_u32 s{S_T0}, s{S_T0}, s{S_T1}
    v_add_u32 v{VG}, s{S_T0}, v31
    s_lshl_b32 s{S_MR}, s{S_W}, 12
    s_add_u32 s{S_MR}, s{S_MR}, {L_REG + O_WO}
    """)
    qpos = cfg.get('qpos', 0)
    units = [(R, par, m) for R in [(R_WQ, R_WK, R_WV), (R_WK, R_WQ, R_WV)][qpos] for par in range(2) for m in range(4)]
    uid = {}
    def u_issue(u):
        R, par, m = units[u]
        for G in range(4):
            A(f"s_add_u32 m0, s{S_MR}, {(u & 3) * RP + G * 1024}")
            A(f"s_mov_b32 s{S_T0}, {(2*(m&1) + 64*(m>>1) + 4*par + 8*(G&1) + 32*(G>>1)) * 8192}")
            uid[u] = vm.issue(f"buffer_load_dwordx4 v{VG}, {srd(R)}, s{S_T0} offen{' nt' if cfg.get('nt', 0) & (1 if R == R_WQ else 8) else ''} lds")
    def u_read(u):
        R, par, m = units[u]
        regf = {R_WK: WK, R_WV: WV, R_WQ: lambda t, ab: WQ(t, ab) if t >= 4 else v(RE + 8 * (2*t + ab), 8)}[R]
        for i in range(4):
            for ab in range(2):
                kind, r0 = regs_of(regf(2*i + par, ab))[0]
                A(f"ds_read_b64_tr_b16 {kind}[{r0+2*m}:{r0+2*m+1}], v{VA + i + 4*((u&3)>>1)} offset:{(u & 1) * RP + ab*8}")
    for u in range(4): u_issue(u)
    A(f"""
    v_bfe_u32 v23, v{L}, 2, 2
    v_and_b32 v32, 3, v{L}
    v_lshlrev_b32 v31, 10, v22
    v_lshl_add_u32 v31, v23, 8, v31
    v_lshl_add_u32 v31, v32, 4, v31
    v_xor_b32 v23, s{S_W}, v23
    v_lshl_add_u32 v31, v23, 6, v31
    """)
    for i in range(4):
        A(f"""
        s_lshl_b32 s{S_T0}, s{S_ROT+i}, 12
        s_add_u32 s{S_T0}, s{S_T0}, {L_REG + O_WO}
        v_add_u32 v{VA+i}, s{S_T0}, v31
        v_add_u32 v{VA+4+i}, {2*RP}, v{VA+i}
        """)
    vm.wait(m0l)
    A(f"""
    v_min_u32 v28, -2, v28
    s_mov_b32 s{S_T0}, {WS_M}
    """)
    m0s = vm.issue(f"buffer_store_dword v28, v{V_MST}, {srd(R_WS)}, s{S_T0} offen sc1")
    lane_ma(A, V_MA, L, 23)
    A(f"""
    v_and_b32 v23, 2, v{L}
    v_cmp_eq_u32 vcc, 0, v23
    v_mov_b32 v23, 0xdddddddd
    v_mov_b32 v33, 0x88888888
    v_cndmask_b32 v{V_IDX}, v23, v33, vcc
    v_bfe_u32 v23, v{L}, 2, 2
    v_xor_b32 v23, v23, v22
    v_and_b32 v33, 15, v{L}
    v_lshlrev_b32 v33, 5, v33
    v_lshl_add_u32 v33, v23, 3, v33
    s_and_b32 s{S_T0}, s{S_W}, 1
    s_lshl_b32 s{S_T0}, s{S_T0}, 10
    s_lshr_b32 s{S_T1}, s{S_W}, 1
    s_lshl2_add_u32 s{S_T0}, s{S_T1}, s{S_T0}
    s_add_u32 s{S_T0}, s{S_T0}, {L_F}
    v_add_u32 v{V_FW}, s{S_T0}, v33
    v_xor_b32 v33, v{L}, v22
    v_lshlrev_b32 v33, 3, v33
    v_add_u32 v{V_FR}, {L_F}, v33
    s_lshl_b32 s{S_T0}, s{S_W}, 2
    v_add_u32 v{V_PW}, s{S_T0}, v{L16}
    v_lshlrev_b32 v{V_KA}, 8, v22
    v_bfe_u32 v33, v{L}, 1, 1
    v_lshl_add_u32 v{V_KA}, v33, 7, v{V_KA}
    v_bfe_u32 v33, v{L}, 2, 2
    v_lshl_add_u32 v{V_KA}, v33, 5, v{V_KA}
    v_and_b32 v33, 1, v{L}
    v_lshl_add_u32 v{V_KA}, v33, 4, v{V_KA}
    s_mov_b32 s{S_C}, {f2u(128**-0.5 * 1.4426950408889634)}
    s_mov_b32 s{S_THR}, {f2u(2.0 ** cfg.get("thr", 32))}
    s_mov_b32 s{S_ON}, 0x3f803f80
    s_mov_b32 s{S_ON+1}, 0x3f803f80
    s_mov_b32 s{S_RDY}, 0
    s_mov_b32 s{S_S}, 0
    s_mov_b32 s{S_TAG}, 0
    s_lshl_b32 s{S_T0}, s{S_H}, 13
    s_and_b32 s{S_T1}, s{S_W}, 1
    s_lshl_b32 s{S_T1}, s{S_T1}, 12
    s_add_u32 s{S_T1}, s{S_T1}, s{S_T0}
    s_add_u32 s{S_PR0}, s{S_T1}, {WS_P}
    s_add_u32 s{S_T1}, s{S_T0}, s{S_W2K}       ; h*8K + w*2K
    s_lshl_b32 s{S_KVB}, s{S_T1}, 1
    s_add_u32 s{S_KVB}, s{S_KVB}, {WS_KV}
    s_lshr_b32 s{S_PUB}, s{S_T1}, 1
    s_add_u32 s{S_PUB}, s{S_PUB}, {WS_KVM - 131072}
    s_add_u32 s{S_MB}, s{S_W2K}, {WS_M}
    s_lshl_b32 s{S_FKV}, s{S_H}, 7
    s_add_u32 s{S_FKV}, s{S_FKV}, {FL_KV}
    s_and_b32 s{S_TX}, s{S_W}, 1
    s_lshl_b32 s{S_TX}, s{S_TX}, 12
    s_cmp_lt_u32 s{S_W}, 2
    s_cselect_b32 s{S_TX}, 0x40000000, s{S_TX}
    """)
    for i in range(4):
        A(f"s_mul_i32 s{S_T0}, s{S_ROT+i}, {RP}\ns_add_u32 s{S_T0}, s{S_T0}, {L_REG}\nv_add_u32 v{V_R[i]}, s{S_T0}, v{L16}")
    A(f"""
    v_mov_b32 v{PUB}, 0
    v_mov_b32 v{PUB+1}, 0
    v_mov_b32 v{PUB+2}, 0
    v_mov_b32 v{PUB+3}, 0
    v_lshlrev_b32 v23, 2, v{L}
    v_and_b32 v23, 16, v23
    v_mov_b32 v33, 0x3f80
    v_lshlrev_b32 v33, v23, v33
    v_bfe_u32 v23, v{L}, 3, 1
    v_and_b32 v34, 1, v{L}
    v_lshl_add_u32 v23, v23, 1, v34
    """)
    for i in range(4):
        A(f"v_cmp_eq_u32 vcc, {i}, v23\nv_cndmask_b32 v{44+i}, 0, v33, vcc")
    A(f"ds_write_b128 v{V_MA}, v[44:47] offset:{L_SEL}")
    vm.wait(wo1)
    for c in range(2):
        for T in range(4):
            for i in range(8):
                A(f"v_mov_b32 v{192 + 8*(4*c+T) + i}, v{RE + 32*c + 4*i + T}")
    stamp(A, cfg, 1); vm.n += bool(cfg.get("prof"))
    for u in range(24):
        vm.wait(uid[u])
        if u == 4: vm.wait(m0s)
        A("s_waitcnt lgkmcnt(0)\ns_barrier")
        if u >= 1 and u + 3 < 24: u_issue(u + 3)
        if u == 9 + 8 * qpos: wo2 = wo_raw([2, 3])
        u_read(u)
        if u == 4:
            A(f"""
            s_cmp_eq_u32 s{S_W}, 3
            s_cbranch_scc0 C_NOH
            s_and_b32 s{S_T0}, s{S_XCC}, 3
            s_lshl_b32 s{S_T0}, s{S_T0}, 3
            s_lshl_b32 s{S_T0}, 4, s{S_T0}
            s_and_b32 s{S_T1}, s{S_XCC}, 4
            v_mov_b32 v23, s{S_T0}
            s_mov_b64 exec, 1
            buffer_atomic_add v23, off, {srd(R_DBG)}, s{S_T1} offset:{D_HIST}
            s_mov_b64 exec, -1
            C_NOH:
            """)
        if u == 8 + 8 * qpos:
            for f in range(16):
                A(f"ds_write_b128 v{V_R[0]}, {v(RE + 4*f, 4)} offset:{O_WQ + f*1024}")
    assert vm.known >= wo2
    A("s_waitcnt lgkmcnt(0)\ns_barrier")
    for fi, (c, T) in enumerate(WOS):
        for i in range(8):
            A(f"v_mov_b32 v{32 + 8*(fi&1) + i}, v{RE + 32*(c-2) + 4*i + T}")
        A(f"ds_write_b128 v{V_R[0]}, {v(32 + 8*(fi&1), 4)} offset:{O_WO + fi*2048}")
        A(f"ds_write_b128 v{V_R[0]}, {v(36 + 8*(fi&1), 4)} offset:{O_WO + fi*2048+1024}")
    wq_prefetch(A, 0, 10 if KD[0] else 14)
    stamp(A, cfg, 2)
    A(f"""
    s_add_u32 m0, s{S_RING}, {O_S}
    C_W0:
    buffer_load_dwordx2 v[24:25], off, {srd(R_DBG)}, 0 offset:{D_HIST} sc1
    buffer_load_dwordx4 v[28:31], off, {srd(R_DBG)}, 0 offset:{D_ARR} sc1
    buffer_load_dwordx4 v[32:35], off, {srd(R_DBG)}, 0 offset:{D_ARR+16} sc1
    """)
    spin_dec(A)
    A(f"""
    s_waitcnt vmcnt(0)
    v_sad_u8 v26, v24, 0, 0
    v_sad_u8 v26, v25, 0, v26
    v_lshrrev_b32 v26, 2, v26
    v_min3_u32 v26, v26, v29, v30
    v_min3_u32 v26, v26, v31, v32
    v_min3_u32 v26, v26, v33, v34
    v_min_u32 v26, v26, v35
    v_readfirstlane_b32 s{S_T0}, v26
    s_cmp_lt_u32 s{S_T0}, 32
    s_cbranch_scc1 C_W0
    v_or_b32 v24, v24, v25
    v_and_b32 v24, 0x80808080, v24
    v_readfirstlane_b32 s{S_SENT}, v24      ; nonzero -> all chain workgroups share one XCC
    """)

def kv_ready(A, s_target, tag):
    A(f"""
    s_cmp_gt_u32 s{S_RDY}, s{s_target}
    s_cbranch_scc1 RDY_OK{tag}
    RDY_P{tag}:
    buffer_load_dwordx4 v[24:27], off, {srd(R_WS)}, s{S_FKV} sc1
    buffer_load_dwordx4 v[28:31], off, {srd(R_WS)}, s{S_FKV} offset:16 sc1
    """)
    spin_dec(A)
    A("s_waitcnt vmcnt(0)")
    for g in range(7):
        A(f"v_mad_u32_u24 v{25+g}, v{25+g}, 7, {g}")
    A(f"""
    v_min3_u32 v24, v25, v26, v27
    v_min3_u32 v24, v24, v28, v29
    v_min3_u32 v24, v24, v30, v31
    s_nop 0
    v_readfirstlane_b32 s{S_RDY}, v24
    s_cmp_gt_u32 s{S_RDY}, s{s_target}
    s_cbranch_scc0 RDY_P{tag}
    RDY_OK{tag}:
    """)

def wqr(f): return f"ds_read_b128 {v(WQS[f >> 1] + 4*(f & 1), 4)}, v{V_R[0]} offset:{O_WQ + f*1024}"
def kdma(i): return f"buffer_load_dwordx4 v{V_KA if i < 2 else V_MA}, {srd(R_WS)}, s{S_KVB} offen offset:{i*1024} sc1 lds"
def wq_prefetch(A, f0=0, f1=14):
    for f in range(f0, f1):
        if KD[0]:
            A(wqr(PFO[f]) if f < 10 else f"ds_read_b128 {v(RKX + 4*(f-10), 4)}, v{V_R[0]} offset:{O_S + (f-10)*1024}")
            continue
        A(f"ds_read_b128 {v(RE + 4*f, 4)}, v{V_R[0]} offset:{O_WQ + f*1024}")

def fold(A, acc, d0, d1):
    A(f"v_pk_add_f32 {v(acc,2)}, {v(acc,2)}, {v(acc+2,2)}")
    A(f"v_pk_add_f32 {v(acc+4,2)}, {v(acc+4,2)}, {v(acc+6,2)}")
    A(f"v_cvt_pk_bf16_f32 v{d0}, v{acc}, v{acc+1}")
    A(f"v_cvt_pk_bf16_f32 v{d1}, v{acc+4}, v{acc+5}")

def delay(A, n):
    while n > 0:
        A(f"s_nop {min(n,16)-1}"); n -= min(n, 16)

ABL = {1: r"buffer_load|buffer_store_dwordx4 v\[12", 2: r"v_mov_b64 v\[\d+:\d+\], 0", 3: r"ds_read_b128 .*offset:(16|17|18|19|2\d|30|31)\d\d\d$",
       4: r"v_smfmac_f32_16x16x64_bf16 v\[10[48]", 5: r"s_barrier", 6: r"v_fmac|v_mul_f32 v10", 7: r"s_waitcnt lgkmcnt",
       9: r"buffer_store_dwordx4 v\[12", 10: r"buffer_load_dword v100", 11: r"buffer_store_dwordx4 v\[12|buffer_load_dword v100",
       8: r"buffer_load|buffer_store_dwordx4 v\[12|v_mov_b64 v\[\d+:\d+\], 0|ds_read_b128 .*offset:(16|17|18|19|2\d|30|31)\d\d\d$"}
def chain_loop(A, cfg, tag, sc):
    fine = cfg.get("prof", 0) >= 2
    P = lambda i: A(f"s_memtime s[{4+2*i}:{5+2*i}]") if fine and (cfg.get("pm", -1) >> i) & 1 else None
    import os
    abl = ABL.get(cfg.get("abl", 0))
    cnt = [0, 2]
    def sl(*ins):
        if fine and "g0" in cfg and cnt[0] >= cfg["g0"] and (cnt[0] - cfg["g0"]) % cfg.get("gs", 4) == 0 and cnt[1] < 18:
            A(f"s_memtime s[{4+2*cnt[1]}:{5+2*cnt[1]}]"); cnt[1] += 1
        cnt[0] += 1
        for x in ins:
            for y in x.split("\n"):
                if abl and re.search(abl, y): continue
                A(y)
    fr = lambda t, R=RA: R + 4 * t
    q = lambda t, ab, R=RA: SM(RQ + 4*ab, fr(t, R), WQ(t, ab))
    k = lambda t, ab, R=RA: SM(RK + 4*ab, fr(t, R), WK(t, ab))
    vv = lambda t, ab, R=RA: SM(RV + 4*ab, fr(t, R), WV(t, ab))
    rd = lambda t: f"ds_read_b128 {v(fr(t),4)}, v{V_R[t>>1]} offset:{O_A + (t&1)*1024}"
    def wo(c, T, hf):
        fi = list(WOS).index((c, T))
        return f"ds_read_b128 {v(WOS[(c, T)] + 4*hf, 4)}, v{V_R[0]} offset:{O_WO + fi*2048 + hf*1024}"
    add = lambda acc, i: f"v_add_f32 v{acc+i}, v{acc+i}, v{acc+2+i}"
    cvt = lambda d, s_: f"v_cvt_pk_bf16_f32 v{d}, v{s_}, v{s_+1}"
    z = lambda r: f"v_mov_b64 {v(r,2)}, 0"
    lg = lambda n: f"s_waitcnt lgkmcnt({n})"
    def m_loads(R):
        A(f"buffer_load_dwordx4 {v(R,4)}, v{V_MA}, {srd(R_WS)}, s{S_MB} offen sc1")
        A(f"buffer_load_dwordx4 {v(R+4,4)}, v{V_MA}, {srd(R_WS)}, s{S_MB} offen offset:1024 sc1")
    kvl = lambda i: f"buffer_load_dwordx4 {v(RKX+4*i,4)}, v{V_KA if i < 2 else V_MA}, {srd(R_WS)}, s{S_KVB} offen offset:{i*1024} sc1"
    TCH, SX, PX, PM, ON, QF, KF = 100, 96, 100, 18, 20, 48, 56
    SA, LL, O0, O1, OP, SEL = 24, 28, 32, 36, 40, 44
    pub = f"buffer_store_dwordx4 {v(PUB,4)}, v{V_MA}, {srd(R_WS)}, s{S_PUB} offen sc1"
    mulc = lambda r: f"v_mul_f32 v{r}, s{S_C}, v{r}"
    fw = lambda r, off: f"ds_write_b32 v{V_FW}, v{r} offset:{off}"
    tr = lambda r, off: f"ds_read_b64_tr_b16 {v(r,2)}, v{V_FR} offset:{off}"
    ad = lambda r, i: f"v_add_f32_dpp v{r+2+i}, v{r+i}, v{r+2+i} {DPP('0,1,0,1')}"
    exd = lambda r, i: f"v_exp_f32_dpp v{r+i}, v{r+2+i} {DPP('2,3,2,3')}"
    tw = cfg.get("tw", 0)
    kd = KD[0]
    def dump():
        if fine:
            P(18)
            A(f"s_cmp_eq_u32 s{S_S}, {cfg.get('pstep', 41)}\ns_cbranch_scc0 NODUMP{tag}\ns_waitcnt lgkmcnt(0) vmcnt(0)")
            for i in range(19): A(f"v_writelane_b32 v26, s{4+2*i}, {i}")
            A(f"v_lshrrev_b32 v27, 2, v{V_MA}\nbuffer_store_dword v26, v27, {srd(R_WS)}, s{S_PROF} offen offset:512\ns_waitcnt vmcnt(0)\nNODUMP{tag}:")
            P(0)
    def norm(fast):
        o = (lambda *x: x) if fast else (lambda *x: ())
        sl(*o(f"v_max_f32 v{LL}, v{LL}, v{LL+2}", f"v_cmp_lt_f32 vcc, s{S_THR}, v{LL}"))
        for i in range(2): A(f"v_pk_mul_f32 {v(O0+2*i,2)}, {v(O0+2*i,2)}, {v(LL+2,2)} op_sel_hi:[1,0]")
        sl(cvt(OP, O0), cvt(OP + 1, O0 + 2))
        if fast: P(11)
        for i in range(2): A(f"v_pk_mul_f32 {v(O1+2*i,2)}, {v(O1+2*i,2)}, {v(LL+2,2)} op_sel_hi:[1,0]")
        sl(cvt(OP + 2, O1), cvt(OP + 3, O1 + 2), f"ds_write_b128 v{V_R[0]}, {v(OP,4)} offset:{O_A}")
    if cfg.get("ph"):
        KF, CK = 88, 28
        ml = lambda sg: f"buffer_load_dwordx4 {v(RA+4*sg,4)}, v{V_MA}, {srd(R_WS)}, s{S_MB} offen offset:{1024*sg} sc1"
        chk = lambda sg: [f"v_max3_u32 v{CK}, v{RA+4*sg}, v{RA+4*sg+1}, v{RA+4*sg+2}", f"v_max_u32 v{CK}, v{CK}, v{RA+4*sg+3}",
                          f"ds_write_b128 v{V_R[0]}, {v(RA+4*sg,4)} offset:{O_A+1024*sg}"]
        cmpv = f"v_cmp_eq_u32 vcc, -1, v{CK}"
        dp = [[1, 17, 19, 21, 23], [1, 3, 6, 17, 20], [1, 2, 4, 6, 8], [1, 3, 17, 19, 21], [17, 1, 3, 19, 21]][cfg.get("dpos", 0)]
        vops = [pub, kdma(0), kdma(1), kdma(2), kdma(3)]
        ex = lambda n: [vops[dp.index(n)]] if n in dp else []
        A(f"LOOP{tag}:")
        A(ml(0))
        dump()
        for i in range(4): A(z(RV + 2*i))
        A(f"s_waitcnt vmcnt({3 if cfg.get('prof') else 2}) lgkmcnt(0)")
        for i in range(4): A(z(RK + 2*i))
        delay(A, cfg.get("dm1", 16))
        A(f"MP{tag}:")
        A(ml(0))
        spin_dec(A)
        A("s_nop 2")
        for i in range(4): A(z(RQ + 2*i))
        A("s_waitcnt vmcnt(1)")
        P(1)
        sl(*chk(0))
        sl(q(0, 0), cmpv)
        sl(q(0, 1), f"s_cbranch_vccnz MP{tag}", ml(1))
        sl(k(0, 0), wqr(6))
        sl(k(0, 1), wqr(7), lg(2)); A("s_barrier"); P(2)
        sl(rd(2), rd(4), rd(6))
        sl(vv(0, 0), ml(1))
        sl(vv(0, 1), wqr(14), lg(3))
        sl(q(2, 0), wqr(15), lg(3))
        sl(q(4, 0), lg(2))
        sl(q(6, 0), wqr(12))
        sl(q(2, 1), wqr(13), "s_waitcnt vmcnt(1)", *chk(1))
        sl(q(4, 1), cmpv)
        sl(q(6, 1), f"s_cbranch_vccnz MR{tag}")
        A(f"MC{tag}:")
        P(9)
        ke = [k(2, 0), k(4, 0), k(6, 0), k(2, 1), k(4, 1), k(6, 1)]
        npre = cfg.get("npre", 2)
        sl(q(1, 0), f"s_cmp_eq_u32 s{S_S}, 63")
        sl(q(1, 1))
        sl(k(1, 0))
        sl(k(1, 1))
        for x in ke[:npre]: sl(x)
        A(lg(0)); A("s_barrier"); P(3)
        sl(rd(3), rd(5), rd(7))
        for i, x in enumerate(ke[npre:]): sl(x, *ex(i + 1 - (2 - npre)))
        sl("s_cbranch_scc1 C_LAST", lg(2))
        sl(q(3, 0), wo(2, 0, 0), *ex(5), lg(2))
        sl(q(5, 0), wo(2, 0, 1), *ex(6), lg(2))
        sl(q(7, 0), wo(3, 0, 0), *ex(7))
        sl(q(3, 1), wo(3, 0, 1), *ex(8))
        sl(q(5, 1), add(RQ, 0))
        sl(q(7, 1), add(RQ, 1))
        sl(k(3, 0), mulc(RQ))
        sl(k(5, 0), mulc(RQ + 1), add(RQ + 4, 0))
        sl(k(7, 0), cvt(RQ + 2, RQ), fw(RQ + 2, 2048), add(RQ + 4, 1))
        sl(k(3, 1), mulc(RQ + 4), mulc(RQ + 5))
        sl(k(5, 1), cvt(RQ + 6, RQ + 4), fw(RQ + 6, 2560), add(RK, 0))
        sl(k(7, 1), add(RK, 1), *(ex(17) if dp[0] == 17 else []), cvt(PUB, RK), fw(PUB, 0))
        P(4)
        sl(vv(1, 0), *(ex(17) if dp[0] != 17 else []), z(RQ))
        sl(vv(1, 1), add(RK + 4, 0), add(RK + 4, 1), cvt(PUB + 2, RK + 4), fw(PUB + 2, 512))
        sl(vv(2, 0), *ex(19), z(RQ + 2))
        sl(vv(2, 1), *ex(20), z(RQ + 4))
        sl(vv(3, 0), *ex(21), z(RQ + 6))
        sl(vv(4, 0), lg(0), "s_barrier", tr(QF, 2048), tr(QF + 2, 2560))
        P(5)
        sl(vv(5, 0), tr(QF + 4, 3072), tr(QF + 6, 3584), tr(KF, 0), tr(KF + 2, 512))
        sl(vv(6, 0), tr(KF + 4, 1024), tr(KF + 6, 1536), f"v_min_u32 v{PUB}, -2, v{PUB}")
        sl(vv(7, 0), *ex(23), f"s_add_u32 s{S_KVB}, s{S_KVB}, 0x80000", z(RK))
        sl(vv(3, 1), "s_waitcnt vmcnt(5) lgkmcnt(6)", z(RK + 2))
        sl(MF(SX, RKX, QF, 0), lg(4), f"v_mov_b64 {v(ON,2)}, s[{S_ON}:{S_ON+1}]", add(RV, 0))
        sl(MF(SX, RKX + 4, QF + 4, v(SX, 4)), lg(2), add(RV, 1), f"v_mov_b64 {v(ON+2,2)}, s[{S_ON}:{S_ON+1}]")
        sl(MF(SA, KF, QF, 0), lg(0), cvt(PUB + 1, RV), f"v_mov_b32 v{PM}, 0", wo(2, 2, 0))
        sl(MF(SA, KF + 4, QF + 4, v(SA, 4)), wo(2, 2, 1), ad(SX, 0), ad(SX, 1))
        sl(vv(4, 1), exd(SX, 0), exd(SX, 1))
        sl(vv(5, 1), cvt(SX, SX), f"ds_write_b32 v{V_PW}, v{SX} offset:{L_PX}")
        P(6)
        sl(vv(6, 1), ad(SA, 0), ad(SA, 1), f"s_add_u32 s{S_PUB}, s{S_PUB}, 0x20000")
        sl(vv(7, 1), exd(SA, 0), exd(SA, 1), z(RK + 4), cvt(PM + 1, SA))
        sl(lg(0), "s_barrier", f"ds_read_b128 {v(PX,4)}, v{V_MA} offset:{L_PX}")
        P(7)
        def pv(fast):
            o = (lambda *x: x) if fast else (lambda *x: ())
            if not fast: sl(exd(SA, 0), exd(SA, 1), cvt(PM + 1, SA))
            sl(MH(LL, ON, PM, 0), *o(add(RV + 4, 0), add(RV + 4, 1), wo(2, 1, 0)))
            sl(MH(O0, PUB, PM, 0), *o(cvt(PUB + 3, RV + 4), z(RK + 6), wo(2, 1, 1)))
            sl(MH(O1, PUB + 2, PM, 0), *o(wo(3, 1, 0), lg(3)))
            if fast: P(8)
            sl(MF(LL, ON, PX, v(LL, 4)), *o(wo(3, 1, 1)))
            sl(MF(O0, RVX, PX, v(O0, 4)), *o(wo(3, 2, 0)))
            sl(MF(O1, RVX + 4, PX, v(O1, 4)), *o(wo(3, 2, 1)), f"v_rcp_f32 v{LL+2}, v{LL}")
            if fast: P(10)
            norm(fast)
        pv(True)
    else:
        A(f"LOOP{tag}:")
        delay(A, cfg.get("dm0", 0))
        m_loads(RA)
        if fine:
            P(18)
            A(f"s_cmp_eq_u32 s{S_S}, {cfg.get('pstep', 41)}\ns_cbranch_scc0 NODUMP{tag}\ns_waitcnt lgkmcnt(0) vmcnt(0)")
            for i in range(19): A(f"v_writelane_b32 v26, s{4+2*i}, {i}")
            A(f"v_lshrrev_b32 v27, 2, v{V_MA}\nbuffer_store_dword v26, v27, {srd(R_WS)}, s{S_PROF} offen offset:512\ns_waitcnt vmcnt(0)\nNODUMP{tag}:")
            P(0)
        for i in range(4): A(z(RV + 2*i))
        A(f"s_waitcnt vmcnt({4 if cfg.get('prof') else 3}) lgkmcnt(0)")
        for i in range(4): A(z(RK + 2*i))
        delay(A, cfg.get("dm1", 16))
        A(f"MP{tag}:")
        m_loads(RA)
        spin_dec(A)
        A(f"s_cmp_eq_u32 s{S_S}, 63")
        for i in (2, 3, 0, 1): A(z(RQ + 2*i))
        A("s_waitcnt vmcnt(3)")
        sl(f"v_max3_u32 v25, v{RA}, v{RA+1}, v{RA+2}", f"v_max_u32 v25, v25, v{RA+3}")
        sl(q(0, 0), f"ds_write_b128 v{V_R[0]}, {v(RA,4)} offset:{O_A}", "s_waitcnt vmcnt(2)")
        P(1)
        sl(f"v_max3_u32 v25, v25, v{RA+4}, v{RA+5}", f"v_max3_u32 v25, v25, v{RA+6}, v{RA+7}", f"v_cmp_eq_u32 vcc, -1, v25")
        sl(q(0, 1), f"ds_write_b128 v{V_R[0]}, {v(RA+4,4)} offset:{O_A+1024}")
        sl(q(1, 0), f"s_cbranch_vccnz MP{tag}")
        if kd:
            dp = [[1, 4, 7, 10, 13], [1, 3, 5, 7, 9], [5, 8, 11, 14, 17], [1, 2, 3, 4, 5], [1, 17, 19, 21, 24], [1, 13, 17, 19, 21], [1, 5, 17, 19, 21]][cfg.get("dpos", 0)]
            vops = [kdma(0), kdma(1), kdma(2), kdma(3), pub] if cfg.get("pe", 1) == 1 else [pub, kdma(0), kdma(1), kdma(2), kdma(3)]
            if "nd" in cfg: vops = [x if i <= cfg["nd"] else "s_nop 0" for i, x in enumerate(vops)]
            ex = lambda n: [vops[dp.index(n)]] if n in dp else []
            sl(q(1, 1))
            sl(vv(0, 0))
            sl(vv(0, 1), lg(0)); P(2); A("s_barrier"); P(3)
            sl(rd(2), rd(4))
            sl(vv(1, 0), rd(5), *ex(1))
            sl(vv(1, 1), rd(6), *ex(2))
            sl(k(0, 0), rd(7), *ex(3))
            sl(k(0, 1), rd(3), *ex(4), "s_cbranch_scc1 C_LAST", lg(5))
            sl(q(2, 0), wqr(12), *ex(5), lg(5))
            sl(q(4, 0), wqr(13), *ex(6), lg(5))
            sl(q(5, 0), wqr(10), *ex(7), lg(5))
            sl(q(6, 0), wqr(11), *ex(8), lg(5))
            sl(q(7, 0), wqr(14), *ex(9), lg(3))
            sl(q(3, 0), wqr(15), *ex(10))
            sl(q(4, 1), wo(2, 0, 0), *ex(11))
            sl(q(5, 1), wo(2, 0, 1), *ex(12), add(RQ, 0))
            sl(q(6, 1), wo(3, 0, 0), *ex(13), add(RQ, 1), lg(5))
            sl(q(2, 1), wo(3, 0, 1), *ex(14), mulc(RQ))
            sl(q(7, 1), *ex(15), mulc(RQ + 1), lg(4))
            sl(q(3, 1), wo(2, 1, 0), *ex(16), cvt(RQ + 2, RQ))
        else:
            sl(q(1, 1), f"ds_read_b128 {v(RE,4)}, v{V_R[0]} offset:{O_WQ + 14*1024}")
            sl(vv(0, 0), f"ds_read_b128 {v(RE+4,4)}, v{V_R[0]} offset:{O_WQ + 15*1024}")
            sl(vv(0, 1), lg(2)); P(2); A("s_barrier"); P(3)
            sl(rd(2), rd(3))
            sl(vv(1, 0), rd(4), kvl(0))
            sl(vv(1, 1), rd(5))
            sl(k(0, 0), rd(6))
            sl(k(0, 1), rd(7), "s_cbranch_scc1 C_LAST", lg(5))
            sl(q(2, 0), kvl(1), lg(4))
            sl(q(3, 0), lg(3))
            sl(q(4, 0), lg(2))
            sl(q(5, 0), lg(1), f"v_lshl_add_u32 v{TCH}, v{V_MA}, 3, s{S_TX}" if tw else f"v_lshlrev_b32 v{TCH}, 2, v{V_MA}")
            sl(q(6, 0), kvl(2), lg(0))
            sl(q(7, 0), wo(2, 0, 0))
            sl(q(2, 1), wo(2, 0, 1))
            sl(q(3, 1), wo(3, 0, 0), add(RQ, 0))
            sl(q(4, 1), kvl(3), add(RQ, 1))
            sl(q(5, 1), wo(3, 0, 1), f"s_add_u32 s{S_KVB}, s{S_KVB}, 0x80000", mulc(RQ))
            sl(q(6, 1), wo(2, 1, 0), mulc(RQ + 1), *([f"s_sub_u32 s{S_TB}, s{S_KVB}, 8192"] if tw else []))
            sl(q(7, 1), wo(2, 1, 1), cvt(RQ + 2, RQ))
        P(4)
        sl(k(1, 0), fw(RQ + 2, 2048), z(RQ), *([wo(2, 1, 1)] + ex(17) if kd else []))
        sl(k(2, 0), add(RQ + 4, 0), add(RQ + 4, 1), mulc(RQ + 4), mulc(RQ + 5), cvt(RQ + 6, RQ + 4), fw(RQ + 6, 2560))
        tch = lambda o=0: f"buffer_load_dword v{TCH}, {srd(R_WS)}, s{S_TB if tw else S_KVB} offen offset:{o} sc1 lds"
        if cfg.get("at"):
            tch = lambda o=0: f"buffer_atomic_or v{RQ}, v{TCH}, {srd(R_WS)}, s{S_TB if tw else S_KVB} offen offset:{o}" + [""," sc1"][cfg["at"]-1]
        pe = cfg.get("pe", 1)
        nx = 1 if tw == 2 else 0
        sl(k(3, 0), *(ex(19) if kd else [pub if pe == 2 else tch()]), z(RQ + 2))
        sl(k(4, 0), z(RQ + 4), *([tch(64)] if nx else []))
        sl(k(5, 0), *(ex(21) if kd else [tch()] if pe == 2 else [pub] if pe else []), z(RQ + 6))
        sl(k(6, 0), lg(0), "s_barrier", tr(QF, 2048), tr(QF + 2, 2560))
        if cfg.get("ack5"): A("s_waitcnt vmcnt(0)")
        P(5)
        sl(k(7, 0), tr(QF + 4, 3072), tr(QF + 6, 3584))
        sl(k(1, 1), *(ex(24) + [f"s_add_u32 s{S_KVB}, s{S_KVB}, 0x80000"] if kd else []))
        sl(k(2, 1), add(RK, 0))
        sl(k(3, 1), "s_waitcnt vmcnt(5) lgkmcnt(2)" if kd else f"s_waitcnt vmcnt({nx + (4 if pe else 3)}) lgkmcnt(2)", add(RK, 1))
        sl(MF(SX, RKX, QF, 0), lg(0), cvt(RK + 2, RK), f"v_mov_b64 {v(ON,2)}, s[{S_ON}:{S_ON+1}]")
        sl(MF(SX, RKX + 4, QF + 4, v(SX, 4)), fw(RK + 2, 0), z(RK), f"v_mov_b64 {v(ON+2,2)}, s[{S_ON}:{S_ON+1}]")
        sl(k(4, 1), f"v_mov_b32 v{PM}, 0")
        sl(k(5, 1), ad(SX, 0))
        sl(k(6, 1), ad(SX, 1))
        sl(k(7, 1), exd(SX, 0))
        sl(vv(2, 0), exd(SX, 1))
        sl(vv(3, 0), add(RK + 4, 0), add(RK + 4, 1), cvt(RK + 6, RK + 4), fw(RK + 6, 512), cvt(SX, SX))
        P(6)
        sl(vv(4, 0), f"ds_write_b32 v{V_PW}, v{SX} offset:{L_PX}", z(RK + 4))
        sl(vv(5, 0))
        sl(vv(6, 0))
        sl(vv(7, 0))
        sl(vv(2, 1), lg(0), "s_barrier", tr(KF, 0), tr(KF + 2, 512))
        P(7)
        sl(vv(3, 1), tr(KF + 4, 1024), tr(KF + 6, 1536), add(RV, 0))
        sl(vv(4, 1), f"ds_read_b128 {v(PX,4)}, v{V_MA} offset:{L_PX}", add(RV, 1))
        sl(vv(5, 1), *([] if pe else [pub]))
        sl(vv(6, 1), f"s_add_u32 s{S_PUB}, s{S_PUB}, 0x20000", cvt(PUB + 1, RV))
        sl(vv(7, 1), lg(3), f"v_min_u32 v{PUB}, -2, v{RK+2}")
        P(8)
        sl(MF(SA, KF, QF, 0), lg(1), f"v_mov_b32 v{PUB+2}, v{RK+6}", z(RK + 2))
        sl(MF(SA, KF + 4, QF + 4, v(SA, 4)), lg(0) if kd else f"s_waitcnt vmcnt({nx + 2}) lgkmcnt(0)", z(RK + 6), add(RV + 4, 0))
        if cfg.get("ack9"): A("s_waitcnt vmcnt(0)")
        P(9)
        def pv(fast):
            o = (lambda *x: x) if fast else (lambda *x: ())
            sl(MF(LL, ON, PX, 0), *o(wo(3, 1, 0), add(RV + 4, 1), cvt(PUB + 3, RV + 4), wo(3, 1, 1), ad(SA, 0), ad(SA, 1)))
            sl(MF(O0, RVX, PX, 0), exd(SA, 0), exd(SA, 1))
            sl(MF(O1, RVX + 4, PX, 0), cvt(PM + 1, SA), *o(wo(2, 2, 0), wo(2, 2, 1)))
            if fast: P(10)
            sl(MH(LL, ON, PM, v(LL, 4)), *o(wo(3, 2, 0)))
            sl(MH(O0, PUB, PM, v(O0, 4)), *o(wo(3, 2, 1)))
            sl(MH(O1, PUB + 2, PM, v(O1, 4)), f"v_rcp_f32 v{LL+2}, v{LL}")
            sl(*o(f"v_max_f32 v{LL}, v{LL}, v{LL+2}", f"v_cmp_lt_f32 vcc, s{S_THR}, v{LL}"))
            if cfg.get("pk0", 1):
                for i in range(2): A(f"v_pk_mul_f32 {v(O0+2*i,2)}, {v(O0+2*i,2)}, {v(LL+2,2)} op_sel_hi:[1,0]")
            else:
                for i in range(4): A(f"v_mul_f32 v{O0+i}, v{O0+i}, v{LL+2}")
            sl(cvt(OP, O0), cvt(OP + 1, O0 + 2))
            if fast: P(11)
            for i in range(2): A(f"v_pk_mul_f32 {v(O1+2*i,2)}, {v(O1+2*i,2)}, {v(LL+2,2)} op_sel_hi:[1,0]")
            sl(cvt(OP + 2, O1), cvt(OP + 3, O1 + 2), f"ds_write_b128 v{V_R[0]}, {v(OP,4)} offset:{O_A}")
        pv(True)
    A(f"s_cbranch_vccnz {'FRET' if abl else 'FBK'}{tag}\nFRET{tag}:")
    OF = [OP, 64, 68, 24]
    so = lambda c, T: SM(RQ + 4*T, OF[c], WO(c, T))
    sl(so(0, 0), f"s_add_u32 s{S_S}, s{S_S}, 1", f"s_and_b32 s{S_T0}, s{S_S}, 3", f"s_lshl_b32 s{S_T0}, s{S_T0}, 13")
    sl(so(0, 1), f"s_add_u32 s{S_MW}, s{S_T0}, {WS_M}", f"s_add_u32 s{S_MB}, s{S_MW}, s{S_W2K}", f"s_xor_b32 s{S_MR}, s{S_MW}, 0x4000")
    sl(so(0, 2), f"s_cmp_lt_u32 s{S_W}, 2", lg(0)); P(12); A("s_barrier"); P(13)
    for c in range(1, 4): A(f"ds_read_b128 {v(OF[c],4)}, v{V_R[c]} offset:{O_A}")
    sl(so(0, 3), wo(2, 3, 0), wo(2, 3, 1), lg(4))
    PK = 32
    pk = lambda i: cvt(PK + i, RQ + 2*i)
    tg = lambda sg: f"v_and_or_b32 v{PK+4*sg}, v{PK+4*sg}, -2, s{S_TAG}"
    ps = lambda sg: f"buffer_store_dwordx4 {v(PK+4*sg,4)}, v{V_PST}, {srd(R_WS)}, s{S_PR1 if sg else S_PW} offen {sc}"
    sl(so(1, 0), lg(3))
    sl(so(2, 0), lg(2), f"v_mov_b32 v42, -1")
    sl(so(3, 0), wo(3, 3, 0))
    sl(so(1, 1), wo(3, 3, 1))
    sl(so(2, 1), f"ds_read_b128 {v(SEL,4)}, v{V_MA} offset:{L_SEL}", pk(0))
    sl(so(3, 1), tg(0))
    sl(so(1, 2), pk(1))
    sl(so(2, 2), pk(2), pk(3), ps(0))
    P(14)
    sl(so(3, 2), lg(0))
    sl(so(1, 3))
    sl(so(2, 3), pk(4))
    sl(so(3, 3), tg(1), pk(5))
    sl(pk(6), pk(7), ps(1))
    P(15)
    n0 = cfg.get("n0", 14)
    wq_prefetch(A, 0, n0)
    A(f"s_cbranch_scc1 RED{tag}")
    if fine and cfg.get("ack"):
        A("s_waitcnt vmcnt(2)"); P(16); A(f"s_waitcnt vmcnt({2 - cfg['ack']})"); P(17)
    if kd: A("s_waitcnt vmcnt(2)")
    wq_prefetch(A, n0, 14)
    A(f"""
    buffer_store_dword v42, v{V_MST}, {srd(R_WS)}, s{S_MR} offen {sc}
    s_cmp_eq_u32 s{S_W}, 3
    s_cbranch_scc0 JOIN{tag}
    s_add_u32 s{S_T3}, s{S_S}, 1
    s_min_u32 s{S_T3}, s{S_T3}, 63
    """)
    kv_ready(A, S_T3, tag)
    A(f"""
    JOIN{tag}:
    s_xor_b32 s{S_TAG}, s{S_TAG}, 1
    s_waitcnt lgkmcnt(0)
    s_barrier
    s_branch LOOP{tag}
    """)
    if cfg.get("ph"):
        A(f"MR{tag}:")
        A(ml(1))
        spin_dec(A)
        A("s_waitcnt vmcnt(1)")
        for x in chk(1) + [cmpv]: A(x)
        A(f"s_cbranch_vccnz MR{tag}\ns_branch MC{tag}")
    A(f"""
    FBK{tag}:
    """)
    X = 104 - 8 * 9
    for r in (SX + 2, SX + 3, SA + 2, SA + 3): A(f"v_mov_b32_dpp v{r}, v{r} {DPP('2,3,2,3')}")
    A(f"""
    ds_write_b32 v{V_PW}, v{SX+2} offset:{L_PX + 1024}
    ds_write_b32 v{V_PW}, v{SX+3} offset:{L_PX + 2048}
    s_waitcnt lgkmcnt(0)
    s_barrier
    ds_read_b128 {v(X,4)}, v{V_MA} offset:{L_PX + 1024}
    ds_read_b128 {v(X+4,4)}, v{V_MA} offset:{L_PX + 2048}
    v_max_f32 v{LL}, v{SA+2}, v{SA+3}
    s_waitcnt lgkmcnt(0)
    """)
    for i in range(4): A(f"v_max3_f32 v{LL}, v{LL}, v{X+2*i}, v{X+2*i+1}")
    xG(A, LL, LL + 1, "v_max_f32")
    for r in list(range(X, X + 8)) + [SA + 2, SA + 3]: A(f"v_sub_f32 v{r}, v{r}, v{LL}")
    for i in range(8): A(f"v_exp_f32 v{X+i}, v{X+i}")
    for i in range(4): A(f"v_cvt_pk_bf16_f32 v{PX+i}, v{X+i}, v{X+4+i}")
    pv(False)
    A(f"s_branch FRET{tag}")
    PB, PA = 24, 20
    A(f"""
    RED{tag}:
    s_cmp_eq_u32 s{S_W}, 0
    """)
    if cfg.get("dp0", -1) >= 0:
        delay(A, cfg["dp0"])
        A(f"s_cbranch_scc1 PP{tag}")
        delay(A, cfg.get("dp1", 0))
    elif cfg.get("pw", 0) == 1:
        delay(A, cfg.get("dpw", 0))
        A("s_waitcnt vmcnt(0)")
    else:
        delay(A, cfg.get("dpw", 0))
        A(f"""
        s_waitcnt vmcnt(1)
        s_cbranch_scc1 PP{tag}
        s_waitcnt vmcnt(0)
        """)
    def pl(B):
        for i in range(4):
            A(f"buffer_load_dwordx4 {v(B+4*i,4)}, v{V_MA}, {srd(R_WS)}, s{S_PR0} offen offset:{i*1024} sc1")
    def pr(B, nb, br=None):
        for i in range(4):
            A(f"s_waitcnt vmcnt({nb+3-i})")
            A(MF(PA, SEL, B + 4*i, "0" if i == 0 else v(PA, 4)))
            if i == 1: A(f"v_bitop3_b32 v40, v{B}, v{B+4}, s{S_TAG} bitop3:0x7e")
        A(f"""
        v_bitop3_b32 v41, v{B+8}, v{B+12}, s{S_TAG} bitop3:0x7e
        v_bitop3_b32 v40, v40, 1, v41 bitop3:0xc8
        v_cmp_ne_u32 vcc, 0, v40
        {br or ''}
        """)
        if br and "s_branch" in br: return
        A(f"""
        v_add_f32_dpp v{PA}, v{PA}, v{PA} row_ror:8 row_mask:0xf bank_mask:0xf
        v_add_f32_dpp v{PA+1}, v{PA+1}, v{PA+1} row_ror:8 row_mask:0xf bank_mask:0xf
        v_cvt_pk_bf16_f32 v41, v{PA}, v{PA+1}
        v_min_u32 v41, -2, v41
        """)
    A(f"PP{tag}:")
    if cfg.get("ps", 2) == 2:
        pl(PB)
        P(16)
        wq_prefetch(A, n0, 14)
        delay(A, cfg.get("dp2", 20))
        A(f"PQ{tag}:")
        pl(RQ)
        if cfg.get("eb", 0):
            pr(PB, 4, f"s_cbranch_vccnz PF{tag}\nPD{tag}:")
        else:
            pr(PB, 4)
            A(f"s_cbranch_vccnz PF{tag}\nPD{tag}:")
    else:
        pl(PB)
        P(16)
        spin_dec(A)
        pr(PB, 0)
        A(f"s_cbranch_vccnz PP{tag}")
    A(f"""
    buffer_store_dword v41, v{V_MST}, {srd(R_WS)}, s{S_MW} offen {sc}
    """)
    P(17)
    A(f"""
    s_barrier
    s_xor_b32 s{S_TAG}, s{S_TAG}, 1
    """)
    if cfg.get("prof"):
        A(f"""
        s_memtime s[{S_TS}:{S_TS+1}]
        s_lshl_b32 s{S_T0}, s{S_S}, 2
        s_add_u32 s{S_T0}, s{S_T0}, s{S_PROF}
        s_waitcnt lgkmcnt(0)
        v_mov_b32 v43, s{S_TS}
        s_mov_b64 exec, 1
        buffer_store_dword v43, off, {srd(R_WS)}, s{S_T0} offset:64
        s_mov_b64 exec, -1
        """)
    A(f"s_branch LOOP{tag}")
    if cfg.get("ps", 2) == 2:
        A(f"PF{tag}:")
        pl(PB)
        spin_dec(A)
        if cfg.get("eb", 0):
            pr(RQ, 4, f"s_cbranch_vccnz PQ{tag}\ns_nop 7\ns_branch PD{tag}")
        else:
            pr(RQ, 4)
            A(f"s_cbranch_vccz PD{tag}\ns_branch PQ{tag}")

def chain(A, cfg):
    cfg["vt"] = 23
    KD[0] = cfg.get("kd", 0)
    if cfg.get("ph"):
        WQS[:] = [48, 88, 72, 88, 96, 80, 96, 48]
        PFO[:] = [0, 1, 2, 3, 8, 9, 10, 11, 4, 5]
    assert cfg.get("n0", 14) <= 10 or not KD[0]
    chain_init(A, cfg)
    A(f"s_mov_b32 s{S_T3}, 1")
    kv_ready(A, S_T3, "I")
    if KD[0]:
        for i in range(4): A(kdma(i))
        A(f"s_add_u32 s{S_KVB}, s{S_KVB}, 0x80000\ns_waitcnt vmcnt(0)")
        wq_prefetch(A, 10, 14)
    stamp(A, cfg, 3)
    A(f"s_waitcnt lgkmcnt(0)\ns_barrier\ns_cmp_eq_u32 s{S_SENT}, 0\ns_cbranch_scc1 LOOPS")
    chain_loop(A, cfg, "F", "")
    chain_loop(A, cfg, "S", "sc1")
    A("C_LAST:")
    A(f"buffer_store_dwordx4 {v(PUB,4)}, v{V_MA}, {srd(R_WS)}, s{S_PUB} offen sc1")
    A(f"s_add_u32 s{S_PUB}, s{S_PUB}, 0x20000")
    A("s_waitcnt lgkmcnt(0)")
    for t in range(1 if cfg.get("ph") else 2, 8):
        for ab in range(2): A(SM(RV + 4*ab, RA + 4*t, WV(t, ab)))
    for t in ((3, 5, 7) if cfg.get("ph") else range(1, 8)):
        for ab in range(2): A(SM(RK + 4*ab, RA + 4*t, WK(t, ab)))
    fold(A, RV, 73, 75)
    fold(A, RK, 72, 74)
    A(f"v_min_u32 v72, -2, v72")
    A(f"buffer_store_dwordx4 v[72:75], v{V_MA}, {srd(R_WS)}, s{S_PUB} offen sc1")
    cfg["vt"] = 76
    stamp(A, cfg, 4)
    A("s_waitcnt vmcnt(0)")
```

```python
from common import *

def stamp(A, cfg, idx):
    if not cfg.get("prof"): return
    A(f"""
    s_memtime s[{S_TS}:{S_TS+1}]
    s_waitcnt lgkmcnt(0)
    v_mov_b32 v{cfg['vt']}, s{S_TS}
    s_mov_b64 exec, 1
    buffer_store_dword v{cfg['vt']}, off, {srd(R_WS)}, s{S_PROF} offset:{idx*4}
    s_mov_b64 exec, -1
    """)

def spin_dec(A):
    A(f"s_sub_u32 s{S_SPIN}, s{S_SPIN}, 1\ns_cbranch_scc1 EXIT")

class Stager:
    def __init__(self, A, s_base, nring, batch=4):
        self.A = A; self.s_base = s_base; self.nring = nring; self.batch = batch
        self.slots = []
        self.issued = 0; self.done = 0
    def add(self, r, voff, soff, reads):
        self.slots.append((r, voff, soff, reads))
    def issue(self, n):
        A = self.A
        for _ in range(n):
            if self.issued >= len(self.slots): return
            r, voff, soff, _r = self.slots[self.issued]
            pos = self.issued % self.nring
            A(f"s_add_u32 m0, s{self.s_base}, {pos*1024}")
            A(f"s_mov_b32 s{S_T0}, {soff}")
            A(f"buffer_load_dwordx4 v{voff}, {srd(r)}, s{S_T0} offen lds")
            self.issued += 1
    def run(self, drained=False):
        A = self.A
        known = self.issued if drained else self.done
        while self.done < len(self.slots):
            n = min(self.batch, len(self.slots) - self.done)
            if self.done + n > known:
                A(f"s_waitcnt vmcnt({self.issued - self.done - n})")
            for i in range(self.done, self.done + n):
                pos = i % self.nring
                for f in self.slots[i][3]:
                    A(f(pos * 1024))
            self.done += n
            if self.issued < len(self.slots):
                A("s_waitcnt lgkmcnt(0)")
                self.issue(n)
        A("s_waitcnt lgkmcnt(0)")

def xlane_sum8(A, t, u, op="v_add_f32"):
    A(f"{op}_dpp v{t}, v{t}, v{t} row_ror:8 row_mask:0xf bank_mask:0xf")
    A(f"v_mov_b32 v{u}, v{t}")
    A(f"v_permlane16_swap_b32 v{t}, v{u}")
    A(f"{op} v{t}, v{t}, v{u}")
    A(f"v_mov_b32 v{u}, v{t}")
    A(f"v_permlane32_swap_b32 v{t}, v{u}")
    A(f"{op} v{t}, v{t}, v{u}")

def rnd_bf16(A, t):
    A(f"v_cvt_pk_bf16_f32 v{t}, v{t}, v{t}")
    A(f"v_and_b32 v{t}, 0xffff0000, v{t}")

def xG(A, t, u, op):
    A(f"v_mov_b32 v{u}, v{t}")
    A(f"v_permlane16_swap_b32 v{t}, v{u}")
    A(f"{op} v{t}, v{t}, v{u}")
    A(f"v_mov_b32 v{u}, v{t}")
    A(f"v_permlane32_swap_b32 v{t}, v{u}")
    A(f"{op} v{t}, v{t}, v{u}")

S_GI, S_NR, S_R, S_SEG, S_RING, S_BUF, S_HOFF = 64, 65, 66, 67, 68, 69, 70
S_G2, S_H2 = 83, 84
V_L, V_L16, V_T = 1, 2, 3

def worker(A, cfg):
    cfg["vt"] = V_T
    A(f"""
    WORKER:
    s_mov_b32 s{S_G2}, s{S_G}
    s_mov_b32 s{S_H2}, s{S_H}
    s_sub_u32 s{S_GI}, s{S_G}, 1
    s_lshl_b32 s{S_T0}, s{S_GI}, 5
    s_add_u32 s85, s{S_T0}, s{S_H}          ; r
    """)
    if cfg.get("remap", 1):
        A(f"""
        s_mul_i32 s{S_H}, s85, 293
        s_lshr_b32 s{S_H}, s{S_H}, 11
        s_mul_i32 s{S_T0}, s{S_H}, 7
        s_sub_u32 s{S_GI}, s85, s{S_T0}
        s_add_u32 s{S_G}, s{S_GI}, 1
        """)
    A(f"""
    s_cmp_eq_u32 s{S_GI}, 0
    s_cselect_b32 s{S_NR}, 10, 9
    s_lshl_b32 s{S_RING}, s{S_W}, 15
    """)
    RAW, F, RAW2, L_X0 = 16, 48, 128, 0x20000
    A(f"""
    v_and_b32 v4, 7, v{V_L}
    v_lshrrev_b32 v5, 3, v{V_L}
    v_lshlrev_b32 v6, 10, v4
    v_lshl_add_u32 v6, v5, 4, v6            ; row*1024 + p*16
    s_lshl_b32 s{S_T2}, s{S_GI}, 15
    s_lshl_b32 s{S_T3}, s{S_W}, 13
    s_add_u32 s{S_T2}, s{S_T2}, s{S_T3}
    """)
    for i in range(8):
        A(f"buffer_load_dwordx4 v[{RAW+4*i}:{RAW+4*i+3}], v6, {srd(R_X)}, s{S_T2} offen offset:{i*128}")
    A(f"""
    s_lshl_b32 s{S_T0}, s{S_W}, 5
    s_add_u32 s{S_T0}, s{S_T0}, s{S_H}
    s_add_u32 s{S_T0}, s{S_T0}, 4           ; u + 4
    s_lshl_b32 s{S_T1}, s{S_NR}, 2
    s_cmp_lt_u32 s{S_T0}, s{S_T1}
    s_cselect_b32 s{S_BUF}, 1, 0
    s_lshr_b32 s{S_T1}, s{S_T0}, 2
    s_mul_i32 s{S_T1}, s{S_T1}, 7
    s_add_u32 s{S_T1}, s{S_T1}, s{S_GI}     ; seg
    s_and_b32 s{S_T0}, s{S_T0}, 3           ; quarter
    s_lshl_b32 s{S_T2}, s{S_T1}, 15
    s_lshl_b32 s{S_T3}, s{S_T0}, 13
    s_add_u32 s{S_SEG}, s{S_T2}, s{S_T3}
    s_lshl_b32 s{S_T3}, s{S_T0}, 7
    s_add_u32 s{S_R}, s{S_T2}, s{S_T3}
    v_lshlrev_b32 v7, 4, v4
    v_lshl_add_u32 v7, v5, 9, v7            ; p*512 + row*16
    s_cmp_eq_u32 s{S_BUF}, 0
    s_cbranch_scc1 W_NOLN0
    """)
    for i in range(8):
        A(f"buffer_load_dwordx4 v[{RAW2+4*i}:{RAW2+4*i+3}], v6, {srd(R_X)}, s{S_SEG} offen offset:{i*128}")
    A("W_NOLN0:")
    ntouch = 0
    if cfg.get("touch", 1):
        A(f"""
        s_lshl_b32 s{S_T0}, s85, 2
        s_add_u32 s{S_T0}, s{S_T0}, s{S_W}
        s_mul_i32 s{S_T0}, s{S_T0}, {37*128}
        v_lshlrev_b32 v4, 7, v{V_L}
        s_mov_b32 exec_hi, 31
        """)
        for R in {1: (R_WO, R_WQ), 2: (R_WO, R_WK, R_WV, R_WQ), 3: (R_WO, R_WK, R_WV, R_WQ)}[cfg.get("touch", 1)]:
            for o in ((0,) if cfg.get("touch", 1) == 3 else (0, 64)):
                A(f"buffer_load_dword v{120+ntouch}, v4, {srd(R)}, s{S_T0} offen offset:{o}"); ntouch += 1
        A("s_mov_b32 exec_hi, -1")
    VS, VRK, VRV = 8, 9, 10
    A(f"""
    v_lshrrev_b32 v4, 2, v{V_L}
    v_and_b32 v5, 3, v{V_L}
    v_lshlrev_b32 v{VS}, 13, v4
    v_lshl_add_u32 v{VS}, v5, 4, v{VS}
    s_lshl_b32 s{S_T0}, s{S_H}, 8
    s_lshl_b32 s{S_T1}, s{S_W}, 6
    s_add_u32 s{S_T0}, s{S_T0}, s{S_T1}
    v_add_u32 v{VS}, s{S_T0}, v{VS}
    v_lshrrev_b32 v4, 5, v{V_L}              ; hf
    v_bfe_u32 v5, v{V_L}, 2, 2               ; r'
    v_lshlrev_b32 v4, 9, v4
    v_lshl_add_u32 v4, v5, 6, v4             ; (8hf + r')*64
    v_add_u32 v4, s{S_RING}, v4
    v_bfe_u32 v5, v{V_L}, 4, 1               ; colhalf
    v_and_b32 v11, 1, v{V_L}
    v_bfe_u32 v12, v{V_L}, 1, 1
    ; K/Q: e = 16*colhalf + 8*(c'&1) + 4*(c'>>1)
    v_lshl_add_u32 v{VRK}, v5, 5, v4
    v_lshl_add_u32 v{VRK}, v11, 4, v{VRK}
    v_lshl_add_u32 v{VRK}, v12, 3, v{VRK}
    ; V: e = 8*c' + 4*colhalf
    v_and_b32 v11, 3, v{V_L}
    v_lshl_add_u32 v{VRV}, v11, 4, v4
    v_lshl_add_u32 v{VRV}, v5, 3, v{VRV}
    """)
    def rd32(reg, va):
        return [lambda o, reg=reg: f"ds_read_b64_tr_b16 {reg(0)}, v{va} offset:{o}",
                lambda o, reg=reg: f"ds_read_b64_tr_b16 {reg(2)}, v{va} offset:{o+256}"]
    VS2, VK2, VV2 = 112, 113, 115
    NT = " nt" if cfg.get("nt", 0) & 4 else ""
    A(f"""
    v_lshrrev_b32 v4, 4, v{V_L}
    v_and_b32 v5, 15, v{V_L}
    v_lshlrev_b32 v{VS2}, 13, v4
    v_lshlrev_b32 v4, 2, v4
    v_xor_b32 v4, v4, v5
    v_lshl_add_u32 v{VS2}, v4, 4, v{VS2}
    s_lshl_b32 s{S_T0}, s{S_H}, 8
    s_add_u32 s{S_T0}, s{S_T0}, s{S_RING}    ; 4w*8192
    v_add_u32 v{VS2}, s{S_T0}, v{VS2}
    s_lshl_b32 s74, s{S_W}, 10
    """)
    vm = VM(A); uid = {}
    def u_issue(u):
        for i in range(4):
            A(f"s_add_u32 m0, s74, {((4*u + i) & 31) * 4096}")
            A(f"s_mov_b32 s{S_T0}, {(2*u + (i >> 1)) * 16 * 8192}")
            uid[u] = vm.issue(f"buffer_load_dwordx4 v{VS2}, {srd(R_WV if i & 1 else R_WK)}, s{S_T0} offen{NT} lds")
    def u_read(u):
        for i in range(4):
            pos = (4*u + i) & 31; ks = 2*u + (i >> 1)
            for j in range(2):
                A(f"ds_read_b64_tr_b16 {a(128*(i&1) + 4*ks + 2*j, 2)}, v{(VV2 if i & 1 else VK2) + (pos >> 4)} offset:{(pos & 15) * 4096 + j*1024}")
    for u in range(8): u_issue(u)
    A(f"""
    v_lshrrev_b32 v4, 5, v{V_L}              ; hf
    v_bfe_u32 v5, v{V_L}, 2, 2               ; r'
    v_lshlrev_b32 v4, 11, v4
    v_lshl_add_u32 v4, v5, 8, v4
    v_xor_b32 v5, s{S_W}, v5
    v_lshl_add_u32 v4, v5, 6, v4
    v_and_b32 v5, 63, v{VRK}
    v_add_u32 v{VK2}, v4, v5
    v_add_u32 v{VK2+1}, 0x10000, v{VK2}
    v_and_b32 v5, 63, v{VRV}
    v_add_u32 v{VV2}, v4, v5
    v_add_u32 v{VV2+1}, 0x10000, v{VV2}
    s_lshl_b32 s{S_T0}, s{S_W}, 7
    s_add_u32 s{S_T0}, s{S_T0}, {L_X0}
    v_add_u32 v6, s{S_T0}, v7
    s_lshl_b32 s{S_T0}, s{S_H}, 7
    s_lshl_b32 s{S_T1}, s{S_G}, 2
    s_add_u32 s71, s{S_T0}, s{S_T1}
    s_add_u32 s71, s71, {FL_KV}
    s_lshl_b32 s{S_T0}, s{S_G}, 12
    s_lshl_b32 s{S_T1}, s{S_H}, 7
    s_add_u32 s72, s{S_T0}, s{S_T1}
    s_add_u32 s72, s72, {FL_GRP}
    """)
    A(f"s_waitcnt vmcnt({32+ntouch})")
    def unpack(R):
        for i in range(32):
            A(f"v_lshlrev_b32 v{F+2*i}, 16, v{R+i}")
            A(f"v_and_b32 v{F+2*i+1}, 0xffff0000, v{R+i}")
    A(f"s_mov_b32 s73, s{S_BUF}\ns_cmp_eq_u32 s{S_BUF}, 0\ns_cbranch_scc1 W_LNL")
    unpack(RAW2)
    for i in range(16): A(f"v_mov_b64 {v(RAW2+2*i,2)}, {v(RAW+2*i,2)}")
    A("s_branch W_LN\nW_LNL:")
    unpack(RAW)
    A("W_LN:")
    A(f"v_add_f32 v12, v{F}, v{F+1}\nv_add_f32 v13, v{F+2}, v{F+3}")
    for i in range(4, 64, 2):
        A(f"v_add_f32 v12, v12, v{F+i}\nv_add_f32 v13, v13, v{F+i+1}")
    A("v_add_f32 v12, v12, v13")
    xlane_sum8(A, 12, 13)
    A("v_mul_f32 v12, 0x3b000000, v12      ; mean")
    A("v_mov_b32 v14, 0\nv_mov_b32 v15, 0")
    for i in range(0, 64, 2):
        A(f"v_sub_f32 v4, v{F+i}, v12\nv_sub_f32 v5, v{F+i+1}, v12")
        A("v_fmac_f32 v14, v4, v4\nv_fmac_f32 v15, v5, v5")
    A("v_add_f32 v14, v14, v15")
    xlane_sum8(A, 14, 13)
    A("v_mul_f32 v14, 0x3b000000, v14      ; var")
    rnd_bf16(A, 12); rnd_bf16(A, 14)
    A("v_add_f32 v14, 0x3727c5ac, v14")
    rnd_bf16(A, 14)
    A("v_sqrt_f32 v14, v14")
    rnd_bf16(A, 14)
    A("v_rcp_f32 v14, v14")
    for i in range(32):
        A(f"v_sub_f32 v4, v{F+2*i}, v12\nv_sub_f32 v5, v{F+2*i+1}, v12")
        A("v_cvt_pk_bf16_f32 v4, v4, v5")
        A("v_and_b32 v5, 0xffff0000, v4\nv_lshlrev_b32 v4, 16, v4")
        A("v_mul_f32 v5, v5, v14\nv_mul_f32 v4, v4, v14")
        A(f"v_cvt_pk_bf16_f32 v{RAW+i}, v4, v5")
    A("s_cmp_eq_u32 s73, 1\ns_cbranch_scc0 W_LN1")
    for i in range(8):
        A(f"s_add_u32 s{S_T0}, s{S_R}, {WS_XN + i*4096}")
        A(f"buffer_store_dwordx4 v[{RAW+4*i}:{RAW+4*i+3}], v7, {srd(R_WS)}, s{S_T0} offen sc1")
    A("s_branch W_NOZ\nW_LN1:")
    for i in range(8):
        A(f"ds_write_b128 v6, v[{RAW+4*i}:{RAW+4*i+3}] offset:{i*4096}")
    A("s_cmp_eq_u32 s73, 2\ns_cbranch_scc1 W_NOLN1")
    A(f"""
    s_cmp_eq_u32 s{S_W}, 3
    s_cbranch_scc0 W_NOZ
    v_mov_b32 v4, 0
    s_mov_b64 exec, 1
    buffer_store_dword v4, off, {srd(R_WS)}, s71 sc1
    buffer_store_dword v4, off, {srd(R_WS)}, s72 sc1
    s_mov_b64 exec, -1
    W_NOZ:
    """)
    stamp(A, cfg, 1)
    for u in range(16):
        vm.wait(uid[u])
        A("s_waitcnt lgkmcnt(0)\ns_barrier")
        if 1 <= u <= 8: u_issue(u + 7)
        u_read(u)
        if u == 8:
            A(f"""
            s_cmp_eq_u32 s{S_W}, 3
            s_cbranch_scc0 W_NOA
            v_mov_b32 v4, 1
            s_lshl_b32 s{S_T1}, s{S_G}, 2
            s_mov_b64 exec, 1
            buffer_atomic_add v4, off, {srd(R_DBG)}, s{S_T1} offset:{D_ARR}
            s_mov_b64 exec, -1
            s_branch W_NOLN1
            W_NOA:
            buffer_load_dword v117, off, {srd(R_X)}, 0
            s_cmp_eq_u32 s{S_BUF}, 0
            s_cbranch_scc1 W_NOLN1
            s_mov_b32 s73, 2
            """)
            vm.n += 1
            unpack(RAW2)
            A("s_branch W_LN\nW_NOLN1:")
    A("s_waitcnt lgkmcnt(0)\ns_barrier")
    stamp(A, cfg, 2)
    VKK = 12
    VKS = 11
    lane_ma(A, 4, V_L, 5)
    A(f"""
    v_and_b32 v4, 255, v4
    v_lshrrev_b32 v5, 5, v{V_L}
    v_lshl_add_u32 v4, v5, 8, v4
    v_bfe_u32 v5, v{V_L}, 4, 1
    v_lshl_add_u32 v{VKS}, v5, 10, v4
    s_lshl_b32 s{S_HOFF}, s{S_H}, 13
    s_lshl_b32 s{S_T0}, s{S_W}, 11
    s_add_u32 s75, s{S_HOFF}, s{S_T0}       ; h*8K + w*2K
    v_lshlrev_b32 v{VKK}, 13, v5
    v_lshrrev_b32 v5, 5, v{V_L}
    v_lshl_add_u32 v{VKK}, v5, 8, v{VKK}
    v_bfe_u32 v5, v{V_L}, 1, 1
    v_lshl_add_u32 v{VKK}, v5, 12, v{VKK}
    v_bfe_u32 v5, v{V_L}, 2, 2
    v_lshl_add_u32 v{VKK}, v5, 5, v{VKK}
    v_and_b32 v5, 1, v{V_L}
    v_lshl_add_u32 v{VKK}, v5, 4, v{VKK}
    s_and_b32 s{S_T0}, s{S_W}, 1
    s_lshl_b32 s{S_T0}, s{S_T0}, 10
    s_lshr_b32 s{S_T1}, s{S_W}, 1
    s_lshl_b32 s{S_T1}, s{S_T1}, 7
    s_add_u32 s{S_T0}, s{S_T0}, s{S_T1}
    v_add_u32 v{VKK}, s{S_T0}, v{VKK}
    """)
    def xn_dma(sseg, sbuf):
        A(f"""
        s_lshl_b32 s{S_T0}, s{sseg}, 15
        s_lshl_b32 s{S_T1}, s{S_W}, 13
        s_add_u32 s{S_T0}, s{S_T0}, s{S_T1}
        s_add_u32 m0, s{sbuf}, s{S_T1}
        s_add_u32 s{S_T2}, s{S_T0}, 4096
        """)
        for i in range(4):
            A(f"buffer_load_dwordx4 v{V_L16}, {srd(R_WS)}, s{S_T0} offen offset:{i*1024} sc1 lds")
        A("s_add_u32 m0, m0, 4096")
        for i in range(4):
            A(f"buffer_load_dwordx4 v{V_L16}, {srd(R_WS)}, s{S_T2} offen offset:{i*1024} sc1 lds")
    def seg_loop(name, body, flag_pub, nst, first):
        A(f"""
        s_mov_b32 s{S_R}, 1
        s_mov_b32 s{S_SEG}, s{S_GI}
        s_mov_b32 s{S_BUF}, 0
        v_add_u32 v13, {L_X0}, v{V_L16}
        """)
        if first:
            body()
            A(f"s_add_u32 s{S_SEG}, s{S_SEG}, 7")
            first()
            xn_dma(S_SEG, S_BUF)
            A("s_waitcnt vmcnt(0)")
        else:
            A(f"s_branch {name}_PF")
        A(f"""
        {name}_LOOP:
        s_barrier
        s_sub_u32 s{S_T0}, s{S_R}, 1
        s_max_i32 s{S_T0}, s{S_T0}, 1
        """)
        flag_pub(S_T0, "A")
        A(f"""
        v_add_u32 v13, s{S_BUF}, v{V_L16}
        s_xor_b32 s{S_BUF}, s{S_BUF}, 0x8000
        s_add_u32 s{S_R}, s{S_R}, 1
        s_cmp_eq_u32 s{S_R}, s{S_NR}
        s_cbranch_scc1 {name}_NOPF
        {name}_PF:
        s_add_u32 s{S_T3}, s{S_SEG}, 7
        """)
        xn_dma(S_T3, S_BUF)
        tr = cfg.get("t" + name, {"P1": 8, "P2": 3}[name])
        if tr:
            A(f"""
            s_mul_i32 s{S_T0}, s{S_W}, {cfg.get("s" + name, 0)}
            s_add_u32 s{S_T0}, s{S_T0}, {tr}
            s_cmp_eq_u32 s{S_R}, s{S_T0}
            s_cbranch_scc0 {name}_NOPF
            s_lshl_b32 s{S_T0}, s85, 2
            s_add_u32 s{S_T0}, s{S_T0}, s{S_W}
            s_lshl_b32 s{S_T1}, s{S_T0}, 11
            s_mul_i32 s{S_T0}, s{S_T0}, {37*128}
            v_lshlrev_b32 v4, 7, v{V_L}
            s_mov_b32 exec_hi, 31
            buffer_load_dword v120, v4, {srd(R_WQ if name == "P1" else R_WO)}, s{S_T0} offen
            s_mov_b64 exec, 0xffff
            """)
            for R in ((R_WG, R_WU) if name == "P1" else (R_WD,)):
                A(f"buffer_load_dword v121, v4, {srd(R)}, s{S_T1} offen")
            A("s_mov_b64 exec, -1")
        A(f"{name}_NOPF:")
        body()
        A(f"""
        s_add_u32 s{S_SEG}, s{S_SEG}, 7
        s_cmp_eq_u32 s{S_R}, s{S_NR}
        s_waitcnt vmcnt({nst})
        s_cbranch_scc0 {name}_LOOP
        """)
    def seg_end(flag_pub):
        A("s_waitcnt vmcnt(0)\ns_barrier")
        flag_pub(S_R, "B")
    XF, AK, AV, PK = 16, 48, 64, 80
    NPF = 8
    def pub_kv(sv, tag):
        A(f"""
        s_cmp_eq_u32 s{S_W}, 0
        s_cbranch_scc0 P1_NOPUB{tag}
        v_mov_b32 v4, s{sv}
        s_mov_b64 exec, 1
        buffer_store_dword v4, off, {srd(R_WS)}, s71 sc1
        s_mov_b64 exec, -1
        P1_NOPUB{tag}:
        """)
    def body1():
        for ks in range(NPF):
            A(f"ds_read_b128 v[{XF+4*ks}:{XF+4*ks+3}], v13 offset:{ks*1024}")
        for ks in range(32):
            x = XF + 4 * (ks % NPF)
            A(f"s_waitcnt lgkmcnt({min(NPF-1, 31-ks)})")
            ck = "0" if ks == 0 else v(AK, 16)
            cv = "0" if ks == 0 else v(AV, 16)
            A(f"v_mfma_f32_32x32x16_bf16 {v(AK,16)}, {a(4*ks,4)}, {v(x,4)}, {ck}")
            A(f"v_mfma_f32_32x32x16_bf16 {v(AV,16)}, {v(x,4)}, {a(128+4*ks,4)}, {cv}")
            if ks + NPF < 32:
                A(f"ds_read_b128 v[{x}:{x+3}], v13 offset:{(ks+NPF)*1024}")
        A(f"""
        s_lshl_b32 s{S_T0}, s{S_SEG}, 18
        s_add_u32 s{S_T0}, s{S_T0}, s75
        s_lshr_b32 s{S_T1}, s{S_T0}, 1
        s_add_u32 s{S_T1}, s{S_T1}, {WS_KVM}
        buffer_store_dwordx4 v[96:99], v{V_L16}, {srd(R_WS)}, s{S_T1} offen sc1
        s_lshl_b32 s{S_T0}, s{S_T0}, 1
        s_add_u32 s{S_T0}, s{S_T0}, {WS_KV}
        s_and_b32 s{S_T1}, s{S_T0}, 0xffffc000
        """)
        for i in range(8):
            A(f"v_cvt_pk_bf16_f32 v{PK+i}, v{AK+2*i}, v{AK+2*i+1}")
        A(f"buffer_store_dwordx4 {v(PK,4)}, v{VKK}, {srd(R_WS)}, s{S_T1} offen sc1")
        A(f"buffer_store_dwordx4 {v(PK+4,4)}, v{VKK}, {srd(R_WS)}, s{S_T1} offen offset:512 sc1")
        for i, r in enumerate([0, 2, 8, 10, 4, 6, 12, 14]):
            A(f"v_cvt_pk_bf16_f32 v{PK+8+i}, v{AV+r}, v{AV+r+1}")
        A(f"buffer_store_dwordx4 {v(PK+8,4)}, v{VKS}, {srd(R_WS)}, s{S_T0} offen offset:2048 sc1")
        A(f"buffer_store_dwordx4 {v(PK+12,4)}, v{VKS}, {srd(R_WS)}, s{S_T0} offen offset:2560 sc1")
    def first1():
        A("s_waitcnt vmcnt(0)\ns_barrier")
        pub_kv(S_R, "F")
        A(f"""
        s_cmp_eq_u32 s{S_W}, 1
        s_cbranch_scc0 W_LNOK
        s_lshl_b32 s{S_T1}, s{S_G}, 2
        W_LNP:
        buffer_load_dword v4, off, {srd(R_DBG)}, s{S_T1} offset:{D_ARR} sc1
        """)
        spin_dec(A)
        A(f"""
        s_waitcnt vmcnt(0)
        v_cmp_gt_u32 vcc, 32, v4
        s_cbranch_vccnz W_LNP
        W_LNOK:
        s_barrier
        """)
    for i in range(4): A(f"v_mov_b32 v{96+i}, -1")
    seg_loop("P1", body1, pub_kv, 5, first1)
    seg_end(pub_kv)
    stamp(A, cfg, 3)
    if cfg.get("stop", 99) <= 1:
        A("s_branch EXIT")
        return
    VSF, VRF, VHS = 14, 15, 10
    A(f"""
    v_lshrrev_b32 v4, 1, v{V_L}
    v_mul_u32_u24 v{VSF}, 3584, v4
    v_and_b32 v5, 1, v{V_L}
    v_lshl_add_u32 v{VSF}, v5, 4, v{VSF}
    s_lshl_b32 s{S_T0}, s{S_H}, 7
    s_lshl_b32 s{S_T1}, s{S_W}, 5
    s_add_u32 s{S_T0}, s{S_T0}, s{S_T1}
    v_add_u32 v{VSF}, s{S_T0}, v{VSF}
    v_lshlrev_b32 v{VRF}, 4, v5
    v_bfe_u32 v5, v{V_L}, 1, 1
    v_lshl_add_u32 v{VRF}, v5, 3, v{VRF}
    v_bfe_u32 v5, v{V_L}, 2, 2
    v_lshl_add_u32 v{VRF}, v5, 5, v{VRF}
    v_lshrrev_b32 v5, 5, v{V_L}
    v_lshl_add_u32 v{VRF}, v5, 8, v{VRF}
    v_bfe_u32 v4, v{V_L}, 4, 1
    v_lshl_add_u32 v{VRF}, v4, 10, v{VRF}
    v_add_u32 v{VRF}, s{S_RING}, v{VRF}
    v_lshlrev_b32 v{VHS}, 16, v4
    v_lshl_add_u32 v{VHS}, v5, 8, v{VHS}
    v_and_b32 v5, 15, v{V_L}
    v_lshl_add_u32 v{VHS}, v5, 4, v{VHS}
    s_lshl_b32 s{S_T0}, s{S_T0}, 4
    v_add_u32 v{VHS}, s{S_T0}, v{VHS}
    """)
    st = Stager(A, S_RING, 32)
    for p in range(16):
        for kk in range(2):
            ks = 2 * p + kk
            st.add(R_WQ, VS, ks * 16 * 8192, rd32(lambda j, ks=ks: a(4*ks+j, 2), VRK))
        st.add(R_WG, VSF, p * 32 * 3584, [])
        rds = []
        for kk in range(2):
            for hb in range(2):
                rds.append(lambda o, p=p, kk=kk, hb=hb: f"ds_read_b64_tr_b16 {a(128+4*(2*p+kk)+2*hb, 2)}, v{VRF} offset:{o - 1024 + kk*512 + hb*128}")
        st.add(R_WU, VSF, p * 32 * 3584, rds)
    st.issue(32)
    st.run()
    A("s_barrier")
    stamp(A, cfg, 4)
    C1 = -2 * 1.4426950408889634 * 0.7978845608028654
    A(f"s_mov_b32 s73, {f2u(C1)}\ns_mov_b32 s74, {f2u(C1 * 0.044715)}")
    def body2():
        for ks in range(NPF):
            A(f"ds_read_b128 v[{XF+4*ks}:{XF+4*ks+3}], v13 offset:{ks*1024}")
        for ks in range(32):
            x = XF + 4 * (ks % NPF)
            A(f"s_waitcnt lgkmcnt({min(NPF-1, 31-ks)})")
            ck = "0" if ks == 0 else v(AK, 16)
            cv = "0" if ks == 0 else v(AV, 16)
            A(f"v_mfma_f32_32x32x16_bf16 {v(AV,16)}, {a(128+4*ks,4)}, {v(x,4)}, {cv}")
            A(f"v_mfma_f32_32x32x16_bf16 {v(AK,16)}, {a(4*ks,4)}, {v(x,4)}, {ck}")
            if ks + NPF < 32:
                A(f"ds_read_b128 v[{x}:{x+3}], v13 offset:{(ks+NPF)*1024}")
        A(f"""
        s_lshl_b32 s{S_T0}, s{S_SEG}, 18
        s_lshl_b32 s{S_T1}, s{S_SEG}, 17
        s_add_u32 s{S_T0}, s{S_T0}, s75
        s_add_u32 s{S_T1}, s{S_T1}, {WS_H}
        s_add_u32 s{S_T0}, s{S_T0}, {WS_QX}
        v_mov_b32 v4, s73
        """)
        T = PK + 8
        for i in range(8): A(f"v_mul_f32 v{T+i}, v{AV+i}, v{AV+i}")
        for i in range(8): A(f"v_fma_f32 v{T+i}, v{T+i}, s74, v4")
        for i in range(8): A(f"v_mul_f32 v{T+i}, v{T+i}, v{AV+i}")
        for i in range(8):
            A(f"v_cvt_pk_bf16_f32 v{PK+i}, v{AK+2*i}, v{AK+2*i+1}")
        A(f"buffer_store_dwordx4 {v(PK,4)}, v{VKS}, {srd(R_WS)}, s{S_T0} offen sc1")
        A(f"buffer_store_dwordx4 {v(PK+4,4)}, v{VKS}, {srd(R_WS)}, s{S_T0} offen offset:512 sc1")
        for i in range(8): A(f"v_exp_f32 v{T+i}, v{T+i}")
        for i in range(8): A(f"v_add_f32 v{T+i}, 1.0, v{T+i}")
        for i in range(8): A(f"v_rcp_f32 v{T+i}, v{T+i}")
        for i in range(8): A(f"v_mul_f32 v{T+i}, v{T+i}, v{AV+i}")
        for i in range(8): A(f"v_mul_f32 v{T+i}, v{T+i}, v{AV+8+i}")
        for i in range(4): A(f"v_cvt_pk_bf16_f32 v{T+8+i}, v{T+2*i}, v{T+2*i+1}")
        A(f"buffer_store_dwordx4 {v(T+8,4)}, v{VHS}, {srd(R_WS)}, s{S_T1} offen sc1")
    seg_loop("P2", body2, lambda a_, b_: None, 3, None)
    seg_end(lambda a_, b_: None)
    def pub_grp(tag, val):
        A(f"""
        s_cmp_eq_u32 s{S_W}, 0
        s_cbranch_scc0 NOPUB_{tag}
        v_mov_b32 v4, {val}
        s_mov_b64 exec, 1
        buffer_store_dword v4, off, {srd(R_WS)}, s72 sc1
        s_mov_b64 exec, -1
        NOPUB_{tag}:
        """)
    pub_grp("H", 1)
    stamp(A, cfg, 5)
    if cfg.get("stop", 99) <= 2:
        A("s_waitcnt vmcnt(0)\ns_branch EXIT")
        return
    VSD, VSO, VRT = 8, 9, 10
    A(f"""
    s_mov_b32 s{S_G}, s{S_G2}
    s_mov_b32 s{S_H}, s{S_H2}
    s_sub_u32 s{S_GI}, s{S_G}, 1
    s_cmp_eq_u32 s{S_GI}, 0
    s_cselect_b32 s{S_NR}, 10, 9
    s_lshl_b32 s{S_HOFF}, s{S_H}, 13
    s_lshl_b32 s{S_T0}, s{S_G}, 12
    s_lshl_b32 s{S_T1}, s{S_H}, 7
    s_add_u32 s72, s{S_T0}, s{S_T1}
    s_add_u32 s72, s72, {FL_GRP}
    v_lshrrev_b32 v4, 2, v{V_L}
    v_and_b32 v5, 3, v{V_L}
    v_lshlrev_b32 v{VSD}, 10, v4
    v_lshl_add_u32 v{VSD}, v5, 4, v{VSD}
    s_lshr_b32 s{S_T0}, s{S_H}, 1
    s_lshl_b32 s{S_T0}, s{S_T0}, 6
    s_lshl_b32 s{S_T1}, s{S_W}, 20
    s_add_u32 s{S_T1}, s{S_T1}, s{S_T0}
    v_add_u32 v{VSO}, s{S_T1}, v{VSD}
    s_mul_i32 s{S_T1}, s{S_W}, {448*1024}
    s_add_u32 s{S_T1}, s{S_T1}, s{S_T0}
    v_add_u32 v{VSD}, s{S_T1}, v{VSD}
    v_lshlrev_b32 v{VRT}, 4, v5
    v_and_b32 v4, 3, v4
    v_lshl_add_u32 v{VRT}, v4, 6, v{VRT}
    v_lshrrev_b32 v4, 4, v{V_L}
    v_lshl_add_u32 v{VRT}, v4, 9, v{VRT}
    v_add_u32 v{VRT}, s{S_RING}, v{VRT}
    """)
    def rd16(regf):
        return [lambda o, T=T, hb=hb: f"ds_read_b64_tr_b16 {regf(4*T+2*hb)}, v{VRT} offset:{o - 1024 + T*8 + hb*256}" for T in range(2) for hb in range(2)]
    st = Stager(A, S_RING, 32)
    for kq in range(14):
        st.add(R_WD, VSD, kq * 32768, [])
        st.add(R_WD, VSD, kq * 32768 + 16384, rd16(lambda j, kq=kq: v(128 + 8*kq + j, 2)))
    for kq in range(32):
        st.add(R_WO, VSO, kq * 32768, [])
        st.add(R_WO, VSO, kq * 32768 + 16384, rd16(lambda j, kq=kq: a(8*kq + j, 2)))
    st.issue(32)
    st.run()
    stamp(A, cfg, 6)
    VFL, VPW, VPR, VG, VXO = 8, 9, 10, 11, 12
    PITCH = 144
    A(f"""
    v_and_b32 v4, 31, v{V_L}
    v_lshlrev_b32 v{VFL}, 7, v4
    s_lshl_b32 s73, s{S_G}, 12
    s_add_u32 s73, s73, {FL_GRP}
    v_and_b32 v4, 15, v{V_L}
    v_mul_u32_u24 v{VPW}, {PITCH}, v4
    v_lshrrev_b32 v5, 4, v{V_L}
    v_lshl_add_u32 v{VPW}, v5, 5, v{VPW}
    s_mul_i32 s{S_T0}, s{S_W}, {16*PITCH}
    v_add_u32 v{VPW}, s{S_T0}, v{VPW}
    v_mul_u32_u24 v{VPR}, {PITCH}, v5
    v_lshl_add_u32 v{VPR}, v4, 3, v{VPR}
    s_mul_i32 s{S_T0}, s{S_W}, {4*PITCH}
    v_add_u32 v{VPR}, s{S_T0}, v{VPR}
    v_lshlrev_b32 v{VG}, 2, v0
    v_add_u32 v{VG}, 0x20000, v{VG}
    v_lshlrev_b32 v{VXO}, 10, v5
    v_lshl_add_u32 v{VXO}, v4, 2, v{VXO}
    s_and_b32 s{S_T0}, s{S_H}, 1
    s_lshl_b32 s74, s{S_T0}, 16            ; rt*64KB
    s_lshl_b32 s{S_T0}, s{S_T0}, 14
    s_lshl_b32 s{S_T1}, s{S_W}, 12
    s_add_u32 s{S_T0}, s{S_T0}, s{S_T1}
    s_lshr_b32 s{S_T1}, s{S_H}, 1
    s_lshl_b32 s{S_T1}, s{S_T1}, 6
    s_add_u32 s{S_T0}, s{S_T0}, s{S_T1}
    v_add_u32 v{VXO}, s{S_T0}, v{VXO}
    """)
    def grp_wait(tag, s_val):
        A(f"""
        GW_{tag}:
        buffer_load_dword v4, v{VFL}, {srd(R_WS)}, s73 offen sc1
        """)
        spin_dec(A)
        A(f"""
        s_waitcnt vmcnt(0)
        v_cmp_gt_u32 vcc, {s_val}, v4
        s_cbranch_vccnz GW_{tag}
        """)
    A(f"""
    s_lshl_b32 s{S_T1}, s{S_G}, 2
    W_ARR2:
    buffer_load_dword v4, off, {srd(R_DBG)}, s{S_T1} offset:{D_ARR} sc1
    """)
    spin_dec(A)
    A(f"""
    s_waitcnt vmcnt(0)
    v_cmp_gt_u32 vcc, 32, v4
    s_cbranch_vccnz W_ARR2
    """)
    grp_wait("H", 1)
    A("s_barrier")
    HF, DA = 16, 112
    A(f"""
    s_mul_i32 s{S_T0}, s{S_W}, {14*1024}
    s_add_u32 s74, s74, s{S_T0}
    s_lshl_b32 s{S_T0}, s{S_GI}, 17
    s_add_u32 s75, s74, s{S_T0}
    s_add_u32 s75, s75, {WS_H}
    s_mov_b32 s{S_R}, 0
    v_mov_b32 v13, v{VPW}
    DN_LOOP:
    """)
    for kq in range(14):
        if kq % 4 == 0: A(f"s_add_u32 s{S_T0}, s75, {kq*1024}")
        A(f"buffer_load_dwordx4 {v(HF+4*kq,4)}, v{V_L16}, {srd(R_WS)}, s{S_T0} offen offset:{(kq%4)*1024} sc1")
    for kq in range(14):
        A(f"s_waitcnt vmcnt({13-kq})")
        for T in range(2):
            cc = "0" if kq == 0 else v(DA+4*T, 4)
            A(f"v_mfma_f32_16x16x32_bf16 {v(DA+4*T,4)}, {v(128+8*kq+4*T,4)}, {v(HF+4*kq,4)}, {cc}")
    A(f"""
    s_add_u32 s75, s75, {7*131072}
    s_add_u32 s{S_R}, s{S_R}, 1
    s_cmp_lt_u32 s{S_R}, s{S_NR}
    ds_write_b128 v13, {v(DA,4)}
    ds_write_b128 v13, {v(DA+4,4)} offset:16
    v_add_u32 v13, {64*PITCH}, v13
    s_cbranch_scc1 DN_LOOP
    s_waitcnt lgkmcnt(0)
    s_barrier
    """)
    def red4(va, off, d):
        for i in range(4):
            A(f"ds_read_b64 v[{d+2*i}:{d+2*i+1}], v{va} offset:{off + i*16*PITCH}")
    NL = -1.4426950408889634
    A(f"v_add_u32 v13, {5*64*PITCH}, v{VPR}")
    for r in range(10):
        red4(VPR if r < 5 else 13, (r % 5) * 64 * PITCH, 16 + 8 * r)
    for r in range(10):
        d = 16 + 8 * r
        A(f"s_waitcnt lgkmcnt(0)" if r == 0 else "")
        A(f"""
        v_add_f32 v{d}, v{d}, v{d+2}
        v_add_f32 v{d+1}, v{d+1}, v{d+3}
        v_add_f32 v{d+4}, v{d+4}, v{d+6}
        v_add_f32 v{d+5}, v{d+5}, v{d+7}
        v_add_f32 v{d}, v{d}, v{d+4}
        v_add_f32 v{d+1}, v{d+1}, v{d+5}
        v_cvt_pk_bf16_f32 v{d}, v{d}, v{d+1}
        v_and_b32 v{d+1}, 0xffff0000, v{d}
        v_lshlrev_b32 v{d}, 16, v{d}
        v_mul_f32 v{d+2}, {f2u(NL)}, v{d}
        v_mul_f32 v{d+3}, {f2u(NL)}, v{d+1}
        v_exp_f32 v{d+2}, v{d+2}
        v_exp_f32 v{d+3}, v{d+3}
        v_add_f32 v{d+2}, 1.0, v{d+2}
        v_add_f32 v{d+3}, 1.0, v{d+3}
        v_rcp_f32 v{d+2}, v{d+2}
        v_rcp_f32 v{d+3}, v{d+3}
        v_mul_f32 v{d}, v{d}, v{d+2}
        v_mul_f32 v{d+1}, v{d+1}, v{d+3}
        v_cvt_pk_bf16_f32 v{d}, v{d}, v{d+1}
        ds_write_b32 v{VG}, v{d} offset:{r*1024}
        """)
    stamp(A, cfg, 7)
    KX, QX, VX, KM, FM, SS, OA = 16, 48, 64, 80, 16, 100, 112
    VMA, VKW, VQI, VKR, VKL = 13, 14, 15, 96, 97
    S_AT, S_OW, S_OR, S_XO, S_CS, S_MK = 75, 76, 77, 79, 80, 81
    S_EH, S_MSK = 82, 86
    L_KT = 0x24000
    lane_ma(A, VMA, V_L, 4)
    A(f"""
    s_lshl_b32 s{S_T0}, s{S_W}, 12
    s_add_u32 s{S_T0}, s{S_T0}, {L_KT}
    v_and_b32 v4, 15, v{V_L}
    v_lshrrev_b32 v5, 4, v{V_L}
    v_lshlrev_b32 v{VKW}, 6, v4
    v_lshl_add_u32 v{VKW}, v5, 4, v{VKW}
    v_add_u32 v{VKW}, s{S_T0}, v{VKW}
    v_add_u32 v{VKR}, s{S_T0}, v{V_L16}
    s_lshr_b32 s{S_T0}, s{S_W}, 1
    v_lshlrev_b32 v{VKL}, 8, v5
    v_bfe_u32 v6, v{V_L}, 1, 1
    v_lshl_add_u32 v{VKL}, v6, 12, v{VKL}
    v_bfe_u32 v6, v{V_L}, 2, 2
    v_lshl_add_u32 v{VKL}, v6, 5, v{VKL}
    v_and_b32 v6, 1, v{V_L}
    v_lshl_add_u32 v{VKL}, v6, 4, v{VKL}
    s_lshl_b32 s{S_T1}, s{S_T0}, 7
    v_add_u32 v{VKL}, s{S_T1}, v{VKL}
    v_xor_b32 v{VKL+1}, 128, v{VKL}
    s_and_b32 s{S_T2}, s{S_W}, 1
    s_lshl_b32 s{S_T3}, s{S_T2}, 4
    v_add_u32 v4, s{S_T3}, v4
    v_lshlrev_b32 v5, 2, v5
    v_sub_u32 v4, v4, v5
    """)
    for tl in range(2):
        for r in range(4):
            A(f"v_cmp_le_i32 s[{S_MSK+2*(4*tl+r)}:{S_MSK+2*(4*tl+r)+1}], {16*tl+r}, v4")
    A(f"""
    s_mov_b32 s{S_CS}, {f2u(128**-0.5 * 1.4426950408889634)}
    v_mov_b32 v{VQI}, {f2u(-1e9 * 128**0.5)}
    s_lshl_b32 s{S_OW}, s{S_T2}, 17
    s_lshl_b32 s{S_EH}, s{S_T0}, 11         ; eh*2048
    s_add_u32 s{S_OW}, s{S_OW}, s{S_EH}
    s_lshl_b32 s{S_T1}, s{S_H}, 12
    s_add_u32 s{S_OW}, s{S_OW}, s{S_T1}
    s_add_u32 s{S_OW}, s{S_OW}, {WS_O}
    s_and_b32 s{S_OR}, s{S_H}, 1
    s_lshl_b32 s{S_OR}, s{S_OR}, 17
    s_lshl_b32 s{S_T1}, s{S_W}, 15
    s_add_u32 s{S_OR}, s{S_OR}, s{S_T1}
    s_add_u32 s{S_OR}, s{S_OR}, {WS_O}
    s_lshl_b32 s{S_AT}, s{S_T2}, 10         ; qt*1024
    s_add_u32 s{S_AT}, s{S_AT}, {WS_QX}
    s_mov_b32 s{S_R}, 0
    s_mov_b32 s{S_SEG}, s{S_GI}
    """)
    def att_loads(sseg):
        A(f"""
        s_lshl_b32 s{S_T0}, s{sseg}, 18
        s_add_u32 s{S_T0}, s{S_T0}, s{S_HOFF}
        s_lshl_b32 s{S_T1}, s{S_EH}, 1
        s_add_u32 s{S_T0}, s{S_T0}, s{S_T1}
        s_add_u32 s{S_T1}, s{S_T0}, s{S_AT}
        s_lshl_b32 s{S_T0}, s{S_T0}, 1
        s_add_u32 s{S_T0}, s{S_T0}, {WS_KV}
        s_and_b32 s{S_T2}, s{S_T0}, 0xffffc000
        s_add_u32 s78, s{S_T2}, 8192
        """)
        for c in range(4):
            if c == 2: A(f"s_xor_b32 s{S_T1}, s{S_T1}, 4096")
            A(f"buffer_load_dwordx4 {v(QX+4*c,4)}, v{VMA}, {srd(R_WS)}, s{S_T1} offen offset:{(c&1)*2048} sc1")
            A(f"buffer_load_dwordx4 {v(KX+4*c,4)}, v{VKL+(c>>1)}, {srd(R_WS)}, s{S_T2} offen offset:{(c&1)*1024} sc1")
            A(f"buffer_load_dwordx4 {v(KX+16+4*c,4)}, v{VKL+(c>>1)}, {srd(R_WS)}, s78 offen offset:{(c&1)*1024} sc1")
            if c < 2:
                A(f"buffer_load_dwordx4 {v(VX+8*c,4)}, v{VMA}, {srd(R_WS)}, s{S_T0} offen offset:2048 sc1")
                A(f"buffer_load_dwordx4 {v(VX+8*c+4,4)}, v{VMA}, {srd(R_WS)}, s{S_T0} offen offset:3072 sc1")
            if c == 0: A(f"s_xor_b32 s{S_T0}, s{S_T0}, 4096")
    att_loads(S_SEG)
    fine = cfg.get("prof", 0) >= 2
    P = lambda i: A(f"s_memtime s[{8+2*i}:{9+2*i}]") if fine else None
    A(f"""
    v_and_b32 v{VFL}, 0x380, v{VFL}
    s_lshl_b32 s{S_T0}, s{S_W}, 10
    s_add_u32 s73, s73, s{S_T0}
    W5_LOOP:
    """)
    P(0)
    MX, LX, PX = 36, 37, KX + 16
    def km_loads():
        for c in range(4):
            A(f"buffer_load_dwordx4 {v(KM+4*c,4)}, v{VMA}, {srd(R_WS)}, s{S_T1 if c < 2 else S_T2} offen offset:{(c&1)*1024} sc1")
    A(f"""
    s_lshl_b32 s{S_T0}, s{S_SEG}, 18
    s_add_u32 s{S_T1}, s{S_T0}, s{S_HOFF}
    s_lshr_b32 s{S_T1}, s{S_T1}, 1
    s_add_u32 s{S_T1}, s{S_T1}, {WS_KVM}
    s_add_u32 s{S_T1}, s{S_T1}, s{S_EH}
    s_xor_b32 s{S_T2}, s{S_T1}, 2048
    s_lshl_b32 s{S_XO}, s{S_SEG}, 15
    s_add_u32 s{S_T3}, s{S_T0}, s{S_OR}
    s_add_u32 s{S_T0}, s{S_T0}, s{S_OW}
    buffer_load_dword v3, v{VXO}, {srd(R_X)}, s{S_XO} offen
    """)
    km_loads()
    A("s_waitcnt vmcnt(5)")
    P(1)
    for c in range(4):
        for tl in range(2):
            cc = "0" if c == 0 else v(SS+4*tl, 4)
            A(f"v_mfma_f32_16x16x32_bf16 {v(SS+4*tl,4)}, {v(KX+16*tl+4*c,4)}, {v(QX+4*c,4)}, {cc}")
    for i in range(8):
        A(f"v_cndmask_b32 v{SS+i}, v{VQI}, v{SS+i}, s[{S_MSK+2*i}:{S_MSK+2*i+1}]")
    A(f"""
    v_max3_f32 v{MX}, v{SS}, v{SS+1}, v{SS+2}
    v_max3_f32 v5, v{SS+3}, v{SS+4}, v{SS+5}
    v_max3_f32 v{MX}, v{MX}, v{SS+6}, v{SS+7}
    v_max_f32 v{MX}, v{MX}, v5
    v_mov_b32 v6, 0
    """)
    xG(A, MX, 5, "v_max_f32")
    A(f"v_mul_f32 v{MX}, s{S_CS}, v{MX}")
    for i in range(8): A(f"v_fma_f32 v{SS+i}, v{SS+i}, s{S_CS}, -v{MX}")
    for i in range(8): A(f"v_exp_f32 v{SS+i}, v{SS+i}")
    for i in range(4): A(f"v_cvt_pk_bf16_f32 v{PX+i}, v{SS+2*i}, v{SS+2*i+1}")
    for i in range(4):
        A(f"v_mfma_f32_16x16x32_bf16 {v(OA+4*i,4)}, {v(VX+4*i,4)}, {v(PX,4)}, 0")
    A(f"""
    v_add_f32 v{LX}, v{SS}, v{SS+1}
    v_add_f32 v5, v{SS+2}, v{SS+3}
    v_add_f32 v{LX}, v{LX}, v{SS+4}
    v_add_f32 v5, v5, v{SS+5}
    v_add_f32 v{LX}, v{LX}, v{SS+6}
    v_add_f32 v5, v5, v{SS+7}
    v_add_f32 v{LX}, v{LX}, v5
    s_branch W5_KC
    W5_KP:
    """)
    if cfg.get("wsl"): A(f"s_cmp_eq_u32 s{S_SEG}, 63\ns_cbranch_scc1 W5_NS\ns_sleep {cfg['wsl']}\nW5_NS:")
    km_loads()
    spin_dec(A)
    A(f"""
    W5_KC:
    s_waitcnt vmcnt(0)
    v_max3_u32 v4, v{KM}, v{KM+4}, v{KM+8}
    v_max_u32 v4, v4, v{KM+12}
    v_cmp_eq_u32 vcc, -1, v4
    s_cbranch_vccnz W5_KP
    """)
    P(2)
    for c in range(4):
        A(f"ds_write_b128 v{VKW}, {v(KM+4*c,4)} offset:{c*1024}")
        A(f"ds_read_b64_tr_b16 {v(FM+4*c,2)}, v{VKR} offset:{c*1024}")
        A(f"ds_read_b64_tr_b16 {v(FM+4*c+2,2)}, v{VKR} offset:{c*1024+8}")
    for c in range(4):
        A(f"s_waitcnt lgkmcnt({9-3*c})")
        cc = "0" if c == 0 else v(SS+8, 4)
        A(f"v_mfma_f32_16x16x32_bf16 {v(SS+8,4)}, {v(FM+4*c,4)}, {v(QX+4*c,4)}, {cc}")
    A(f"""
    s_add_u32 s{S_R}, s{S_R}, 1
    s_add_u32 s{S_BUF}, s{S_R}, 1
    v_mul_f32 v{SS+8}, s{S_CS}, v{SS+8}
    v_mul_f32 v{SS+9}, s{S_CS}, v{SS+9}
    v_max3_f32 v4, v{MX}, v{SS+8}, v{SS+9}
    """)
    xG(A, 4, 5, "v_max_f32")
    A(f"""
    v_sub_f32 v{MX}, v{MX}, v4
    v_sub_f32 v{SS+8}, v{SS+8}, v4
    v_sub_f32 v{SS+9}, v{SS+9}, v4
    v_exp_f32 v{MX}, v{MX}
    v_exp_f32 v{SS+8}, v{SS+8}
    v_exp_f32 v{SS+9}, v{SS+9}
    v_fma_f32 v4, v{LX}, v{MX}, v{SS+8}
    v_add_f32 v4, v4, v{SS+9}
    """)
    xG(A, 4, 5, "v_add_f32")
    A(f"""
    v_rcp_f32 v4, v4
    v_mul_f32 v{MX}, v{MX}, v4
    v_mul_f32 v{SS+8}, v{SS+8}, v4
    v_mul_f32 v{SS+9}, v{SS+9}, v4
    v_cvt_pk_bf16_f32 v7, v{SS+8}, v{SS+9}
    """)
    for i in range(8): A(f"v_pk_mul_f32 {v(OA+2*i,2)}, {v(OA+2*i,2)}, {v(MX,2)} op_sel_hi:[1,0]")
    for i in range(4):
        A(f"v_mfma_f32_16x16x16_bf16 {v(OA+4*i,4)}, {v(KM+2*i,2)}, v[6:7], {v(OA+4*i,4)}")
    for hh in range(2):
        for i in range(4): A(f"v_cvt_pk_bf16_f32 v{SS+4*hh+i}, v{OA+8*hh+2*i}, v{OA+8*hh+2*i+1}")
        A(f"buffer_store_dwordx4 {v(SS+4*hh,4)}, v{V_L16}, {srd(R_WS)}, s{S_T0} offen offset:{hh*1024} sc1")
    P(3)
    A(f"ds_read_b32 v7, v{VG}\nv_add_u32 v{VG}, 1024, v{VG}")
    A("s_waitcnt vmcnt(0)")
    P(4)
    A("s_barrier")
    P(5)
    pub_grp("O", f"s{S_BUF}")
    grp_wait("O", f"s{S_BUF}")
    P(6)
    NB = cfg.get("nb", 16)
    def o_load(kq):
        if kq % 4 == 0 and kq: A(f"s_add_u32 s{S_T3}, s{S_T3}, 4096")
        A(f"buffer_load_dwordx4 {v(128+4*kq,4)}, v{V_L16}, {srd(R_WS)}, s{S_T3} offen offset:{(kq%4)*1024} sc1")
    for kq in range(NB): o_load(kq)
    P(7)
    for kq in range(32):
        A(f"s_waitcnt vmcnt({min(NB-1, 31-kq)})")
        if kq == 0: P(8)
        if kq == 16: P(9)
        for T in range(2):
            cc = "0" if kq == 0 else v(OA+4*T, 4)
            A(f"v_mfma_f32_16x16x32_bf16 {v(OA+4*T,4)}, {a(8*kq+4*T,4)}, {v(128+4*kq,4)}, {cc}")
        if kq + NB < 32: o_load(kq + NB)
    d = SS
    P(10)
    A(f"""
    s_waitcnt lgkmcnt(0)
    v_and_b32 v6, 0xffff0000, v7
    v_lshlrev_b32 v7, 16, v7
    v_and_b32 v5, 0xffff0000, v3
    v_lshlrev_b32 v4, 16, v3
    s_add_u32 s{S_SEG}, s{S_SEG}, 7
    ds_write_b128 v{VPW}, {v(OA,4)}
    ds_write_b128 v{VPW}, {v(OA+4,4)} offset:16
    s_waitcnt lgkmcnt(0)
    s_barrier
    """)
    red4(VPR, 0, d)
    A(f"""
    s_waitcnt lgkmcnt(2)
    v_add_f32 v{d}, v{d}, v{d+2}
    v_add_f32 v{d+1}, v{d+1}, v{d+3}
    s_waitcnt lgkmcnt(0)
    v_add_f32 v{d+4}, v{d+4}, v{d+6}
    v_add_f32 v{d+5}, v{d+5}, v{d+7}
    v_add_f32 v{d}, v{d}, v{d+4}
    v_add_f32 v{d+1}, v{d+1}, v{d+5}
    v_cvt_pk_bf16_f32 v{d}, v{d}, v{d+1}
    v_and_b32 v{d+1}, 0xffff0000, v{d}
    v_lshlrev_b32 v{d}, 16, v{d}
    v_mul_f32 v{d}, v{d}, v7
    v_mul_f32 v{d+1}, v{d+1}, v6
    v_cvt_pk_bf16_f32 v{d}, v{d}, v{d+1}
    v_and_b32 v{d+1}, 0xffff0000, v{d}
    v_lshlrev_b32 v{d}, 16, v{d}
    v_add_f32 v{d}, v{d}, v4
    v_add_f32 v{d+1}, v{d+1}, v5
    v_cvt_pk_bf16_f32 v4, v{d}, v{d+1}
    buffer_store_dword v4, v{VXO}, {srd(R_OUT)}, s{S_XO} offen
    """)
    if fine:
        P(11)
        A(f"s_cmp_eq_u32 s{S_R}, {cfg.get('pr', 4)}\ns_cbranch_scc0 W5_ND\ns_waitcnt lgkmcnt(0)")
        for i in range(12): A(f"v_writelane_b32 v5, s{8+2*i}, {i}")
        A(f"v_lshrrev_b32 v6, 2, v{V_L16}\nbuffer_store_dword v5, v6, {srd(R_WS)}, s{S_PROF} offen offset:512\nW5_ND:")
    if cfg.get("prof"):
        A(f"""
        s_memtime s[{S_TS}:{S_TS+1}]
        s_lshl_b32 s{S_T0}, s{S_R}, 2
        s_add_u32 s{S_T0}, s{S_T0}, s{S_PROF}
        s_waitcnt lgkmcnt(0)
        v_mov_b32 v5, s{S_TS}
        s_mov_b64 exec, 1
        buffer_store_dword v5, off, {srd(R_WS)}, s{S_T0} offset:28
        s_mov_b64 exec, -1
        """)
    A(f"""
    s_cmp_lt_u32 s{S_R}, s{S_NR}
    s_cbranch_scc0 W5_END
    """)
    att_loads(S_SEG)
    A(f"""
    s_branch W5_LOOP
    W5_END:
    """)
```

```python
import re
from common import *
from worker import stamp, spin_dec, xG

L_PX, L_SEL, L_F, L_REG, RP = 0, 0xC00, 0x1000, 0x2000, 0x9800
O_WQ, O_WO, O_A, O_S = 0, 0x4000, 0x8000, 0x8800
L_DUMMY = L_REG + O_S
V_IDX, V_MA, V_KA, V_FW, V_FR, V_PW, V_PST, V_MST = 0, 1, 2, 3, 4, 5, 6, 7
V_R = [8, 9, 10, 11]
PUB = 12
RA, RE, RV, RQ, RK, ALT = 16, 48, 104, 112, 120, 40
RKX, RVX = 56, 64
S_S, S_RING, S_ROT = 64, 65, 66
S_RDY, S_PW, S_MB, S_KVB, S_MW, S_PUB, S_TAG, S_FKV = 70, 71, 72, 73, 74, 75, 76, 77
S_C, S_THR = 78, 79
S_B1, S_ON, S_HF = 80, 82, 90
S_SENT, S_PR0, S_PR1, S_W2K, S_MR = 84, 85, 86, 87, 88
S_TX, S_TB = 92, 93

KD = [0]
WQS = [48, 88, 96, 72, 80, 88, 96, 48]
PFO = list(range(10))
def WQ(t, ab): return v(WQS[2 * t + ab] if KD[0] else RE + 8 * ((2 * t + ab) % 7), 8) if t < 4 else v(128 + 8 * (2 * (t - 4) + ab), 8)
def WK(t, ab): return a(8 * (2 * t + ab), 8)
def WV(t, ab): return a(128 + 8 * (2 * t + ab), 8)
WOS = {(2, 0): 72, (3, 0): 80, (2, 1): 88, (3, 1): 48, (2, 2): 56, (3, 2): 104, (2, 3): 96, (3, 3): 16}
def WO(c, T): return v(192 + 8 * (4 * c + T), 8) if c < 2 else v(WOS[(c, T)], 8)
def SM(d, aa, b): return f"v_smfmac_f32_16x16x64_bf16 {v(d,4)}, {v(aa,4)}, {b}, v{V_IDX}"
def MF(d, aa, b, c): return f"v_mfma_f32_16x16x32_bf16 {v(d,4)}, {v(aa,4)}, {v(b,4)}, {c}"
def MH(d, aa, b, c): return f"v_mfma_f32_16x16x16_bf16 {v(d,4)}, {v(aa,2)}, {v(b,2)}, {c}"
DPP = lambda p: f"quad_perm:[{p}] row_mask:0xf bank_mask:0xf"

def chain_init(A, cfg):
    L, L16 = 20, 21
    vm = VM(A)
    A(f"""
    CHAIN:
    v_mov_b32 v{L}, v1
    v_mov_b32 v{L16}, v2
    s_mul_i32 s{S_RING}, s{S_W}, {RP}
    s_add_u32 s{S_RING}, s{S_RING}, {L_REG}
    s_lshl_b32 s{S_W2K}, s{S_W}, 11
    """)
    for i in range(4):
        A(f"s_add_u32 s{S_T0}, s{S_W}, {i}\ns_and_b32 s{S_ROT+i}, s{S_T0}, 3")
    A(f"""
    v_lshrrev_b32 v22, 4, v{L}
    v_bfe_u32 v23, v{L}, 2, 1
    v_lshlrev_b32 v{V_MST}, 8, v23
    v_bfe_u32 v23, v{L}, 1, 1
    v_lshl_add_u32 v{V_MST}, v23, 5, v{V_MST}
    v_and_b32 v23, 1, v{L}
    v_lshl_add_u32 v{V_MST}, v23, 3, v{V_MST}
    v_and_b32 v23, 1, v22
    v_lshl_add_u32 v{V_MST}, v23, 4, v{V_MST}
    v_lshrrev_b32 v24, 5, v{L}
    v_lshl_add_u32 v{V_MST}, v24, 2, v{V_MST}
    v_lshlrev_b32 v25, 10, v23
    v_lshl_add_u32 v25, v24, 2, v25
    v_and_b32 v24, 7, v{L}
    v_lshl_add_u32 v25, v24, 4, v25
    s_lshr_b32 s{S_T0}, s{S_H}, 3            ; w'
    s_bfe_u32 s{S_T1}, s{S_H}, 0x20001       ; G'
    s_and_b32 s{S_T2}, s{S_H}, 1             ; nh
    s_and_b32 s{S_T3}, s{S_W}, 1             ; sig
    s_lshl_b32 s{S_PW}, s{S_T0}, 11
    s_lshl_b32 s{S_MB}, s{S_T3}, 10
    s_add_u32 s{S_PW}, s{S_PW}, s{S_MB}
    s_lshl_b32 s{S_MB}, s{S_T2}, 9
    s_add_u32 s{S_PW}, s{S_PW}, s{S_MB}
    s_lshl_b32 s{S_MB}, s{S_T1}, 6
    s_add_u32 s{S_PW}, s{S_PW}, s{S_MB}
    v_add_u32 v{V_MST}, s{S_PW}, v{V_MST}
    s_lshl_b32 s{S_T1}, s{S_T1}, 11
    s_lshl_b32 s{S_PW}, s{S_T0}, 8
    s_add_u32 s{S_T1}, s{S_T1}, s{S_PW}
    s_lshl_b32 s{S_T2}, s{S_T2}, 7
    s_add_u32 s{S_T1}, s{S_T1}, s{S_T2}
    s_lshl_b32 s{S_T3}, s{S_T3}, 3
    s_add_u32 s{S_T1}, s{S_T1}, s{S_T3}
    """)
    m0l = vm.issue(f"buffer_load_dword v28, v25, {srd(R_M0)}, s{S_T1} offen")
    A(f"""
    v_lshrrev_b32 v23, 3, v{L}
    s_lshl_b32 s{S_T1}, s{S_W}, 3
    v_add_u32 v23, s{S_T1}, v23
    v_lshlrev_b32 v{V_PST}, 13, v23
    v_lshl_add_u32 v{V_PST}, v24, 4, v{V_PST}
    v_and_b32 v23, {cfg.get("swz", 31)}, v23
    v_xor_b32 v23, s{S_H}, v23
    v_lshl_add_u32 v{V_PST}, v23, 7, v{V_PST}
    v_mov_b32 v24, -1
    v_mov_b32 v25, -1
    v_mov_b32 v26, -1
    v_mov_b32 v27, -1
    s_mov_b32 s{S_PW}, {WS_P}
    s_mov_b32 s{S_PR1}, {WS_P + 4096}
    """)
    vm.issue(f"buffer_store_dwordx4 v[24:27], v{V_PST}, {srd(R_WS)}, s{S_PW} offen sc1")
    vm.issue(f"buffer_store_dwordx4 v[24:27], v{V_PST}, {srd(R_WS)}, s{S_PR1} offen sc1")
    for i in range(1, 4):
        A(f"s_mov_b32 s{S_T0}, {WS_M + i*8192}")
        vm.issue(f"buffer_store_dword v24, v{V_MST}, {srd(R_WS)}, s{S_T0} offen sc1")
    A(f"""
    v_and_b32 v23, 15, v{L}
    v_lshlrev_b32 v30, 12, v22
    v_lshl_add_u32 v30, v23, 4, v30
    s_lshl_b32 s{S_T0}, s{S_H}, 17
    s_lshl_b32 s{S_T1}, s{S_W}, 8
    s_add_u32 s{S_T0}, s{S_T0}, s{S_T1}
    v_add_u32 v30, s{S_T0}, v30
    """)
    def wo_raw(cs):
        for ci, c in enumerate(cs):
            A(f"s_lshl_b32 s{S_T0}, s{S_ROT+c}, 15\ns_add_u32 s{S_T1}, s{S_T0}, 16384")
            for i in range(8):
                r = RE + 32 * ci + 4 * i
                k = vm.issue(f"buffer_load_dwordx4 {v(r,4)}, v30, {srd(R_WO)}, s{S_T0 if i < 4 else S_T1} offen offset:{(i&3)*1024}{' nt' if cfg.get('nt', 0) & 2 else ''}")
        return k
    wo1 = wo_raw([0, 1])
    NT = " nt" if cfg.get("nt", 0) & 1 else ""
    VG, VA = 16, 112
    A(f"""
    v_and_b32 v31, 1, v22
    v_lshlrev_b32 v31, 4, v31
    v_lshrrev_b32 v32, 5, v{L}
    v_add_u32 v31, v31, v32                  ; 16(j&1) + (j>>1)
    v_lshlrev_b32 v31, 13, v31
    v_lshlrev_b32 v32, 2, v22
    v_xor_b32 v32, v32, v23
    v_lshl_add_u32 v31, v32, 4, v31
    s_lshl_b32 s{S_T0}, s{S_H}, 8
    s_lshl_b32 s{S_T1}, s{S_W}, 20
    s_add_u32 s{S_T0}, s{S_T0}, s{S_T1}
    v_add_u32 v{VG}, s{S_T0}, v31
    s_lshl_b32 s{S_MR}, s{S_W}, 12
    s_add_u32 s{S_MR}, s{S_MR}, {L_REG + O_WO}
    """)
    qpos = cfg.get('qpos', 0)
    units = [(R, par, m) for R in [(R_WQ, R_WK, R_WV), (R_WK, R_WQ, R_WV)][qpos] for par in range(2) for m in range(4)]
    uid = {}
    def u_issue(u):
        R, par, m = units[u]
        for G in range(4):
            A(f"s_add_u32 m0, s{S_MR}, {(u & 3) * RP + G * 1024}")
            A(f"s_mov_b32 s{S_T0}, {(2*(m&1) + 64*(m>>1) + 4*par + 8*(G&1) + 32*(G>>1)) * 8192}")
            uid[u] = vm.issue(f"buffer_load_dwordx4 v{VG}, {srd(R)}, s{S_T0} offen{' nt' if cfg.get('nt', 0) & (1 if R == R_WQ else 8) else ''} lds")
    def u_read(u):
        R, par, m = units[u]
        regf = {R_WK: WK, R_WV: WV, R_WQ: lambda t, ab: WQ(t, ab) if t >= 4 else v(RE + 8 * (2*t + ab), 8)}[R]
        for i in range(4):
            for ab in range(2):
                kind, r0 = regs_of(regf(2*i + par, ab))[0]
                A(f"ds_read_b64_tr_b16 {kind}[{r0+2*m}:{r0+2*m+1}], v{VA + i + 4*((u&3)>>1)} offset:{(u & 1) * RP + ab*8}")
    for u in range(4): u_issue(u)
    A(f"""
    v_bfe_u32 v23, v{L}, 2, 2
    v_and_b32 v32, 3, v{L}
    v_lshlrev_b32 v31, 10, v22
    v_lshl_add_u32 v31, v23, 8, v31
    v_lshl_add_u32 v31, v32, 4, v31
    v_xor_b32 v23, s{S_W}, v23
    v_lshl_add_u32 v31, v23, 6, v31
    """)
    for i in range(4):
        A(f"""
        s_lshl_b32 s{S_T0}, s{S_ROT+i}, 12
        s_add_u32 s{S_T0}, s{S_T0}, {L_REG + O_WO}
        v_add_u32 v{VA+i}, s{S_T0}, v31
        v_add_u32 v{VA+4+i}, {2*RP}, v{VA+i}
        """)
    vm.wait(m0l)
    A(f"""
    v_min_u32 v28, -2, v28
    s_mov_b32 s{S_T0}, {WS_M}
    """)
    m0s = vm.issue(f"buffer_store_dword v28, v{V_MST}, {srd(R_WS)}, s{S_T0} offen sc1")
    lane_ma(A, V_MA, L, 23)
    A(f"""
    v_and_b32 v23, 2, v{L}
    v_cmp_eq_u32 vcc, 0, v23
    v_mov_b32 v23, 0xdddddddd
    v_mov_b32 v33, 0x88888888
    v_cndmask_b32 v{V_IDX}, v23, v33, vcc
    v_bfe_u32 v23, v{L}, 2, 2
    v_xor_b32 v23, v23, v22
    v_and_b32 v33, 15, v{L}
    v_lshlrev_b32 v33, 5, v33
    v_lshl_add_u32 v33, v23, 3, v33
    s_and_b32 s{S_T0}, s{S_W}, 1
    s_lshl_b32 s{S_T0}, s{S_T0}, 10
    s_lshr_b32 s{S_T1}, s{S_W}, 1
    s_lshl2_add_u32 s{S_T0}, s{S_T1}, s{S_T0}
    s_add_u32 s{S_T0}, s{S_T0}, {L_F}
    v_add_u32 v{V_FW}, s{S_T0}, v33
    v_xor_b32 v33, v{L}, v22
    v_lshlrev_b32 v33, 3, v33
    v_add_u32 v{V_FR}, {L_F}, v33
    s_lshl_b32 s{S_T0}, s{S_W}, 2
    v_add_u32 v{V_PW}, s{S_T0}, v{L16}
    v_lshlrev_b32 v{V_KA}, 8, v22
    v_bfe_u32 v33, v{L}, 1, 1
    v_lshl_add_u32 v{V_KA}, v33, 7, v{V_KA}
    v_bfe_u32 v33, v{L}, 2, 2
    v_lshl_add_u32 v{V_KA}, v33, 5, v{V_KA}
    v_and_b32 v33, 1, v{L}
    v_lshl_add_u32 v{V_KA}, v33, 4, v{V_KA}
    s_mov_b32 s{S_C}, {f2u(128**-0.5 * 1.4426950408889634)}
    s_mov_b32 s{S_THR}, {f2u(2.0 ** cfg.get("thr", 32))}
    s_mov_b32 s{S_ON}, 0x3f803f80
    s_mov_b32 s{S_ON+1}, 0x3f803f80
    s_mov_b32 s{S_RDY}, 0
    s_mov_b32 s{S_S}, 0
    s_mov_b32 s{S_TAG}, 0
    s_lshl_b32 s{S_T0}, s{S_H}, 13
    s_and_b32 s{S_T1}, s{S_W}, 1
    s_lshl_b32 s{S_T1}, s{S_T1}, 12
    s_add_u32 s{S_T1}, s{S_T1}, s{S_T0}
    s_add_u32 s{S_PR0}, s{S_T1}, {WS_P}
    s_add_u32 s{S_T1}, s{S_T0}, s{S_W2K}       ; h*8K + w*2K
    s_lshl_b32 s{S_KVB}, s{S_T1}, 1
    s_add_u32 s{S_KVB}, s{S_KVB}, {WS_KV}
    s_lshr_b32 s{S_PUB}, s{S_T1}, 1
    s_add_u32 s{S_PUB}, s{S_PUB}, {WS_KVM - 131072}
    s_add_u32 s{S_MB}, s{S_W2K}, {WS_M}
    s_lshl_b32 s{S_FKV}, s{S_H}, 7
    s_add_u32 s{S_FKV}, s{S_FKV}, {FL_KV}
    s_and_b32 s{S_TX}, s{S_W}, 1
    s_lshl_b32 s{S_TX}, s{S_TX}, 12
    s_cmp_lt_u32 s{S_W}, 2
    s_cselect_b32 s{S_TX}, 0x40000000, s{S_TX}
    """)
    for i in range(4):
        A(f"s_mul_i32 s{S_T0}, s{S_ROT+i}, {RP}\ns_add_u32 s{S_T0}, s{S_T0}, {L_REG}\nv_add_u32 v{V_R[i]}, s{S_T0}, v{L16}")
    A(f"""
    v_mov_b32 v{PUB}, 0
    v_mov_b32 v{PUB+1}, 0
    v_mov_b32 v{PUB+2}, 0
    v_mov_b32 v{PUB+3}, 0
    v_lshlrev_b32 v23, 2, v{L}
    v_and_b32 v23, 16, v23
    v_mov_b32 v33, 0x3f80
    v_lshlrev_b32 v33, v23, v33
    v_bfe_u32 v23, v{L}, 3, 1
    v_and_b32 v34, 1, v{L}
    v_lshl_add_u32 v23, v23, 1, v34
    """)
    for i in range(4):
        A(f"v_cmp_eq_u32 vcc, {i}, v23\nv_cndmask_b32 v{44+i}, 0, v33, vcc")
    A(f"ds_write_b128 v{V_MA}, v[44:47] offset:{L_SEL}")
    vm.wait(wo1)
    for c in range(2):
        for T in range(4):
            for i in range(8):
                A(f"v_mov_b32 v{192 + 8*(4*c+T) + i}, v{RE + 32*c + 4*i + T}")
    stamp(A, cfg, 1); vm.n += bool(cfg.get("prof"))
    ep = cfg.get("ep", 0) if KD[0] else 0
    ua = cfg.get("ua", ep - 4)
    assert not ep or 17 <= ep <= 20
    for u in range(24):
        vm.wait(uid[u])
        if u == 4: vm.wait(m0s)
        A("s_waitcnt lgkmcnt(0)\ns_barrier")
        if u >= 1 and u + 3 < 24: u_issue(u + 3)
        if u == 9 + 8 * qpos: wo2 = wo_raw([2, 3])
        if ep and u == ua:
            vm.issue(f"buffer_load_dwordx2 v[24:25], off, {srd(R_DBG)}, 0 offset:{D_HIST} sc1")
            vm.issue(f"buffer_load_dwordx4 v[32:35], off, {srd(R_DBG)}, 0 offset:{D_ARR} sc1")
            arl = vm.issue(f"buffer_load_dwordx4 v[36:39], off, {srd(R_DBG)}, 0 offset:{D_ARR+16} sc1")
        if ep and u == ep:
            vm.wait(arl)
            vm.issue(f"buffer_load_dwordx4 v[40:43], off, {srd(R_WS)}, s{S_FKV} sc1")
            kfl = vm.issue(f"buffer_load_dwordx4 v[44:47], off, {srd(R_WS)}, s{S_FKV} offset:16 sc1")
        if ep and u == ep + 3:
            vm.wait(kfl)
            A(f"s_add_u32 m0, s{S_RING}, {O_S}")
            for i in range(4): kd0 = vm.issue(kdma(i))
        u_read(u)
        if ep and u == ep + 3:
            A(f'''
            v_sad_u8 v26, v24, 0, 0
            v_sad_u8 v26, v25, 0, v26
            v_lshrrev_b32 v26, 2, v26
            v_min3_u32 v26, v26, v33, v34
            v_min3_u32 v26, v26, v35, v36
            v_min3_u32 v26, v26, v37, v38
            v_min_u32 v26, v26, v39
            v_or_b32 v24, v24, v25
            v_and_b32 v24, 0x80808080, v24
            ''')
            for g in range(7): A(f"v_mad_u32_u24 v{41+g}, v{41+g}, 7, {g}")
            A(f'''
            v_min3_u32 v40, v41, v42, v43
            v_min3_u32 v40, v40, v44, v45
            v_min3_u32 v40, v40, v46, v47
            v_readfirstlane_b32 s{S_T0}, v26
            v_readfirstlane_b32 s{S_SENT}, v24
            v_readfirstlane_b32 s{S_RDY}, v40
            s_cmp_lt_u32 s{S_T0}, 32
            s_cselect_b32 s{S_RDY}, 0, s{S_RDY}
            ''')
        if u == 4:
            A(f"""
            s_cmp_eq_u32 s{S_W}, 3
            s_cbranch_scc0 C_NOH
            s_and_b32 s{S_T0}, s{S_XCC}, 3
            s_lshl_b32 s{S_T0}, s{S_T0}, 3
            s_lshl_b32 s{S_T0}, 4, s{S_T0}
            s_and_b32 s{S_T1}, s{S_XCC}, 4
            v_mov_b32 v23, s{S_T0}
            s_mov_b64 exec, 1
            buffer_atomic_add v23, off, {srd(R_DBG)}, s{S_T1} offset:{D_HIST}
            s_mov_b64 exec, -1
            C_NOH:
            """)
        if u == 8 + 8 * qpos:
            for f in range(16):
                A(f"ds_write_b128 v{V_R[0]}, {v(RE + 4*f, 4)} offset:{O_WQ + f*1024}")
    assert vm.known >= wo2
    A("s_waitcnt lgkmcnt(0)\ns_barrier")
    for fi, (c, T) in enumerate(WOS):
        for i in range(8):
            A(f"v_mov_b32 v{32 + 8*(fi&1) + i}, v{RE + 32*(c-2) + 4*i + T}")
        A(f"ds_write_b128 v{V_R[0]}, {v(32 + 8*(fi&1), 4)} offset:{O_WO + fi*2048}")
        A(f"ds_write_b128 v{V_R[0]}, {v(36 + 8*(fi&1), 4)} offset:{O_WO + fi*2048+1024}")
    wq_prefetch(A, 0, 10 if KD[0] else 14)
    stamp(A, cfg, 2)
    if ep: A(f"s_cmp_gt_u32 s{S_RDY}, 1\ns_cbranch_scc1 C_GO\ns_mov_b32 s{S_RDY}, 0")
    A(f"""
    s_add_u32 m0, s{S_RING}, {O_S}
    C_W0:
    buffer_load_dwordx2 v[24:25], off, {srd(R_DBG)}, 0 offset:{D_HIST} sc1
    buffer_load_dwordx4 v[28:31], off, {srd(R_DBG)}, 0 offset:{D_ARR} sc1
    buffer_load_dwordx4 v[32:35], off, {srd(R_DBG)}, 0 offset:{D_ARR+16} sc1
    """)
    spin_dec(A)
    A(f"""
    s_waitcnt vmcnt(0)
    v_sad_u8 v26, v24, 0, 0
    v_sad_u8 v26, v25, 0, v26
    v_lshrrev_b32 v26, 2, v26
    v_min3_u32 v26, v26, v29, v30
    v_min3_u32 v26, v26, v31, v32
    v_min3_u32 v26, v26, v33, v34
    v_min_u32 v26, v26, v35
    v_readfirstlane_b32 s{S_T0}, v26
    s_cmp_lt_u32 s{S_T0}, 32
    s_cbranch_scc1 C_W0
    v_or_b32 v24, v24, v25
    v_and_b32 v24, 0x80808080, v24
    v_readfirstlane_b32 s{S_SENT}, v24      ; nonzero -> all chain workgroups share one XCC
    """)

def kv_ready(A, s_target, tag):
    A(f"""
    s_cmp_gt_u32 s{S_RDY}, s{s_target}
    s_cbranch_scc1 RDY_OK{tag}
    RDY_P{tag}:
    buffer_load_dwordx4 v[24:27], off, {srd(R_WS)}, s{S_FKV} sc1
    buffer_load_dwordx4 v[28:31], off, {srd(R_WS)}, s{S_FKV} offset:16 sc1
    """)
    spin_dec(A)
    A("s_waitcnt vmcnt(0)")
    for g in range(7):
        A(f"v_mad_u32_u24 v{25+g}, v{25+g}, 7, {g}")
    A(f"""
    v_min3_u32 v24, v25, v26, v27
    v_min3_u32 v24, v24, v28, v29
    v_min3_u32 v24, v24, v30, v31
    s_nop 0
    v_readfirstlane_b32 s{S_RDY}, v24
    s_cmp_gt_u32 s{S_RDY}, s{s_target}
    s_cbranch_scc0 RDY_P{tag}
    RDY_OK{tag}:
    """)

def wqr(f): return f"ds_read_b128 {v(WQS[f >> 1] + 4*(f & 1), 4)}, v{V_R[0]} offset:{O_WQ + f*1024}"
def kdma(i): return f"buffer_load_dwordx4 v{V_KA if i < 2 else V_MA}, {srd(R_WS)}, s{S_KVB} offen offset:{i*1024} sc1 lds"
def wq_prefetch(A, f0=0, f1=14):
    for f in range(f0, f1):
        if KD[0]:
            A(wqr(PFO[f]) if f < 10 else f"ds_read_b128 {v(RKX + 4*(f-10), 4)}, v{V_R[0]} offset:{O_S + (f-10)*1024}")
            continue
        A(f"ds_read_b128 {v(RE + 4*f, 4)}, v{V_R[0]} offset:{O_WQ + f*1024}")

def fold(A, acc, d0, d1):
    A(f"v_pk_add_f32 {v(acc,2)}, {v(acc,2)}, {v(acc+2,2)}")
    A(f"v_pk_add_f32 {v(acc+4,2)}, {v(acc+4,2)}, {v(acc+6,2)}")
    A(f"v_cvt_pk_bf16_f32 v{d0}, v{acc}, v{acc+1}")
    A(f"v_cvt_pk_bf16_f32 v{d1}, v{acc+4}, v{acc+5}")

def delay(A, n):
    while n > 0:
        A(f"s_nop {min(n,16)-1}"); n -= min(n, 16)

ABL = {1: r"buffer_load|buffer_store_dwordx4 v\[12", 2: r"v_mov_b64 v\[\d+:\d+\], 0", 3: r"ds_read_b128 .*offset:(16|17|18|19|2\d|30|31)\d\d\d$",
       4: r"v_smfmac_f32_16x16x64_bf16 v\[10[48]", 5: r"s_barrier", 6: r"v_fmac|v_mul_f32 v10", 7: r"s_waitcnt lgkmcnt",
       9: r"buffer_store_dwordx4 v\[12", 10: r"buffer_load_dword v100", 11: r"buffer_store_dwordx4 v\[12|buffer_load_dword v100",
       8: r"buffer_load|buffer_store_dwordx4 v\[12|v_mov_b64 v\[\d+:\d+\], 0|ds_read_b128 .*offset:(16|17|18|19|2\d|30|31)\d\d\d$"}
def chain_loop(A, cfg, tag, sc):
    fine = cfg.get("prof", 0) >= 2
    P = lambda i: A(f"s_memtime s[{4+2*i}:{5+2*i}]") if fine and (cfg.get("pm", -1) >> i) & 1 else None
    import os
    abl = ABL.get(cfg.get("abl", 0))
    cnt = [0, 2]
    def sl(*ins):
        if fine and "g0" in cfg and cnt[0] >= cfg["g0"] and (cnt[0] - cfg["g0"]) % cfg.get("gs", 4) == 0 and cnt[1] < 18:
            A(f"s_memtime s[{4+2*cnt[1]}:{5+2*cnt[1]}]"); cnt[1] += 1
        cnt[0] += 1
        for x in ins:
            for y in x.split("\n"):
                if abl and re.search(abl, y): continue
                A(y)
    fr = lambda t, R=RA: R + 4 * t
    q = lambda t, ab, R=RA: SM(RQ + 4*ab, fr(t, R), WQ(t, ab))
    k = lambda t, ab, R=RA: SM(RK + 4*ab, fr(t, R), WK(t, ab))
    vv = lambda t, ab, R=RA: SM(RV + 4*ab, fr(t, R), WV(t, ab))
    rd = lambda t: f"ds_read_b128 {v(fr(t),4)}, v{V_R[t>>1]} offset:{O_A + (t&1)*1024}"
    def wo(c, T, hf):
        fi = list(WOS).index((c, T))
        return f"ds_read_b128 {v(WOS[(c, T)] + 4*hf, 4)}, v{V_R[0]} offset:{O_WO + fi*2048 + hf*1024}"
    add = lambda acc, i: f"v_add_f32 v{acc+i}, v{acc+i}, v{acc+2+i}"
    cvt = lambda d, s_: f"v_cvt_pk_bf16_f32 v{d}, v{s_}, v{s_+1}"
    z = lambda r: f"v_mov_b64 {v(r,2)}, 0"
    lg = lambda n: f"s_waitcnt lgkmcnt({n})"
    def m_loads(R):
        A(f"buffer_load_dwordx4 {v(R,4)}, v{V_MA}, {srd(R_WS)}, s{S_MB} offen sc1")
        A(f"buffer_load_dwordx4 {v(R+4,4)}, v{V_MA}, {srd(R_WS)}, s{S_MB} offen offset:1024 sc1")
    kvl = lambda i: f"buffer_load_dwordx4 {v(RKX+4*i,4)}, v{V_KA if i < 2 else V_MA}, {srd(R_WS)}, s{S_KVB} offen offset:{i*1024} sc1"
    TCH, SX, PX, PM, ON, QF, KF = 100, 96, 100, 18, 20, 48, 56
    SA, LL, O0, O1, OP, SEL = 24, 28, 32, 36, 40, 44
    pub = f"buffer_store_dwordx4 {v(PUB,4)}, v{V_MA}, {srd(R_WS)}, s{S_PUB} offen sc1"
    mulc = lambda r: f"v_mul_f32 v{r}, s{S_C}, v{r}"
    fw = lambda r, off: f"ds_write_b32 v{V_FW}, v{r} offset:{off}"
    tr = lambda r, off: f"ds_read_b64_tr_b16 {v(r,2)}, v{V_FR} offset:{off}"
    ad = lambda r, i: f"v_add_f32_dpp v{r+2+i}, v{r+i}, v{r+2+i} {DPP('0,1,0,1')}"
    exd = lambda r, i: f"v_exp_f32_dpp v{r+i}, v{r+2+i} {DPP('2,3,2,3')}"
    tw = cfg.get("tw", 0)
    kd = KD[0]
    def dump():
        if fine:
            P(18)
            A(f"s_cmp_eq_u32 s{S_S}, {cfg.get('pstep', 41)}\ns_cbranch_scc0 NODUMP{tag}\ns_waitcnt lgkmcnt(0) vmcnt(0)")
            for i in range(19): A(f"v_writelane_b32 v26, s{4+2*i}, {i}")
            A(f"v_lshrrev_b32 v27, 2, v{V_MA}\nbuffer_store_dword v26, v27, {srd(R_WS)}, s{S_PROF} offen offset:512\ns_waitcnt vmcnt(0)\nNODUMP{tag}:")
            P(0)
    def norm(fast):
        o = (lambda *x: x) if fast else (lambda *x: ())
        sl(*o(f"v_max_f32 v{LL}, v{LL}, v{LL+2}", f"v_cmp_lt_f32 vcc, s{S_THR}, v{LL}"))
        for i in range(2): A(f"v_pk_mul_f32 {v(O0+2*i,2)}, {v(O0+2*i,2)}, {v(LL+2,2)} op_sel_hi:[1,0]")
        sl(cvt(OP, O0), cvt(OP + 1, O0 + 2))
        if fast: P(11)
        for i in range(2): A(f"v_pk_mul_f32 {v(O1+2*i,2)}, {v(O1+2*i,2)}, {v(LL+2,2)} op_sel_hi:[1,0]")
        sl(cvt(OP + 2, O1), cvt(OP + 3, O1 + 2), f"ds_write_b128 v{V_R[0]}, {v(OP,4)} offset:{O_A}")
    if cfg.get("ph"):
        KF, CK = 88, 28
        ml = lambda sg: f"buffer_load_dwordx4 {v(RA+4*sg,4)}, v{V_MA}, {srd(R_WS)}, s{S_MB} offen offset:{1024*sg} sc1"
        chk = lambda sg: [f"v_max3_u32 v{CK}, v{RA+4*sg}, v{RA+4*sg+1}, v{RA+4*sg+2}", f"v_max_u32 v{CK}, v{CK}, v{RA+4*sg+3}",
                          f"ds_write_b128 v{V_R[0]}, {v(RA+4*sg,4)} offset:{O_A+1024*sg}"]
        cmpv = f"v_cmp_eq_u32 vcc, -1, v{CK}"
        dp = [[1, 17, 19, 21, 23], [1, 3, 6, 17, 20], [1, 2, 4, 6, 8], [1, 3, 17, 19, 21], [17, 1, 3, 19, 21]][cfg.get("dpos", 0)]
        vops = [pub, kdma(0), kdma(1), kdma(2), kdma(3)]
        ex = lambda n: [vops[dp.index(n)]] if n in dp else []
        A(f"LOOP{tag}:")
        A(ml(0))
        dump()
        for i in range(4): A(z(RV + 2*i))
        A(f"s_waitcnt vmcnt({3 if cfg.get('prof') else 2}) lgkmcnt(0)")
        for i in range(4): A(z(RK + 2*i))
        delay(A, cfg.get("dm1", 16))
        A(f"MP{tag}:")
        A(ml(0))
        spin_dec(A)
        A("s_nop 2")
        for i in range(4): A(z(RQ + 2*i))
        A("s_waitcnt vmcnt(1)")
        P(1)
        sl(*chk(0))
        sl(q(0, 0), cmpv)
        sl(q(0, 1), f"s_cbranch_vccnz MP{tag}", ml(1))
        sl(k(0, 0), wqr(6))
        sl(k(0, 1), wqr(7), lg(2)); A("s_barrier"); P(2)
        sl(rd(2), rd(4), rd(6))
        sl(vv(0, 0), ml(1))
        sl(vv(0, 1), wqr(14), lg(3))
        sl(q(2, 0), wqr(15), lg(3))
        sl(q(4, 0), lg(2))
        sl(q(6, 0), wqr(12))
        sl(q(2, 1), wqr(13), "s_waitcnt vmcnt(1)", *chk(1))
        sl(q(4, 1), cmpv)
        sl(q(6, 1), f"s_cbranch_vccnz MR{tag}")
        A(f"MC{tag}:")
        P(9)
        ke = [k(2, 0), k(4, 0), k(6, 0), k(2, 1), k(4, 1), k(6, 1)]
        npre = cfg.get("npre", 2)
        sl(q(1, 0), f"s_cmp_eq_u32 s{S_S}, 63")
        sl(q(1, 1))
        sl(k(1, 0))
        sl(k(1, 1))
        for x in ke[:npre]: sl(x)
        A(lg(0)); A("s_barrier"); P(3)
        sl(rd(3), rd(5), rd(7))
        for i, x in enumerate(ke[npre:]): sl(x, *ex(i + 1 - (2 - npre)))
        sl("s_cbranch_scc1 C_LAST", lg(2))
        sl(q(3, 0), wo(2, 0, 0), *ex(5), lg(2))
        sl(q(5, 0), wo(2, 0, 1), *ex(6), lg(2))
        sl(q(7, 0), wo(3, 0, 0), *ex(7))
        sl(q(3, 1), wo(3, 0, 1), *ex(8))
        sl(q(5, 1), add(RQ, 0))
        sl(q(7, 1), add(RQ, 1))
        sl(k(3, 0), mulc(RQ))
        sl(k(5, 0), mulc(RQ + 1), add(RQ + 4, 0))
        sl(k(7, 0), cvt(RQ + 2, RQ), fw(RQ + 2, 2048), add(RQ + 4, 1))
        sl(k(3, 1), mulc(RQ + 4), mulc(RQ + 5))
        sl(k(5, 1), cvt(RQ + 6, RQ + 4), fw(RQ + 6, 2560), add(RK, 0))
        sl(k(7, 1), add(RK, 1), *(ex(17) if dp[0] == 17 else []), cvt(PUB, RK), fw(PUB, 0))
        P(4)
        sl(vv(1, 0), *(ex(17) if dp[0] != 17 else []), z(RQ))
        sl(vv(1, 1), add(RK + 4, 0), add(RK + 4, 1), cvt(PUB + 2, RK + 4), fw(PUB + 2, 512))
        sl(vv(2, 0), *ex(19), z(RQ + 2))
        sl(vv(2, 1), *ex(20), z(RQ + 4))
        sl(vv(3, 0), *ex(21), z(RQ + 6))
        sl(vv(4, 0), lg(0), "s_barrier", tr(QF, 2048), tr(QF + 2, 2560))
        P(5)
        sl(vv(5, 0), tr(QF + 4, 3072), tr(QF + 6, 3584), tr(KF, 0), tr(KF + 2, 512))
        sl(vv(6, 0), tr(KF + 4, 1024), tr(KF + 6, 1536), f"v_min_u32 v{PUB}, -2, v{PUB}")
        sl(vv(7, 0), *ex(23), f"s_add_u32 s{S_KVB}, s{S_KVB}, 0x80000", z(RK))
        sl(vv(3, 1), "s_waitcnt vmcnt(5) lgkmcnt(6)", z(RK + 2))
        sl(MF(SX, RKX, QF, 0), lg(4), f"v_mov_b64 {v(ON,2)}, s[{S_ON}:{S_ON+1}]", add(RV, 0))
        sl(MF(SX, RKX + 4, QF + 4, v(SX, 4)), lg(2), add(RV, 1), f"v_mov_b64 {v(ON+2,2)}, s[{S_ON}:{S_ON+1}]")
        sl(MF(SA, KF, QF, 0), lg(0), cvt(PUB + 1, RV), f"v_mov_b32 v{PM}, 0", wo(2, 2, 0))
        sl(MF(SA, KF + 4, QF + 4, v(SA, 4)), wo(2, 2, 1), ad(SX, 0), ad(SX, 1))
        sl(vv(4, 1), exd(SX, 0), exd(SX, 1))
        sl(vv(5, 1), cvt(SX, SX), f"ds_write_b32 v{V_PW}, v{SX} offset:{L_PX}")
        P(6)
        sl(vv(6, 1), ad(SA, 0), ad(SA, 1), f"s_add_u32 s{S_PUB}, s{S_PUB}, 0x20000")
        sl(vv(7, 1), exd(SA, 0), exd(SA, 1), z(RK + 4), cvt(PM + 1, SA))
        sl(lg(0), "s_barrier", f"ds_read_b128 {v(PX,4)}, v{V_MA} offset:{L_PX}")
        P(7)
        def pv(fast):
            o = (lambda *x: x) if fast else (lambda *x: ())
            if not fast: sl(exd(SA, 0), exd(SA, 1), cvt(PM + 1, SA))
            sl(MH(LL, ON, PM, 0), *o(add(RV + 4, 0), add(RV + 4, 1), wo(2, 1, 0)))
            sl(MH(O0, PUB, PM, 0), *o(cvt(PUB + 3, RV + 4), z(RK + 6), wo(2, 1, 1)))
            sl(MH(O1, PUB + 2, PM, 0), *o(wo(3, 1, 0), lg(3)))
            if fast: P(8)
            sl(MF(LL, ON, PX, v(LL, 4)), *o(wo(3, 1, 1)))
            sl(MF(O0, RVX, PX, v(O0, 4)), *o(wo(3, 2, 0)))
            sl(MF(O1, RVX + 4, PX, v(O1, 4)), *o(wo(3, 2, 1)), f"v_rcp_f32 v{LL+2}, v{LL}")
            if fast: P(10)
            norm(fast)
        pv(True)
    else:
        A(f"LOOP{tag}:")
        delay(A, cfg.get("dm0", 0))
        m_loads(RA)
        if fine:
            P(18)
            A(f"s_cmp_eq_u32 s{S_S}, {cfg.get('pstep', 41)}\ns_cbranch_scc0 NODUMP{tag}\ns_waitcnt lgkmcnt(0) vmcnt(0)")
            for i in range(19): A(f"v_writelane_b32 v26, s{4+2*i}, {i}")
            A(f"v_lshrrev_b32 v27, 2, v{V_MA}\nbuffer_store_dword v26, v27, {srd(R_WS)}, s{S_PROF} offen offset:512\ns_waitcnt vmcnt(0)\nNODUMP{tag}:")
            P(0)
        for i in range(4): A(z(RV + 2*i))
        A(f"s_waitcnt vmcnt({4 if cfg.get('prof') else 3}) lgkmcnt(0)")
        for i in range(4): A(z(RK + 2*i))
        delay(A, cfg.get("dm1", 16))
        A(f"MP{tag}:")
        m_loads(RA)
        spin_dec(A)
        A(f"s_cmp_eq_u32 s{S_S}, 63")
        for i in (2, 3, 0, 1): A(z(RQ + 2*i))
        A("s_waitcnt vmcnt(3)")
        sl(f"v_max3_u32 v25, v{RA}, v{RA+1}, v{RA+2}", f"v_max_u32 v25, v25, v{RA+3}")
        sl(q(0, 0), f"ds_write_b128 v{V_R[0]}, {v(RA,4)} offset:{O_A}", "s_waitcnt vmcnt(2)")
        P(1)
        sl(f"v_max3_u32 v25, v25, v{RA+4}, v{RA+5}", f"v_max3_u32 v25, v25, v{RA+6}, v{RA+7}", f"v_cmp_eq_u32 vcc, -1, v25")
        sl(q(0, 1), f"ds_write_b128 v{V_R[0]}, {v(RA+4,4)} offset:{O_A+1024}")
        sl(q(1, 0), f"s_cbranch_vccnz MP{tag}")
        if kd:
            dp = [[1, 4, 7, 10, 13], [1, 3, 5, 7, 9], [5, 8, 11, 14, 17], [1, 2, 3, 4, 5], [1, 17, 19, 21, 24], [1, 13, 17, 19, 21], [1, 5, 17, 19, 21]][cfg.get("dpos", 0)]
            vops = [kdma(0), kdma(1), kdma(2), kdma(3), pub] if cfg.get("pe", 1) == 1 else [pub, kdma(0), kdma(1), kdma(2), kdma(3)]
            if "nd" in cfg: vops = [x if i <= cfg["nd"] else "s_nop 0" for i, x in enumerate(vops)]
            ex = lambda n: [vops[dp.index(n)]] if n in dp else []
            sl(q(1, 1))
            sl(vv(0, 0))
            sl(vv(0, 1), lg(0)); P(2); A("s_barrier"); P(3)
            sl(rd(2), rd(4))
            sl(vv(1, 0), rd(5), *ex(1))
            sl(vv(1, 1), rd(6), *ex(2))
            sl(k(0, 0), rd(7), *ex(3))
            sl(k(0, 1), rd(3), *ex(4), "s_cbranch_scc1 C_LAST", lg(5))
            sl(q(2, 0), wqr(12), *ex(5), lg(5))
            sl(q(4, 0), wqr(13), *ex(6), lg(5))
            sl(q(5, 0), wqr(10), *ex(7), lg(5))
            sl(q(6, 0), wqr(11), *ex(8), lg(5))
            sl(q(7, 0), wqr(14), *ex(9), lg(3))
            sl(q(3, 0), wqr(15), *ex(10))
            sl(q(4, 1), wo(2, 0, 0), *ex(11))
            sl(q(5, 1), wo(2, 0, 1), *ex(12), add(RQ, 0))
            sl(q(6, 1), wo(3, 0, 0), *ex(13), add(RQ, 1), lg(5))
            sl(q(2, 1), wo(3, 0, 1), *ex(14), mulc(RQ))
            sl(q(7, 1), *ex(15), mulc(RQ + 1), lg(4))
            sl(q(3, 1), wo(2, 1, 0), *ex(16), cvt(RQ + 2, RQ))
        else:
            sl(q(1, 1), f"ds_read_b128 {v(RE,4)}, v{V_R[0]} offset:{O_WQ + 14*1024}")
            sl(vv(0, 0), f"ds_read_b128 {v(RE+4,4)}, v{V_R[0]} offset:{O_WQ + 15*1024}")
            sl(vv(0, 1), lg(2)); P(2); A("s_barrier"); P(3)
            sl(rd(2), rd(3))
            sl(vv(1, 0), rd(4), kvl(0))
            sl(vv(1, 1), rd(5))
            sl(k(0, 0), rd(6))
            sl(k(0, 1), rd(7), "s_cbranch_scc1 C_LAST", lg(5))
            sl(q(2, 0), kvl(1), lg(4))
            sl(q(3, 0), lg(3))
            sl(q(4, 0), lg(2))
            sl(q(5, 0), lg(1), f"v_lshl_add_u32 v{TCH}, v{V_MA}, 3, s{S_TX}" if tw else f"v_lshlrev_b32 v{TCH}, 2, v{V_MA}")
            sl(q(6, 0), kvl(2), lg(0))
            sl(q(7, 0), wo(2, 0, 0))
            sl(q(2, 1), wo(2, 0, 1))
            sl(q(3, 1), wo(3, 0, 0), add(RQ, 0))
            sl(q(4, 1), kvl(3), add(RQ, 1))
            sl(q(5, 1), wo(3, 0, 1), f"s_add_u32 s{S_KVB}, s{S_KVB}, 0x80000", mulc(RQ))
            sl(q(6, 1), wo(2, 1, 0), mulc(RQ + 1), *([f"s_sub_u32 s{S_TB}, s{S_KVB}, 8192"] if tw else []))
            sl(q(7, 1), wo(2, 1, 1), cvt(RQ + 2, RQ))
        P(4)
        sl(k(1, 0), fw(RQ + 2, 2048), z(RQ), *([wo(2, 1, 1)] + ex(17) if kd else []))
        sl(k(2, 0), add(RQ + 4, 0), add(RQ + 4, 1), mulc(RQ + 4), mulc(RQ + 5), cvt(RQ + 6, RQ + 4), fw(RQ + 6, 2560))
        tch = lambda o=0: f"buffer_load_dword v{TCH}, {srd(R_WS)}, s{S_TB if tw else S_KVB} offen offset:{o} sc1 lds"
        if cfg.get("at"):
            tch = lambda o=0: f"buffer_atomic_or v{RQ}, v{TCH}, {srd(R_WS)}, s{S_TB if tw else S_KVB} offen offset:{o}" + [""," sc1"][cfg["at"]-1]
        pe = cfg.get("pe", 1)
        nx = 1 if tw == 2 else 0
        sl(k(3, 0), *(ex(19) if kd else [pub if pe == 2 else tch()]), z(RQ + 2))
        sl(k(4, 0), z(RQ + 4), *([tch(64)] if nx else []))
        sl(k(5, 0), *(ex(21) if kd else [tch()] if pe == 2 else [pub] if pe else []), z(RQ + 6))
        sl(k(6, 0), lg(0), "s_barrier", tr(QF, 2048), tr(QF + 2, 2560))
        if cfg.get("ack5"): A("s_waitcnt vmcnt(0)")
        P(5)
        sl(k(7, 0), tr(QF + 4, 3072), tr(QF + 6, 3584))
        sl(k(1, 1), *(ex(24) + [f"s_add_u32 s{S_KVB}, s{S_KVB}, 0x80000"] if kd else []))
        sl(k(2, 1), add(RK, 0))
        sl(k(3, 1), "s_waitcnt vmcnt(5) lgkmcnt(2)" if kd else f"s_waitcnt vmcnt({nx + (4 if pe else 3)}) lgkmcnt(2)", add(RK, 1))
        sl(MF(SX, RKX, QF, 0), lg(0), cvt(RK + 2, RK), f"v_mov_b64 {v(ON,2)}, s[{S_ON}:{S_ON+1}]")
        sl(MF(SX, RKX + 4, QF + 4, v(SX, 4)), fw(RK + 2, 0), z(RK), f"v_mov_b64 {v(ON+2,2)}, s[{S_ON}:{S_ON+1}]")
        sl(k(4, 1), f"v_mov_b32 v{PM}, 0")
        sl(k(5, 1), ad(SX, 0))
        sl(k(6, 1), ad(SX, 1))
        sl(k(7, 1), exd(SX, 0))
        sl(vv(2, 0), exd(SX, 1))
        sl(vv(3, 0), add(RK + 4, 0), add(RK + 4, 1), cvt(RK + 6, RK + 4), fw(RK + 6, 512), cvt(SX, SX))
        P(6)
        sl(vv(4, 0), f"ds_write_b32 v{V_PW}, v{SX} offset:{L_PX}", z(RK + 4))
        sl(vv(5, 0))
        sl(vv(6, 0))
        sl(vv(7, 0))
        sl(vv(2, 1), lg(0), "s_barrier", tr(KF, 0), tr(KF + 2, 512))
        P(7)
        sl(vv(3, 1), tr(KF + 4, 1024), tr(KF + 6, 1536), add(RV, 0))
        sl(vv(4, 1), f"ds_read_b128 {v(PX,4)}, v{V_MA} offset:{L_PX}", add(RV, 1))
        sl(vv(5, 1), *([] if pe else [pub]))
        sl(vv(6, 1), f"s_add_u32 s{S_PUB}, s{S_PUB}, 0x20000", cvt(PUB + 1, RV))
        sl(vv(7, 1), lg(3), f"v_min_u32 v{PUB}, -2, v{RK+2}")
        P(8)
        sl(MF(SA, KF, QF, 0), lg(1), f"v_mov_b32 v{PUB+2}, v{RK+6}", z(RK + 2))
        sl(MF(SA, KF + 4, QF + 4, v(SA, 4)), lg(0) if kd else f"s_waitcnt vmcnt({nx + 2}) lgkmcnt(0)", z(RK + 6), add(RV + 4, 0))
        if cfg.get("ack9"): A("s_waitcnt vmcnt(0)")
        P(9)
        def pv(fast):
            o = (lambda *x: x) if fast else (lambda *x: ())
            sl(MF(LL, ON, PX, 0), *o(wo(3, 1, 0), add(RV + 4, 1), cvt(PUB + 3, RV + 4), wo(3, 1, 1), ad(SA, 0), ad(SA, 1)))
            sl(MF(O0, RVX, PX, 0), exd(SA, 0), exd(SA, 1))
            sl(MF(O1, RVX + 4, PX, 0), cvt(PM + 1, SA), *o(wo(2, 2, 0), wo(2, 2, 1)))
            if fast: P(10)
            sl(MH(LL, ON, PM, v(LL, 4)), *o(wo(3, 2, 0)))
            sl(MH(O0, PUB, PM, v(O0, 4)), *o(wo(3, 2, 1)))
            sl(MH(O1, PUB + 2, PM, v(O1, 4)), f"v_rcp_f32 v{LL+2}, v{LL}")
            sl(*o(f"v_max_f32 v{LL}, v{LL}, v{LL+2}", f"v_cmp_lt_f32 vcc, s{S_THR}, v{LL}"))
            if cfg.get("pk0", 1):
                for i in range(2): A(f"v_pk_mul_f32 {v(O0+2*i,2)}, {v(O0+2*i,2)}, {v(LL+2,2)} op_sel_hi:[1,0]")
            else:
                for i in range(4): A(f"v_mul_f32 v{O0+i}, v{O0+i}, v{LL+2}")
            sl(cvt(OP, O0), cvt(OP + 1, O0 + 2))
            if fast: P(11)
            for i in range(2): A(f"v_pk_mul_f32 {v(O1+2*i,2)}, {v(O1+2*i,2)}, {v(LL+2,2)} op_sel_hi:[1,0]")
            sl(cvt(OP + 2, O1), cvt(OP + 3, O1 + 2), f"ds_write_b128 v{V_R[0]}, {v(OP,4)} offset:{O_A}")
        pv(True)
    A(f"s_cbranch_vccnz {'FRET' if abl else 'FBK'}{tag}\nFRET{tag}:")
    OF = [OP, 64, 68, 24]
    so = lambda c, T: SM(RQ + 4*T, OF[c], WO(c, T))
    sl(so(0, 0), f"s_add_u32 s{S_S}, s{S_S}, 1", f"s_and_b32 s{S_T0}, s{S_S}, 3", f"s_lshl_b32 s{S_T0}, s{S_T0}, 13")
    sl(so(0, 1), f"s_add_u32 s{S_MW}, s{S_T0}, {WS_M}", f"s_add_u32 s{S_MB}, s{S_MW}, s{S_W2K}", f"s_xor_b32 s{S_MR}, s{S_MW}, 0x4000")
    sl(so(0, 2), f"s_cmp_lt_u32 s{S_W}, 2", lg(0)); P(12); A("s_barrier"); P(13)
    for c in range(1, 4): A(f"ds_read_b128 {v(OF[c],4)}, v{V_R[c]} offset:{O_A}")
    sl(so(0, 3), wo(2, 3, 0), wo(2, 3, 1), lg(4))
    PK = 32
    pk = lambda i: cvt(PK + i, RQ + 2*i)
    tg = lambda sg: f"v_and_or_b32 v{PK+4*sg}, v{PK+4*sg}, -2, s{S_TAG}"
    ps = lambda sg: f"buffer_store_dwordx4 {v(PK+4*sg,4)}, v{V_PST}, {srd(R_WS)}, s{S_PR1 if sg else S_PW} offen {sc}"
    sl(so(1, 0), lg(3))
    sl(so(2, 0), lg(2), f"v_mov_b32 v42, -1")
    sl(so(3, 0), wo(3, 3, 0))
    sl(so(1, 1), wo(3, 3, 1))
    sl(so(2, 1), f"ds_read_b128 {v(SEL,4)}, v{V_MA} offset:{L_SEL}", pk(0))
    sl(so(3, 1), tg(0))
    sl(so(1, 2), pk(1))
    sl(so(2, 2), pk(2), pk(3), ps(0))
    P(14)
    sl(so(3, 2), lg(0))
    sl(so(1, 3))
    sl(so(2, 3), pk(4))
    sl(so(3, 3), tg(1), pk(5))
    sl(pk(6), pk(7), ps(1))
    P(15)
    n0 = cfg.get("n0", 14)
    wq_prefetch(A, 0, n0)
    A(f"s_cbranch_scc1 RED{tag}")
    if fine and cfg.get("ack"):
        A("s_waitcnt vmcnt(2)"); P(16); A(f"s_waitcnt vmcnt({2 - cfg['ack']})"); P(17)
    if kd: A("s_waitcnt vmcnt(2)")
    wq_prefetch(A, n0, 14)
    A(f"""
    buffer_store_dword v42, v{V_MST}, {srd(R_WS)}, s{S_MR} offen {sc}
    s_cmp_eq_u32 s{S_W}, 3
    s_cbranch_scc0 JOIN{tag}
    s_add_u32 s{S_T3}, s{S_S}, 1
    s_min_u32 s{S_T3}, s{S_T3}, 63
    """)
    kv_ready(A, S_T3, tag)
    A(f"""
    JOIN{tag}:
    s_xor_b32 s{S_TAG}, s{S_TAG}, 1
    s_waitcnt lgkmcnt(0)
    s_barrier
    s_branch LOOP{tag}
    """)
    if cfg.get("ph"):
        A(f"MR{tag}:")
        A(ml(1))
        spin_dec(A)
        A("s_waitcnt vmcnt(1)")
        for x in chk(1) + [cmpv]: A(x)
        A(f"s_cbranch_vccnz MR{tag}\ns_branch MC{tag}")
    A(f"""
    FBK{tag}:
    """)
    X = 104 - 8 * 9
    for r in (SX + 2, SX + 3, SA + 2, SA + 3): A(f"v_mov_b32_dpp v{r}, v{r} {DPP('2,3,2,3')}")
    A(f"""
    ds_write_b32 v{V_PW}, v{SX+2} offset:{L_PX + 1024}
    ds_write_b32 v{V_PW}, v{SX+3} offset:{L_PX + 2048}
    s_waitcnt lgkmcnt(0)
    s_barrier
    ds_read_b128 {v(X,4)}, v{V_MA} offset:{L_PX + 1024}
    ds_read_b128 {v(X+4,4)}, v{V_MA} offset:{L_PX + 2048}
    v_max_f32 v{LL}, v{SA+2}, v{SA+3}
    s_waitcnt lgkmcnt(0)
    """)
    for i in range(4): A(f"v_max3_f32 v{LL}, v{LL}, v{X+2*i}, v{X+2*i+1}")
    xG(A, LL, LL + 1, "v_max_f32")
    for r in list(range(X, X + 8)) + [SA + 2, SA + 3]: A(f"v_sub_f32 v{r}, v{r}, v{LL}")
    for i in range(8): A(f"v_exp_f32 v{X+i}, v{X+i}")
    for i in range(4): A(f"v_cvt_pk_bf16_f32 v{PX+i}, v{X+i}, v{X+4+i}")
    pv(False)
    A(f"s_branch FRET{tag}")
    PB, PA = 24, 20
    A(f"""
    RED{tag}:
    s_cmp_eq_u32 s{S_W}, 0
    """)
    if cfg.get("dp0", -1) >= 0:
        delay(A, cfg["dp0"])
        A(f"s_cbranch_scc1 PP{tag}")
        delay(A, cfg.get("dp1", 0))
    elif cfg.get("pw", 0) == 1:
        delay(A, cfg.get("dpw", 0))
        A("s_waitcnt vmcnt(0)")
    else:
        delay(A, cfg.get("dpw", 0))
        A(f"""
        s_waitcnt vmcnt(1)
        s_cbranch_scc1 PP{tag}
        s_waitcnt vmcnt(0)
        """)
    def pl(B):
        for i in range(4):
            A(f"buffer_load_dwordx4 {v(B+4*i,4)}, v{V_MA}, {srd(R_WS)}, s{S_PR0} offen offset:{i*1024} sc1")
    def pr(B, nb, br=None):
        for i in range(4):
            A(f"s_waitcnt vmcnt({nb+3-i})")
            A(MF(PA, SEL, B + 4*i, "0" if i == 0 else v(PA, 4)))
            if i == 1: A(f"v_bitop3_b32 v40, v{B}, v{B+4}, s{S_TAG} bitop3:0x7e")
        A(f"""
        v_bitop3_b32 v41, v{B+8}, v{B+12}, s{S_TAG} bitop3:0x7e
        v_bitop3_b32 v40, v40, 1, v41 bitop3:0xc8
        v_cmp_ne_u32 vcc, 0, v40
        {br or ''}
        """)
        if br and "s_branch" in br: return
        A(f"""
        v_add_f32_dpp v{PA}, v{PA}, v{PA} row_ror:8 row_mask:0xf bank_mask:0xf
        v_add_f32_dpp v{PA+1}, v{PA+1}, v{PA+1} row_ror:8 row_mask:0xf bank_mask:0xf
        v_cvt_pk_bf16_f32 v41, v{PA}, v{PA+1}
        v_min_u32 v41, -2, v41
        """)
    A(f"PP{tag}:")
    if cfg.get("ps", 2) == 2:
        pl(PB)
        P(16)
        wq_prefetch(A, n0, 14)
        delay(A, cfg.get("dp2", 20))
        A(f"PQ{tag}:")
        pl(RQ)
        if cfg.get("eb", 0):
            pr(PB, 4, f"s_cbranch_vccnz PF{tag}\nPD{tag}:")
        else:
            pr(PB, 4)
            A(f"s_cbranch_vccnz PF{tag}\nPD{tag}:")
    else:
        pl(PB)
        P(16)
        spin_dec(A)
        pr(PB, 0)
        A(f"s_cbranch_vccnz PP{tag}")
    A(f"""
    buffer_store_dword v41, v{V_MST}, {srd(R_WS)}, s{S_MW} offen {sc}
    """)
    P(17)
    A(f"""
    s_barrier
    s_xor_b32 s{S_TAG}, s{S_TAG}, 1
    """)
    if cfg.get("prof"):
        A(f"""
        s_memtime s[{S_TS}:{S_TS+1}]
        s_lshl_b32 s{S_T0}, s{S_S}, 2
        s_add_u32 s{S_T0}, s{S_T0}, s{S_PROF}
        s_waitcnt lgkmcnt(0)
        v_mov_b32 v43, s{S_TS}
        s_mov_b64 exec, 1
        buffer_store_dword v43, off, {srd(R_WS)}, s{S_T0} offset:64
        s_mov_b64 exec, -1
        """)
    A(f"s_branch LOOP{tag}")
    if cfg.get("ps", 2) == 2:
        A(f"PF{tag}:")
        pl(PB)
        spin_dec(A)
        if cfg.get("eb", 0):
            pr(RQ, 4, f"s_cbranch_vccnz PQ{tag}\ns_nop 7\ns_branch PD{tag}")
        else:
            pr(RQ, 4)
            A(f"s_cbranch_vccz PD{tag}\ns_branch PQ{tag}")

def chain(A, cfg):
    cfg["vt"] = 23
    KD[0] = cfg.get("kd", 0)
    if cfg.get("ph"):
        WQS[:] = [48, 88, 72, 88, 96, 80, 96, 48]
        PFO[:] = [0, 1, 2, 3, 8, 9, 10, 11, 4, 5]
    assert cfg.get("n0", 14) <= 10 or not KD[0]
    chain_init(A, cfg)
    A(f"s_mov_b32 s{S_T3}, 1")
    kv_ready(A, S_T3, "I")
    if KD[0]:
        for i in range(4): A(kdma(i))
        A(f"C_GO:\ns_add_u32 s{S_KVB}, s{S_KVB}, 0x80000\ns_waitcnt vmcnt(0)")
        wq_prefetch(A, 10, 14)
    stamp(A, cfg, 3)
    A(f"s_waitcnt lgkmcnt(0)\ns_barrier\ns_cmp_eq_u32 s{S_SENT}, 0\ns_cbranch_scc1 LOOPS")
    chain_loop(A, cfg, "F", "")
    chain_loop(A, cfg, "S", "sc1")
    A("C_LAST:")
    A(f"buffer_store_dwordx4 {v(PUB,4)}, v{V_MA}, {srd(R_WS)}, s{S_PUB} offen sc1")
    A(f"s_add_u32 s{S_PUB}, s{S_PUB}, 0x20000")
    A("s_waitcnt lgkmcnt(0)")
    for t in range(1 if cfg.get("ph") else 2, 8):
        for ab in range(2): A(SM(RV + 4*ab, RA + 4*t, WV(t, ab)))
    for t in ((3, 5, 7) if cfg.get("ph") else range(1, 8)):
        for ab in range(2): A(SM(RK + 4*ab, RA + 4*t, WK(t, ab)))
    fold(A, RV, 73, 75)
    fold(A, RK, 72, 74)
    A(f"v_min_u32 v72, -2, v72")
    A(f"buffer_store_dwordx4 v[72:75], v{V_MA}, {srd(R_WS)}, s{S_PUB} offen sc1")
    cfg["vt"] = 76
    stamp(A, cfg, 4)
    A("s_waitcnt vmcnt(0)")
```

```python
import re
from common import *
from worker import stamp, spin_dec, xG

L_PX, L_SEL, L_F, L_REG, RP = 0, 0xC00, 0x1000, 0x2000, 0x9800
O_WQ, O_WO, O_A, O_S = 0, 0x4000, 0x8000, 0x8800
L_DUMMY = L_REG + O_S
V_IDX, V_MA, V_KA, V_FW, V_FR, V_PW, V_PST, V_MST = 0, 1, 2, 3, 4, 5, 6, 7
V_R = [8, 9, 10, 11]
PUB = 12
RA, RE, RV, RQ, RK, ALT = 16, 48, 104, 112, 120, 40
RKX, RVX = 56, 64
S_S, S_RING, S_ROT = 64, 65, 66
S_RDY, S_PW, S_MB, S_KVB, S_MW, S_PUB, S_TAG, S_FKV = 70, 71, 72, 73, 74, 75, 76, 77
S_C, S_THR = 78, 79
S_B1, S_ON, S_HF = 80, 82, 90
S_SENT, S_PR0, S_PR1, S_W2K, S_MR = 84, 85, 86, 87, 88
S_TX, S_TB = 92, 93

KD = [0]
WQS = [48, 88, 96, 72, 80, 88, 96, 48]
PFO = list(range(10))
def WQ(t, ab): return v(WQS[2 * t + ab] if KD[0] else RE + 8 * ((2 * t + ab) % 7), 8) if t < 4 else v(128 + 8 * (2 * (t - 4) + ab), 8)
def WK(t, ab): return a(8 * (2 * t + ab), 8)
def WV(t, ab): return a(128 + 8 * (2 * t + ab), 8)
WOS = {(2, 0): 72, (3, 0): 80, (2, 1): 88, (3, 1): 48, (2, 2): 56, (3, 2): 104, (2, 3): 96, (3, 3): 16}
def WO(c, T): return v(192 + 8 * (4 * c + T), 8) if c < 2 else v(WOS[(c, T)], 8)
def SM(d, aa, b): return f"v_smfmac_f32_16x16x64_bf16 {v(d,4)}, {v(aa,4)}, {b}, v{V_IDX}"
def MF(d, aa, b, c): return f"v_mfma_f32_16x16x32_bf16 {v(d,4)}, {v(aa,4)}, {v(b,4)}, {c}"
def MH(d, aa, b, c): return f"v_mfma_f32_16x16x16_bf16 {v(d,4)}, {v(aa,2)}, {v(b,2)}, {c}"
DPP = lambda p: f"quad_perm:[{p}] row_mask:0xf bank_mask:0xf"

def chain_init(A, cfg):
    L, L16 = 20, 21
    vm = VM(A)
    A(f"""
    CHAIN:
    v_mov_b32 v{L}, v1
    v_mov_b32 v{L16}, v2
    s_mul_i32 s{S_RING}, s{S_W}, {RP}
    s_add_u32 s{S_RING}, s{S_RING}, {L_REG}
    s_lshl_b32 s{S_W2K}, s{S_W}, 11
    """)
    for i in range(4):
        A(f"s_add_u32 s{S_T0}, s{S_W}, {i}\ns_and_b32 s{S_ROT+i}, s{S_T0}, 3")
    A(f"""
    v_lshrrev_b32 v22, 4, v{L}
    v_bfe_u32 v23, v{L}, 2, 1
    v_lshlrev_b32 v{V_MST}, 8, v23
    v_bfe_u32 v23, v{L}, 1, 1
    v_lshl_add_u32 v{V_MST}, v23, 5, v{V_MST}
    v_and_b32 v23, 1, v{L}
    v_lshl_add_u32 v{V_MST}, v23, 3, v{V_MST}
    v_and_b32 v23, 1, v22
    v_lshl_add_u32 v{V_MST}, v23, 4, v{V_MST}
    v_lshrrev_b32 v24, 5, v{L}
    v_lshl_add_u32 v{V_MST}, v24, 2, v{V_MST}
    v_lshlrev_b32 v25, 10, v23
    v_lshl_add_u32 v25, v24, 2, v25
    v_and_b32 v24, 7, v{L}
    v_lshl_add_u32 v25, v24, 4, v25
    s_lshr_b32 s{S_T0}, s{S_H}, 3            ; w'
    s_bfe_u32 s{S_T1}, s{S_H}, 0x20001       ; G'
    s_and_b32 s{S_T2}, s{S_H}, 1             ; nh
    s_and_b32 s{S_T3}, s{S_W}, 1             ; sig
    s_lshl_b32 s{S_PW}, s{S_T0}, 11
    s_lshl_b32 s{S_MB}, s{S_T3}, 10
    s_add_u32 s{S_PW}, s{S_PW}, s{S_MB}
    s_lshl_b32 s{S_MB}, s{S_T2}, 9
    s_add_u32 s{S_PW}, s{S_PW}, s{S_MB}
    s_lshl_b32 s{S_MB}, s{S_T1}, 6
    s_add_u32 s{S_PW}, s{S_PW}, s{S_MB}
    v_add_u32 v{V_MST}, s{S_PW}, v{V_MST}
    s_lshl_b32 s{S_T1}, s{S_T1}, 11
    s_lshl_b32 s{S_PW}, s{S_T0}, 8
    s_add_u32 s{S_T1}, s{S_T1}, s{S_PW}
    s_lshl_b32 s{S_T2}, s{S_T2}, 7
    s_add_u32 s{S_T1}, s{S_T1}, s{S_T2}
    s_lshl_b32 s{S_T3}, s{S_T3}, 3
    s_add_u32 s{S_T1}, s{S_T1}, s{S_T3}
    """)
    m0l = vm.issue(f"buffer_load_dword v28, v25, {srd(R_M0)}, s{S_T1} offen")
    A(f"""
    v_lshrrev_b32 v23, 3, v{L}
    s_lshl_b32 s{S_T1}, s{S_W}, 3
    v_add_u32 v23, s{S_T1}, v23
    v_lshlrev_b32 v{V_PST}, 13, v23
    v_lshl_add_u32 v{V_PST}, v24, 4, v{V_PST}
    v_and_b32 v23, {cfg.get("swz", 31)}, v23
    v_xor_b32 v23, s{S_H}, v23
    v_lshl_add_u32 v{V_PST}, v23, 7, v{V_PST}
    v_mov_b32 v24, -1
    v_mov_b32 v25, -1
    v_mov_b32 v26, -1
    v_mov_b32 v27, -1
    s_mov_b32 s{S_PW}, {WS_P}
    s_mov_b32 s{S_PR1}, {WS_P + 4096}
    """)
    vm.issue(f"buffer_store_dwordx4 v[24:27], v{V_PST}, {srd(R_WS)}, s{S_PW} offen sc1")
    vm.issue(f"buffer_store_dwordx4 v[24:27], v{V_PST}, {srd(R_WS)}, s{S_PR1} offen sc1")
    for i in range(1, 4):
        A(f"s_mov_b32 s{S_T0}, {WS_M + i*8192}")
        vm.issue(f"buffer_store_dword v24, v{V_MST}, {srd(R_WS)}, s{S_T0} offen sc1")
    A(f"""
    v_and_b32 v23, 15, v{L}
    v_lshlrev_b32 v30, 12, v22
    v_lshl_add_u32 v30, v23, 4, v30
    s_lshl_b32 s{S_T0}, s{S_H}, 17
    s_lshl_b32 s{S_T1}, s{S_W}, 8
    s_add_u32 s{S_T0}, s{S_T0}, s{S_T1}
    v_add_u32 v30, s{S_T0}, v30
    """)
    def wo_raw(cs):
        for ci, c in enumerate(cs):
            A(f"s_lshl_b32 s{S_T0}, s{S_ROT+c}, 15\ns_add_u32 s{S_T1}, s{S_T0}, 16384")
            for i in range(8):
                r = RE + 32 * ci + 4 * i
                k = vm.issue(f"buffer_load_dwordx4 {v(r,4)}, v30, {srd(R_WO)}, s{S_T0 if i < 4 else S_T1} offen offset:{(i&3)*1024}{' nt' if cfg.get('nt', 0) & 2 else ''}")
        return k
    wo1 = wo_raw([0, 1])
    NT = " nt" if cfg.get("nt", 0) & 1 else ""
    VG, VA = 16, 112
    A(f"""
    v_and_b32 v31, 1, v22
    v_lshlrev_b32 v31, 4, v31
    v_lshrrev_b32 v32, 5, v{L}
    v_add_u32 v31, v31, v32                  ; 16(j&1) + (j>>1)
    v_lshlrev_b32 v31, 13, v31
    v_lshlrev_b32 v32, 2, v22
    v_xor_b32 v32, v32, v23
    v_lshl_add_u32 v31, v32, 4, v31
    s_lshl_b32 s{S_T0}, s{S_H}, 8
    s_lshl_b32 s{S_T1}, s{S_W}, 20
    s_add_u32 s{S_T0}, s{S_T0}, s{S_T1}
    v_add_u32 v{VG}, s{S_T0}, v31
    s_lshl_b32 s{S_MR}, s{S_W}, 12
    s_add_u32 s{S_MR}, s{S_MR}, {L_REG + O_WO}
    """)
    qpos = cfg.get('qpos', 0)
    units = [(R, par, m) for R in [(R_WQ, R_WK, R_WV), (R_WK, R_WQ, R_WV)][qpos] for par in range(2) for m in range(4)]
    uid = {}
    def u_issue(u):
        R, par, m = units[u]
        for G in range(4):
            A(f"s_add_u32 m0, s{S_MR}, {(u & 3) * RP + G * 1024}")
            A(f"s_mov_b32 s{S_T0}, {(2*(m&1) + 64*(m>>1) + 4*par + 8*(G&1) + 32*(G>>1)) * 8192}")
            uid[u] = vm.issue(f"buffer_load_dwordx4 v{VG}, {srd(R)}, s{S_T0} offen{' nt' if cfg.get('nt', 0) & (1 if R == R_WQ else 8) else ''} lds")
    def u_read(u):
        R, par, m = units[u]
        regf = {R_WK: WK, R_WV: WV, R_WQ: lambda t, ab: WQ(t, ab) if t >= 4 else v(RE + 8 * (2*t + ab), 8)}[R]
        for i in range(4):
            for ab in range(2):
                kind, r0 = regs_of(regf(2*i + par, ab))[0]
                A(f"ds_read_b64_tr_b16 {kind}[{r0+2*m}:{r0+2*m+1}], v{VA + i + 4*((u&3)>>1)} offset:{(u & 1) * RP + ab*8}")
    for u in range(4): u_issue(u)
    A(f"""
    v_bfe_u32 v23, v{L}, 2, 2
    v_and_b32 v32, 3, v{L}
    v_lshlrev_b32 v31, 10, v22
    v_lshl_add_u32 v31, v23, 8, v31
    v_lshl_add_u32 v31, v32, 4, v31
    v_xor_b32 v23, s{S_W}, v23
    v_lshl_add_u32 v31, v23, 6, v31
    """)
    for i in range(4):
        A(f"""
        s_lshl_b32 s{S_T0}, s{S_ROT+i}, 12
        s_add_u32 s{S_T0}, s{S_T0}, {L_REG + O_WO}
        v_add_u32 v{VA+i}, s{S_T0}, v31
        v_add_u32 v{VA+4+i}, {2*RP}, v{VA+i}
        """)
    vm.wait(m0l)
    A(f"""
    v_min_u32 v28, -2, v28
    s_mov_b32 s{S_T0}, {WS_M}
    """)
    m0s = vm.issue(f"buffer_store_dword v28, v{V_MST}, {srd(R_WS)}, s{S_T0} offen sc1")
    lane_ma(A, V_MA, L, 23)
    A(f"""
    v_and_b32 v23, 2, v{L}
    v_cmp_eq_u32 vcc, 0, v23
    v_mov_b32 v23, 0xdddddddd
    v_mov_b32 v33, 0x88888888
    v_cndmask_b32 v{V_IDX}, v23, v33, vcc
    v_bfe_u32 v23, v{L}, 2, 2
    v_xor_b32 v23, v23, v22
    v_and_b32 v33, 15, v{L}
    v_lshlrev_b32 v33, 5, v33
    v_lshl_add_u32 v33, v23, 3, v33
    s_and_b32 s{S_T0}, s{S_W}, 1
    s_lshl_b32 s{S_T0}, s{S_T0}, 10
    s_lshr_b32 s{S_T1}, s{S_W}, 1
    s_lshl2_add_u32 s{S_T0}, s{S_T1}, s{S_T0}
    s_add_u32 s{S_T0}, s{S_T0}, {L_F}
    v_add_u32 v{V_FW}, s{S_T0}, v33
    v_xor_b32 v33, v{L}, v22
    v_lshlrev_b32 v33, 3, v33
    v_add_u32 v{V_FR}, {L_F}, v33
    s_lshl_b32 s{S_T0}, s{S_W}, 2
    v_add_u32 v{V_PW}, s{S_T0}, v{L16}
    v_lshlrev_b32 v{V_KA}, 8, v22
    v_bfe_u32 v33, v{L}, 1, 1
    v_lshl_add_u32 v{V_KA}, v33, 7, v{V_KA}
    v_bfe_u32 v33, v{L}, 2, 2
    v_lshl_add_u32 v{V_KA}, v33, 5, v{V_KA}
    v_and_b32 v33, 1, v{L}
    v_lshl_add_u32 v{V_KA}, v33, 4, v{V_KA}
    s_mov_b32 s{S_C}, {f2u(128**-0.5 * 1.4426950408889634)}
    s_mov_b32 s{S_THR}, {f2u(2.0 ** cfg.get("thr", 32))}
    s_mov_b32 s{S_ON}, 0x3f803f80
    s_mov_b32 s{S_ON+1}, 0x3f803f80
    s_mov_b32 s{S_RDY}, 0
    s_mov_b32 s{S_S}, 0
    s_mov_b32 s{S_TAG}, 0
    s_lshl_b32 s{S_T0}, s{S_H}, 13
    s_and_b32 s{S_T1}, s{S_W}, 1
    s_lshl_b32 s{S_T1}, s{S_T1}, 12
    s_add_u32 s{S_T1}, s{S_T1}, s{S_T0}
    s_add_u32 s{S_PR0}, s{S_T1}, {WS_P}
    s_add_u32 s{S_T1}, s{S_T0}, s{S_W2K}       ; h*8K + w*2K
    s_lshl_b32 s{S_KVB}, s{S_T1}, 1
    s_add_u32 s{S_KVB}, s{S_KVB}, {WS_KV}
    s_lshr_b32 s{S_PUB}, s{S_T1}, 1
    s_add_u32 s{S_PUB}, s{S_PUB}, {WS_KVM - 131072}
    s_add_u32 s{S_MB}, s{S_W2K}, {WS_M}
    s_lshl_b32 s{S_FKV}, s{S_H}, 7
    s_add_u32 s{S_FKV}, s{S_FKV}, {FL_KV}
    s_and_b32 s{S_TX}, s{S_W}, 1
    s_lshl_b32 s{S_TX}, s{S_TX}, 12
    s_cmp_lt_u32 s{S_W}, 2
    s_cselect_b32 s{S_TX}, 0x40000000, s{S_TX}
    """)
    for i in range(4):
        A(f"s_mul_i32 s{S_T0}, s{S_ROT+i}, {RP}\ns_add_u32 s{S_T0}, s{S_T0}, {L_REG}\nv_add_u32 v{V_R[i]}, s{S_T0}, v{L16}")
    A(f"""
    v_mov_b32 v{PUB}, 0
    v_mov_b32 v{PUB+1}, 0
    v_mov_b32 v{PUB+2}, 0
    v_mov_b32 v{PUB+3}, 0
    v_lshlrev_b32 v23, 2, v{L}
    v_and_b32 v23, 16, v23
    v_mov_b32 v33, 0x3f80
    v_lshlrev_b32 v33, v23, v33
    v_bfe_u32 v23, v{L}, 3, 1
    v_and_b32 v34, 1, v{L}
    v_lshl_add_u32 v23, v23, 1, v34
    """)
    for i in range(4):
        A(f"v_cmp_eq_u32 vcc, {i}, v23\nv_cndmask_b32 v{44+i}, 0, v33, vcc")
    A(f"ds_write_b128 v{V_MA}, v[44:47] offset:{L_SEL}")
    vm.wait(wo1)
    for c in range(2):
        for T in range(4):
            for i in range(8):
                A(f"v_mov_b32 v{192 + 8*(4*c+T) + i}, v{RE + 32*c + 4*i + T}")
    stamp(A, cfg, 1); vm.n += bool(cfg.get("prof"))
    ep = cfg.get("ep", 0) if KD[0] else 0
    ua = cfg.get("ua", ep - 4)
    assert not ep or 17 <= ep <= 20
    for u in range(24):
        vm.wait(uid[u])
        if u == 4: vm.wait(m0s)
        A("s_waitcnt lgkmcnt(0)\ns_barrier")
        if u >= 1 and u + 3 < 24: u_issue(u + 3)
        if u == 9 + 8 * qpos: wo2 = wo_raw([2, 3])
        if ep and u == ua:
            vm.issue(f"buffer_load_dwordx2 v[24:25], off, {srd(R_DBG)}, 0 offset:{D_HIST} sc1")
            vm.issue(f"buffer_load_dwordx4 v[32:35], off, {srd(R_DBG)}, 0 offset:{D_ARR} sc1")
            arl = vm.issue(f"buffer_load_dwordx4 v[36:39], off, {srd(R_DBG)}, 0 offset:{D_ARR+16} sc1")
        if ep and u == ep:
            vm.wait(arl)
            vm.issue(f"buffer_load_dwordx4 v[40:43], off, {srd(R_WS)}, s{S_FKV} sc1")
            kfl = vm.issue(f"buffer_load_dwordx4 v[44:47], off, {srd(R_WS)}, s{S_FKV} offset:16 sc1")
        if ep and u == ep + 3:
            vm.wait(kfl)
            A(f"s_add_u32 m0, s{S_RING}, {O_S}")
            for i in range(4): kd0 = vm.issue(kdma(i))
        u_read(u)
        if ep and u == ep + 3:
            A(f'''
            v_sad_u8 v26, v24, 0, 0
            v_sad_u8 v26, v25, 0, v26
            v_lshrrev_b32 v26, 2, v26
            v_min3_u32 v26, v26, v33, v34
            v_min3_u32 v26, v26, v35, v36
            v_min3_u32 v26, v26, v37, v38
            v_min_u32 v26, v26, v39
            v_or_b32 v24, v24, v25
            v_and_b32 v24, 0x80808080, v24
            ''')
            for g in range(7): A(f"v_mad_u32_u24 v{41+g}, v{41+g}, 7, {g}")
            A(f'''
            v_min3_u32 v40, v41, v42, v43
            v_min3_u32 v40, v40, v44, v45
            v_min3_u32 v40, v40, v46, v47
            v_readfirstlane_b32 s{S_T0}, v26
            v_readfirstlane_b32 s{S_SENT}, v24
            v_readfirstlane_b32 s{S_RDY}, v40
            s_cmp_lt_u32 s{S_T0}, 32
            s_cselect_b32 s{S_RDY}, 0, s{S_RDY}
            ''')
        if u == 4:
            A(f"""
            s_cmp_eq_u32 s{S_W}, 3
            s_cbranch_scc0 C_NOH
            s_and_b32 s{S_T0}, s{S_XCC}, 3
            s_lshl_b32 s{S_T0}, s{S_T0}, 3
            s_lshl_b32 s{S_T0}, 4, s{S_T0}
            s_and_b32 s{S_T1}, s{S_XCC}, 4
            v_mov_b32 v23, s{S_T0}
            s_mov_b64 exec, 1
            buffer_atomic_add v23, off, {srd(R_DBG)}, s{S_T1} offset:{D_HIST}
            s_mov_b64 exec, -1
            C_NOH:
            """)
        if u == 8 + 8 * qpos:
            for f in range(16):
                A(f"ds_write_b128 v{V_R[0]}, {v(RE + 4*f, 4)} offset:{O_WQ + f*1024}")
    assert vm.known >= wo2
    A("s_waitcnt lgkmcnt(0)\ns_barrier")
    for fi, (c, T) in enumerate(WOS):
        for i in range(8):
            A(f"v_mov_b32 v{32 + 8*(fi&1) + i}, v{RE + 32*(c-2) + 4*i + T}")
        A(f"ds_write_b128 v{V_R[0]}, {v(32 + 8*(fi&1), 4)} offset:{O_WO + fi*2048}")
        A(f"ds_write_b128 v{V_R[0]}, {v(36 + 8*(fi&1), 4)} offset:{O_WO + fi*2048+1024}")
    wq_prefetch(A, 0, 10 if KD[0] else 14)
    stamp(A, cfg, 2)
    if ep: A(f"s_cmp_gt_u32 s{S_RDY}, 1\ns_cbranch_scc1 C_GO\ns_mov_b32 s{S_RDY}, 0")
    A(f"""
    s_add_u32 m0, s{S_RING}, {O_S}
    C_W0:
    buffer_load_dwordx2 v[24:25], off, {srd(R_DBG)}, 0 offset:{D_HIST} sc1
    buffer_load_dwordx4 v[28:31], off, {srd(R_DBG)}, 0 offset:{D_ARR} sc1
    buffer_load_dwordx4 v[32:35], off, {srd(R_DBG)}, 0 offset:{D_ARR+16} sc1
    """)
    spin_dec(A)
    A(f"""
    s_waitcnt vmcnt(0)
    v_sad_u8 v26, v24, 0, 0
    v_sad_u8 v26, v25, 0, v26
    v_lshrrev_b32 v26, 2, v26
    v_min3_u32 v26, v26, v29, v30
    v_min3_u32 v26, v26, v31, v32
    v_min3_u32 v26, v26, v33, v34
    v_min_u32 v26, v26, v35
    v_readfirstlane_b32 s{S_T0}, v26
    s_cmp_lt_u32 s{S_T0}, 32
    s_cbranch_scc1 C_W0
    v_or_b32 v24, v24, v25
    v_and_b32 v24, 0x80808080, v24
    v_readfirstlane_b32 s{S_SENT}, v24      ; nonzero -> all chain workgroups share one XCC
    """)

def kv_ready(A, s_target, tag):
    A(f"""
    s_cmp_gt_u32 s{S_RDY}, s{s_target}
    s_cbranch_scc1 RDY_OK{tag}
    RDY_P{tag}:
    buffer_load_dwordx4 v[24:27], off, {srd(R_WS)}, s{S_FKV} sc1
    buffer_load_dwordx4 v[28:31], off, {srd(R_WS)}, s{S_FKV} offset:16 sc1
    """)
    spin_dec(A)
    A("s_waitcnt vmcnt(0)")
    for g in range(7):
        A(f"v_mad_u32_u24 v{25+g}, v{25+g}, 7, {g}")
    A(f"""
    v_min3_u32 v24, v25, v26, v27
    v_min3_u32 v24, v24, v28, v29
    v_min3_u32 v24, v24, v30, v31
    s_nop 0
    v_readfirstlane_b32 s{S_RDY}, v24
    s_cmp_gt_u32 s{S_RDY}, s{s_target}
    s_cbranch_scc0 RDY_P{tag}
    RDY_OK{tag}:
    """)

def wqr(f): return f"ds_read_b128 {v(WQS[f >> 1] + 4*(f & 1), 4)}, v{V_R[0]} offset:{O_WQ + f*1024}"
def kdma(i): return f"buffer_load_dwordx4 v{V_KA if i < 2 else V_MA}, {srd(R_WS)}, s{S_KVB} offen offset:{i*1024} sc1 lds"
def wq_prefetch(A, f0=0, f1=14):
    for f in range(f0, f1):
        if KD[0]:
            A(wqr(PFO[f]) if f < 10 else f"ds_read_b128 {v(RKX + 4*(f-10), 4)}, v{V_R[0]} offset:{O_S + (f-10)*1024}")
            continue
        A(f"ds_read_b128 {v(RE + 4*f, 4)}, v{V_R[0]} offset:{O_WQ + f*1024}")

def fold(A, acc, d0, d1):
    A(f"v_pk_add_f32 {v(acc,2)}, {v(acc,2)}, {v(acc+2,2)}")
    A(f"v_pk_add_f32 {v(acc+4,2)}, {v(acc+4,2)}, {v(acc+6,2)}")
    A(f"v_cvt_pk_bf16_f32 v{d0}, v{acc}, v{acc+1}")
    A(f"v_cvt_pk_bf16_f32 v{d1}, v{acc+4}, v{acc+5}")

def delay(A, n):
    while n > 0:
        A(f"s_nop {min(n,16)-1}"); n -= min(n, 16)

ABL = {1: r"buffer_load|buffer_store_dwordx4 v\[12", 2: r"v_mov_b64 v\[\d+:\d+\], 0", 3: r"ds_read_b128 .*offset:(16|17|18|19|2\d|30|31)\d\d\d$",
       4: r"v_smfmac_f32_16x16x64_bf16 v\[10[48]", 5: r"s_barrier", 6: r"v_fmac|v_mul_f32 v10", 7: r"s_waitcnt lgkmcnt",
       9: r"buffer_store_dwordx4 v\[12", 10: r"buffer_load_dword v100", 11: r"buffer_store_dwordx4 v\[12|buffer_load_dword v100",
       8: r"buffer_load|buffer_store_dwordx4 v\[12|v_mov_b64 v\[\d+:\d+\], 0|ds_read_b128 .*offset:(16|17|18|19|2\d|30|31)\d\d\d$"}
def chain_loop(A, cfg, tag, sc):
    fine = cfg.get("prof", 0) >= 2
    P = lambda i: A(f"s_memtime s[{4+2*i}:{5+2*i}]") if fine and (cfg.get("pm", -1) >> i) & 1 else None
    import os
    abl = ABL.get(cfg.get("abl", 0))
    cnt = [0, 2]
    def sl(*ins):
        if fine and "g0" in cfg and cnt[0] >= cfg["g0"] and (cnt[0] - cfg["g0"]) % cfg.get("gs", 4) == 0 and cnt[1] < 18:
            A(f"s_memtime s[{4+2*cnt[1]}:{5+2*cnt[1]}]"); cnt[1] += 1
        cnt[0] += 1
        for x in ins:
            for y in x.split("\n"):
                if abl and re.search(abl, y): continue
                A(y)
    fr = lambda t, R=RA: R + 4 * t
    q = lambda t, ab, R=RA: SM(RQ + 4*ab, fr(t, R), WQ(t, ab))
    k = lambda t, ab, R=RA: SM(RK + 4*ab, fr(t, R), WK(t, ab))
    vv = lambda t, ab, R=RA: SM(RV + 4*ab, fr(t, R), WV(t, ab))
    rd = lambda t: f"ds_read_b128 {v(fr(t),4)}, v{V_R[t>>1]} offset:{O_A + (t&1)*1024}"
    def wo(c, T, hf):
        fi = list(WOS).index((c, T))
        return f"ds_read_b128 {v(WOS[(c, T)] + 4*hf, 4)}, v{V_R[0]} offset:{O_WO + fi*2048 + hf*1024}"
    add = lambda acc, i: f"v_add_f32 v{acc+i}, v{acc+i}, v{acc+2+i}"
    cvt = lambda d, s_: f"v_cvt_pk_bf16_f32 v{d}, v{s_}, v{s_+1}"
    z = lambda r: f"v_mov_b64 {v(r,2)}, 0"
    lg = lambda n: f"s_waitcnt lgkmcnt({n})"
    def m_loads(R):
        A(f"buffer_load_dwordx4 {v(R,4)}, v{V_MA}, {srd(R_WS)}, s{S_MB} offen sc1")
        A(f"buffer_load_dwordx4 {v(R+4,4)}, v{V_MA}, {srd(R_WS)}, s{S_MB} offen offset:1024 sc1")
    kvl = lambda i: f"buffer_load_dwordx4 {v(RKX+4*i,4)}, v{V_KA if i < 2 else V_MA}, {srd(R_WS)}, s{S_KVB} offen offset:{i*1024} sc1"
    TCH, SX, PX, PM, ON, QF, KF = 100, 96, 100, 18, 20, 48, 56
    SA, LL, O0, O1, OP, SEL = 24, 28, 32, 36, 40, 44
    pub = f"buffer_store_dwordx4 {v(PUB,4)}, v{V_MA}, {srd(R_WS)}, s{S_PUB} offen sc1"
    mulc = lambda r: f"v_mul_f32 v{r}, s{S_C}, v{r}"
    fw = lambda r, off: f"ds_write_b32 v{V_FW}, v{r} offset:{off}"
    tr = lambda r, off: f"ds_read_b64_tr_b16 {v(r,2)}, v{V_FR} offset:{off}"
    ad = lambda r, i: f"v_add_f32_dpp v{r+2+i}, v{r+i}, v{r+2+i} {DPP('0,1,0,1')}"
    exd = lambda r, i: f"v_exp_f32_dpp v{r+i}, v{r+2+i} {DPP('2,3,2,3')}"
    tw = cfg.get("tw", 0)
    kd = KD[0]
    def dump():
        if fine:
            P(18)
            A(f"s_cmp_eq_u32 s{S_S}, {cfg.get('pstep', 41)}\ns_cbranch_scc0 NODUMP{tag}\ns_waitcnt lgkmcnt(0) vmcnt(0)")
            for i in range(19): A(f"v_writelane_b32 v26, s{4+2*i}, {i}")
            A(f"v_lshrrev_b32 v27, 2, v{V_MA}\nbuffer_store_dword v26, v27, {srd(R_WS)}, s{S_PROF} offen offset:512\ns_waitcnt vmcnt(0)\nNODUMP{tag}:")
            P(0)
    def norm(fast):
        o = (lambda *x: x) if fast else (lambda *x: ())
        sl(*o(f"v_max_f32 v{LL}, v{LL}, v{LL+2}", f"v_cmp_lt_f32 vcc, s{S_THR}, v{LL}"))
        for i in range(2): A(f"v_pk_mul_f32 {v(O0+2*i,2)}, {v(O0+2*i,2)}, {v(LL+2,2)} op_sel_hi:[1,0]")
        sl(cvt(OP, O0), cvt(OP + 1, O0 + 2))
        if fast: P(11)
        for i in range(2): A(f"v_pk_mul_f32 {v(O1+2*i,2)}, {v(O1+2*i,2)}, {v(LL+2,2)} op_sel_hi:[1,0]")
        sl(cvt(OP + 2, O1), cvt(OP + 3, O1 + 2), f"ds_write_b128 v{V_R[0]}, {v(OP,4)} offset:{O_A}")
    if cfg.get("ph"):
        KF, CK = 88, 28
        ml = lambda sg: f"buffer_load_dwordx4 {v(RA+4*sg,4)}, v{V_MA}, {srd(R_WS)}, s{S_MB} offen offset:{1024*sg} sc1"
        chk = lambda sg: [f"v_max3_u32 v{CK}, v{RA+4*sg}, v{RA+4*sg+1}, v{RA+4*sg+2}", f"v_max_u32 v{CK}, v{CK}, v{RA+4*sg+3}",
                          f"ds_write_b128 v{V_R[0]}, {v(RA+4*sg,4)} offset:{O_A+1024*sg}"]
        cmpv = f"v_cmp_eq_u32 vcc, -1, v{CK}"
        dp = [[1, 17, 19, 21, 23], [1, 3, 6, 17, 20], [1, 2, 4, 6, 8], [1, 3, 17, 19, 21], [17, 1, 3, 19, 21]][cfg.get("dpos", 0)]
        vops = [pub, kdma(0), kdma(1), kdma(2), kdma(3)]
        ex = lambda n: [vops[dp.index(n)]] if n in dp else []
        A(f"LOOP{tag}:")
        A(ml(0))
        dump()
        for i in range(4): A(z(RV + 2*i))
        A(f"s_waitcnt vmcnt({3 if cfg.get('prof') else 2}) lgkmcnt(0)")
        for i in range(4): A(z(RK + 2*i))
        delay(A, cfg.get("dm1", 16))
        A(f"MP{tag}:")
        A(ml(0))
        spin_dec(A)
        A("s_nop 2")
        for i in range(4): A(z(RQ + 2*i))
        A("s_waitcnt vmcnt(1)")
        P(1)
        sl(*chk(0))
        sl(q(0, 0), cmpv)
        sl(q(0, 1), f"s_cbranch_vccnz MP{tag}", ml(1))
        sl(k(0, 0), wqr(6))
        sl(k(0, 1), wqr(7), lg(2)); A("s_barrier"); P(2)
        sl(rd(2), rd(4), rd(6))
        sl(vv(0, 0), ml(1))
        sl(vv(0, 1), wqr(14), lg(3))
        sl(q(2, 0), wqr(15), lg(3))
        sl(q(4, 0), lg(2))
        sl(q(6, 0), wqr(12))
        sl(q(2, 1), wqr(13), "s_waitcnt vmcnt(1)", *chk(1))
        sl(q(4, 1), cmpv)
        sl(q(6, 1), f"s_cbranch_vccnz MR{tag}")
        A(f"MC{tag}:")
        P(9)
        ke = [k(2, 0), k(4, 0), k(6, 0), k(2, 1), k(4, 1), k(6, 1)]
        npre = cfg.get("npre", 2)
        sl(q(1, 0), f"s_cmp_eq_u32 s{S_S}, 63")
        sl(q(1, 1))
        sl(k(1, 0))
        sl(k(1, 1))
        for x in ke[:npre]: sl(x)
        A(lg(0)); A("s_barrier"); P(3)
        sl(rd(3), rd(5), rd(7))
        for i, x in enumerate(ke[npre:]): sl(x, *ex(i + 1 - (2 - npre)))
        sl("s_cbranch_scc1 C_LAST", lg(2))
        sl(q(3, 0), wo(2, 0, 0), *ex(5), lg(2))
        sl(q(5, 0), wo(2, 0, 1), *ex(6), lg(2))
        sl(q(7, 0), wo(3, 0, 0), *ex(7))
        sl(q(3, 1), wo(3, 0, 1), *ex(8))
        sl(q(5, 1), add(RQ, 0))
        sl(q(7, 1), add(RQ, 1))
        sl(k(3, 0), mulc(RQ))
        sl(k(5, 0), mulc(RQ + 1), add(RQ + 4, 0))
        sl(k(7, 0), cvt(RQ + 2, RQ), fw(RQ + 2, 2048), add(RQ + 4, 1))
        sl(k(3, 1), mulc(RQ + 4), mulc(RQ + 5))
        sl(k(5, 1), cvt(RQ + 6, RQ + 4), fw(RQ + 6, 2560), add(RK, 0))
        sl(k(7, 1), add(RK, 1), *(ex(17) if dp[0] == 17 else []), cvt(PUB, RK), fw(PUB, 0))
        P(4)
        sl(vv(1, 0), *(ex(17) if dp[0] != 17 else []), z(RQ))
        sl(vv(1, 1), add(RK + 4, 0), add(RK + 4, 1), cvt(PUB + 2, RK + 4), fw(PUB + 2, 512))
        sl(vv(2, 0), *ex(19), z(RQ + 2))
        sl(vv(2, 1), *ex(20), z(RQ + 4))
        sl(vv(3, 0), *ex(21), z(RQ + 6))
        sl(vv(4, 0), lg(0), "s_barrier", tr(QF, 2048), tr(QF + 2, 2560))
        P(5)
        sl(vv(5, 0), tr(QF + 4, 3072), tr(QF + 6, 3584), tr(KF, 0), tr(KF + 2, 512))
        sl(vv(6, 0), tr(KF + 4, 1024), tr(KF + 6, 1536), f"v_min_u32 v{PUB}, -2, v{PUB}")
        sl(vv(7, 0), *ex(23), f"s_add_u32 s{S_KVB}, s{S_KVB}, 0x80000", z(RK))
        sl(vv(3, 1), "s_waitcnt vmcnt(5) lgkmcnt(6)", z(RK + 2))
        sl(MF(SX, RKX, QF, 0), lg(4), f"v_mov_b64 {v(ON,2)}, s[{S_ON}:{S_ON+1}]", add(RV, 0))
        sl(MF(SX, RKX + 4, QF + 4, v(SX, 4)), lg(2), add(RV, 1), f"v_mov_b64 {v(ON+2,2)}, s[{S_ON}:{S_ON+1}]")
        sl(MF(SA, KF, QF, 0), lg(0), cvt(PUB + 1, RV), f"v_mov_b32 v{PM}, 0", wo(2, 2, 0))
        sl(MF(SA, KF + 4, QF + 4, v(SA, 4)), wo(2, 2, 1), ad(SX, 0), ad(SX, 1))
        sl(vv(4, 1), exd(SX, 0), exd(SX, 1))
        sl(vv(5, 1), cvt(SX, SX), f"ds_write_b32 v{V_PW}, v{SX} offset:{L_PX}")
        P(6)
        sl(vv(6, 1), ad(SA, 0), ad(SA, 1), f"s_add_u32 s{S_PUB}, s{S_PUB}, 0x20000")
        sl(vv(7, 1), exd(SA, 0), exd(SA, 1), z(RK + 4), cvt(PM + 1, SA))
        sl(lg(0), "s_barrier", f"ds_read_b128 {v(PX,4)}, v{V_MA} offset:{L_PX}")
        P(7)
        def pv(fast):
            o = (lambda *x: x) if fast else (lambda *x: ())
            if not fast: sl(exd(SA, 0), exd(SA, 1), cvt(PM + 1, SA))
            sl(MH(LL, ON, PM, 0), *o(add(RV + 4, 0), add(RV + 4, 1), wo(2, 1, 0)))
            sl(MH(O0, PUB, PM, 0), *o(cvt(PUB + 3, RV + 4), z(RK + 6), wo(2, 1, 1)))
            sl(MH(O1, PUB + 2, PM, 0), *o(wo(3, 1, 0), lg(3)))
            if fast: P(8)
            sl(MF(LL, ON, PX, v(LL, 4)), *o(wo(3, 1, 1)))
            sl(MF(O0, RVX, PX, v(O0, 4)), *o(wo(3, 2, 0)))
            sl(MF(O1, RVX + 4, PX, v(O1, 4)), *o(wo(3, 2, 1)), f"v_rcp_f32 v{LL+2}, v{LL}")
            if fast: P(10)
            norm(fast)
        pv(True)
    else:
        if cfg.get("al", 0) & 1 and tag == "F":
            A(f".p2align 6")
            for i in range(cfg.get("ao", 0)): A("s_nop 0")
        A(f"LOOP{tag}:")
        delay(A, cfg.get("dm0", 0))
        m_loads(RA)
        if fine:
            P(18)
            A(f"s_cmp_eq_u32 s{S_S}, {cfg.get('pstep', 41)}\ns_cbranch_scc0 NODUMP{tag}\ns_waitcnt lgkmcnt(0) vmcnt(0)")
            for i in range(19): A(f"v_writelane_b32 v26, s{4+2*i}, {i}")
            A(f"v_lshrrev_b32 v27, 2, v{V_MA}\nbuffer_store_dword v26, v27, {srd(R_WS)}, s{S_PROF} offen offset:512\ns_waitcnt vmcnt(0)\nNODUMP{tag}:")
            P(0)
        for i in range(4): A(z(RV + 2*i))
        A(f"s_waitcnt vmcnt({4 if cfg.get('prof') else 3}) lgkmcnt(0)")
        for i in range(4): A(z(RK + 2*i))
        delay(A, cfg.get("dm1", 16))
        A(f"MP{tag}:")
        m_loads(RA)
        spin_dec(A)
        A(f"s_cmp_eq_u32 s{S_S}, 63")
        for i in (2, 3, 0, 1): A(z(RQ + 2*i))
        A("s_waitcnt vmcnt(3)")
        sl(f"v_max3_u32 v25, v{RA}, v{RA+1}, v{RA+2}", f"v_max_u32 v25, v25, v{RA+3}")
        sl(q(0, 0), f"ds_write_b128 v{V_R[0]}, {v(RA,4)} offset:{O_A}", "s_waitcnt vmcnt(2)")
        P(1)
        sl(f"v_max3_u32 v25, v25, v{RA+4}, v{RA+5}", f"v_max3_u32 v25, v25, v{RA+6}, v{RA+7}", f"v_cmp_eq_u32 vcc, -1, v25")
        sl(q(0, 1), f"ds_write_b128 v{V_R[0]}, {v(RA+4,4)} offset:{O_A+1024}")
        sl(q(1, 0), f"s_cbranch_vccnz MP{tag}")
        if kd:
            dp = [[1, 4, 7, 10, 13], [1, 3, 5, 7, 9], [5, 8, 11, 14, 17], [1, 2, 3, 4, 5], [1, 17, 19, 21, 24], [1, 13, 17, 19, 21], [1, 5, 17, 19, 21]][cfg.get("dpos", 0)]
            vops = [kdma(0), kdma(1), kdma(2), kdma(3), pub] if cfg.get("pe", 1) == 1 else [pub, kdma(0), kdma(1), kdma(2), kdma(3)]
            if "nd" in cfg: vops = [x if i <= cfg["nd"] else "s_nop 0" for i, x in enumerate(vops)]
            ex = lambda n: [vops[dp.index(n)]] if n in dp else []
            sl(q(1, 1))
            sl(vv(0, 0))
            sl(vv(0, 1), lg(0)); P(2); A("s_barrier"); P(3)
            sl(rd(2), rd(4))
            sl(vv(1, 0), rd(5), *ex(1))
            sl(vv(1, 1), rd(6), *ex(2))
            sl(k(0, 0), rd(7), *ex(3))
            sl(k(0, 1), rd(3), *ex(4), "s_cbranch_scc1 C_LAST", lg(5))
            sl(q(2, 0), wqr(12), *ex(5), lg(5))
            sl(q(4, 0), wqr(13), *ex(6), lg(5))
            sl(q(5, 0), wqr(10), *ex(7), lg(5))
            sl(q(6, 0), wqr(11), *ex(8), lg(5))
            sl(q(7, 0), wqr(14), *ex(9), lg(3))
            sl(q(3, 0), wqr(15), *ex(10))
            sl(q(4, 1), wo(2, 0, 0), *ex(11))
            sl(q(5, 1), wo(2, 0, 1), *ex(12), add(RQ, 0))
            sl(q(6, 1), wo(3, 0, 0), *ex(13), add(RQ, 1), lg(5))
            sl(q(2, 1), wo(3, 0, 1), *ex(14), mulc(RQ))
            sl(q(7, 1), *ex(15), mulc(RQ + 1), lg(4))
            sl(q(3, 1), wo(2, 1, 0), *ex(16), cvt(RQ + 2, RQ))
        else:
            sl(q(1, 1), f"ds_read_b128 {v(RE,4)}, v{V_R[0]} offset:{O_WQ + 14*1024}")
            sl(vv(0, 0), f"ds_read_b128 {v(RE+4,4)}, v{V_R[0]} offset:{O_WQ + 15*1024}")
            sl(vv(0, 1), lg(2)); P(2); A("s_barrier"); P(3)
            sl(rd(2), rd(3))
            sl(vv(1, 0), rd(4), kvl(0))
            sl(vv(1, 1), rd(5))
            sl(k(0, 0), rd(6))
            sl(k(0, 1), rd(7), "s_cbranch_scc1 C_LAST", lg(5))
            sl(q(2, 0), kvl(1), lg(4))
            sl(q(3, 0), lg(3))
            sl(q(4, 0), lg(2))
            sl(q(5, 0), lg(1), f"v_lshl_add_u32 v{TCH}, v{V_MA}, 3, s{S_TX}" if tw else f"v_lshlrev_b32 v{TCH}, 2, v{V_MA}")
            sl(q(6, 0), kvl(2), lg(0))
            sl(q(7, 0), wo(2, 0, 0))
            sl(q(2, 1), wo(2, 0, 1))
            sl(q(3, 1), wo(3, 0, 0), add(RQ, 0))
            sl(q(4, 1), kvl(3), add(RQ, 1))
            sl(q(5, 1), wo(3, 0, 1), f"s_add_u32 s{S_KVB}, s{S_KVB}, 0x80000", mulc(RQ))
            sl(q(6, 1), wo(2, 1, 0), mulc(RQ + 1), *([f"s_sub_u32 s{S_TB}, s{S_KVB}, 8192"] if tw else []))
            sl(q(7, 1), wo(2, 1, 1), cvt(RQ + 2, RQ))
        P(4)
        sl(k(1, 0), fw(RQ + 2, 2048), z(RQ), *([wo(2, 1, 1)] + ex(17) if kd else []))
        sl(k(2, 0), add(RQ + 4, 0), add(RQ + 4, 1), mulc(RQ + 4), mulc(RQ + 5), cvt(RQ + 6, RQ + 4), fw(RQ + 6, 2560))
        tch = lambda o=0: f"buffer_load_dword v{TCH}, {srd(R_WS)}, s{S_TB if tw else S_KVB} offen offset:{o} sc1 lds"
        if cfg.get("at"):
            tch = lambda o=0: f"buffer_atomic_or v{RQ}, v{TCH}, {srd(R_WS)}, s{S_TB if tw else S_KVB} offen offset:{o}" + [""," sc1"][cfg["at"]-1]
        pe = cfg.get("pe", 1)
        nx = 1 if tw == 2 else 0
        sl(k(3, 0), *(ex(19) if kd else [pub if pe == 2 else tch()]), z(RQ + 2))
        sl(k(4, 0), z(RQ + 4), *([tch(64)] if nx else []))
        sl(k(5, 0), *(ex(21) if kd else [tch()] if pe == 2 else [pub] if pe else []), z(RQ + 6))
        sl(k(6, 0), lg(0), "s_barrier", tr(QF, 2048), tr(QF + 2, 2560))
        if cfg.get("ack5"): A("s_waitcnt vmcnt(0)")
        P(5)
        sl(k(7, 0), tr(QF + 4, 3072), tr(QF + 6, 3584))
        sl(k(1, 1), *(ex(24) + [f"s_add_u32 s{S_KVB}, s{S_KVB}, 0x80000"] if kd else []))
        sl(k(2, 1), add(RK, 0))
        sl(k(3, 1), "s_waitcnt vmcnt(5) lgkmcnt(2)" if kd else f"s_waitcnt vmcnt({nx + (4 if pe else 3)}) lgkmcnt(2)", add(RK, 1))
        sl(MF(SX, RKX, QF, 0), lg(0), cvt(RK + 2, RK), f"v_mov_b64 {v(ON,2)}, s[{S_ON}:{S_ON+1}]")
        sl(MF(SX, RKX + 4, QF + 4, v(SX, 4)), fw(RK + 2, 0), z(RK), f"v_mov_b64 {v(ON+2,2)}, s[{S_ON}:{S_ON+1}]")
        sl(k(4, 1), f"v_mov_b32 v{PM}, 0")
        sl(k(5, 1), ad(SX, 0))
        sl(k(6, 1), ad(SX, 1))
        sl(k(7, 1), exd(SX, 0))
        sl(vv(2, 0), exd(SX, 1))
        sl(vv(3, 0), add(RK + 4, 0), add(RK + 4, 1), cvt(RK + 6, RK + 4), fw(RK + 6, 512), cvt(SX, SX))
        P(6)
        sl(vv(4, 0), f"ds_write_b32 v{V_PW}, v{SX} offset:{L_PX}", z(RK + 4))
        sl(vv(5, 0))
        sl(vv(6, 0))
        sl(vv(7, 0))
        sl(vv(2, 1), lg(0), "s_barrier", tr(KF, 0), tr(KF + 2, 512))
        P(7)
        sl(vv(3, 1), tr(KF + 4, 1024), tr(KF + 6, 1536), add(RV, 0))
        sl(vv(4, 1), f"ds_read_b128 {v(PX,4)}, v{V_MA} offset:{L_PX}", add(RV, 1))
        sl(vv(5, 1), *([] if pe else [pub]))
        sl(vv(6, 1), f"s_add_u32 s{S_PUB}, s{S_PUB}, 0x20000", cvt(PUB + 1, RV))
        sl(vv(7, 1), lg(3), f"v_min_u32 v{PUB}, -2, v{RK+2}")
        P(8)
        sl(MF(SA, KF, QF, 0), lg(1), f"v_mov_b32 v{PUB+2}, v{RK+6}", z(RK + 2))
        sl(MF(SA, KF + 4, QF + 4, v(SA, 4)), lg(0) if kd else f"s_waitcnt vmcnt({nx + 2}) lgkmcnt(0)", z(RK + 6), add(RV + 4, 0))
        if cfg.get("ack9"): A("s_waitcnt vmcnt(0)")
        P(9)
        def pv(fast):
            o = (lambda *x: x) if fast else (lambda *x: ())
            sl(MF(LL, ON, PX, 0), *o(wo(3, 1, 0), add(RV + 4, 1), cvt(PUB + 3, RV + 4), wo(3, 1, 1), ad(SA, 0), ad(SA, 1)))
            sl(MF(O0, RVX, PX, 0), exd(SA, 0), exd(SA, 1))
            sl(MF(O1, RVX + 4, PX, 0), cvt(PM + 1, SA), *o(wo(2, 2, 0), wo(2, 2, 1)))
            if fast: P(10)
            sl(MH(LL, ON, PM, v(LL, 4)), *o(wo(3, 2, 0)))
            sl(MH(O0, PUB, PM, v(O0, 4)), *o(wo(3, 2, 1)))
            sl(MH(O1, PUB + 2, PM, v(O1, 4)), f"v_rcp_f32 v{LL+2}, v{LL}")
            sl(*o(f"v_max_f32 v{LL}, v{LL}, v{LL+2}", f"v_cmp_lt_f32 vcc, s{S_THR}, v{LL}"))
            if cfg.get("pk0", 1):
                for i in range(2): A(f"v_pk_mul_f32 {v(O0+2*i,2)}, {v(O0+2*i,2)}, {v(LL+2,2)} op_sel_hi:[1,0]")
            else:
                for i in range(4): A(f"v_mul_f32 v{O0+i}, v{O0+i}, v{LL+2}")
            sl(cvt(OP, O0), cvt(OP + 1, O0 + 2))
            if fast: P(11)
            for i in range(2): A(f"v_pk_mul_f32 {v(O1+2*i,2)}, {v(O1+2*i,2)}, {v(LL+2,2)} op_sel_hi:[1,0]")
            sl(cvt(OP + 2, O1), cvt(OP + 3, O1 + 2), f"ds_write_b128 v{V_R[0]}, {v(OP,4)} offset:{O_A}")
        pv(True)
    A(f"s_cbranch_vccnz {'FRET' if abl else 'FBK'}{tag}\nFRET{tag}:")
    OF = [OP, 64, 68, 24]
    so = lambda c, T: SM(RQ + 4*T, OF[c], WO(c, T))
    sl(so(0, 0), f"s_add_u32 s{S_S}, s{S_S}, 1", f"s_and_b32 s{S_T0}, s{S_S}, 3", f"s_lshl_b32 s{S_T0}, s{S_T0}, 13")
    sl(so(0, 1), f"s_add_u32 s{S_MW}, s{S_T0}, {WS_M}", f"s_add_u32 s{S_MB}, s{S_MW}, s{S_W2K}", f"s_xor_b32 s{S_MR}, s{S_MW}, 0x4000")
    sl(so(0, 2), f"s_cmp_lt_u32 s{S_W}, 2", lg(0)); P(12); A("s_barrier"); P(13)
    for c in range(1, 4): A(f"ds_read_b128 {v(OF[c],4)}, v{V_R[c]} offset:{O_A}")
    sl(so(0, 3), wo(2, 3, 0), wo(2, 3, 1), lg(4))
    PK = 32
    pk = lambda i: cvt(PK + i, RQ + 2*i)
    tg = lambda sg: f"v_and_or_b32 v{PK+4*sg}, v{PK+4*sg}, -2, s{S_TAG}"
    ps = lambda sg: f"buffer_store_dwordx4 {v(PK+4*sg,4)}, v{V_PST}, {srd(R_WS)}, s{S_PR1 if sg else S_PW} offen {sc}"
    sl(so(1, 0), lg(3))
    sl(so(2, 0), lg(2), f"v_mov_b32 v42, -1")
    sl(so(3, 0), wo(3, 3, 0))
    sl(so(1, 1), wo(3, 3, 1))
    sl(so(2, 1), f"ds_read_b128 {v(SEL,4)}, v{V_MA} offset:{L_SEL}", pk(0))
    sl(so(3, 1), tg(0))
    sl(so(1, 2), pk(1))
    sl(so(2, 2), pk(2), pk(3), ps(0))
    P(14)
    sl(so(3, 2), lg(0))
    sl(so(1, 3))
    sl(so(2, 3), pk(4))
    sl(so(3, 3), tg(1), pk(5))
    sl(pk(6), pk(7), ps(1))
    P(15)
    n0 = cfg.get("n0", 14)
    wq_prefetch(A, 0, n0)
    A(f"s_cbranch_scc1 RED{tag}")
    if fine and cfg.get("ack"):
        A("s_waitcnt vmcnt(2)"); P(16); A(f"s_waitcnt vmcnt({2 - cfg['ack']})"); P(17)
    if kd: A("s_waitcnt vmcnt(2)")
    wq_prefetch(A, n0, 14)
    A(f"""
    buffer_store_dword v42, v{V_MST}, {srd(R_WS)}, s{S_MR} offen {sc}
    s_cmp_eq_u32 s{S_W}, 3
    s_cbranch_scc0 JOIN{tag}
    s_add_u32 s{S_T3}, s{S_S}, 1
    s_min_u32 s{S_T3}, s{S_T3}, 63
    """)
    kv_ready(A, S_T3, tag)
    A(f"""
    JOIN{tag}:
    s_xor_b32 s{S_TAG}, s{S_TAG}, 1
    s_waitcnt lgkmcnt(0)
    s_barrier
    s_branch LOOP{tag}
    """)
    if cfg.get("ph"):
        A(f"MR{tag}:")
        A(ml(1))
        spin_dec(A)
        A("s_waitcnt vmcnt(1)")
        for x in chk(1) + [cmpv]: A(x)
        A(f"s_cbranch_vccnz MR{tag}\ns_branch MC{tag}")
    A(f"""
    FBK{tag}:
    """)
    X = 104 - 8 * 9
    for r in (SX + 2, SX + 3, SA + 2, SA + 3): A(f"v_mov_b32_dpp v{r}, v{r} {DPP('2,3,2,3')}")
    A(f"""
    ds_write_b32 v{V_PW}, v{SX+2} offset:{L_PX + 1024}
    ds_write_b32 v{V_PW}, v{SX+3} offset:{L_PX + 2048}
    s_waitcnt lgkmcnt(0)
    s_barrier
    ds_read_b128 {v(X,4)}, v{V_MA} offset:{L_PX + 1024}
    ds_read_b128 {v(X+4,4)}, v{V_MA} offset:{L_PX + 2048}
    v_max_f32 v{LL}, v{SA+2}, v{SA+3}
    s_waitcnt lgkmcnt(0)
    """)
    for i in range(4): A(f"v_max3_f32 v{LL}, v{LL}, v{X+2*i}, v{X+2*i+1}")
    xG(A, LL, LL + 1, "v_max_f32")
    for r in list(range(X, X + 8)) + [SA + 2, SA + 3]: A(f"v_sub_f32 v{r}, v{r}, v{LL}")
    for i in range(8): A(f"v_exp_f32 v{X+i}, v{X+i}")
    for i in range(4): A(f"v_cvt_pk_bf16_f32 v{PX+i}, v{X+i}, v{X+4+i}")
    pv(False)
    A(f"s_branch FRET{tag}")
    PB, PA = 24, 20
    if cfg.get("al", 0) & 2 and tag == "F":
        A(".p2align 6")
        for i in range(cfg.get("ar", 0)): A("s_nop 0")
    A(f"""
    RED{tag}:
    s_cmp_eq_u32 s{S_W}, 0
    """)
    if cfg.get("dp0", -1) >= 0:
        delay(A, cfg["dp0"])
        A(f"s_cbranch_scc1 PP{tag}")
        delay(A, cfg.get("dp1", 0))
    elif cfg.get("pw", 0) == 1:
        delay(A, cfg.get("dpw", 0))
        A("s_waitcnt vmcnt(0)")
    else:
        delay(A, cfg.get("dpw", 0))
        A(f"""
        s_waitcnt vmcnt(1)
        s_cbranch_scc1 PP{tag}
        s_waitcnt vmcnt(0)
        """)
    def pl(B):
        for i in range(4):
            A(f"buffer_load_dwordx4 {v(B+4*i,4)}, v{V_MA}, {srd(R_WS)}, s{S_PR0} offen offset:{i*1024} sc1")
    def pr(B, nb, br=None):
        for i in range(4):
            A(f"s_waitcnt vmcnt({nb+3-i})")
            A(MF(PA, SEL, B + 4*i, "0" if i == 0 else v(PA, 4)))
            if i == 1: A(f"v_bitop3_b32 v40, v{B}, v{B+4}, s{S_TAG} bitop3:0x7e")
        A(f"""
        v_bitop3_b32 v41, v{B+8}, v{B+12}, s{S_TAG} bitop3:0x7e
        v_bitop3_b32 v40, v40, 1, v41 bitop3:0xc8
        v_cmp_ne_u32 vcc, 0, v40
        {br or ''}
        """)
        if br and "s_branch" in br: return
        A(f"""
        v_add_f32_dpp v{PA}, v{PA}, v{PA} row_ror:8 row_mask:0xf bank_mask:0xf
        v_add_f32_dpp v{PA+1}, v{PA+1}, v{PA+1} row_ror:8 row_mask:0xf bank_mask:0xf
        v_cvt_pk_bf16_f32 v41, v{PA}, v{PA+1}
        v_min_u32 v41, -2, v41
        """)
    A(f"PP{tag}:")
    if cfg.get("ps", 2) == 2:
        pl(PB)
        P(16)
        wq_prefetch(A, n0, 14)
        delay(A, cfg.get("dp2", 20))
        A(f"PQ{tag}:")
        pl(RQ)
        if cfg.get("eb", 0):
            pr(PB, 4, f"s_cbranch_vccnz PF{tag}\nPD{tag}:")
        else:
            pr(PB, 4)
            A(f"s_cbranch_vccnz PF{tag}\nPD{tag}:")
    else:
        pl(PB)
        P(16)
        spin_dec(A)
        pr(PB, 0)
        A(f"s_cbranch_vccnz PP{tag}")
    A(f"""
    buffer_store_dword v41, v{V_MST}, {srd(R_WS)}, s{S_MW} offen {sc}
    """)
    P(17)
    A(f"""
    s_barrier
    s_xor_b32 s{S_TAG}, s{S_TAG}, 1
    """)
    if cfg.get("prof"):
        A(f"""
        s_memtime s[{S_TS}:{S_TS+1}]
        s_lshl_b32 s{S_T0}, s{S_S}, 2
        s_add_u32 s{S_T0}, s{S_T0}, s{S_PROF}
        s_waitcnt lgkmcnt(0)
        v_mov_b32 v43, s{S_TS}
        s_mov_b64 exec, 1
        buffer_store_dword v43, off, {srd(R_WS)}, s{S_T0} offset:64
        s_mov_b64 exec, -1
        """)
    A(f"s_branch LOOP{tag}")
    if cfg.get("ps", 2) == 2:
        if cfg.get("al", 0) & 4 and tag == "F": A(".p2align 6")
        A(f"PF{tag}:")
        pl(PB)
        spin_dec(A)
        if cfg.get("eb", 0):
            pr(RQ, 4, f"s_cbranch_vccnz PQ{tag}\ns_nop 7\ns_branch PD{tag}")
        else:
            pr(RQ, 4)
            A(f"s_cbranch_vccz PD{tag}\ns_branch PQ{tag}")

def chain(A, cfg):
    cfg["vt"] = 23
    KD[0] = cfg.get("kd", 0)
    if cfg.get("ph"):
        WQS[:] = [48, 88, 72, 88, 96, 80, 96, 48]
        PFO[:] = [0, 1, 2, 3, 8, 9, 10, 11, 4, 5]
    assert cfg.get("n0", 14) <= 10 or not KD[0]
    chain_init(A, cfg)
    A(f"s_mov_b32 s{S_T3}, 1")
    kv_ready(A, S_T3, "I")
    if KD[0]:
        for i in range(4): A(kdma(i))
        A(f"C_GO:\ns_add_u32 s{S_KVB}, s{S_KVB}, 0x80000\ns_waitcnt vmcnt(0)")
        wq_prefetch(A, 10, 14)
    stamp(A, cfg, 3)
    A(f"s_waitcnt lgkmcnt(0)\ns_barrier\ns_cmp_eq_u32 s{S_SENT}, 0\ns_cbranch_scc1 LOOPS")
    chain_loop(A, cfg, "F", "")
    chain_loop(A, cfg, "S", "sc1")
    A("C_LAST:")
    A(f"buffer_store_dwordx4 {v(PUB,4)}, v{V_MA}, {srd(R_WS)}, s{S_PUB} offen sc1")
    A(f"s_add_u32 s{S_PUB}, s{S_PUB}, 0x20000")
    A("s_waitcnt lgkmcnt(0)")
    for t in range(1 if cfg.get("ph") else 2, 8):
        for ab in range(2): A(SM(RV + 4*ab, RA + 4*t, WV(t, ab)))
    for t in ((3, 5, 7) if cfg.get("ph") else range(1, 8)):
        for ab in range(2): A(SM(RK + 4*ab, RA + 4*t, WK(t, ab)))
    fold(A, RV, 73, 75)
    fold(A, RK, 72, 74)
    A(f"v_min_u32 v72, -2, v72")
    A(f"buffer_store_dwordx4 v[72:75], v{V_MA}, {srd(R_WS)}, s{S_PUB} offen sc1")
    cfg["vt"] = 76
    stamp(A, cfg, 4)
    A("s_waitcnt vmcnt(0)")
```

```python
import re
from common import *
from worker import stamp, spin_dec, xG

L_PX, L_SEL, L_F, L_REG, RP = 0, 0xC00, 0x1000, 0x2000, 0x9800
O_WQ, O_WO, O_A, O_S = 0, 0x4000, 0x8000, 0x8800
L_DUMMY = L_REG + O_S
V_IDX, V_MA, V_KA, V_FW, V_FR, V_PW, V_PST, V_MST = 0, 1, 2, 3, 4, 5, 6, 7
V_R = [8, 9, 10, 11]
PUB = 12
RA, RE, RV, RQ, RK, ALT = 16, 48, 104, 112, 120, 40
RKX, RVX = 56, 64
S_S, S_RING, S_ROT = 64, 65, 66
S_RDY, S_PW, S_MB, S_KVB, S_MW, S_PUB, S_TAG, S_FKV = 70, 71, 72, 73, 74, 75, 76, 77
S_C, S_THR = 78, 79
S_B1, S_ON, S_HF = 80, 82, 90
S_SENT, S_PR0, S_PR1, S_W2K, S_MR = 84, 85, 86, 87, 88
S_TX, S_TB = 92, 93

KD = [0]
WQS = [48, 88, 96, 72, 80, 88, 96, 48]
PFO = list(range(10))
def WQ(t, ab): return v(WQS[2 * t + ab] if KD[0] else RE + 8 * ((2 * t + ab) % 7), 8) if t < 4 else v(128 + 8 * (2 * (t - 4) + ab), 8)
def WK(t, ab): return a(8 * (2 * t + ab), 8)
def WV(t, ab): return a(128 + 8 * (2 * t + ab), 8)
WOS = {(2, 0): 72, (3, 0): 80, (2, 1): 88, (3, 1): 48, (2, 2): 56, (3, 2): 104, (2, 3): 96, (3, 3): 16}
def WO(c, T): return v(192 + 8 * (4 * c + T), 8) if c < 2 else v(WOS[(c, T)], 8)
def SM(d, aa, b): return f"v_smfmac_f32_16x16x64_bf16 {v(d,4)}, {v(aa,4)}, {b}, v{V_IDX}"
def MF(d, aa, b, c): return f"v_mfma_f32_16x16x32_bf16 {v(d,4)}, {v(aa,4)}, {v(b,4)}, {c}"
def MH(d, aa, b, c): return f"v_mfma_f32_16x16x16_bf16 {v(d,4)}, {v(aa,2)}, {v(b,2)}, {c}"
DPP = lambda p: f"quad_perm:[{p}] row_mask:0xf bank_mask:0xf"

def chain_init(A, cfg):
    L, L16 = 20, 21
    vm = VM(A)
    A(f"""
    CHAIN:
    v_mov_b32 v{L}, v1
    v_mov_b32 v{L16}, v2
    s_mul_i32 s{S_RING}, s{S_W}, {RP}
    s_add_u32 s{S_RING}, s{S_RING}, {L_REG}
    s_lshl_b32 s{S_W2K}, s{S_W}, 11
    """)
    for i in range(4):
        A(f"s_add_u32 s{S_T0}, s{S_W}, {i}\ns_and_b32 s{S_ROT+i}, s{S_T0}, 3")
    A(f"""
    v_lshrrev_b32 v22, 4, v{L}
    v_bfe_u32 v23, v{L}, 2, 1
    v_lshlrev_b32 v{V_MST}, 8, v23
    v_bfe_u32 v23, v{L}, 1, 1
    v_lshl_add_u32 v{V_MST}, v23, 5, v{V_MST}
    v_and_b32 v23, 1, v{L}
    v_lshl_add_u32 v{V_MST}, v23, 3, v{V_MST}
    v_and_b32 v23, 1, v22
    v_lshl_add_u32 v{V_MST}, v23, 4, v{V_MST}
    v_lshrrev_b32 v24, 5, v{L}
    v_lshl_add_u32 v{V_MST}, v24, 2, v{V_MST}
    v_lshlrev_b32 v25, 10, v23
    v_lshl_add_u32 v25, v24, 2, v25
    v_and_b32 v24, 7, v{L}
    v_lshl_add_u32 v25, v24, 4, v25
    s_lshr_b32 s{S_T0}, s{S_H}, 3            ; w'
    s_bfe_u32 s{S_T1}, s{S_H}, 0x20001       ; G'
    s_and_b32 s{S_T2}, s{S_H}, 1             ; nh
    s_and_b32 s{S_T3}, s{S_W}, 1             ; sig
    s_lshl_b32 s{S_PW}, s{S_T0}, 11
    s_lshl_b32 s{S_MB}, s{S_T3}, 10
    s_add_u32 s{S_PW}, s{S_PW}, s{S_MB}
    s_lshl_b32 s{S_MB}, s{S_T2}, 9
    s_add_u32 s{S_PW}, s{S_PW}, s{S_MB}
    s_lshl_b32 s{S_MB}, s{S_T1}, 6
    s_add_u32 s{S_PW}, s{S_PW}, s{S_MB}
    v_add_u32 v{V_MST}, s{S_PW}, v{V_MST}
    s_lshl_b32 s{S_T1}, s{S_T1}, 11
    s_lshl_b32 s{S_PW}, s{S_T0}, 8
    s_add_u32 s{S_T1}, s{S_T1}, s{S_PW}
    s_lshl_b32 s{S_T2}, s{S_T2}, 7
    s_add_u32 s{S_T1}, s{S_T1}, s{S_T2}
    s_lshl_b32 s{S_T3}, s{S_T3}, 3
    s_add_u32 s{S_T1}, s{S_T1}, s{S_T3}
    """)
    m0l = vm.issue(f"buffer_load_dword v28, v25, {srd(R_M0)}, s{S_T1} offen")
    A(f"""
    v_lshrrev_b32 v23, 3, v{L}
    s_lshl_b32 s{S_T1}, s{S_W}, 3
    v_add_u32 v23, s{S_T1}, v23
    v_lshlrev_b32 v{V_PST}, 13, v23
    v_lshl_add_u32 v{V_PST}, v24, 4, v{V_PST}
    v_and_b32 v23, {cfg.get("swz", 31)}, v23
    v_xor_b32 v23, s{S_H}, v23
    v_lshl_add_u32 v{V_PST}, v23, 7, v{V_PST}
    v_mov_b32 v24, -1
    v_mov_b32 v25, -1
    v_mov_b32 v26, -1
    v_mov_b32 v27, -1
    s_mov_b32 s{S_PW}, {WS_P}
    s_mov_b32 s{S_PR1}, {WS_P + 4096}
    """)
    vm.issue(f"buffer_store_dwordx4 v[24:27], v{V_PST}, {srd(R_WS)}, s{S_PW} offen sc1")
    vm.issue(f"buffer_store_dwordx4 v[24:27], v{V_PST}, {srd(R_WS)}, s{S_PR1} offen sc1")
    for i in range(1, 4):
        A(f"s_mov_b32 s{S_T0}, {WS_M + i*8192}")
        vm.issue(f"buffer_store_dword v24, v{V_MST}, {srd(R_WS)}, s{S_T0} offen sc1")
    A(f"""
    v_and_b32 v23, 15, v{L}
    v_lshlrev_b32 v30, 12, v22
    v_lshl_add_u32 v30, v23, 4, v30
    s_lshl_b32 s{S_T0}, s{S_H}, 17
    s_lshl_b32 s{S_T1}, s{S_W}, 8
    s_add_u32 s{S_T0}, s{S_T0}, s{S_T1}
    v_add_u32 v30, s{S_T0}, v30
    """)
    def wo_raw(cs):
        for ci, c in enumerate(cs):
            A(f"s_lshl_b32 s{S_T0}, s{S_ROT+c}, 15\ns_add_u32 s{S_T1}, s{S_T0}, 16384")
            for i in range(8):
                r = RE + 32 * ci + 4 * i
                k = vm.issue(f"buffer_load_dwordx4 {v(r,4)}, v30, {srd(R_WO)}, s{S_T0 if i < 4 else S_T1} offen offset:{(i&3)*1024}{' nt' if cfg.get('nt', 0) & 2 else ''}")
        return k
    wo1 = wo_raw([0, 1])
    NT = " nt" if cfg.get("nt", 0) & 1 else ""
    VG, VA = 16, 112
    A(f"""
    v_and_b32 v31, 1, v22
    v_lshlrev_b32 v31, 4, v31
    v_lshrrev_b32 v32, 5, v{L}
    v_add_u32 v31, v31, v32                  ; 16(j&1) + (j>>1)
    v_lshlrev_b32 v31, 13, v31
    v_lshlrev_b32 v32, 2, v22
    v_xor_b32 v32, v32, v23
    v_lshl_add_u32 v31, v32, 4, v31
    s_lshl_b32 s{S_T0}, s{S_H}, 8
    s_lshl_b32 s{S_T1}, s{S_W}, 20
    s_add_u32 s{S_T0}, s{S_T0}, s{S_T1}
    v_add_u32 v{VG}, s{S_T0}, v31
    s_lshl_b32 s{S_MR}, s{S_W}, 12
    s_add_u32 s{S_MR}, s{S_MR}, {L_REG + O_WO}
    """)
    qpos = cfg.get('qpos', 0)
    units = [(R, par, m) for R in [(R_WQ, R_WK, R_WV), (R_WK, R_WQ, R_WV)][qpos] for par in range(2) for m in range(4)]
    uid = {}
    def u_issue(u):
        R, par, m = units[u]
        for G in range(4):
            A(f"s_add_u32 m0, s{S_MR}, {(u & 3) * RP + G * 1024}")
            A(f"s_mov_b32 s{S_T0}, {(2*(m&1) + 64*(m>>1) + 4*par + 8*(G&1) + 32*(G>>1)) * 8192}")
            uid[u] = vm.issue(f"buffer_load_dwordx4 v{VG}, {srd(R)}, s{S_T0} offen{' nt' if cfg.get('nt', 0) & (1 if R == R_WQ else 8) else ''} lds")
    def u_read(u):
        R, par, m = units[u]
        regf = {R_WK: WK, R_WV: WV, R_WQ: lambda t, ab: WQ(t, ab) if t >= 4 else v(RE + 8 * (2*t + ab), 8)}[R]
        for i in range(4):
            for ab in range(2):
                kind, r0 = regs_of(regf(2*i + par, ab))[0]
                A(f"ds_read_b64_tr_b16 {kind}[{r0+2*m}:{r0+2*m+1}], v{VA + i + 4*((u&3)>>1)} offset:{(u & 1) * RP + ab*8}")
    for u in range(4): u_issue(u)
    A(f"""
    v_bfe_u32 v23, v{L}, 2, 2
    v_and_b32 v32, 3, v{L}
    v_lshlrev_b32 v31, 10, v22
    v_lshl_add_u32 v31, v23, 8, v31
    v_lshl_add_u32 v31, v32, 4, v31
    v_xor_b32 v23, s{S_W}, v23
    v_lshl_add_u32 v31, v23, 6, v31
    """)
    for i in range(4):
        A(f"""
        s_lshl_b32 s{S_T0}, s{S_ROT+i}, 12
        s_add_u32 s{S_T0}, s{S_T0}, {L_REG + O_WO}
        v_add_u32 v{VA+i}, s{S_T0}, v31
        v_add_u32 v{VA+4+i}, {2*RP}, v{VA+i}
        """)
    vm.wait(m0l)
    A(f"""
    v_min_u32 v28, -2, v28
    s_mov_b32 s{S_T0}, {WS_M}
    """)
    m0s = vm.issue(f"buffer_store_dword v28, v{V_MST}, {srd(R_WS)}, s{S_T0} offen sc1")
    lane_ma(A, V_MA, L, 23)
    A(f"""
    v_and_b32 v23, 2, v{L}
    v_cmp_eq_u32 vcc, 0, v23
    v_mov_b32 v23, 0xdddddddd
    v_mov_b32 v33, 0x88888888
    v_cndmask_b32 v{V_IDX}, v23, v33, vcc
    v_bfe_u32 v23, v{L}, 2, 2
    v_xor_b32 v23, v23, v22
    v_and_b32 v33, 15, v{L}
    v_lshlrev_b32 v33, 5, v33
    v_lshl_add_u32 v33, v23, 3, v33
    s_and_b32 s{S_T0}, s{S_W}, 1
    s_lshl_b32 s{S_T0}, s{S_T0}, 10
    s_lshr_b32 s{S_T1}, s{S_W}, 1
    s_lshl2_add_u32 s{S_T0}, s{S_T1}, s{S_T0}
    s_add_u32 s{S_T0}, s{S_T0}, {L_F}
    v_add_u32 v{V_FW}, s{S_T0}, v33
    v_xor_b32 v33, v{L}, v22
    v_lshlrev_b32 v33, 3, v33
    v_add_u32 v{V_FR}, {L_F}, v33
    s_lshl_b32 s{S_T0}, s{S_W}, 2
    v_add_u32 v{V_PW}, s{S_T0}, v{L16}
    v_lshlrev_b32 v{V_KA}, 8, v22
    v_bfe_u32 v33, v{L}, 1, 1
    v_lshl_add_u32 v{V_KA}, v33, 7, v{V_KA}
    v_bfe_u32 v33, v{L}, 2, 2
    v_lshl_add_u32 v{V_KA}, v33, 5, v{V_KA}
    v_and_b32 v33, 1, v{L}
    v_lshl_add_u32 v{V_KA}, v33, 4, v{V_KA}
    s_mov_b32 s{S_C}, {f2u(128**-0.5 * 1.4426950408889634)}
    s_mov_b32 s{S_THR}, {f2u(2.0 ** cfg.get("thr", 32))}
    s_mov_b32 s{S_ON}, 0x3f803f80
    s_mov_b32 s{S_ON+1}, 0x3f803f80
    s_mov_b32 s{S_RDY}, 0
    s_mov_b32 s{S_S}, 0
    s_mov_b32 s{S_TAG}, 0
    s_lshl_b32 s{S_T0}, s{S_H}, 13
    s_and_b32 s{S_T1}, s{S_W}, 1
    s_lshl_b32 s{S_T1}, s{S_T1}, 12
    s_add_u32 s{S_T1}, s{S_T1}, s{S_T0}
    s_add_u32 s{S_PR0}, s{S_T1}, {WS_P}
    s_add_u32 s{S_T1}, s{S_T0}, s{S_W2K}       ; h*8K + w*2K
    s_lshl_b32 s{S_KVB}, s{S_T1}, 1
    s_add_u32 s{S_KVB}, s{S_KVB}, {WS_KV}
    s_lshr_b32 s{S_PUB}, s{S_T1}, 1
    s_add_u32 s{S_PUB}, s{S_PUB}, {WS_KVM - 131072}
    s_add_u32 s{S_MB}, s{S_W2K}, {WS_M}
    s_lshl_b32 s{S_FKV}, s{S_H}, 7
    s_add_u32 s{S_FKV}, s{S_FKV}, {FL_KV}
    s_and_b32 s{S_TX}, s{S_W}, 1
    s_lshl_b32 s{S_TX}, s{S_TX}, 12
    s_cmp_lt_u32 s{S_W}, 2
    s_cselect_b32 s{S_TX}, 0x40000000, s{S_TX}
    """)
    for i in range(4):
        A(f"s_mul_i32 s{S_T0}, s{S_ROT+i}, {RP}\ns_add_u32 s{S_T0}, s{S_T0}, {L_REG}\nv_add_u32 v{V_R[i]}, s{S_T0}, v{L16}")
    A(f"""
    v_mov_b32 v{PUB}, 0
    v_mov_b32 v{PUB+1}, 0
    v_mov_b32 v{PUB+2}, 0
    v_mov_b32 v{PUB+3}, 0
    v_lshlrev_b32 v23, 2, v{L}
    v_and_b32 v23, 16, v23
    v_mov_b32 v33, 0x3f80
    v_lshlrev_b32 v33, v23, v33
    v_bfe_u32 v23, v{L}, 3, 1
    v_and_b32 v34, 1, v{L}
    v_lshl_add_u32 v23, v23, 1, v34
    """)
    for i in range(4):
        A(f"v_cmp_eq_u32 vcc, {i}, v23\nv_cndmask_b32 v{44+i}, 0, v33, vcc")
    A(f"ds_write_b128 v{V_MA}, v[44:47] offset:{L_SEL}")
    vm.wait(wo1)
    for c in range(2):
        for T in range(4):
            for i in range(8):
                A(f"v_mov_b32 v{192 + 8*(4*c+T) + i}, v{RE + 32*c + 4*i + T}")
    stamp(A, cfg, 1); vm.n += bool(cfg.get("prof"))
    ep = cfg.get("ep", 0) if KD[0] else 0
    ua = cfg.get("ua", ep - 4)
    assert not ep or 17 <= ep <= 20
    for u in range(24):
        vm.wait(uid[u])
        if u == 4: vm.wait(m0s)
        A("s_waitcnt lgkmcnt(0)\ns_barrier")
        if u >= 1 and u + 3 < 24: u_issue(u + 3)
        if u == 9 + 8 * qpos: wo2 = wo_raw([2, 3])
        if ep and u == ua:
            vm.issue(f"buffer_load_dwordx2 v[24:25], off, {srd(R_DBG)}, 0 offset:{D_HIST} sc1")
            vm.issue(f"buffer_load_dwordx4 v[32:35], off, {srd(R_DBG)}, 0 offset:{D_ARR} sc1")
            arl = vm.issue(f"buffer_load_dwordx4 v[36:39], off, {srd(R_DBG)}, 0 offset:{D_ARR+16} sc1")
        if ep and u == ep:
            vm.wait(arl)
            vm.issue(f"buffer_load_dwordx4 v[40:43], off, {srd(R_WS)}, s{S_FKV} sc1")
            kfl = vm.issue(f"buffer_load_dwordx4 v[44:47], off, {srd(R_WS)}, s{S_FKV} offset:16 sc1")
        if ep and u == ep + 3:
            vm.wait(kfl)
            A(f"s_add_u32 m0, s{S_RING}, {O_S}")
            for i in range(4): kd0 = vm.issue(kdma(i))
        u_read(u)
        if ep and u == ep + 3:
            A(f'''
            v_sad_u8 v26, v24, 0, 0
            v_sad_u8 v26, v25, 0, v26
            v_lshlrev_b32 v26, 22, v26
            v_min3_u32 v26, v26, v33, v34
            v_min3_u32 v26, v26, v35, v36
            v_min3_u32 v26, v26, v37, v38
            v_min_u32 v26, v26, v39
            v_or_b32 v24, v24, v25
            v_and_b32 v24, 0x80808080, v24
            ''')
            for g in range(7): A(f"v_mad_u32_u24 v{41+g}, v{41+g}, 7, {g}")
            A(f'''
            v_min3_u32 v40, v41, v42, v43
            v_min3_u32 v40, v40, v44, v45
            v_min3_u32 v40, v40, v46, v47
            v_readfirstlane_b32 s{S_T0}, v26
            v_readfirstlane_b32 s{S_SENT}, v24
            v_readfirstlane_b32 s{S_RDY}, v40
            s_cmp_lt_u32 s{S_T0}, 0x20000000
            s_cselect_b32 s{S_RDY}, 0, s{S_RDY}
            ''')
        if u == 4:
            A(f"""
            s_cmp_eq_u32 s{S_W}, 3
            s_cbranch_scc0 C_NOH
            s_and_b32 s{S_T0}, s{S_XCC}, 3
            s_lshl_b32 s{S_T0}, s{S_T0}, 3
            s_lshl_b32 s{S_T0}, 4, s{S_T0}
            s_and_b32 s{S_T1}, s{S_XCC}, 4
            v_mov_b32 v23, s{S_T0}
            s_mov_b64 exec, 1
            buffer_atomic_add v23, off, {srd(R_DBG)}, s{S_T1} offset:{D_HIST}
            s_mov_b64 exec, -1
            C_NOH:
            """)
        if u == 8 + 8 * qpos:
            for f in range(16):
                A(f"ds_write_b128 v{V_R[0]}, {v(RE + 4*f, 4)} offset:{O_WQ + f*1024}")
    assert vm.known >= wo2
    A("s_waitcnt lgkmcnt(0)\ns_barrier")
    for fi, (c, T) in enumerate(WOS):
        for i in range(8):
            A(f"v_mov_b32 v{32 + 8*(fi&1) + i}, v{RE + 32*(c-2) + 4*i + T}")
        A(f"ds_write_b128 v{V_R[0]}, {v(32 + 8*(fi&1), 4)} offset:{O_WO + fi*2048}")
        A(f"ds_write_b128 v{V_R[0]}, {v(36 + 8*(fi&1), 4)} offset:{O_WO + fi*2048+1024}")
    wq_prefetch(A, 0, 10 if KD[0] else 14)
    stamp(A, cfg, 2)
    if ep: A(f"s_cmp_gt_u32 s{S_RDY}, 1\ns_cbranch_scc1 C_GO\ns_mov_b32 s{S_RDY}, 0")
    A(f"""
    s_add_u32 m0, s{S_RING}, {O_S}
    C_W0:
    buffer_load_dwordx2 v[24:25], off, {srd(R_DBG)}, 0 offset:{D_HIST} sc1
    buffer_load_dwordx4 v[28:31], off, {srd(R_DBG)}, 0 offset:{D_ARR} sc1
    buffer_load_dwordx4 v[32:35], off, {srd(R_DBG)}, 0 offset:{D_ARR+16} sc1
    """)
    spin_dec(A)
    A(f"""
    s_waitcnt vmcnt(0)
    v_sad_u8 v26, v24, 0, 0
    v_sad_u8 v26, v25, 0, v26
    v_lshlrev_b32 v26, 22, v26
    v_min3_u32 v26, v26, v29, v30
    v_min3_u32 v26, v26, v31, v32
    v_min3_u32 v26, v26, v33, v34
    v_min_u32 v26, v26, v35
    v_readfirstlane_b32 s{S_T0}, v26
    s_cmp_lt_u32 s{S_T0}, 0x20000000
    s_cbranch_scc1 C_W0
    v_or_b32 v24, v24, v25
    v_and_b32 v24, 0x80808080, v24
    v_readfirstlane_b32 s{S_SENT}, v24      ; nonzero -> all chain workgroups share one XCC
    """)

def kv_ready(A, s_target, tag):
    A(f"""
    s_cmp_gt_u32 s{S_RDY}, s{s_target}
    s_cbranch_scc1 RDY_OK{tag}
    RDY_P{tag}:
    buffer_load_dwordx4 v[24:27], off, {srd(R_WS)}, s{S_FKV} sc1
    buffer_load_dwordx4 v[28:31], off, {srd(R_WS)}, s{S_FKV} offset:16 sc1
    """)
    spin_dec(A)
    A("s_waitcnt vmcnt(0)")
    for g in range(7):
        A(f"v_mad_u32_u24 v{25+g}, v{25+g}, 7, {g}")
    A(f"""
    v_min3_u32 v24, v25, v26, v27
    v_min3_u32 v24, v24, v28, v29
    v_min3_u32 v24, v24, v30, v31
    s_nop 0
    v_readfirstlane_b32 s{S_RDY}, v24
    s_cmp_gt_u32 s{S_RDY}, s{s_target}
    s_cbranch_scc0 RDY_P{tag}
    RDY_OK{tag}:
    """)

def wqr(f): return f"ds_read_b128 {v(WQS[f >> 1] + 4*(f & 1), 4)}, v{V_R[0]} offset:{O_WQ + f*1024}"
def kdma(i): return f"buffer_load_dwordx4 v{V_KA if i < 2 else V_MA}, {srd(R_WS)}, s{S_KVB} offen offset:{i*1024} sc1 lds"
def wq_prefetch(A, f0=0, f1=14):
    for f in range(f0, f1):
        if KD[0]:
            A(wqr(PFO[f]) if f < 10 else f"ds_read_b128 {v(RKX + 4*(f-10), 4)}, v{V_R[0]} offset:{O_S + (f-10)*1024}")
            continue
        A(f"ds_read_b128 {v(RE + 4*f, 4)}, v{V_R[0]} offset:{O_WQ + f*1024}")

def fold(A, acc, d0, d1):
    A(f"v_pk_add_f32 {v(acc,2)}, {v(acc,2)}, {v(acc+2,2)}")
    A(f"v_pk_add_f32 {v(acc+4,2)}, {v(acc+4,2)}, {v(acc+6,2)}")
    A(f"v_cvt_pk_bf16_f32 v{d0}, v{acc}, v{acc+1}")
    A(f"v_cvt_pk_bf16_f32 v{d1}, v{acc+4}, v{acc+5}")

def delay(A, n):
    while n > 0:
        A(f"s_nop {min(n,16)-1}"); n -= min(n, 16)

ABL = {1: r"buffer_load|buffer_store_dwordx4 v\[12", 2: r"v_mov_b64 v\[\d+:\d+\], 0", 3: r"ds_read_b128 .*offset:(16|17|18|19|2\d|30|31)\d\d\d$",
       4: r"v_smfmac_f32_16x16x64_bf16 v\[10[48]", 5: r"s_barrier", 6: r"v_fmac|v_mul_f32 v10", 7: r"s_waitcnt lgkmcnt",
       9: r"buffer_store_dwordx4 v\[12", 10: r"buffer_load_dword v100", 11: r"buffer_store_dwordx4 v\[12|buffer_load_dword v100",
       8: r"buffer_load|buffer_store_dwordx4 v\[12|v_mov_b64 v\[\d+:\d+\], 0|ds_read_b128 .*offset:(16|17|18|19|2\d|30|31)\d\d\d$"}
def chain_loop(A, cfg, tag, sc):
    fine = cfg.get("prof", 0) >= 2
    P = lambda i: A(f"s_memtime s[{4+2*i}:{5+2*i}]") if fine and (cfg.get("pm", -1) >> i) & 1 else None
    import os
    abl = ABL.get(cfg.get("abl", 0))
    cnt = [0, 2]
    def sl(*ins):
        if fine and "g0" in cfg and cnt[0] >= cfg["g0"] and (cnt[0] - cfg["g0"]) % cfg.get("gs", 4) == 0 and cnt[1] < 18:
            A(f"s_memtime s[{4+2*cnt[1]}:{5+2*cnt[1]}]"); cnt[1] += 1
        cnt[0] += 1
        for x in ins:
            for y in x.split("\n"):
                if abl and re.search(abl, y): continue
                A(y)
    fr = lambda t, R=RA: R + 4 * t
    q = lambda t, ab, R=RA: SM(RQ + 4*ab, fr(t, R), WQ(t, ab))
    k = lambda t, ab, R=RA: SM(RK + 4*ab, fr(t, R), WK(t, ab))
    vv = lambda t, ab, R=RA: SM(RV + 4*ab, fr(t, R), WV(t, ab))
    rd = lambda t: f"ds_read_b128 {v(fr(t),4)}, v{V_R[t>>1]} offset:{O_A + (t&1)*1024}"
    def wo(c, T, hf):
        fi = list(WOS).index((c, T))
        return f"ds_read_b128 {v(WOS[(c, T)] + 4*hf, 4)}, v{V_R[0]} offset:{O_WO + fi*2048 + hf*1024}"
    add = lambda acc, i: f"v_add_f32 v{acc+i}, v{acc+i}, v{acc+2+i}"
    cvt = lambda d, s_: f"v_cvt_pk_bf16_f32 v{d}, v{s_}, v{s_+1}"
    z = lambda r: f"v_mov_b64 {v(r,2)}, 0"
    lg = lambda n: f"s_waitcnt lgkmcnt({n})"
    def m_loads(R):
        A(f"buffer_load_dwordx4 {v(R,4)}, v{V_MA}, {srd(R_WS)}, s{S_MB} offen sc1")
        A(f"buffer_load_dwordx4 {v(R+4,4)}, v{V_MA}, {srd(R_WS)}, s{S_MB} offen offset:1024 sc1")
    kvl = lambda i: f"buffer_load_dwordx4 {v(RKX+4*i,4)}, v{V_KA if i < 2 else V_MA}, {srd(R_WS)}, s{S_KVB} offen offset:{i*1024} sc1"
    TCH, SX, PX, PM, ON, QF, KF = 100, 96, 100, 18, 20, 48, 56
    SA, LL, O0, O1, OP, SEL = 24, 28, 32, 36, 40, 44
    pub = f"buffer_store_dwordx4 {v(PUB,4)}, v{V_MA}, {srd(R_WS)}, s{S_PUB} offen sc1"
    mulc = lambda r: f"v_mul_f32 v{r}, s{S_C}, v{r}"
    fw = lambda r, off: f"ds_write_b32 v{V_FW}, v{r} offset:{off}"
    tr = lambda r, off: f"ds_read_b64_tr_b16 {v(r,2)}, v{V_FR} offset:{off}"
    ad = lambda r, i: f"v_add_f32_dpp v{r+2+i}, v{r+i}, v{r+2+i} {DPP('0,1,0,1')}"
    exd = lambda r, i: f"v_exp_f32_dpp v{r+i}, v{r+2+i} {DPP('2,3,2,3')}"
    tw = cfg.get("tw", 0)
    kd = KD[0]
    def dump():
        if fine:
            P(18)
            A(f"s_cmp_eq_u32 s{S_S}, {cfg.get('pstep', 41)}\ns_cbranch_scc0 NODUMP{tag}\ns_waitcnt lgkmcnt(0) vmcnt(0)")
            for i in range(19): A(f"v_writelane_b32 v26, s{4+2*i}, {i}")
            A(f"v_lshrrev_b32 v27, 2, v{V_MA}\nbuffer_store_dword v26, v27, {srd(R_WS)}, s{S_PROF} offen offset:512\ns_waitcnt vmcnt(0)\nNODUMP{tag}:")
            P(0)
    def norm(fast):
        o = (lambda *x: x) if fast else (lambda *x: ())
        sl(*o(f"v_max_f32 v{LL}, v{LL}, v{LL+2}", f"v_cmp_lt_f32 vcc, s{S_THR}, v{LL}"))
        for i in range(2): A(f"v_pk_mul_f32 {v(O0+2*i,2)}, {v(O0+2*i,2)}, {v(LL+2,2)} op_sel_hi:[1,0]")
        sl(cvt(OP, O0), cvt(OP + 1, O0 + 2))
        if fast: P(11)
        for i in range(2): A(f"v_pk_mul_f32 {v(O1+2*i,2)}, {v(O1+2*i,2)}, {v(LL+2,2)} op_sel_hi:[1,0]")
        sl(cvt(OP + 2, O1), cvt(OP + 3, O1 + 2), f"ds_write_b128 v{V_R[0]}, {v(OP,4)} offset:{O_A}")
    if cfg.get("ph"):
        KF, CK = 88, 28
        ml = lambda sg: f"buffer_load_dwordx4 {v(RA+4*sg,4)}, v{V_MA}, {srd(R_WS)}, s{S_MB} offen offset:{1024*sg} sc1"
        chk = lambda sg: [f"v_max3_u32 v{CK}, v{RA+4*sg}, v{RA+4*sg+1}, v{RA+4*sg+2}", f"v_max_u32 v{CK}, v{CK}, v{RA+4*sg+3}",
                          f"ds_write_b128 v{V_R[0]}, {v(RA+4*sg,4)} offset:{O_A+1024*sg}"]
        cmpv = f"v_cmp_eq_u32 vcc, -1, v{CK}"
        dp = [[1, 17, 19, 21, 23], [1, 3, 6, 17, 20], [1, 2, 4, 6, 8], [1, 3, 17, 19, 21], [17, 1, 3, 19, 21]][cfg.get("dpos", 0)]
        vops = [pub, kdma(0), kdma(1), kdma(2), kdma(3)]
        ex = lambda n: [vops[dp.index(n)]] if n in dp else []
        A(f"LOOP{tag}:")
        A(ml(0))
        dump()
        for i in range(4): A(z(RV + 2*i))
        A(f"s_waitcnt vmcnt({3 if cfg.get('prof') else 2}) lgkmcnt(0)")
        for i in range(4): A(z(RK + 2*i))
        delay(A, cfg.get("dm1", 16))
        A(f"MP{tag}:")
        A(ml(0))
        spin_dec(A)
        A("s_nop 2")
        for i in range(4): A(z(RQ + 2*i))
        A("s_waitcnt vmcnt(1)")
        P(1)
        sl(*chk(0))
        sl(q(0, 0), cmpv)
        sl(q(0, 1), f"s_cbranch_vccnz MP{tag}", ml(1))
        sl(k(0, 0), wqr(6))
        sl(k(0, 1), wqr(7), lg(2)); A("s_barrier"); P(2)
        sl(rd(2), rd(4), rd(6))
        sl(vv(0, 0), ml(1))
        sl(vv(0, 1), wqr(14), lg(3))
        sl(q(2, 0), wqr(15), lg(3))
        sl(q(4, 0), lg(2))
        sl(q(6, 0), wqr(12))
        sl(q(2, 1), wqr(13), "s_waitcnt vmcnt(1)", *chk(1))
        sl(q(4, 1), cmpv)
        sl(q(6, 1), f"s_cbranch_vccnz MR{tag}")
        A(f"MC{tag}:")
        P(9)
        ke = [k(2, 0), k(4, 0), k(6, 0), k(2, 1), k(4, 1), k(6, 1)]
        npre = cfg.get("npre", 2)
        sl(q(1, 0), f"s_cmp_eq_u32 s{S_S}, 63")
        sl(q(1, 1))
        sl(k(1, 0))
        sl(k(1, 1))
        for x in ke[:npre]: sl(x)
        A(lg(0)); A("s_barrier"); P(3)
        sl(rd(3), rd(5), rd(7))
        for i, x in enumerate(ke[npre:]): sl(x, *ex(i + 1 - (2 - npre)))
        sl("s_cbranch_scc1 C_LAST", lg(2))
        sl(q(3, 0), wo(2, 0, 0), *ex(5), lg(2))
        sl(q(5, 0), wo(2, 0, 1), *ex(6), lg(2))
        sl(q(7, 0), wo(3, 0, 0), *ex(7))
        sl(q(3, 1), wo(3, 0, 1), *ex(8))
        sl(q(5, 1), add(RQ, 0))
        sl(q(7, 1), add(RQ, 1))
        sl(k(3, 0), mulc(RQ))
        sl(k(5, 0), mulc(RQ + 1), add(RQ + 4, 0))
        sl(k(7, 0), cvt(RQ + 2, RQ), fw(RQ + 2, 2048), add(RQ + 4, 1))
        sl(k(3, 1), mulc(RQ + 4), mulc(RQ + 5))
        sl(k(5, 1), cvt(RQ + 6, RQ + 4), fw(RQ + 6, 2560), add(RK, 0))
        sl(k(7, 1), add(RK, 1), *(ex(17) if dp[0] == 17 else []), cvt(PUB, RK), fw(PUB, 0))
        P(4)
        sl(vv(1, 0), *(ex(17) if dp[0] != 17 else []), z(RQ))
        sl(vv(1, 1), add(RK + 4, 0), add(RK + 4, 1), cvt(PUB + 2, RK + 4), fw(PUB + 2, 512))
        sl(vv(2, 0), *ex(19), z(RQ + 2))
        sl(vv(2, 1), *ex(20), z(RQ + 4))
        sl(vv(3, 0), *ex(21), z(RQ + 6))
        sl(vv(4, 0), lg(0), "s_barrier", tr(QF, 2048), tr(QF + 2, 2560))
        P(5)
        sl(vv(5, 0), tr(QF + 4, 3072), tr(QF + 6, 3584), tr(KF, 0), tr(KF + 2, 512))
        sl(vv(6, 0), tr(KF + 4, 1024), tr(KF + 6, 1536), f"v_min_u32 v{PUB}, -2, v{PUB}")
        sl(vv(7, 0), *ex(23), f"s_add_u32 s{S_KVB}, s{S_KVB}, 0x80000", z(RK))
        sl(vv(3, 1), "s_waitcnt vmcnt(5) lgkmcnt(6)", z(RK + 2))
        sl(MF(SX, RKX, QF, 0), lg(4), f"v_mov_b64 {v(ON,2)}, s[{S_ON}:{S_ON+1}]", add(RV, 0))
        sl(MF(SX, RKX + 4, QF + 4, v(SX, 4)), lg(2), add(RV, 1), f"v_mov_b64 {v(ON+2,2)}, s[{S_ON}:{S_ON+1}]")
        sl(MF(SA, KF, QF, 0), lg(0), cvt(PUB + 1, RV), f"v_mov_b32 v{PM}, 0", wo(2, 2, 0))
        sl(MF(SA, KF + 4, QF + 4, v(SA, 4)), wo(2, 2, 1), ad(SX, 0), ad(SX, 1))
        sl(vv(4, 1), exd(SX, 0), exd(SX, 1))
        sl(vv(5, 1), cvt(SX, SX), f"ds_write_b32 v{V_PW}, v{SX} offset:{L_PX}")
        P(6)
        sl(vv(6, 1), ad(SA, 0), ad(SA, 1), f"s_add_u32 s{S_PUB}, s{S_PUB}, 0x20000")
        sl(vv(7, 1), exd(SA, 0), exd(SA, 1), z(RK + 4), cvt(PM + 1, SA))
        sl(lg(0), "s_barrier", f"ds_read_b128 {v(PX,4)}, v{V_MA} offset:{L_PX}")
        P(7)
        def pv(fast):
            o = (lambda *x: x) if fast else (lambda *x: ())
            if not fast: sl(exd(SA, 0), exd(SA, 1), cvt(PM + 1, SA))
            sl(MH(LL, ON, PM, 0), *o(add(RV + 4, 0), add(RV + 4, 1), wo(2, 1, 0)))
            sl(MH(O0, PUB, PM, 0), *o(cvt(PUB + 3, RV + 4), z(RK + 6), wo(2, 1, 1)))
            sl(MH(O1, PUB + 2, PM, 0), *o(wo(3, 1, 0), lg(3)))
            if fast: P(8)
            sl(MF(LL, ON, PX, v(LL, 4)), *o(wo(3, 1, 1)))
            sl(MF(O0, RVX, PX, v(O0, 4)), *o(wo(3, 2, 0)))
            sl(MF(O1, RVX + 4, PX, v(O1, 4)), *o(wo(3, 2, 1)), f"v_rcp_f32 v{LL+2}, v{LL}")
            if fast: P(10)
            norm(fast)
        pv(True)
    else:
        if cfg.get("al", 0) & 1 and tag == "F":
            A(f".p2align 6")
            for i in range(cfg.get("ao", 0)): A("s_nop 0")
        A(f"LOOP{tag}:")
        delay(A, cfg.get("dm0", 0))
        m_loads(RA)
        if fine:
            P(18)
            A(f"s_cmp_eq_u32 s{S_S}, {cfg.get('pstep', 41)}\ns_cbranch_scc0 NODUMP{tag}\ns_waitcnt lgkmcnt(0) vmcnt(0)")
            for i in range(19): A(f"v_writelane_b32 v26, s{4+2*i}, {i}")
            A(f"v_lshrrev_b32 v27, 2, v{V_MA}\nbuffer_store_dword v26, v27, {srd(R_WS)}, s{S_PROF} offen offset:512\ns_waitcnt vmcnt(0)\nNODUMP{tag}:")
            P(0)
        for i in range(4): A(z(RV + 2*i))
        A(f"s_waitcnt vmcnt({4 if cfg.get('prof') else 3}) lgkmcnt(0)")
        for i in range(4): A(z(RK + 2*i))
        delay(A, cfg.get("dm1", 16))
        A(f"MP{tag}:")
        m_loads(RA)
        spin_dec(A)
        A(f"s_cmp_eq_u32 s{S_S}, 63")
        for i in (2, 3, 0, 1): A(z(RQ + 2*i))
        A("s_waitcnt vmcnt(3)")
        sl(f"v_max3_u32 v25, v{RA}, v{RA+1}, v{RA+2}", f"v_max_u32 v25, v25, v{RA+3}")
        sl(q(0, 0), f"ds_write_b128 v{V_R[0]}, {v(RA,4)} offset:{O_A}", "s_waitcnt vmcnt(2)")
        P(1)
        sl(f"v_max3_u32 v25, v25, v{RA+4}, v{RA+5}", f"v_max3_u32 v25, v25, v{RA+6}, v{RA+7}", f"v_cmp_eq_u32 vcc, -1, v25")
        sl(q(0, 1), f"ds_write_b128 v{V_R[0]}, {v(RA+4,4)} offset:{O_A+1024}")
        sl(q(1, 0), f"s_cbranch_vccnz MP{tag}")
        if kd:
            dp = [[1, 4, 7, 10, 13], [1, 3, 5, 7, 9], [5, 8, 11, 14, 17], [1, 2, 3, 4, 5], [1, 17, 19, 21, 24], [1, 13, 17, 19, 21], [1, 5, 17, 19, 21]][cfg.get("dpos", 0)]
            vops = [kdma(0), kdma(1), kdma(2), kdma(3), pub] if cfg.get("pe", 1) == 1 else [pub, kdma(0), kdma(1), kdma(2), kdma(3)]
            if "nd" in cfg: vops = [x if i <= cfg["nd"] else "s_nop 0" for i, x in enumerate(vops)]
            ex = lambda n: [vops[dp.index(n)]] if n in dp else []
            sl(q(1, 1))
            sl(vv(0, 0))
            sl(vv(0, 1), lg(0)); P(2); A("s_barrier"); P(3)
            sl(rd(2), rd(4))
            sl(vv(1, 0), rd(5), *ex(1))
            sl(vv(1, 1), rd(6), *ex(2))
            sl(k(0, 0), rd(7), *ex(3))
            sl(k(0, 1), rd(3), *ex(4), "s_cbranch_scc1 C_LAST", lg(5))
            sl(q(2, 0), wqr(12), *ex(5), lg(5))
            sl(q(4, 0), wqr(13), *ex(6), lg(5))
            sl(q(5, 0), wqr(10), *ex(7), lg(5))
            sl(q(6, 0), wqr(11), *ex(8), lg(5))
            sl(q(7, 0), wqr(14), *ex(9), lg(3))
            sl(q(3, 0), wqr(15), *ex(10))
            sl(q(4, 1), wo(2, 0, 0), *ex(11))
            sl(q(5, 1), wo(2, 0, 1), *ex(12), add(RQ, 0))
            sl(q(6, 1), wo(3, 0, 0), *ex(13), add(RQ, 1), lg(5))
            sl(q(2, 1), wo(3, 0, 1), *ex(14), mulc(RQ))
            sl(q(7, 1), *ex(15), mulc(RQ + 1), lg(4))
            sl(q(3, 1), wo(2, 1, 0), *ex(16), cvt(RQ + 2, RQ))
        else:
            sl(q(1, 1), f"ds_read_b128 {v(RE,4)}, v{V_R[0]} offset:{O_WQ + 14*1024}")
            sl(vv(0, 0), f"ds_read_b128 {v(RE+4,4)}, v{V_R[0]} offset:{O_WQ + 15*1024}")
            sl(vv(0, 1), lg(2)); P(2); A("s_barrier"); P(3)
            sl(rd(2), rd(3))
            sl(vv(1, 0), rd(4), kvl(0))
            sl(vv(1, 1), rd(5))
            sl(k(0, 0), rd(6))
            sl(k(0, 1), rd(7), "s_cbranch_scc1 C_LAST", lg(5))
            sl(q(2, 0), kvl(1), lg(4))
            sl(q(3, 0), lg(3))
            sl(q(4, 0), lg(2))
            sl(q(5, 0), lg(1), f"v_lshl_add_u32 v{TCH}, v{V_MA}, 3, s{S_TX}" if tw else f"v_lshlrev_b32 v{TCH}, 2, v{V_MA}")
            sl(q(6, 0), kvl(2), lg(0))
            sl(q(7, 0), wo(2, 0, 0))
            sl(q(2, 1), wo(2, 0, 1))
            sl(q(3, 1), wo(3, 0, 0), add(RQ, 0))
            sl(q(4, 1), kvl(3), add(RQ, 1))
            sl(q(5, 1), wo(3, 0, 1), f"s_add_u32 s{S_KVB}, s{S_KVB}, 0x80000", mulc(RQ))
            sl(q(6, 1), wo(2, 1, 0), mulc(RQ + 1), *([f"s_sub_u32 s{S_TB}, s{S_KVB}, 8192"] if tw else []))
            sl(q(7, 1), wo(2, 1, 1), cvt(RQ + 2, RQ))
        P(4)
        sl(k(1, 0), fw(RQ + 2, 2048), z(RQ), *([wo(2, 1, 1)] + ex(17) if kd else []))
        sl(k(2, 0), add(RQ + 4, 0), add(RQ + 4, 1), mulc(RQ + 4), mulc(RQ + 5), cvt(RQ + 6, RQ + 4), fw(RQ + 6, 2560))
        tch = lambda o=0: f"buffer_load_dword v{TCH}, {srd(R_WS)}, s{S_TB if tw else S_KVB} offen offset:{o} sc1 lds"
        if cfg.get("at"):
            tch = lambda o=0: f"buffer_atomic_or v{RQ}, v{TCH}, {srd(R_WS)}, s{S_TB if tw else S_KVB} offen offset:{o}" + [""," sc1"][cfg["at"]-1]
        pe = cfg.get("pe", 1)
        nx = 1 if tw == 2 else 0
        sl(k(3, 0), *(ex(19) if kd else [pub if pe == 2 else tch()]), z(RQ + 2))
        sl(k(4, 0), z(RQ + 4), *([tch(64)] if nx else []))
        sl(k(5, 0), *(ex(21) if kd else [tch()] if pe == 2 else [pub] if pe else []), z(RQ + 6))
        sl(k(6, 0), lg(0), "s_barrier", tr(QF, 2048), tr(QF + 2, 2560))
        if cfg.get("ack5"): A("s_waitcnt vmcnt(0)")
        P(5)
        sl(k(7, 0), tr(QF + 4, 3072), tr(QF + 6, 3584))
        sl(k(1, 1), *(ex(24) + [f"s_add_u32 s{S_KVB}, s{S_KVB}, 0x80000"] if kd else []))
        sl(k(2, 1), add(RK, 0))
        sl(k(3, 1), "s_waitcnt vmcnt(5) lgkmcnt(2)" if kd else f"s_waitcnt vmcnt({nx + (4 if pe else 3)}) lgkmcnt(2)", add(RK, 1))
        sl(MF(SX, RKX, QF, 0), lg(0), cvt(RK + 2, RK), f"v_mov_b64 {v(ON,2)}, s[{S_ON}:{S_ON+1}]")
        sl(MF(SX, RKX + 4, QF + 4, v(SX, 4)), fw(RK + 2, 0), z(RK), f"v_mov_b64 {v(ON+2,2)}, s[{S_ON}:{S_ON+1}]")
        sl(k(4, 1), f"v_mov_b32 v{PM}, 0")
        sl(k(5, 1), ad(SX, 0))
        sl(k(6, 1), ad(SX, 1))
        sl(k(7, 1), exd(SX, 0))
        sl(vv(2, 0), exd(SX, 1))
        sl(vv(3, 0), add(RK + 4, 0), add(RK + 4, 1), cvt(RK + 6, RK + 4), fw(RK + 6, 512), cvt(SX, SX))
        P(6)
        sl(vv(4, 0), f"ds_write_b32 v{V_PW}, v{SX} offset:{L_PX}", z(RK + 4))
        sl(vv(5, 0))
        sl(vv(6, 0))
        sl(vv(7, 0))
        sl(vv(2, 1), lg(0), "s_barrier", tr(KF, 0), tr(KF + 2, 512))
        P(7)
        sl(vv(3, 1), tr(KF + 4, 1024), tr(KF + 6, 1536), add(RV, 0))
        sl(vv(4, 1), f"ds_read_b128 {v(PX,4)}, v{V_MA} offset:{L_PX}", add(RV, 1))
        sl(vv(5, 1), *([] if pe else [pub]))
        sl(vv(6, 1), f"s_add_u32 s{S_PUB}, s{S_PUB}, 0x20000", cvt(PUB + 1, RV))
        sl(vv(7, 1), lg(3), f"v_min_u32 v{PUB}, -2, v{RK+2}")
        P(8)
        sl(MF(SA, KF, QF, 0), lg(1), f"v_mov_b32 v{PUB+2}, v{RK+6}", z(RK + 2))
        sl(MF(SA, KF + 4, QF + 4, v(SA, 4)), lg(0) if kd else f"s_waitcnt vmcnt({nx + 2}) lgkmcnt(0)", z(RK + 6), add(RV + 4, 0))
        if cfg.get("ack9"): A("s_waitcnt vmcnt(0)")
        P(9)
        def pv(fast):
            o = (lambda *x: x) if fast else (lambda *x: ())
            sl(MF(LL, ON, PX, 0), *o(wo(3, 1, 0), add(RV + 4, 1), cvt(PUB + 3, RV + 4), wo(3, 1, 1), ad(SA, 0), ad(SA, 1)))
            sl(MF(O0, RVX, PX, 0), exd(SA, 0), exd(SA, 1))
            sl(MF(O1, RVX + 4, PX, 0), cvt(PM + 1, SA), *o(wo(2, 2, 0), wo(2, 2, 1)))
            if fast: P(10)
            sl(MH(LL, ON, PM, v(LL, 4)), *o(wo(3, 2, 0)))
            sl(MH(O0, PUB, PM, v(O0, 4)), *o(wo(3, 2, 1)))
            sl(MH(O1, PUB + 2, PM, v(O1, 4)), f"v_rcp_f32 v{LL+2}, v{LL}")
            sl(*o(f"v_max_f32 v{LL}, v{LL}, v{LL+2}", f"v_cmp_lt_f32 vcc, s{S_THR}, v{LL}"))
            if cfg.get("pk0", 1):
                for i in range(2): A(f"v_pk_mul_f32 {v(O0+2*i,2)}, {v(O0+2*i,2)}, {v(LL+2,2)} op_sel_hi:[1,0]")
            else:
                for i in range(4): A(f"v_mul_f32 v{O0+i}, v{O0+i}, v{LL+2}")
            sl(cvt(OP, O0), cvt(OP + 1, O0 + 2))
            if fast: P(11)
            for i in range(2): A(f"v_pk_mul_f32 {v(O1+2*i,2)}, {v(O1+2*i,2)}, {v(LL+2,2)} op_sel_hi:[1,0]")
            sl(cvt(OP + 2, O1), cvt(OP + 3, O1 + 2), f"ds_write_b128 v{V_R[0]}, {v(OP,4)} offset:{O_A}")
        pv(True)
    A(f"s_cbranch_vccnz {'FRET' if abl else 'FBK'}{tag}\nFRET{tag}:")
    OF = [OP, 64, 68, 24]
    so = lambda c, T: SM(RQ + 4*T, OF[c], WO(c, T))
    sl(so(0, 0), f"s_add_u32 s{S_S}, s{S_S}, 1", f"s_and_b32 s{S_T0}, s{S_S}, 3", f"s_lshl_b32 s{S_T0}, s{S_T0}, 13")
    sl(so(0, 1), f"s_add_u32 s{S_MW}, s{S_T0}, {WS_M}", f"s_add_u32 s{S_MB}, s{S_MW}, s{S_W2K}", f"s_xor_b32 s{S_MR}, s{S_MW}, 0x4000")
    sl(so(0, 2), f"s_cmp_lt_u32 s{S_W}, 2", lg(0)); P(12); A("s_barrier"); P(13)
    for c in range(1, 4): A(f"ds_read_b128 {v(OF[c],4)}, v{V_R[c]} offset:{O_A}")
    sl(so(0, 3), wo(2, 3, 0), wo(2, 3, 1), lg(4))
    PK = 32
    pk = lambda i: cvt(PK + i, RQ + 2*i)
    tg = lambda sg: f"v_and_or_b32 v{PK+4*sg}, v{PK+4*sg}, -2, s{S_TAG}"
    ps = lambda sg: f"buffer_store_dwordx4 {v(PK+4*sg,4)}, v{V_PST}, {srd(R_WS)}, s{S_PR1 if sg else S_PW} offen {sc}"
    sl(so(1, 0), lg(3))
    sl(so(2, 0), lg(2), f"v_mov_b32 v42, -1")
    sl(so(3, 0), wo(3, 3, 0))
    sl(so(1, 1), wo(3, 3, 1))
    sl(so(2, 1), f"ds_read_b128 {v(SEL,4)}, v{V_MA} offset:{L_SEL}", pk(0))
    sl(so(3, 1), tg(0))
    sl(so(1, 2), pk(1))
    sl(so(2, 2), pk(2), pk(3), ps(0))
    P(14)
    sl(so(3, 2), lg(0))
    sl(so(1, 3))
    sl(so(2, 3), pk(4))
    sl(so(3, 3), tg(1), pk(5))
    sl(pk(6), pk(7), ps(1))
    P(15)
    n0 = cfg.get("n0", 14)
    wq_prefetch(A, 0, n0)
    A(f"s_cbranch_scc1 RED{tag}")
    if fine and cfg.get("ack"):
        A("s_waitcnt vmcnt(2)"); P(16); A(f"s_waitcnt vmcnt({2 - cfg['ack']})"); P(17)
    if kd: A("s_waitcnt vmcnt(2)")
    wq_prefetch(A, n0, 14)
    A(f"""
    buffer_store_dword v42, v{V_MST}, {srd(R_WS)}, s{S_MR} offen {sc}
    s_cmp_eq_u32 s{S_W}, 3
    s_cbranch_scc0 JOIN{tag}
    s_add_u32 s{S_T3}, s{S_S}, 1
    s_min_u32 s{S_T3}, s{S_T3}, 63
    """)
    kv_ready(A, S_T3, tag)
    A(f"""
    JOIN{tag}:
    s_xor_b32 s{S_TAG}, s{S_TAG}, 1
    s_waitcnt lgkmcnt(0)
    s_barrier
    s_branch LOOP{tag}
    """)
    if cfg.get("ph"):
        A(f"MR{tag}:")
        A(ml(1))
        spin_dec(A)
        A("s_waitcnt vmcnt(1)")
        for x in chk(1) + [cmpv]: A(x)
        A(f"s_cbranch_vccnz MR{tag}\ns_branch MC{tag}")
    A(f"""
    FBK{tag}:
    """)
    X = 104 - 8 * 9
    for r in (SX + 2, SX + 3, SA + 2, SA + 3): A(f"v_mov_b32_dpp v{r}, v{r} {DPP('2,3,2,3')}")
    A(f"""
    ds_write_b32 v{V_PW}, v{SX+2} offset:{L_PX + 1024}
    ds_write_b32 v{V_PW}, v{SX+3} offset:{L_PX + 2048}
    s_waitcnt lgkmcnt(0)
    s_barrier
    ds_read_b128 {v(X,4)}, v{V_MA} offset:{L_PX + 1024}
    ds_read_b128 {v(X+4,4)}, v{V_MA} offset:{L_PX + 2048}
    v_max_f32 v{LL}, v{SA+2}, v{SA+3}
    s_waitcnt lgkmcnt(0)
    """)
    for i in range(4): A(f"v_max3_f32 v{LL}, v{LL}, v{X+2*i}, v{X+2*i+1}")
    xG(A, LL, LL + 1, "v_max_f32")
    for r in list(range(X, X + 8)) + [SA + 2, SA + 3]: A(f"v_sub_f32 v{r}, v{r}, v{LL}")
    for i in range(8): A(f"v_exp_f32 v{X+i}, v{X+i}")
    for i in range(4): A(f"v_cvt_pk_bf16_f32 v{PX+i}, v{X+i}, v{X+4+i}")
    pv(False)
    A(f"s_branch FRET{tag}")
    PB, PA = 24, 20
    if cfg.get("al", 0) & 2 and tag == "F":
        A(".p2align 6")
        for i in range(cfg.get("ar", 0)): A("s_nop 0")
    A(f"""
    RED{tag}:
    s_cmp_eq_u32 s{S_W}, 0
    """)
    if cfg.get("dp0", -1) >= 0:
        delay(A, cfg["dp0"])
        A(f"s_cbranch_scc1 PP{tag}")
        delay(A, cfg.get("dp1", 0))
    elif cfg.get("pw", 0) == 1:
        delay(A, cfg.get("dpw", 0))
        A("s_waitcnt vmcnt(0)")
    else:
        delay(A, cfg.get("dpw", 0))
        A(f"""
        s_cbranch_scc1 PW{tag}
        s_waitcnt vmcnt(0)
        PW{tag}:
        s_waitcnt vmcnt(1)
        """ if cfg.get("pb", 0) else f"""
        s_waitcnt vmcnt(1)
        s_cbranch_scc1 PP{tag}
        s_waitcnt vmcnt(0)
        """)
    def pl(B):
        for i in range(4):
            A(f"buffer_load_dwordx4 {v(B+4*i,4)}, v{V_MA}, {srd(R_WS)}, s{S_PR0} offen offset:{i*1024} sc1")
    def pr(B, nb, br=None):
        for i in range(4):
            A(f"s_waitcnt vmcnt({nb+3-i})")
            A(MF(PA, SEL, B + 4*i, "0" if i == 0 else v(PA, 4)))
            if i == 1: A(f"v_bitop3_b32 v40, v{B}, v{B+4}, s{S_TAG} bitop3:0x7e")
        A(f"""
        v_bitop3_b32 v41, v{B+8}, v{B+12}, s{S_TAG} bitop3:0x7e
        v_bitop3_b32 v40, v40, 1, v41 bitop3:0xc8
        v_cmp_ne_u32 vcc, 0, v40
        {br or ''}
        """)
        if br and "s_branch" in br: return
        A(f"""
        v_add_f32_dpp v{PA}, v{PA}, v{PA} row_ror:8 row_mask:0xf bank_mask:0xf
        v_add_f32_dpp v{PA+1}, v{PA+1}, v{PA+1} row_ror:8 row_mask:0xf bank_mask:0xf
        v_cvt_pk_bf16_f32 v41, v{PA}, v{PA+1}
        v_min_u32 v41, -2, v41
        """)
    A(f"PP{tag}:")
    if cfg.get("ps", 2) == 2:
        pl(PB)
        P(16)
        wq_prefetch(A, n0, 14)
        delay(A, cfg.get("dp2", 20))
        A(f"PQ{tag}:")
        pl(RQ)
        if cfg.get("eb", 0):
            pr(PB, 4, f"s_cbranch_vccnz PF{tag}\nPD{tag}:")
        else:
            pr(PB, 4)
            A(f"s_cbranch_vccnz PF{tag}\nPD{tag}:")
    else:
        pl(PB)
        P(16)
        spin_dec(A)
        pr(PB, 0)
        A(f"s_cbranch_vccnz PP{tag}")
    A(f"""
    buffer_store_dword v41, v{V_MST}, {srd(R_WS)}, s{S_MW} offen {sc}
    """)
    P(17)
    A(f"""
    s_barrier
    s_xor_b32 s{S_TAG}, s{S_TAG}, 1
    """)
    if cfg.get("prof"):
        A(f"""
        s_memtime s[{S_TS}:{S_TS+1}]
        s_lshl_b32 s{S_T0}, s{S_S}, 2
        s_add_u32 s{S_T0}, s{S_T0}, s{S_PROF}
        s_waitcnt lgkmcnt(0)
        v_mov_b32 v43, s{S_TS}
        s_mov_b64 exec, 1
        buffer_store_dword v43, off, {srd(R_WS)}, s{S_T0} offset:64
        s_mov_b64 exec, -1
        """)
    A(f"s_branch LOOP{tag}")
    if cfg.get("ps", 2) == 2:
        if cfg.get("al", 0) & 4 and tag == "F": A(".p2align 6")
        A(f"PF{tag}:")
        pf = cfg.get("pf", 0) if not cfg.get("prof") else 0
        if pf:
            if pf == 1: pl(PB)
            pr(RQ, 4 if pf == 1 else 0)
            A(f'''
            s_cbranch_vccnz PG{tag}
            buffer_store_dword v41, v{V_MST}, {srd(R_WS)}, s{S_MW} offen {sc}
            s_barrier
            s_xor_b32 s{S_TAG}, s{S_TAG}, 1
            s_branch LOOP{tag}
            PG{tag}:
            ''')
            if pf == 2: pl(PB)
            spin_dec(A)
            A(f"s_branch PQ{tag}")
            return
        pl(PB)
        spin_dec(A)
        if cfg.get("eb", 0):
            pr(RQ, 4, f"s_cbranch_vccnz PQ{tag}\ns_nop 7\ns_branch PD{tag}")
        else:
            pr(RQ, 4)
            A(f"s_cbranch_vccz PD{tag}\ns_branch PQ{tag}")

def chain(A, cfg):
    cfg["vt"] = 23
    KD[0] = cfg.get("kd", 0)
    if cfg.get("ph"):
        WQS[:] = [48, 88, 72, 88, 96, 80, 96, 48]
        PFO[:] = [0, 1, 2, 3, 8, 9, 10, 11, 4, 5]
    assert cfg.get("n0", 14) <= 10 or not KD[0]
    chain_init(A, cfg)
    A(f"s_mov_b32 s{S_T3}, 1")
    kv_ready(A, S_T3, "I")
    if KD[0]:
        for i in range(4): A(kdma(i))
        A(f"C_GO:\ns_add_u32 s{S_KVB}, s{S_KVB}, 0x80000\ns_waitcnt vmcnt(0)")
        wq_prefetch(A, 10, 14)
    stamp(A, cfg, 3)
    A(f"s_waitcnt lgkmcnt(0)\ns_barrier\ns_cmp_eq_u32 s{S_SENT}, 0\ns_cbranch_scc1 LOOPS")
    chain_loop(A, cfg, "F", "")
    chain_loop(A, cfg, "S", "sc1")
    A("C_LAST:")
    A(f"buffer_store_dwordx4 {v(PUB,4)}, v{V_MA}, {srd(R_WS)}, s{S_PUB} offen sc1")
    A(f"s_add_u32 s{S_PUB}, s{S_PUB}, 0x20000")
    A("s_waitcnt lgkmcnt(0)")
    for t in range(1 if cfg.get("ph") else 2, 8):
        for ab in range(2): A(SM(RV + 4*ab, RA + 4*t, WV(t, ab)))
    for t in ((3, 5, 7) if cfg.get("ph") else range(1, 8)):
        for ab in range(2): A(SM(RK + 4*ab, RA + 4*t, WK(t, ab)))
    fold(A, RV, 73, 75)
    fold(A, RK, 72, 74)
    A(f"v_min_u32 v72, -2, v72")
    A(f"buffer_store_dwordx4 v[72:75], v{V_MA}, {srd(R_WS)}, s{S_PUB} offen sc1")
    cfg["vt"] = 76
    stamp(A, cfg, 4)
    A("s_waitcnt vmcnt(0)")
```

```python
from common import *

def stamp(A, cfg, idx):
    if not cfg.get("prof"): return
    A(f"""
    s_memtime s[{S_TS}:{S_TS+1}]
    s_waitcnt lgkmcnt(0)
    v_mov_b32 v{cfg['vt']}, s{S_TS}
    s_mov_b64 exec, 1
    buffer_store_dword v{cfg['vt']}, off, {srd(R_WS)}, s{S_PROF} offset:{idx*4}
    s_mov_b64 exec, -1
    """)

def spin_dec(A):
    A(f"s_sub_u32 s{S_SPIN}, s{S_SPIN}, 1\ns_cbranch_scc1 EXIT")

class Stager:
    def __init__(self, A, s_base, nring, batch=4):
        self.A = A; self.s_base = s_base; self.nring = nring; self.batch = batch
        self.slots = []
        self.issued = 0; self.done = 0
    def add(self, r, voff, soff, reads):
        self.slots.append((r, voff, soff, reads))
    def issue(self, n):
        A = self.A
        for _ in range(n):
            if self.issued >= len(self.slots): return
            r, voff, soff, _r = self.slots[self.issued]
            pos = self.issued % self.nring
            A(f"s_add_u32 m0, s{self.s_base}, {pos*1024}")
            A(f"s_mov_b32 s{S_T0}, {soff}")
            A(f"buffer_load_dwordx4 v{voff}, {srd(r)}, s{S_T0} offen lds")
            self.issued += 1
    def run(self, drained=False):
        A = self.A
        known = self.issued if drained else self.done
        while self.done < len(self.slots):
            n = min(self.batch, len(self.slots) - self.done)
            if self.done + n > known:
                A(f"s_waitcnt vmcnt({self.issued - self.done - n})")
            for i in range(self.done, self.done + n):
                pos = i % self.nring
                for f in self.slots[i][3]:
                    A(f(pos * 1024))
            self.done += n
            if self.issued < len(self.slots):
                A("s_waitcnt lgkmcnt(0)")
                self.issue(n)
        A("s_waitcnt lgkmcnt(0)")

def xlane_sum8(A, t, u, op="v_add_f32"):
    A(f"{op}_dpp v{t}, v{t}, v{t} row_ror:8 row_mask:0xf bank_mask:0xf")
    A(f"v_mov_b32 v{u}, v{t}")
    A(f"v_permlane16_swap_b32 v{t}, v{u}")
    A(f"{op} v{t}, v{t}, v{u}")
    A(f"v_mov_b32 v{u}, v{t}")
    A(f"v_permlane32_swap_b32 v{t}, v{u}")
    A(f"{op} v{t}, v{t}, v{u}")

def rnd_bf16(A, t):
    A(f"v_cvt_pk_bf16_f32 v{t}, v{t}, v{t}")
    A(f"v_and_b32 v{t}, 0xffff0000, v{t}")

def xG(A, t, u, op):
    A(f"v_mov_b32 v{u}, v{t}")
    A(f"v_permlane16_swap_b32 v{t}, v{u}")
    A(f"{op} v{t}, v{t}, v{u}")
    A(f"v_mov_b32 v{u}, v{t}")
    A(f"v_permlane32_swap_b32 v{t}, v{u}")
    A(f"{op} v{t}, v{t}, v{u}")

S_GI, S_NR, S_R, S_SEG, S_RING, S_BUF, S_HOFF = 64, 65, 66, 67, 68, 69, 70
S_G2, S_H2 = 83, 84
V_L, V_L16, V_T = 1, 2, 3

def worker(A, cfg):
    cfg["vt"] = V_T
    A(f"""
    WORKER:
    s_mov_b32 s{S_G2}, s{S_G}
    s_mov_b32 s{S_H2}, s{S_H}
    s_sub_u32 s{S_GI}, s{S_G}, 1
    s_lshl_b32 s{S_T0}, s{S_GI}, 5
    s_add_u32 s85, s{S_T0}, s{S_H}          ; r
    """)
    if cfg.get("remap", 1):
        A(f"""
        s_mul_i32 s{S_H}, s85, 293
        s_lshr_b32 s{S_H}, s{S_H}, 11
        s_mul_i32 s{S_T0}, s{S_H}, 7
        s_sub_u32 s{S_GI}, s85, s{S_T0}
        s_add_u32 s{S_G}, s{S_GI}, 1
        """)
    A(f"""
    s_cmp_eq_u32 s{S_GI}, 0
    s_cselect_b32 s{S_NR}, 10, 9
    s_lshl_b32 s{S_RING}, s{S_W}, 15
    """)
    RAW, F, RAW2, L_X0 = 16, 48, 128, 0x20000
    A(f"""
    v_and_b32 v4, 7, v{V_L}
    v_lshrrev_b32 v5, 3, v{V_L}
    v_lshlrev_b32 v6, 10, v4
    v_lshl_add_u32 v6, v5, 4, v6            ; row*1024 + p*16
    s_lshl_b32 s{S_T2}, s{S_GI}, 15
    s_lshl_b32 s{S_T3}, s{S_W}, 13
    s_add_u32 s{S_T2}, s{S_T2}, s{S_T3}
    """)
    for i in range(8):
        A(f"buffer_load_dwordx4 v[{RAW+4*i}:{RAW+4*i+3}], v6, {srd(R_X)}, s{S_T2} offen offset:{i*128}")
    A(f"""
    s_lshl_b32 s{S_T0}, s{S_W}, 5
    s_add_u32 s{S_T0}, s{S_T0}, s{S_H}
    s_add_u32 s{S_T0}, s{S_T0}, 4           ; u + 4
    s_lshl_b32 s{S_T1}, s{S_NR}, 2
    s_cmp_lt_u32 s{S_T0}, s{S_T1}
    s_cselect_b32 s{S_BUF}, 1, 0
    s_lshr_b32 s{S_T1}, s{S_T0}, 2
    s_mul_i32 s{S_T1}, s{S_T1}, 7
    s_add_u32 s{S_T1}, s{S_T1}, s{S_GI}     ; seg
    s_and_b32 s{S_T0}, s{S_T0}, 3           ; quarter
    s_lshl_b32 s{S_T2}, s{S_T1}, 15
    s_lshl_b32 s{S_T3}, s{S_T0}, 13
    s_add_u32 s{S_SEG}, s{S_T2}, s{S_T3}
    s_lshl_b32 s{S_T3}, s{S_T0}, 7
    s_add_u32 s{S_R}, s{S_T2}, s{S_T3}
    v_lshlrev_b32 v7, 4, v4
    v_lshl_add_u32 v7, v5, 9, v7            ; p*512 + row*16
    s_cmp_eq_u32 s{S_BUF}, 0
    s_cbranch_scc1 W_NOLN0
    """)
    for i in range(8):
        A(f"buffer_load_dwordx4 v[{RAW2+4*i}:{RAW2+4*i+3}], v6, {srd(R_X)}, s{S_SEG} offen offset:{i*128}")
    A("W_NOLN0:")
    ntouch = 0
    if cfg.get("touch", 1):
        A(f"""
        s_lshl_b32 s{S_T0}, s85, 2
        s_add_u32 s{S_T0}, s{S_T0}, s{S_W}
        s_mul_i32 s{S_T0}, s{S_T0}, {37*128}
        v_lshlrev_b32 v4, 7, v{V_L}
        s_mov_b32 exec_hi, 31
        """)
        for R in {1: (R_WO, R_WQ), 2: (R_WO, R_WK, R_WV, R_WQ), 3: (R_WO, R_WK, R_WV, R_WQ)}[cfg.get("touch", 1)]:
            for o in ((0,) if cfg.get("touch", 1) == 3 else (0, 64)):
                A(f"buffer_load_dword v{120+ntouch}, v4, {srd(R)}, s{S_T0} offen offset:{o}"); ntouch += 1
        A("s_mov_b32 exec_hi, -1")
    VS, VRK, VRV = 8, 9, 10
    A(f"""
    v_lshrrev_b32 v4, 2, v{V_L}
    v_and_b32 v5, 3, v{V_L}
    v_lshlrev_b32 v{VS}, 13, v4
    v_lshl_add_u32 v{VS}, v5, 4, v{VS}
    s_lshl_b32 s{S_T0}, s{S_H}, 8
    s_lshl_b32 s{S_T1}, s{S_W}, 6
    s_add_u32 s{S_T0}, s{S_T0}, s{S_T1}
    v_add_u32 v{VS}, s{S_T0}, v{VS}
    v_lshrrev_b32 v4, 5, v{V_L}              ; hf
    v_bfe_u32 v5, v{V_L}, 2, 2               ; r'
    v_lshlrev_b32 v4, 9, v4
    v_lshl_add_u32 v4, v5, 6, v4             ; (8hf + r')*64
    v_add_u32 v4, s{S_RING}, v4
    v_bfe_u32 v5, v{V_L}, 4, 1               ; colhalf
    v_and_b32 v11, 1, v{V_L}
    v_bfe_u32 v12, v{V_L}, 1, 1
    ; K/Q: e = 16*colhalf + 8*(c'&1) + 4*(c'>>1)
    v_lshl_add_u32 v{VRK}, v5, 5, v4
    v_lshl_add_u32 v{VRK}, v11, 4, v{VRK}
    v_lshl_add_u32 v{VRK}, v12, 3, v{VRK}
    ; V: e = 8*c' + 4*colhalf
    v_and_b32 v11, 3, v{V_L}
    v_lshl_add_u32 v{VRV}, v11, 4, v4
    v_lshl_add_u32 v{VRV}, v5, 3, v{VRV}
    """)
    def rd32(reg, va):
        return [lambda o, reg=reg: f"ds_read_b64_tr_b16 {reg(0)}, v{va} offset:{o}",
                lambda o, reg=reg: f"ds_read_b64_tr_b16 {reg(2)}, v{va} offset:{o+256}"]
    VS2, VK2, VV2 = 112, 113, 115
    NT = " nt" if cfg.get("nt", 0) & 4 else ""
    A(f"""
    v_lshrrev_b32 v4, 4, v{V_L}
    v_and_b32 v5, 15, v{V_L}
    v_lshlrev_b32 v{VS2}, 13, v4
    v_lshlrev_b32 v4, 2, v4
    v_xor_b32 v4, v4, v5
    v_lshl_add_u32 v{VS2}, v4, 4, v{VS2}
    s_lshl_b32 s{S_T0}, s{S_H}, 8
    s_add_u32 s{S_T0}, s{S_T0}, s{S_RING}    ; 4w*8192
    v_add_u32 v{VS2}, s{S_T0}, v{VS2}
    s_lshl_b32 s74, s{S_W}, 10
    """)
    vm = VM(A); uid = {}
    def u_issue(u):
        for i in range(4):
            A(f"s_add_u32 m0, s74, {((4*u + i) & 31) * 4096}")
            A(f"s_mov_b32 s{S_T0}, {(2*u + (i >> 1)) * 16 * 8192}")
            uid[u] = vm.issue(f"buffer_load_dwordx4 v{VS2}, {srd(R_WV if i & 1 else R_WK)}, s{S_T0} offen{NT} lds")
    def u_read(u):
        for i in range(4):
            pos = (4*u + i) & 31; ks = 2*u + (i >> 1)
            for j in range(2):
                A(f"ds_read_b64_tr_b16 {a(128*(i&1) + 4*ks + 2*j, 2)}, v{(VV2 if i & 1 else VK2) + (pos >> 4)} offset:{(pos & 15) * 4096 + j*1024}")
    for u in range(8): u_issue(u)
    A(f"""
    v_lshrrev_b32 v4, 5, v{V_L}              ; hf
    v_bfe_u32 v5, v{V_L}, 2, 2               ; r'
    v_lshlrev_b32 v4, 11, v4
    v_lshl_add_u32 v4, v5, 8, v4
    v_xor_b32 v5, s{S_W}, v5
    v_lshl_add_u32 v4, v5, 6, v4
    v_and_b32 v5, 63, v{VRK}
    v_add_u32 v{VK2}, v4, v5
    v_add_u32 v{VK2+1}, 0x10000, v{VK2}
    v_and_b32 v5, 63, v{VRV}
    v_add_u32 v{VV2}, v4, v5
    v_add_u32 v{VV2+1}, 0x10000, v{VV2}
    s_lshl_b32 s{S_T0}, s{S_W}, 7
    s_add_u32 s{S_T0}, s{S_T0}, {L_X0}
    v_add_u32 v6, s{S_T0}, v7
    s_lshl_b32 s{S_T0}, s{S_H}, 7
    s_lshl_b32 s{S_T1}, s{S_G}, 2
    s_add_u32 s71, s{S_T0}, s{S_T1}
    s_add_u32 s71, s71, {FL_KV}
    s_lshl_b32 s{S_T0}, s{S_G}, 12
    s_lshl_b32 s{S_T1}, s{S_H}, 7
    s_add_u32 s72, s{S_T0}, s{S_T1}
    s_add_u32 s72, s72, {FL_GRP}
    """)
    A(f"s_waitcnt vmcnt({32+ntouch})")
    def unpack(R):
        for i in range(32):
            A(f"v_lshlrev_b32 v{F+2*i}, 16, v{R+i}")
            A(f"v_and_b32 v{F+2*i+1}, 0xffff0000, v{R+i}")
    A(f"s_mov_b32 s73, s{S_BUF}\ns_cmp_eq_u32 s{S_BUF}, 0\ns_cbranch_scc1 W_LNL")
    unpack(RAW2)
    for i in range(16): A(f"v_mov_b64 {v(RAW2+2*i,2)}, {v(RAW+2*i,2)}")
    A("s_branch W_LN\nW_LNL:")
    unpack(RAW)
    A("W_LN:")
    A(f"v_add_f32 v12, v{F}, v{F+1}\nv_add_f32 v13, v{F+2}, v{F+3}")
    for i in range(4, 64, 2):
        A(f"v_add_f32 v12, v12, v{F+i}\nv_add_f32 v13, v13, v{F+i+1}")
    A("v_add_f32 v12, v12, v13")
    xlane_sum8(A, 12, 13)
    A("v_mul_f32 v12, 0x3b000000, v12      ; mean")
    A("v_mov_b32 v14, 0\nv_mov_b32 v15, 0")
    for i in range(0, 64, 2):
        A(f"v_sub_f32 v4, v{F+i}, v12\nv_sub_f32 v5, v{F+i+1}, v12")
        A("v_fmac_f32 v14, v4, v4\nv_fmac_f32 v15, v5, v5")
    A("v_add_f32 v14, v14, v15")
    xlane_sum8(A, 14, 13)
    A("v_mul_f32 v14, 0x3b000000, v14      ; var")
    rnd_bf16(A, 12); rnd_bf16(A, 14)
    A("v_add_f32 v14, 0x3727c5ac, v14")
    rnd_bf16(A, 14)
    A("v_sqrt_f32 v14, v14")
    rnd_bf16(A, 14)
    A("v_rcp_f32 v14, v14")
    for i in range(32):
        A(f"v_sub_f32 v4, v{F+2*i}, v12\nv_sub_f32 v5, v{F+2*i+1}, v12")
        A("v_cvt_pk_bf16_f32 v4, v4, v5")
        A("v_and_b32 v5, 0xffff0000, v4\nv_lshlrev_b32 v4, 16, v4")
        A("v_mul_f32 v5, v5, v14\nv_mul_f32 v4, v4, v14")
        A(f"v_cvt_pk_bf16_f32 v{RAW+i}, v4, v5")
    A("s_cmp_eq_u32 s73, 1\ns_cbranch_scc0 W_LN1")
    for i in range(8):
        A(f"s_add_u32 s{S_T0}, s{S_R}, {WS_XN + i*4096}")
        A(f"buffer_store_dwordx4 v[{RAW+4*i}:{RAW+4*i+3}], v7, {srd(R_WS)}, s{S_T0} offen sc1")
    A("s_branch W_NOZ\nW_LN1:")
    for i in range(8):
        A(f"ds_write_b128 v6, v[{RAW+4*i}:{RAW+4*i+3}] offset:{i*4096}")
    A("s_cmp_eq_u32 s73, 2\ns_cbranch_scc1 W_NOLN1")
    A(f"""
    s_cmp_eq_u32 s{S_W}, 3
    s_cbranch_scc0 W_NOZ
    v_mov_b32 v4, 0
    s_mov_b64 exec, 1
    buffer_store_dword v4, off, {srd(R_WS)}, s71 sc1
    buffer_store_dword v4, off, {srd(R_WS)}, s72 sc1
    s_mov_b64 exec, -1
    W_NOZ:
    """)
    stamp(A, cfg, 1)
    for u in range(16):
        vm.wait(uid[u])
        A("s_waitcnt lgkmcnt(0)\ns_barrier")
        if 1 <= u <= 8: u_issue(u + 7)
        u_read(u)
        if u == 8:
            A(f"""
            s_cmp_eq_u32 s{S_W}, 3
            s_cbranch_scc0 W_NOA
            s_mul_i32 s{S_T1}, s{S_XCC}, s{S_XCC}
            s_lshl_b32 s{S_T1}, s{S_T1}, 8
            s_add_u32 s{S_T1}, s{S_T1}, s{S_XCC}
            s_add_u32 s{S_T1}, s{S_T1}, 0x1000000
            v_mov_b32 v4, s{S_T1}
            s_lshl_b32 s{S_T1}, s{S_G}, 2
            s_mov_b64 exec, 1
            buffer_atomic_add v4, off, {srd(R_DBG)}, s{S_T1} offset:{D_ARR}
            s_mov_b64 exec, -1
            s_branch W_NOLN1
            W_NOA:
            buffer_load_dword v117, off, {srd(R_X)}, 0
            s_cmp_eq_u32 s{S_BUF}, 0
            s_cbranch_scc1 W_NOLN1
            s_mov_b32 s73, 2
            """)
            vm.n += 1
            unpack(RAW2)
            A("s_branch W_LN\nW_NOLN1:")
    A("s_waitcnt lgkmcnt(0)\ns_barrier")
    stamp(A, cfg, 2)
    VKK = 12
    VKS = 11
    lane_ma(A, 4, V_L, 5)
    A(f"""
    v_and_b32 v4, 255, v4
    v_lshrrev_b32 v5, 5, v{V_L}
    v_lshl_add_u32 v4, v5, 8, v4
    v_bfe_u32 v5, v{V_L}, 4, 1
    v_lshl_add_u32 v{VKS}, v5, 10, v4
    s_lshl_b32 s{S_HOFF}, s{S_H}, 13
    s_lshl_b32 s{S_T0}, s{S_W}, 11
    s_add_u32 s75, s{S_HOFF}, s{S_T0}       ; h*8K + w*2K
    v_lshlrev_b32 v{VKK}, 13, v5
    v_lshrrev_b32 v5, 5, v{V_L}
    v_lshl_add_u32 v{VKK}, v5, 8, v{VKK}
    v_bfe_u32 v5, v{V_L}, 1, 1
    v_lshl_add_u32 v{VKK}, v5, 12, v{VKK}
    v_bfe_u32 v5, v{V_L}, 2, 2
    v_lshl_add_u32 v{VKK}, v5, 5, v{VKK}
    v_and_b32 v5, 1, v{V_L}
    v_lshl_add_u32 v{VKK}, v5, 4, v{VKK}
    s_and_b32 s{S_T0}, s{S_W}, 1
    s_lshl_b32 s{S_T0}, s{S_T0}, 10
    s_lshr_b32 s{S_T1}, s{S_W}, 1
    s_lshl_b32 s{S_T1}, s{S_T1}, 7
    s_add_u32 s{S_T0}, s{S_T0}, s{S_T1}
    v_add_u32 v{VKK}, s{S_T0}, v{VKK}
    """)
    def xn_dma(sseg, sbuf):
        A(f"""
        s_lshl_b32 s{S_T0}, s{sseg}, 15
        s_lshl_b32 s{S_T1}, s{S_W}, 13
        s_add_u32 s{S_T0}, s{S_T0}, s{S_T1}
        s_add_u32 m0, s{sbuf}, s{S_T1}
        s_add_u32 s{S_T2}, s{S_T0}, 4096
        """)
        for i in range(4):
            A(f"buffer_load_dwordx4 v{V_L16}, {srd(R_WS)}, s{S_T0} offen offset:{i*1024} sc1 lds")
        A("s_add_u32 m0, m0, 4096")
        for i in range(4):
            A(f"buffer_load_dwordx4 v{V_L16}, {srd(R_WS)}, s{S_T2} offen offset:{i*1024} sc1 lds")
    def seg_loop(name, body, flag_pub, nst, first):
        A(f"""
        s_mov_b32 s{S_R}, 1
        s_mov_b32 s{S_SEG}, s{S_GI}
        s_mov_b32 s{S_BUF}, 0
        v_add_u32 v13, {L_X0}, v{V_L16}
        """)
        if first:
            body()
            A(f"s_add_u32 s{S_SEG}, s{S_SEG}, 7")
            first()
            xn_dma(S_SEG, S_BUF)
            A("s_waitcnt vmcnt(0)")
        else:
            A(f"s_branch {name}_PF")
        A(f"""
        {name}_LOOP:
        s_barrier
        s_sub_u32 s{S_T0}, s{S_R}, 1
        s_max_i32 s{S_T0}, s{S_T0}, 1
        """)
        flag_pub(S_T0, "A")
        A(f"""
        v_add_u32 v13, s{S_BUF}, v{V_L16}
        s_xor_b32 s{S_BUF}, s{S_BUF}, 0x8000
        s_add_u32 s{S_R}, s{S_R}, 1
        s_cmp_eq_u32 s{S_R}, s{S_NR}
        s_cbranch_scc1 {name}_NOPF
        {name}_PF:
        s_add_u32 s{S_T3}, s{S_SEG}, 7
        """)
        xn_dma(S_T3, S_BUF)
        tr = cfg.get("t" + name, {"P1": 8, "P2": 3}[name])
        tf = cfg.get("tf", 0) if name == "P2" else 0
        if tf:
            A(f'''
            s_lshl_b32 s{S_T0}, s85, 2
            s_add_u32 s{S_T0}, s{S_T0}, s{S_W}
            s_lshl3_add_u32 s{S_T0}, s{S_T0}, s{S_R}
            s_sub_u32 s{S_T0}, s{S_T0}, 1
            s_lshl_b32 s{S_T1}, s{S_T0}, 8
            s_mul_i32 s{S_T0}, s{S_T0}, {5*128}
            v_lshlrev_b32 v4, 7, v{V_L}
            ''')
            if tf & 1: A(f"s_mov_b64 exec, 31\nbuffer_load_dword v120, v4, {srd(R_WO)}, s{S_T0} offen")
            if tf & 2: A(f"s_mov_b64 exec, 3\nbuffer_load_dword v121, v4, {srd(R_WD)}, s{S_T1} offen")
            A("s_mov_b64 exec, -1")
        if tr:
            A(f"""
            s_mul_i32 s{S_T0}, s{S_W}, {cfg.get("s" + name, 0)}
            s_add_u32 s{S_T0}, s{S_T0}, {tr}
            s_cmp_eq_u32 s{S_R}, s{S_T0}
            s_cbranch_scc0 {name}_NOPF
            s_lshl_b32 s{S_T0}, s85, 2
            s_add_u32 s{S_T0}, s{S_T0}, s{S_W}
            s_lshl_b32 s{S_T1}, s{S_T0}, 11
            s_mul_i32 s{S_T0}, s{S_T0}, {37*128}
            v_lshlrev_b32 v4, 7, v{V_L}
            s_mov_b32 exec_hi, 31
            buffer_load_dword v120, v4, {srd(R_WQ if name == "P1" else R_WO)}, s{S_T0} offen
            s_mov_b64 exec, 0xffff
            """)
            for R in ((R_WG, R_WU) if name == "P1" else (R_WD,)):
                A(f"buffer_load_dword v121, v4, {srd(R)}, s{S_T1} offen")
            A("s_mov_b64 exec, -1")
        A(f"{name}_NOPF:")
        body()
        A(f"""
        s_add_u32 s{S_SEG}, s{S_SEG}, 7
        s_cmp_eq_u32 s{S_R}, s{S_NR}
        s_waitcnt vmcnt({nst})
        s_cbranch_scc0 {name}_LOOP
        """)
    def seg_end(flag_pub):
        A("s_waitcnt vmcnt(0)\ns_barrier")
        flag_pub(S_R, "B")
    XF, AK, AV, PK = 16, 48, 64, 80
    NPF = 8
    def pub_kv(sv, tag):
        A(f"""
        s_cmp_eq_u32 s{S_W}, 0
        s_cbranch_scc0 P1_NOPUB{tag}
        v_mov_b32 v4, s{sv}
        s_mov_b64 exec, 1
        buffer_store_dword v4, off, {srd(R_WS)}, s71 sc1
        s_mov_b64 exec, -1
        P1_NOPUB{tag}:
        """)
    def body1():
        for ks in range(NPF):
            A(f"ds_read_b128 v[{XF+4*ks}:{XF+4*ks+3}], v13 offset:{ks*1024}")
        for ks in range(32):
            x = XF + 4 * (ks % NPF)
            A(f"s_waitcnt lgkmcnt({min(NPF-1, 31-ks)})")
            ck = "0" if ks == 0 else v(AK, 16)
            cv = "0" if ks == 0 else v(AV, 16)
            A(f"v_mfma_f32_32x32x16_bf16 {v(AK,16)}, {a(4*ks,4)}, {v(x,4)}, {ck}")
            A(f"v_mfma_f32_32x32x16_bf16 {v(AV,16)}, {v(x,4)}, {a(128+4*ks,4)}, {cv}")
            if ks + NPF < 32:
                A(f"ds_read_b128 v[{x}:{x+3}], v13 offset:{(ks+NPF)*1024}")
        A(f"""
        s_lshl_b32 s{S_T0}, s{S_SEG}, 18
        s_add_u32 s{S_T0}, s{S_T0}, s75
        s_lshr_b32 s{S_T1}, s{S_T0}, 1
        s_add_u32 s{S_T1}, s{S_T1}, {WS_KVM}
        buffer_store_dwordx4 v[96:99], v{V_L16}, {srd(R_WS)}, s{S_T1} offen sc1
        s_lshl_b32 s{S_T0}, s{S_T0}, 1
        s_add_u32 s{S_T0}, s{S_T0}, {WS_KV}
        s_and_b32 s{S_T1}, s{S_T0}, 0xffffc000
        """)
        for i in range(8):
            A(f"v_cvt_pk_bf16_f32 v{PK+i}, v{AK+2*i}, v{AK+2*i+1}")
        A(f"buffer_store_dwordx4 {v(PK,4)}, v{VKK}, {srd(R_WS)}, s{S_T1} offen sc1")
        A(f"buffer_store_dwordx4 {v(PK+4,4)}, v{VKK}, {srd(R_WS)}, s{S_T1} offen offset:512 sc1")
        for i, r in enumerate([0, 2, 8, 10, 4, 6, 12, 14]):
            A(f"v_cvt_pk_bf16_f32 v{PK+8+i}, v{AV+r}, v{AV+r+1}")
        A(f"buffer_store_dwordx4 {v(PK+8,4)}, v{VKS}, {srd(R_WS)}, s{S_T0} offen offset:2048 sc1")
        A(f"buffer_store_dwordx4 {v(PK+12,4)}, v{VKS}, {srd(R_WS)}, s{S_T0} offen offset:2560 sc1")
    def first1():
        A("s_waitcnt vmcnt(0)\ns_barrier")
        pub_kv(S_R, "F")
        A(f"""
        s_cmp_eq_u32 s{S_W}, 1
        s_cbranch_scc0 W_LNOK
        s_lshl_b32 s{S_T1}, s{S_G}, 2
        W_LNP:
        buffer_load_dword v4, off, {srd(R_DBG)}, s{S_T1} offset:{D_ARR} sc1
        """)
        spin_dec(A)
        A(f"""
        s_waitcnt vmcnt(0)
        v_cmp_gt_u32 vcc, 0x20000000, v4
        s_cbranch_vccnz W_LNP
        W_LNOK:
        s_barrier
        """)
    for i in range(4): A(f"v_mov_b32 v{96+i}, -1")
    seg_loop("P1", body1, pub_kv, 5, first1)
    seg_end(pub_kv)
    stamp(A, cfg, 3)
    if cfg.get("stop", 99) <= 1:
        A("s_branch EXIT")
        return
    VSF, VRF, VHS = 14, 15, 10
    A(f"""
    v_lshrrev_b32 v4, 1, v{V_L}
    v_mul_u32_u24 v{VSF}, 3584, v4
    v_and_b32 v5, 1, v{V_L}
    v_lshl_add_u32 v{VSF}, v5, 4, v{VSF}
    s_lshl_b32 s{S_T0}, s{S_H}, 7
    s_lshl_b32 s{S_T1}, s{S_W}, 5
    s_add_u32 s{S_T0}, s{S_T0}, s{S_T1}
    v_add_u32 v{VSF}, s{S_T0}, v{VSF}
    v_lshlrev_b32 v{VRF}, 4, v5
    v_bfe_u32 v5, v{V_L}, 1, 1
    v_lshl_add_u32 v{VRF}, v5, 3, v{VRF}
    v_bfe_u32 v5, v{V_L}, 2, 2
    v_lshl_add_u32 v{VRF}, v5, 5, v{VRF}
    v_lshrrev_b32 v5, 5, v{V_L}
    v_lshl_add_u32 v{VRF}, v5, 8, v{VRF}
    v_bfe_u32 v4, v{V_L}, 4, 1
    v_lshl_add_u32 v{VRF}, v4, 10, v{VRF}
    v_add_u32 v{VRF}, s{S_RING}, v{VRF}
    v_lshlrev_b32 v{VHS}, 16, v4
    v_lshl_add_u32 v{VHS}, v5, 8, v{VHS}
    v_and_b32 v5, 15, v{V_L}
    v_lshl_add_u32 v{VHS}, v5, 4, v{VHS}
    s_lshl_b32 s{S_T0}, s{S_T0}, 4
    v_add_u32 v{VHS}, s{S_T0}, v{VHS}
    """)
    st = Stager(A, S_RING, 32)
    for p in range(16):
        for kk in range(2):
            ks = 2 * p + kk
            st.add(R_WQ, VS, ks * 16 * 8192, rd32(lambda j, ks=ks: a(4*ks+j, 2), VRK))
        st.add(R_WG, VSF, p * 32 * 3584, [])
        rds = []
        for kk in range(2):
            for hb in range(2):
                rds.append(lambda o, p=p, kk=kk, hb=hb: f"ds_read_b64_tr_b16 {a(128+4*(2*p+kk)+2*hb, 2)}, v{VRF} offset:{o - 1024 + kk*512 + hb*128}")
        st.add(R_WU, VSF, p * 32 * 3584, rds)
    st.issue(32)
    st.run()
    A("s_barrier")
    stamp(A, cfg, 4)
    C1 = -2 * 1.4426950408889634 * 0.7978845608028654
    A(f"s_mov_b32 s73, {f2u(C1)}\ns_mov_b32 s74, {f2u(C1 * 0.044715)}")
    def body2():
        for ks in range(NPF):
            A(f"ds_read_b128 v[{XF+4*ks}:{XF+4*ks+3}], v13 offset:{ks*1024}")
        for ks in range(32):
            x = XF + 4 * (ks % NPF)
            A(f"s_waitcnt lgkmcnt({min(NPF-1, 31-ks)})")
            ck = "0" if ks == 0 else v(AK, 16)
            cv = "0" if ks == 0 else v(AV, 16)
            A(f"v_mfma_f32_32x32x16_bf16 {v(AV,16)}, {a(128+4*ks,4)}, {v(x,4)}, {cv}")
            A(f"v_mfma_f32_32x32x16_bf16 {v(AK,16)}, {a(4*ks,4)}, {v(x,4)}, {ck}")
            if ks + NPF < 32:
                A(f"ds_read_b128 v[{x}:{x+3}], v13 offset:{(ks+NPF)*1024}")
        A(f"""
        s_lshl_b32 s{S_T0}, s{S_SEG}, 18
        s_lshl_b32 s{S_T1}, s{S_SEG}, 17
        s_add_u32 s{S_T0}, s{S_T0}, s75
        s_add_u32 s{S_T1}, s{S_T1}, {WS_H}
        s_add_u32 s{S_T0}, s{S_T0}, {WS_QX}
        v_mov_b32 v4, s73
        """)
        T = PK + 8
        for i in range(8): A(f"v_mul_f32 v{T+i}, v{AV+i}, v{AV+i}")
        for i in range(8): A(f"v_fma_f32 v{T+i}, v{T+i}, s74, v4")
        for i in range(8): A(f"v_mul_f32 v{T+i}, v{T+i}, v{AV+i}")
        for i in range(8):
            A(f"v_cvt_pk_bf16_f32 v{PK+i}, v{AK+2*i}, v{AK+2*i+1}")
        A(f"buffer_store_dwordx4 {v(PK,4)}, v{VKS}, {srd(R_WS)}, s{S_T0} offen sc1")
        A(f"buffer_store_dwordx4 {v(PK+4,4)}, v{VKS}, {srd(R_WS)}, s{S_T0} offen offset:512 sc1")
        for i in range(8): A(f"v_exp_f32 v{T+i}, v{T+i}")
        for i in range(8): A(f"v_add_f32 v{T+i}, 1.0, v{T+i}")
        for i in range(8): A(f"v_rcp_f32 v{T+i}, v{T+i}")
        for i in range(8): A(f"v_mul_f32 v{T+i}, v{T+i}, v{AV+i}")
        for i in range(8): A(f"v_mul_f32 v{T+i}, v{T+i}, v{AV+8+i}")
        for i in range(4): A(f"v_cvt_pk_bf16_f32 v{T+8+i}, v{T+2*i}, v{T+2*i+1}")
        A(f"buffer_store_dwordx4 {v(T+8,4)}, v{VHS}, {srd(R_WS)}, s{S_T1} offen sc1")
    seg_loop("P2", body2, lambda a_, b_: None, 3, None)
    seg_end(lambda a_, b_: None)
    def pub_grp(tag, val, sc="sc1"):
        A(f"""
        s_cmp_eq_u32 s{S_W}, 0
        s_cbranch_scc0 NOPUB_{tag}
        v_mov_b32 v4, {val}
        s_mov_b64 exec, 1
        buffer_store_dword v4, off, {srd(R_WS)}, s72 {sc}
        s_mov_b64 exec, -1
        NOPUB_{tag}:
        """)
    pub_grp("H", 1)
    stamp(A, cfg, 5)
    if cfg.get("stop", 99) <= 2:
        A("s_waitcnt vmcnt(0)\ns_branch EXIT")
        return
    VSD, VSO, VRT = 8, 9, 10
    A(f"""
    s_mov_b32 s{S_G}, s{S_G2}
    s_mov_b32 s{S_H}, s{S_H2}
    s_sub_u32 s{S_GI}, s{S_G}, 1
    s_cmp_eq_u32 s{S_GI}, 0
    s_cselect_b32 s{S_NR}, 10, 9
    s_lshl_b32 s{S_HOFF}, s{S_H}, 13
    s_lshl_b32 s{S_T0}, s{S_G}, 12
    s_lshl_b32 s{S_T1}, s{S_H}, 7
    s_add_u32 s72, s{S_T0}, s{S_T1}
    s_add_u32 s72, s72, {FL_GRP}
    v_lshrrev_b32 v4, 2, v{V_L}
    v_and_b32 v5, 3, v{V_L}
    v_lshlrev_b32 v{VSD}, 10, v4
    v_lshl_add_u32 v{VSD}, v5, 4, v{VSD}
    s_lshr_b32 s{S_T0}, s{S_H}, 1
    s_lshl_b32 s{S_T0}, s{S_T0}, 6
    s_lshl_b32 s{S_T1}, s{S_W}, 20
    s_add_u32 s{S_T1}, s{S_T1}, s{S_T0}
    v_add_u32 v{VSO}, s{S_T1}, v{VSD}
    s_mul_i32 s{S_T1}, s{S_W}, {448*1024}
    s_add_u32 s{S_T1}, s{S_T1}, s{S_T0}
    v_add_u32 v{VSD}, s{S_T1}, v{VSD}
    v_lshlrev_b32 v{VRT}, 4, v5
    v_and_b32 v4, 3, v4
    v_lshl_add_u32 v{VRT}, v4, 6, v{VRT}
    v_lshrrev_b32 v4, 4, v{V_L}
    v_lshl_add_u32 v{VRT}, v4, 9, v{VRT}
    v_add_u32 v{VRT}, s{S_RING}, v{VRT}
    """)
    def rd16(regf):
        return [lambda o, T=T, hb=hb: f"ds_read_b64_tr_b16 {regf(4*T+2*hb)}, v{VRT} offset:{o - 1024 + T*8 + hb*256}" for T in range(2) for hb in range(2)]
    st = Stager(A, S_RING, 32)
    for kq in range(14):
        st.add(R_WD, VSD, kq * 32768, [])
        st.add(R_WD, VSD, kq * 32768 + 16384, rd16(lambda j, kq=kq: v(128 + 8*kq + j, 2)))
    for kq in range(32):
        st.add(R_WO, VSO, kq * 32768, [])
        st.add(R_WO, VSO, kq * 32768 + 16384, rd16(lambda j, kq=kq: a(8*kq + j, 2)))
    st.issue(32)
    st.run()
    stamp(A, cfg, 6)
    VFL, VPW, VPR, VG, VXO = 8, 9, 10, 11, 12
    PITCH = 144
    A(f"""
    v_and_b32 v4, 31, v{V_L}
    v_lshlrev_b32 v{VFL}, 7, v4
    s_lshl_b32 s73, s{S_G}, 12
    s_add_u32 s73, s73, {FL_GRP}
    v_and_b32 v4, 15, v{V_L}
    v_mul_u32_u24 v{VPW}, {PITCH}, v4
    v_lshrrev_b32 v5, 4, v{V_L}
    v_lshl_add_u32 v{VPW}, v5, 5, v{VPW}
    s_mul_i32 s{S_T0}, s{S_W}, {16*PITCH}
    v_add_u32 v{VPW}, s{S_T0}, v{VPW}
    v_mul_u32_u24 v{VPR}, {PITCH}, v5
    v_lshl_add_u32 v{VPR}, v4, 3, v{VPR}
    s_mul_i32 s{S_T0}, s{S_W}, {4*PITCH}
    v_add_u32 v{VPR}, s{S_T0}, v{VPR}
    v_lshlrev_b32 v{VG}, 2, v0
    v_add_u32 v{VG}, 0x20000, v{VG}
    v_lshlrev_b32 v{VXO}, 10, v5
    v_lshl_add_u32 v{VXO}, v4, 2, v{VXO}
    s_and_b32 s{S_T0}, s{S_H}, 1
    s_lshl_b32 s74, s{S_T0}, 16            ; rt*64KB
    s_lshl_b32 s{S_T0}, s{S_T0}, 14
    s_lshl_b32 s{S_T1}, s{S_W}, 12
    s_add_u32 s{S_T0}, s{S_T0}, s{S_T1}
    s_lshr_b32 s{S_T1}, s{S_H}, 1
    s_lshl_b32 s{S_T1}, s{S_T1}, 6
    s_add_u32 s{S_T0}, s{S_T0}, s{S_T1}
    v_add_u32 v{VXO}, s{S_T0}, v{VXO}
    """)
    def grp_wait(tag, s_val):
        A(f"""
        GW_{tag}:
        buffer_load_dword v4, v{VFL}, {srd(R_WS)}, s73 offen sc1
        """)
        spin_dec(A)
        A(f"""
        s_waitcnt vmcnt(0)
        v_cmp_gt_u32 vcc, {s_val}, v4
        s_cbranch_vccnz GW_{tag}
        """)
    A(f"""
    s_lshl_b32 s{S_T1}, s{S_G}, 2
    W_ARR2:
    buffer_load_dword v4, off, {srd(R_DBG)}, s{S_T1} offset:{D_ARR} sc1
    """)
    spin_dec(A)
    A(f"""
    s_waitcnt vmcnt(0)
    v_cmp_gt_u32 vcc, 0x20000000, v4
    s_cbranch_vccnz W_ARR2
    s_mul_i32 s{S_T1}, s{S_XCC}, s{S_XCC}
    s_lshl_b32 s{S_T1}, s{S_T1}, 8
    s_add_u32 s{S_T1}, s{S_T1}, s{S_XCC}
    s_add_u32 s{S_T1}, s{S_T1}, 0x1000000
    s_lshl_b32 s{S_T1}, s{S_T1}, 5
    v_readfirstlane_b32 s81, v4
    s_xor_b32 s81, s81, s{S_T1}
    """)
    grp_wait("H", 1)
    A("s_barrier")
    HF, DA = 16, 112
    A(f"""
    s_mul_i32 s{S_T0}, s{S_W}, {14*1024}
    s_add_u32 s74, s74, s{S_T0}
    s_lshl_b32 s{S_T0}, s{S_GI}, 17
    s_add_u32 s75, s74, s{S_T0}
    s_add_u32 s75, s75, {WS_H}
    s_mov_b32 s{S_R}, 0
    v_mov_b32 v13, v{VPW}
    DN_LOOP:
    """)
    for kq in range(14):
        if kq % 4 == 0: A(f"s_add_u32 s{S_T0}, s75, {kq*1024}")
        A(f"buffer_load_dwordx4 {v(HF+4*kq,4)}, v{V_L16}, {srd(R_WS)}, s{S_T0} offen offset:{(kq%4)*1024} sc1")
    for kq in range(14):
        A(f"s_waitcnt vmcnt({13-kq})")
        for T in range(2):
            cc = "0" if kq == 0 else v(DA+4*T, 4)
            A(f"v_mfma_f32_16x16x32_bf16 {v(DA+4*T,4)}, {v(128+8*kq+4*T,4)}, {v(HF+4*kq,4)}, {cc}")
    A(f"""
    s_add_u32 s75, s75, {7*131072}
    s_add_u32 s{S_R}, s{S_R}, 1
    s_cmp_lt_u32 s{S_R}, s{S_NR}
    ds_write_b128 v13, {v(DA,4)}
    ds_write_b128 v13, {v(DA+4,4)} offset:16
    v_add_u32 v13, {64*PITCH}, v13
    s_cbranch_scc1 DN_LOOP
    s_waitcnt lgkmcnt(0)
    s_barrier
    """)
    def red4(va, off, d):
        for i in range(4):
            A(f"ds_read_b64 v[{d+2*i}:{d+2*i+1}], v{va} offset:{off + i*16*PITCH}")
    NL = -1.4426950408889634
    A(f"v_add_u32 v13, {5*64*PITCH}, v{VPR}")
    for r in range(10):
        red4(VPR if r < 5 else 13, (r % 5) * 64 * PITCH, 16 + 8 * r)
    for r in range(10):
        d = 16 + 8 * r
        A(f"s_waitcnt lgkmcnt(0)" if r == 0 else "")
        A(f"""
        v_add_f32 v{d}, v{d}, v{d+2}
        v_add_f32 v{d+1}, v{d+1}, v{d+3}
        v_add_f32 v{d+4}, v{d+4}, v{d+6}
        v_add_f32 v{d+5}, v{d+5}, v{d+7}
        v_add_f32 v{d}, v{d}, v{d+4}
        v_add_f32 v{d+1}, v{d+1}, v{d+5}
        v_cvt_pk_bf16_f32 v{d}, v{d}, v{d+1}
        v_and_b32 v{d+1}, 0xffff0000, v{d}
        v_lshlrev_b32 v{d}, 16, v{d}
        v_mul_f32 v{d+2}, {f2u(NL)}, v{d}
        v_mul_f32 v{d+3}, {f2u(NL)}, v{d+1}
        v_exp_f32 v{d+2}, v{d+2}
        v_exp_f32 v{d+3}, v{d+3}
        v_add_f32 v{d+2}, 1.0, v{d+2}
        v_add_f32 v{d+3}, 1.0, v{d+3}
        v_rcp_f32 v{d+2}, v{d+2}
        v_rcp_f32 v{d+3}, v{d+3}
        v_mul_f32 v{d}, v{d}, v{d+2}
        v_mul_f32 v{d+1}, v{d+1}, v{d+3}
        v_cvt_pk_bf16_f32 v{d}, v{d}, v{d+1}
        ds_write_b32 v{VG}, v{d} offset:{r*1024}
        """)
    stamp(A, cfg, 7)
    KX, QX, VX, KM, FM, SS, OA = 16, 48, 64, 80, 16, 100, 112
    VMA, VKW, VQI, VKR, VKL = 13, 14, 15, 96, 97
    S_AT, S_OW, S_OR, S_XO, S_CS, S_MK = 75, 76, 77, 79, 80, 81
    S_EH, S_MSK = 82, 86
    L_KT = 0x24000
    lane_ma(A, VMA, V_L, 4)
    A(f"""
    s_lshl_b32 s{S_T0}, s{S_W}, 12
    s_add_u32 s{S_T0}, s{S_T0}, {L_KT}
    v_and_b32 v4, 15, v{V_L}
    v_lshrrev_b32 v5, 4, v{V_L}
    v_lshlrev_b32 v{VKW}, 6, v4
    v_lshl_add_u32 v{VKW}, v5, 4, v{VKW}
    v_add_u32 v{VKW}, s{S_T0}, v{VKW}
    v_add_u32 v{VKR}, s{S_T0}, v{V_L16}
    s_lshr_b32 s{S_T0}, s{S_W}, 1
    v_lshlrev_b32 v{VKL}, 8, v5
    v_bfe_u32 v6, v{V_L}, 1, 1
    v_lshl_add_u32 v{VKL}, v6, 12, v{VKL}
    v_bfe_u32 v6, v{V_L}, 2, 2
    v_lshl_add_u32 v{VKL}, v6, 5, v{VKL}
    v_and_b32 v6, 1, v{V_L}
    v_lshl_add_u32 v{VKL}, v6, 4, v{VKL}
    s_lshl_b32 s{S_T1}, s{S_T0}, 7
    v_add_u32 v{VKL}, s{S_T1}, v{VKL}
    v_xor_b32 v{VKL+1}, 128, v{VKL}
    s_and_b32 s{S_T2}, s{S_W}, 1
    s_lshl_b32 s{S_T3}, s{S_T2}, 4
    v_add_u32 v4, s{S_T3}, v4
    v_lshlrev_b32 v5, 2, v5
    v_sub_u32 v4, v4, v5
    """)
    for tl in range(2):
        for r in range(4):
            A(f"v_cmp_le_i32 s[{S_MSK+2*(4*tl+r)}:{S_MSK+2*(4*tl+r)+1}], {16*tl+r}, v4")
    A(f"""
    s_mov_b32 s{S_CS}, {f2u(128**-0.5 * 1.4426950408889634)}
    v_mov_b32 v{VQI}, {f2u(-1e9 * 128**0.5)}
    s_lshl_b32 s{S_OW}, s{S_T2}, 17
    s_lshl_b32 s{S_EH}, s{S_T0}, 11         ; eh*2048
    s_add_u32 s{S_OW}, s{S_OW}, s{S_EH}
    s_lshl_b32 s{S_T1}, s{S_H}, 12
    s_add_u32 s{S_OW}, s{S_OW}, s{S_T1}
    s_add_u32 s{S_OW}, s{S_OW}, {WS_O}
    s_and_b32 s{S_OR}, s{S_H}, 1
    s_lshl_b32 s{S_OR}, s{S_OR}, 17
    s_lshl_b32 s{S_T1}, s{S_W}, 15
    s_add_u32 s{S_OR}, s{S_OR}, s{S_T1}
    s_add_u32 s{S_OR}, s{S_OR}, {WS_O}
    s_lshl_b32 s{S_AT}, s{S_T2}, 10         ; qt*1024
    s_add_u32 s{S_AT}, s{S_AT}, {WS_QX}
    s_mov_b32 s{S_R}, 0
    s_mov_b32 s{S_SEG}, s{S_GI}
    """)
    def att_loads(sseg):
        A(f"""
        s_lshl_b32 s{S_T0}, s{sseg}, 18
        s_add_u32 s{S_T0}, s{S_T0}, s{S_HOFF}
        s_lshl_b32 s{S_T1}, s{S_EH}, 1
        s_add_u32 s{S_T0}, s{S_T0}, s{S_T1}
        s_add_u32 s{S_T1}, s{S_T0}, s{S_AT}
        s_lshl_b32 s{S_T0}, s{S_T0}, 1
        s_add_u32 s{S_T0}, s{S_T0}, {WS_KV}
        s_and_b32 s{S_T2}, s{S_T0}, 0xffffc000
        s_add_u32 s78, s{S_T2}, 8192
        """)
        for c in range(4):
            if c == 2: A(f"s_xor_b32 s{S_T1}, s{S_T1}, 4096")
            A(f"buffer_load_dwordx4 {v(QX+4*c,4)}, v{VMA}, {srd(R_WS)}, s{S_T1} offen offset:{(c&1)*2048} sc1")
            A(f"buffer_load_dwordx4 {v(KX+4*c,4)}, v{VKL+(c>>1)}, {srd(R_WS)}, s{S_T2} offen offset:{(c&1)*1024} sc1")
            A(f"buffer_load_dwordx4 {v(KX+16+4*c,4)}, v{VKL+(c>>1)}, {srd(R_WS)}, s78 offen offset:{(c&1)*1024} sc1")
            if c < 2:
                A(f"buffer_load_dwordx4 {v(VX+8*c,4)}, v{VMA}, {srd(R_WS)}, s{S_T0} offen offset:2048 sc1")
                A(f"buffer_load_dwordx4 {v(VX+8*c+4,4)}, v{VMA}, {srd(R_WS)}, s{S_T0} offen offset:3072 sc1")
            if c == 0: A(f"s_xor_b32 s{S_T0}, s{S_T0}, 4096")
    att_loads(S_SEG)
    fine = cfg.get("prof", 0) >= 2
    P = lambda i: A(f"s_memtime s[{8+2*i}:{9+2*i}]") if fine else None
    A(f"""
    v_and_b32 v{VFL}, 0x380, v{VFL}
    s_lshl_b32 s{S_T0}, s{S_W}, 10
    s_add_u32 s73, s73, s{S_T0}
    W5_LOOP:
    """)
    P(0)
    MX, LX, PX = 36, 37, KX + 16
    ring = f"s_and_b32 s{S_T0}, s{S_R}, 1\ns_lshl1_add_u32 s{S_T0}, s{S_GI}, s{S_T0}\ns_lshl_b32 s{S_T0}, s{S_T0}, 18" if cfg.get("oring", 0) else ""
    def km_loads():
        for c in range(4):
            A(f"buffer_load_dwordx4 {v(KM+4*c,4)}, v{VMA}, {srd(R_WS)}, s{S_T1 if c < 2 else S_T2} offen offset:{(c&1)*1024} sc1")
    A(f"""
    s_lshl_b32 s{S_T0}, s{S_SEG}, 18
    s_add_u32 s{S_T1}, s{S_T0}, s{S_HOFF}
    s_lshr_b32 s{S_T1}, s{S_T1}, 1
    s_add_u32 s{S_T1}, s{S_T1}, {WS_KVM}
    s_add_u32 s{S_T1}, s{S_T1}, s{S_EH}
    s_xor_b32 s{S_T2}, s{S_T1}, 2048
    s_lshl_b32 s{S_XO}, s{S_SEG}, 15
    {ring}
    s_add_u32 s{S_T3}, s{S_T0}, s{S_OR}
    s_add_u32 s{S_T0}, s{S_T0}, s{S_OW}
    buffer_load_dword v3, v{VXO}, {srd(R_X)}, s{S_XO} offen
    """)
    km_loads()
    A("s_waitcnt vmcnt(5)")
    P(1)
    for c in range(4):
        for tl in range(2):
            cc = "0" if c == 0 else v(SS+4*tl, 4)
            A(f"v_mfma_f32_16x16x32_bf16 {v(SS+4*tl,4)}, {v(KX+16*tl+4*c,4)}, {v(QX+4*c,4)}, {cc}")
    for i in range(8):
        A(f"v_cndmask_b32 v{SS+i}, v{VQI}, v{SS+i}, s[{S_MSK+2*i}:{S_MSK+2*i+1}]")
    A(f"""
    v_max3_f32 v{MX}, v{SS}, v{SS+1}, v{SS+2}
    v_max3_f32 v5, v{SS+3}, v{SS+4}, v{SS+5}
    v_max3_f32 v{MX}, v{MX}, v{SS+6}, v{SS+7}
    v_max_f32 v{MX}, v{MX}, v5
    v_mov_b32 v6, 0
    """)
    xG(A, MX, 5, "v_max_f32")
    A(f"v_mul_f32 v{MX}, s{S_CS}, v{MX}")
    for i in range(8): A(f"v_fma_f32 v{SS+i}, v{SS+i}, s{S_CS}, -v{MX}")
    for i in range(8): A(f"v_exp_f32 v{SS+i}, v{SS+i}")
    for i in range(4): A(f"v_cvt_pk_bf16_f32 v{PX+i}, v{SS+2*i}, v{SS+2*i+1}")
    for i in range(4):
        A(f"v_mfma_f32_16x16x32_bf16 {v(OA+4*i,4)}, {v(VX+4*i,4)}, {v(PX,4)}, 0")
    A(f"""
    v_add_f32 v{LX}, v{SS}, v{SS+1}
    v_add_f32 v5, v{SS+2}, v{SS+3}
    v_add_f32 v{LX}, v{LX}, v{SS+4}
    v_add_f32 v5, v5, v{SS+5}
    v_add_f32 v{LX}, v{LX}, v{SS+6}
    v_add_f32 v5, v5, v{SS+7}
    v_add_f32 v{LX}, v{LX}, v5
    s_branch W5_KC
    W5_KP:
    """)
    if cfg.get("wsl"): A(f"s_cmp_eq_u32 s{S_SEG}, 63\ns_cbranch_scc1 W5_NS\ns_sleep {cfg['wsl']}\nW5_NS:")
    km_loads()
    spin_dec(A)
    A(f"""
    W5_KC:
    s_waitcnt vmcnt(0)
    v_max3_u32 v4, v{KM}, v{KM+4}, v{KM+8}
    v_max_u32 v4, v4, v{KM+12}
    v_cmp_eq_u32 vcc, -1, v4
    s_cbranch_vccnz W5_KP
    """)
    P(2)
    for c in range(4):
        A(f"ds_write_b128 v{VKW}, {v(KM+4*c,4)} offset:{c*1024}")
        A(f"ds_read_b64_tr_b16 {v(FM+4*c,2)}, v{VKR} offset:{c*1024}")
        A(f"ds_read_b64_tr_b16 {v(FM+4*c+2,2)}, v{VKR} offset:{c*1024+8}")
    for c in range(4):
        A(f"s_waitcnt lgkmcnt({9-3*c})")
        cc = "0" if c == 0 else v(SS+8, 4)
        A(f"v_mfma_f32_16x16x32_bf16 {v(SS+8,4)}, {v(FM+4*c,4)}, {v(QX+4*c,4)}, {cc}")
    A(f"""
    s_add_u32 s{S_R}, s{S_R}, 1
    s_add_u32 s{S_BUF}, s{S_R}, 1
    v_mul_f32 v{SS+8}, s{S_CS}, v{SS+8}
    v_mul_f32 v{SS+9}, s{S_CS}, v{SS+9}
    v_max3_f32 v4, v{MX}, v{SS+8}, v{SS+9}
    """)
    xG(A, 4, 5, "v_max_f32")
    A(f"""
    v_sub_f32 v{MX}, v{MX}, v4
    v_sub_f32 v{SS+8}, v{SS+8}, v4
    v_sub_f32 v{SS+9}, v{SS+9}, v4
    v_exp_f32 v{MX}, v{MX}
    v_exp_f32 v{SS+8}, v{SS+8}
    v_exp_f32 v{SS+9}, v{SS+9}
    v_fma_f32 v4, v{LX}, v{MX}, v{SS+8}
    v_add_f32 v4, v4, v{SS+9}
    """)
    xG(A, 4, 5, "v_add_f32")
    A(f"""
    v_rcp_f32 v4, v4
    v_mul_f32 v{MX}, v{MX}, v4
    v_mul_f32 v{SS+8}, v{SS+8}, v4
    v_mul_f32 v{SS+9}, v{SS+9}, v4
    v_cvt_pk_bf16_f32 v7, v{SS+8}, v{SS+9}
    """)
    for i in range(8): A(f"v_pk_mul_f32 {v(OA+2*i,2)}, {v(OA+2*i,2)}, {v(MX,2)} op_sel_hi:[1,0]")
    for i in range(4):
        A(f"v_mfma_f32_16x16x16_bf16 {v(OA+4*i,4)}, {v(KM+2*i,2)}, v[6:7], {v(OA+4*i,4)}")
    def o_pub(tag, sc):
        for hh in range(2):
            for i in range(4): A(f"v_cvt_pk_bf16_f32 v{SS+4*hh+i}, v{OA+8*hh+2*i}, v{OA+8*hh+2*i+1}")
            A(f"buffer_store_dwordx4 {v(SS+4*hh,4)}, v{V_L16}, {srd(R_WS)}, s{S_T0} offen offset:{hh*1024} {sc}")
        P(3)
        A(f"ds_read_b32 v7, v{VG}\nv_add_u32 v{VG}, 1024, v{VG}")
        A("s_waitcnt vmcnt(0)")
        P(4)
        A("s_barrier")
        P(5)
        pub_grp(tag, f"s{S_BUF}", sc)
    if cfg.get("uni", 0):
        A("s_cmp_eq_u32 s81, 0\ns_cbranch_scc1 W5_UNI\ns_nop 7")
        o_pub("O", "sc1")
        A("s_branch GW_O\nW5_UNI:\ns_nop 5")
        o_pub("U", "")
    else:
        o_pub("O", "sc1")
    grp_wait("O", f"s{S_BUF}")
    P(6)
    NB = cfg.get("nb", 16)
    def o_load(kq):
        if kq % 4 == 0 and kq: A(f"s_add_u32 s{S_T3}, s{S_T3}, 4096")
        A(f"buffer_load_dwordx4 {v(128+4*kq,4)}, v{V_L16}, {srd(R_WS)}, s{S_T3} offen offset:{(kq%4)*1024} sc1")
    for kq in range(NB): o_load(kq)
    P(7)
    for kq in range(32):
        A(f"s_waitcnt vmcnt({min(NB-1, 31-kq)})")
        if kq == 0: P(8)
        if kq == 16: P(9)
        for T in range(2):
            cc = "0" if kq == 0 else v(OA+4*T, 4)
            A(f"v_mfma_f32_16x16x32_bf16 {v(OA+4*T,4)}, {a(8*kq+4*T,4)}, {v(128+4*kq,4)}, {cc}")
        if kq + NB < 32: o_load(kq + NB)
    d = SS
    P(10)
    A(f"""
    s_waitcnt lgkmcnt(0)
    v_and_b32 v6, 0xffff0000, v7
    v_lshlrev_b32 v7, 16, v7
    v_and_b32 v5, 0xffff0000, v3
    v_lshlrev_b32 v4, 16, v3
    s_add_u32 s{S_SEG}, s{S_SEG}, 7
    ds_write_b128 v{VPW}, {v(OA,4)}
    ds_write_b128 v{VPW}, {v(OA+4,4)} offset:16
    s_waitcnt lgkmcnt(0)
    s_barrier
    """)
    red4(VPR, 0, d)
    A(f"""
    s_waitcnt lgkmcnt(2)
    v_add_f32 v{d}, v{d}, v{d+2}
    v_add_f32 v{d+1}, v{d+1}, v{d+3}
    s_waitcnt lgkmcnt(0)
    v_add_f32 v{d+4}, v{d+4}, v{d+6}
    v_add_f32 v{d+5}, v{d+5}, v{d+7}
    v_add_f32 v{d}, v{d}, v{d+4}
    v_add_f32 v{d+1}, v{d+1}, v{d+5}
    v_cvt_pk_bf16_f32 v{d}, v{d}, v{d+1}
    v_and_b32 v{d+1}, 0xffff0000, v{d}
    v_lshlrev_b32 v{d}, 16, v{d}
    v_mul_f32 v{d}, v{d}, v7
    v_mul_f32 v{d+1}, v{d+1}, v6
    v_cvt_pk_bf16_f32 v{d}, v{d}, v{d+1}
    v_and_b32 v{d+1}, 0xffff0000, v{d}
    v_lshlrev_b32 v{d}, 16, v{d}
    v_add_f32 v{d}, v{d}, v4
    v_add_f32 v{d+1}, v{d+1}, v5
    v_cvt_pk_bf16_f32 v4, v{d}, v{d+1}
    buffer_store_dword v4, v{VXO}, {srd(R_OUT)}, s{S_XO} offen
    """)
    if fine:
        P(11)
        A(f"s_cmp_eq_u32 s{S_R}, {cfg.get('pr', 4)}\ns_cbranch_scc0 W5_ND\ns_waitcnt lgkmcnt(0)")
        for i in range(12): A(f"v_writelane_b32 v5, s{8+2*i}, {i}")
        A(f"v_lshrrev_b32 v6, 2, v{V_L16}\nbuffer_store_dword v5, v6, {srd(R_WS)}, s{S_PROF} offen offset:512\nW5_ND:")
    if cfg.get("prof"):
        A(f"""
        s_memtime s[{S_TS}:{S_TS+1}]
        s_lshl_b32 s{S_T0}, s{S_R}, 2
        s_add_u32 s{S_T0}, s{S_T0}, s{S_PROF}
        s_waitcnt lgkmcnt(0)
        v_mov_b32 v5, s{S_TS}
        s_mov_b64 exec, 1
        buffer_store_dword v5, off, {srd(R_WS)}, s{S_T0} offset:28
        s_mov_b64 exec, -1
        """)
    A(f"""
    s_cmp_lt_u32 s{S_R}, s{S_NR}
    s_cbranch_scc0 W5_END
    """)
    att_loads(S_SEG)
    A(f"""
    s_branch W5_LOOP
    W5_END:
    """)
```

```python
import sys
from common import *
from worker import *

def prologue(A, cfg):
    A(f"""
    s_cmp_ge_u32 s2, 256
    s_cbranch_scc1 EXIT
    """)
    if cfg.get("ctouch", 0):
        A(f"""
        s_getpc_b64 s[64:65]
        CODE0:
        s_mov_b32 s66, EXIT-CODE0
        s_mov_b32 s67, 0x20000
        v_lshlrev_b32 v4, 7, v0
        s_mov_b32 s68, 0x8000
        buffer_load_dword v126, v4, s[64:67], 0 offen
        buffer_load_dword v127, v4, s[64:67], s68 offen
        """)
    slots = {R_X: 0, R_M0: 8, R_WQ: 16, R_WK: 24, R_WV: 32, R_WO: 40, R_WG: 64, R_WU: 72, R_WD: 80, R_OUT: 88, R_DBG: 96, R_WS: 104}
    sizes = {R_X: 2*MB, R_M0: 8192, R_WQ: 4*MB, R_WK: 4*MB, R_WV: 4*MB, R_WO: 4*MB, R_WG: 512*3584, R_WU: 512*3584,
             R_WD: 1792*1024, R_OUT: 2*MB, R_DBG: 256, R_WS: WS_SIZE}
    for r in [R_DBG] + [r for r in slots if r != R_DBG]:
        A(f"s_load_dwordx2 s[{r}:{r+1}], s[0:1], {slots[r]}")
    for r in slots:
        A(f"s_mov_b32 s{r+2}, {sizes[r]}\ns_mov_b32 s{r+3}, 0x20000")
    A(f"""
    s_getreg_b32 s{S_XCC}, hwreg(HW_REG_XCC_ID)
    s_and_b32 s{S_XCC}, s{S_XCC}, 7
    v_lshrrev_b32 v3, 6, v0
    v_and_b32 v1, 63, v0
    v_readfirstlane_b32 s{S_W}, v3
    v_lshlrev_b32 v2, 4, v1
    s_mov_b32 s{S_SPIN}, {cfg.get('spin', 1<<17)}
    v_mov_b32 v5, 0
    s_waitcnt lgkmcnt(0)
    """)
    if cfg.get("prof"):
        A(f"s_memtime s[{S_TS+2}:{S_TS+3}]\ns_memrealtime s[{S_TS+4}:{S_TS+5}]")
    if cfg.get("static_roles"):
        A(f"s_and_b32 s{S_H}, s2, 31\ns_lshr_b32 s{S_G}, s2, 5" if cfg["static_roles"] == 1 else f"s_xor_b32 s{S_G}, s2, {cfg.get('cx', 0)}\ns_and_b32 s{S_G}, s{S_G}, 7\ns_lshr_b32 s{S_H}, s2, 3")
    else:
        A(f"""
        s_cmp_eq_u32 s{S_W}, 0
        s_cbranch_scc0 TK_DONE
        s_mov_b32 s{S_G}, s{S_XCC}
        s_mov_b32 s{S_T1}, 8
        s_mov_b64 exec, 1
        TK_LOOP:
        v_mov_b32 v4, 1
        s_lshl_b32 s{S_T0}, s{S_G}, 2
        buffer_atomic_add v4, off, {srd(R_DBG)}, s{S_T0} offset:{D_TICK} sc0
        s_waitcnt vmcnt(0)
        v_readfirstlane_b32 s{S_H}, v4
        s_cmp_lt_u32 s{S_H}, 32
        s_cbranch_scc1 TK_GOT
        s_add_u32 s{S_G}, s{S_G}, 1
        s_and_b32 s{S_G}, s{S_G}, 7
        s_sub_u32 s{S_T1}, s{S_T1}, 1
        s_cmp_lg_u32 s{S_T1}, 0
        s_cbranch_scc1 TK_LOOP
        s_mov_b32 s{S_G}, 8
        TK_GOT:
        s_lshl_b32 s{S_T0}, s{S_G}, 5
        s_add_u32 s{S_T0}, s{S_T0}, s{S_H}
        v_mov_b32 v4, s{S_T0}
        ds_write_b32 v5, v4
        s_mov_b64 exec, -1
        s_waitcnt lgkmcnt(0)
        TK_DONE:
        s_barrier
        ds_read_b32 v4, v5
        s_waitcnt lgkmcnt(0)
        v_readfirstlane_b32 s{S_T0}, v4
        s_barrier
        s_cmp_ge_u32 s{S_T0}, 256
        s_cbranch_scc1 EXIT
        s_and_b32 s{S_H}, s{S_T0}, 31
        s_lshr_b32 s{S_G}, s{S_T0}, 5
        """)
    if cfg.get("prof"):
        A(f"""
        s_lshl_b32 s{S_T0}, s{S_G}, 5
        s_add_u32 s{S_T0}, s{S_T0}, s{S_H}
        s_lshl_b32 s{S_T0}, s{S_T0}, 2
        s_add_u32 s{S_T0}, s{S_T0}, s{S_W}
        s_lshl_b32 s{S_PROF}, s{S_T0}, 10
        s_add_u32 s{S_PROF}, s{S_PROF}, {WS_PROF}
        s_waitcnt lgkmcnt(0)
        v_mov_b32 v4, s{S_TS+2}
        s_mov_b64 exec, 1
        buffer_store_dword v4, off, {srd(R_WS)}, s{S_PROF}
        v_mov_b32 v4, s{S_TS+4}
        buffer_store_dword v4, off, {srd(R_WS)}, s{S_PROF} offset:1000
        s_memtime s[{S_TS}:{S_TS+1}]
        s_waitcnt lgkmcnt(0)
        v_mov_b32 v4, s{S_TS}
        buffer_store_dword v4, off, {srd(R_WS)}, s{S_PROF} offset:1012
        s_mov_b64 exec, -1
        """)
    A(f"""
    s_cmp_eq_u32 s{S_G}, 0
    s_cbranch_scc1 CHAIN
    """)

def build(cfg):
    A = Asm()
    prologue(A, cfg)
    worker(A, cfg)
    A("s_branch EXITP" if cfg.get("prof") else "s_branch EXIT")
    try:
        from chain import chain
        chain(A, cfg)
    except ImportError:
        A("CHAIN:")
    if cfg.get("prof"):
        A(f"""
        EXITP:
        s_memrealtime s[{S_TS}:{S_TS+1}]
        s_memtime s[{S_TS+2}:{S_TS+3}]
        s_waitcnt lgkmcnt(0)
        v_mov_b32 v4, s{S_TS}
        v_mov_b32 v5, s{S_TS+2}
        s_mov_b64 exec, 1
        buffer_store_dwordx2 v[4:5], off, {srd(R_WS)}, s{S_PROF} offset:1004
        s_waitcnt vmcnt(0)
        """)
    A("EXIT:\ns_endpgm")
    n = A.fix()
    hdr = open("recurrent_scan__memory_aug_recurrent_mem_tr__glu_gated_geglu__prompt.s.ref").read().split("\n")
    top = [l for l in hdr if l.startswith(";") and "@launch" not in l]
    out = "\n".join(top) + "\n; @launch grid=(256,1,1) block=(256,1,1) lds=163840\n"
    out += f'.amdgcn_target "amdgcn-amd-amdhsa--gfx950"\n.text\n.globl {KNAME}\n.p2align 8\n.type {KNAME},@function\n{KNAME}:\n'
    out += A.text()
    out += f""".section .rodata,"a"
.p2align 6
.amdhsa_kernel {KNAME}
  .amdhsa_next_free_vgpr 512
  .amdhsa_next_free_sgpr 102
  .amdhsa_accum_offset 256
  .amdhsa_group_segment_fixed_size 0
  .amdhsa_kernarg_size 112
  .amdhsa_user_sgpr_count 2
  .amdhsa_user_sgpr_kernarg_segment_ptr 1
  .amdhsa_system_sgpr_workgroup_id_x 1
.end_amdhsa_kernel
"""
    return out, n

if __name__ == "__main__":
    cfg = {"mv": 1, "dm0": 24, "dm1": 22, "n0": 10, "dp2": 32, "pf": 1, "dp0": 26, "dp1": 14, "pb": 1, "static_roles": 2, "touch": 0, "cx": 1, "nt": 3, "ctouch": 0, "kd": 1, "pe": 2, "dpos": 4, "ep": 19, "swz": 15, "tP1": 0, "tP2": 0, "al": 7, "ao": 3, "tf": 1, "oring": 1}
    for x in sys.argv[2:]:
        k, val = x.split("=")
        cfg[k] = int(val, 0)
    out, n = build(cfg)
    if cfg.get("e64"):
        from align import align
        for l0, l1 in (("LOOPF", "FBKF"), ("REDF", "PFF"), ("PFF", "LOOPS")):
            out = align(out, l0, l1, cfg["e64"], cfg.get("nopc", 3))
    open(sys.argv[1], "w").write(out)
    print("wrote", sys.argv[1], len(out), "bytes; nop states added:", n)
```

```python
import re
from common import *
from worker import stamp, spin_dec, xG

L_PX, L_SEL, L_F, L_REG, RP = 0, 0xC00, 0x1000, 0x2000, 0x9800
O_WQ, O_WO, O_A, O_S = 0, 0x4000, 0x8000, 0x8800
L_DUMMY = L_REG + O_S
V_IDX, V_MA, V_KA, V_FW, V_FR, V_PW, V_PST, V_MST = 0, 1, 2, 3, 4, 5, 6, 7
V_R = [8, 9, 10, 11]
PUB = 12
RA, RE, RV, RQ, RK, ALT = 16, 48, 104, 112, 120, 40
RKX, RVX = 56, 64
S_S, S_RING, S_ROT = 64, 65, 66
S_RDY, S_PW, S_MB, S_KVB, S_MW, S_PUB, S_TAG, S_FKV = 70, 71, 72, 73, 74, 75, 76, 77
S_C, S_THR = 78, 79
S_B1, S_ON, S_HF = 80, 82, 90
S_SENT, S_PR0, S_PR1, S_W2K, S_MR = 84, 85, 86, 87, 88
S_TX, S_TB = 92, 93

KD = [0]
WQS = [48, 88, 96, 72, 80, 88, 96, 48]
PFO = list(range(10))
def WQ(t, ab): return v(WQS[2 * t + ab] if KD[0] else RE + 8 * ((2 * t + ab) % 7), 8) if t < 4 else v(128 + 8 * (2 * (t - 4) + ab), 8)
def WK(t, ab): return a(8 * (2 * t + ab), 8)
def WV(t, ab): return a(128 + 8 * (2 * t + ab), 8)
WOS = {(2, 0): 72, (3, 0): 80, (2, 1): 88, (3, 1): 48, (2, 2): 56, (3, 2): 104, (2, 3): 96, (3, 3): 16}
def WO(c, T): return v(192 + 8 * (4 * c + T), 8) if c < 2 else v(WOS[(c, T)], 8)
def SM(d, aa, b): return f"v_smfmac_f32_16x16x64_bf16 {v(d,4)}, {v(aa,4)}, {b}, v{V_IDX}"
def MF(d, aa, b, c): return f"v_mfma_f32_16x16x32_bf16 {v(d,4)}, {v(aa,4)}, {v(b,4)}, {c}"
def MH(d, aa, b, c): return f"v_mfma_f32_16x16x16_bf16 {v(d,4)}, {v(aa,2)}, {v(b,2)}, {c}"
DPP = lambda p: f"quad_perm:[{p}] row_mask:0xf bank_mask:0xf"

def chain_init(A, cfg):
    L, L16 = 20, 21
    vm = VM(A)
    A(f"""
    CHAIN:
    v_mov_b32 v{L}, v1
    v_mov_b32 v{L16}, v2
    s_mul_i32 s{S_RING}, s{S_W}, {RP}
    s_add_u32 s{S_RING}, s{S_RING}, {L_REG}
    s_lshl_b32 s{S_W2K}, s{S_W}, 11
    """)
    for i in range(4):
        A(f"s_add_u32 s{S_T0}, s{S_W}, {i}\ns_and_b32 s{S_ROT+i}, s{S_T0}, 3")
    A(f"""
    v_lshrrev_b32 v22, 4, v{L}
    v_bfe_u32 v23, v{L}, 2, 1
    v_lshlrev_b32 v{V_MST}, 8, v23
    v_bfe_u32 v23, v{L}, 1, 1
    v_lshl_add_u32 v{V_MST}, v23, 5, v{V_MST}
    v_and_b32 v23, 1, v{L}
    v_lshl_add_u32 v{V_MST}, v23, 3, v{V_MST}
    v_and_b32 v23, 1, v22
    v_lshl_add_u32 v{V_MST}, v23, 4, v{V_MST}
    v_lshrrev_b32 v24, 5, v{L}
    v_lshl_add_u32 v{V_MST}, v24, 2, v{V_MST}
    v_lshlrev_b32 v25, 10, v23
    v_lshl_add_u32 v25, v24, 2, v25
    v_and_b32 v24, 7, v{L}
    v_lshl_add_u32 v25, v24, 4, v25
    s_lshr_b32 s{S_T0}, s{S_H}, 3            ; w'
    s_bfe_u32 s{S_T1}, s{S_H}, 0x20001       ; G'
    s_and_b32 s{S_T2}, s{S_H}, 1             ; nh
    s_and_b32 s{S_T3}, s{S_W}, 1             ; sig
    s_lshl_b32 s{S_PW}, s{S_T0}, 11
    s_lshl_b32 s{S_MB}, s{S_T3}, 10
    s_add_u32 s{S_PW}, s{S_PW}, s{S_MB}
    s_lshl_b32 s{S_MB}, s{S_T2}, 9
    s_add_u32 s{S_PW}, s{S_PW}, s{S_MB}
    s_lshl_b32 s{S_MB}, s{S_T1}, 6
    s_add_u32 s{S_PW}, s{S_PW}, s{S_MB}
    v_add_u32 v{V_MST}, s{S_PW}, v{V_MST}
    s_lshl_b32 s{S_T1}, s{S_T1}, 11
    s_lshl_b32 s{S_PW}, s{S_T0}, 8
    s_add_u32 s{S_T1}, s{S_T1}, s{S_PW}
    s_lshl_b32 s{S_T2}, s{S_T2}, 7
    s_add_u32 s{S_T1}, s{S_T1}, s{S_T2}
    s_lshl_b32 s{S_T3}, s{S_T3}, 3
    s_add_u32 s{S_T1}, s{S_T1}, s{S_T3}
    """)
    m0l = vm.issue(f"buffer_load_dword v28, v25, {srd(R_M0)}, s{S_T1} offen")
    A(f"""
    v_lshrrev_b32 v23, 3, v{L}
    s_lshl_b32 s{S_T1}, s{S_W}, 3
    v_add_u32 v23, s{S_T1}, v23
    v_lshlrev_b32 v{V_PST}, 13, v23
    v_lshl_add_u32 v{V_PST}, v24, 4, v{V_PST}
    v_and_b32 v23, {cfg.get("swz", 31)}, v23
    v_xor_b32 v23, s{S_H}, v23
    v_lshl_add_u32 v{V_PST}, v23, 7, v{V_PST}
    v_mov_b32 v24, -1
    v_mov_b32 v25, -1
    v_mov_b32 v26, -1
    v_mov_b32 v27, -1
    s_mov_b32 s{S_PW}, {WS_P}
    s_mov_b32 s{S_PR1}, {WS_P + 4096}
    """)
    vm.issue(f"buffer_store_dwordx4 v[24:27], v{V_PST}, {srd(R_WS)}, s{S_PW} offen sc1")
    vm.issue(f"buffer_store_dwordx4 v[24:27], v{V_PST}, {srd(R_WS)}, s{S_PR1} offen sc1")
    for i in range(1, 4):
        A(f"s_mov_b32 s{S_T0}, {WS_M + i*8192}")
        vm.issue(f"buffer_store_dword v24, v{V_MST}, {srd(R_WS)}, s{S_T0} offen sc1")
    A(f"""
    v_and_b32 v23, 15, v{L}
    v_lshlrev_b32 v30, 12, v22
    v_lshl_add_u32 v30, v23, 4, v30
    s_lshl_b32 s{S_T0}, s{S_H}, 17
    s_lshl_b32 s{S_T1}, s{S_W}, 8
    s_add_u32 s{S_T0}, s{S_T0}, s{S_T1}
    v_add_u32 v30, s{S_T0}, v30
    """)
    def wo_raw(cs):
        for ci, c in enumerate(cs):
            A(f"s_lshl_b32 s{S_T0}, s{S_ROT+c}, 15\ns_add_u32 s{S_T1}, s{S_T0}, 16384")
            for i in range(8):
                r = RE + 32 * ci + 4 * i
                k = vm.issue(f"buffer_load_dwordx4 {v(r,4)}, v30, {srd(R_WO)}, s{S_T0 if i < 4 else S_T1} offen offset:{(i&3)*1024}{' nt' if cfg.get('nt', 0) & 2 else ''}")
        return k
    wo1 = wo_raw([0, 1])
    NT = " nt" if cfg.get("nt", 0) & 1 else ""
    VG, VA = 16, 112
    A(f"""
    v_and_b32 v31, 1, v22
    v_lshlrev_b32 v31, 4, v31
    v_lshrrev_b32 v32, 5, v{L}
    v_add_u32 v31, v31, v32                  ; 16(j&1) + (j>>1)
    v_lshlrev_b32 v31, 13, v31
    v_lshlrev_b32 v32, 2, v22
    v_xor_b32 v32, v32, v23
    v_lshl_add_u32 v31, v32, 4, v31
    s_lshl_b32 s{S_T0}, s{S_H}, 8
    s_lshl_b32 s{S_T1}, s{S_W}, 20
    s_add_u32 s{S_T0}, s{S_T0}, s{S_T1}
    v_add_u32 v{VG}, s{S_T0}, v31
    s_lshl_b32 s{S_MR}, s{S_W}, 12
    s_add_u32 s{S_MR}, s{S_MR}, {L_REG + O_WO}
    """)
    qpos = cfg.get('qpos', 0)
    units = [(R, par, m) for R in [(R_WQ, R_WK, R_WV), (R_WK, R_WQ, R_WV)][qpos] for par in range(2) for m in range(4)]
    uid = {}
    def u_issue(u):
        R, par, m = units[u]
        for G in range(4):
            A(f"s_add_u32 m0, s{S_MR}, {(u & 3) * RP + G * 1024}")
            A(f"s_mov_b32 s{S_T0}, {(2*(m&1) + 64*(m>>1) + 4*par + 8*(G&1) + 32*(G>>1)) * 8192}")
            uid[u] = vm.issue(f"buffer_load_dwordx4 v{VG}, {srd(R)}, s{S_T0} offen{' nt' if cfg.get('nt', 0) & (1 if R == R_WQ else 8) else ''} lds")
    def u_read(u):
        R, par, m = units[u]
        regf = {R_WK: WK, R_WV: WV, R_WQ: lambda t, ab: WQ(t, ab) if t >= 4 else v(RE + 8 * (2*t + ab), 8)}[R]
        for i in range(4):
            for ab in range(2):
                kind, r0 = regs_of(regf(2*i + par, ab))[0]
                A(f"ds_read_b64_tr_b16 {kind}[{r0+2*m}:{r0+2*m+1}], v{VA + i + 4*((u&3)>>1)} offset:{(u & 1) * RP + ab*8}")
    for u in range(4): u_issue(u)
    A(f"""
    v_bfe_u32 v23, v{L}, 2, 2
    v_and_b32 v32, 3, v{L}
    v_lshlrev_b32 v31, 10, v22
    v_lshl_add_u32 v31, v23, 8, v31
    v_lshl_add_u32 v31, v32, 4, v31
    v_xor_b32 v23, s{S_W}, v23
    v_lshl_add_u32 v31, v23, 6, v31
    """)
    for i in range(4):
        A(f"""
        s_lshl_b32 s{S_T0}, s{S_ROT+i}, 12
        s_add_u32 s{S_T0}, s{S_T0}, {L_REG + O_WO}
        v_add_u32 v{VA+i}, s{S_T0}, v31
        v_add_u32 v{VA+4+i}, {2*RP}, v{VA+i}
        """)
    vm.wait(m0l)
    A(f"""
    v_min_u32 v28, -2, v28
    s_mov_b32 s{S_T0}, {WS_M}
    """)
    m0s = vm.issue(f"buffer_store_dword v28, v{V_MST}, {srd(R_WS)}, s{S_T0} offen sc1")
    lane_ma(A, V_MA, L, 23)
    A(f"""
    v_and_b32 v23, 2, v{L}
    v_cmp_eq_u32 vcc, 0, v23
    v_mov_b32 v23, 0xdddddddd
    v_mov_b32 v33, 0x88888888
    v_cndmask_b32 v{V_IDX}, v23, v33, vcc
    v_bfe_u32 v23, v{L}, 2, 2
    v_xor_b32 v23, v23, v22
    v_and_b32 v33, 15, v{L}
    v_lshlrev_b32 v33, 5, v33
    v_lshl_add_u32 v33, v23, 3, v33
    s_and_b32 s{S_T0}, s{S_W}, 1
    s_lshl_b32 s{S_T0}, s{S_T0}, 10
    s_lshr_b32 s{S_T1}, s{S_W}, 1
    s_lshl2_add_u32 s{S_T0}, s{S_T1}, s{S_T0}
    s_add_u32 s{S_T0}, s{S_T0}, {L_F}
    v_add_u32 v{V_FW}, s{S_T0}, v33
    v_xor_b32 v33, v{L}, v22
    v_lshlrev_b32 v33, 3, v33
    v_add_u32 v{V_FR}, {L_F}, v33
    s_lshl_b32 s{S_T0}, s{S_W}, 2
    v_add_u32 v{V_PW}, s{S_T0}, v{L16}
    v_lshlrev_b32 v{V_KA}, 8, v22
    v_bfe_u32 v33, v{L}, 1, 1
    v_lshl_add_u32 v{V_KA}, v33, 7, v{V_KA}
    v_bfe_u32 v33, v{L}, 2, 2
    v_lshl_add_u32 v{V_KA}, v33, 5, v{V_KA}
    v_and_b32 v33, 1, v{L}
    v_lshl_add_u32 v{V_KA}, v33, 4, v{V_KA}
    s_mov_b32 s{S_C}, {f2u(128**-0.5 * 1.4426950408889634)}
    s_mov_b32 s{S_THR}, {f2u(2.0 ** cfg.get("thr", 32))}
    s_mov_b32 s{S_ON}, 0x3f803f80
    s_mov_b32 s{S_ON+1}, 0x3f803f80
    s_mov_b32 s{S_RDY}, 0
    s_mov_b32 s{S_S}, 0
    s_mov_b32 s{S_TAG}, 0
    s_lshl_b32 s{S_T0}, s{S_H}, 13
    s_and_b32 s{S_T1}, s{S_W}, 1
    s_lshl_b32 s{S_T1}, s{S_T1}, 12
    s_add_u32 s{S_T1}, s{S_T1}, s{S_T0}
    s_add_u32 s{S_PR0}, s{S_T1}, {WS_P}
    s_add_u32 s{S_T1}, s{S_T0}, s{S_W2K}       ; h*8K + w*2K
    s_lshl_b32 s{S_KVB}, s{S_T1}, 1
    s_add_u32 s{S_KVB}, s{S_KVB}, {WS_KV}
    s_lshr_b32 s{S_PUB}, s{S_T1}, 1
    s_add_u32 s{S_PUB}, s{S_PUB}, {WS_KVM - 131072}
    s_add_u32 s{S_MB}, s{S_W2K}, {WS_M}
    s_lshl_b32 s{S_FKV}, s{S_H}, 7
    s_add_u32 s{S_FKV}, s{S_FKV}, {FL_KV}
    s_and_b32 s{S_TX}, s{S_W}, 1
    s_lshl_b32 s{S_TX}, s{S_TX}, 12
    s_cmp_lt_u32 s{S_W}, 2
    s_cselect_b32 s{S_TX}, 0x40000000, s{S_TX}
    """)
    for i in range(4):
        A(f"s_mul_i32 s{S_T0}, s{S_ROT+i}, {RP}\ns_add_u32 s{S_T0}, s{S_T0}, {L_REG}\nv_add_u32 v{V_R[i]}, s{S_T0}, v{L16}")
    A(f"""
    v_mov_b32 v{PUB}, 0
    v_mov_b32 v{PUB+1}, 0
    v_mov_b32 v{PUB+2}, 0
    v_mov_b32 v{PUB+3}, 0
    v_lshlrev_b32 v23, 2, v{L}
    v_and_b32 v23, 16, v23
    v_mov_b32 v33, 0x3f80
    v_lshlrev_b32 v33, v23, v33
    v_bfe_u32 v23, v{L}, 3, 1
    v_and_b32 v34, 1, v{L}
    v_lshl_add_u32 v23, v23, 1, v34
    """)
    for i in range(4):
        A(f"v_cmp_eq_u32 vcc, {i}, v23\nv_cndmask_b32 v{44+i}, 0, v33, vcc")
    A(f"ds_write_b128 v{V_MA}, v[44:47] offset:{L_SEL}")
    vm.wait(wo1)
    for c in range(2):
        for T in range(4):
            for i in range(8):
                A(f"v_mov_b32 v{192 + 8*(4*c+T) + i}, v{RE + 32*c + 4*i + T}")
    stamp(A, cfg, 1); vm.n += bool(cfg.get("prof"))
    ep = cfg.get("ep", 0) if KD[0] else 0
    ua = cfg.get("ua", ep - 4)
    assert not ep or 17 <= ep <= 20
    for u in range(24):
        vm.wait(uid[u])
        if u == 4: vm.wait(m0s)
        A("s_waitcnt lgkmcnt(0)\ns_barrier")
        if u >= 1 and u + 3 < 24: u_issue(u + 3)
        if u == 9 + 8 * qpos: wo2 = wo_raw([2, 3])
        if ep and u == ua:
            vm.issue(f"buffer_load_dwordx2 v[24:25], off, {srd(R_DBG)}, 0 offset:{D_HIST} sc1")
            vm.issue(f"buffer_load_dwordx4 v[32:35], off, {srd(R_DBG)}, 0 offset:{D_ARR} sc1")
            arl = vm.issue(f"buffer_load_dwordx4 v[36:39], off, {srd(R_DBG)}, 0 offset:{D_ARR+16} sc1")
        if ep and u == ep:
            vm.wait(arl)
            vm.issue(f"buffer_load_dwordx4 v[40:43], off, {srd(R_WS)}, s{S_FKV} sc1")
            kfl = vm.issue(f"buffer_load_dwordx4 v[44:47], off, {srd(R_WS)}, s{S_FKV} offset:16 sc1")
        if ep and u == ep + 3:
            vm.wait(kfl)
            A(f"s_add_u32 m0, s{S_RING}, {O_S}")
            for i in range(4): kd0 = vm.issue(kdma(i))
        u_read(u)
        if ep and u == ep + 3:
            A(f'''
            v_sad_u8 v26, v24, 0, 0
            v_sad_u8 v26, v25, 0, v26
            v_lshlrev_b32 v26, 22, v26
            v_min3_u32 v26, v26, v33, v34
            v_min3_u32 v26, v26, v35, v36
            v_min3_u32 v26, v26, v37, v38
            v_min_u32 v26, v26, v39
            v_or_b32 v24, v24, v25
            v_and_b32 v24, 0x80808080, v24
            ''')
            for g in range(7): A(f"v_mad_u32_u24 v{41+g}, v{41+g}, 7, {g}")
            A(f'''
            v_min3_u32 v40, v41, v42, v43
            v_min3_u32 v40, v40, v44, v45
            v_min3_u32 v40, v40, v46, v47
            v_readfirstlane_b32 s{S_T0}, v26
            v_readfirstlane_b32 s{S_SENT}, v24
            v_readfirstlane_b32 s{S_RDY}, v40
            s_cmp_lt_u32 s{S_T0}, 0x20000000
            s_cselect_b32 s{S_RDY}, 0, s{S_RDY}
            ''')
        if u == 4:
            A(f"""
            s_cmp_eq_u32 s{S_W}, 3
            s_cbranch_scc0 C_NOH
            s_and_b32 s{S_T0}, s{S_XCC}, 3
            s_lshl_b32 s{S_T0}, s{S_T0}, 3
            s_lshl_b32 s{S_T0}, 4, s{S_T0}
            s_and_b32 s{S_T1}, s{S_XCC}, 4
            v_mov_b32 v23, s{S_T0}
            s_mov_b64 exec, 1
            buffer_atomic_add v23, off, {srd(R_DBG)}, s{S_T1} offset:{D_HIST}
            s_mov_b64 exec, -1
            C_NOH:
            """)
        if u == 8 + 8 * qpos:
            for f in range(16):
                A(f"ds_write_b128 v{V_R[0]}, {v(RE + 4*f, 4)} offset:{O_WQ + f*1024}")
    assert vm.known >= wo2
    A("s_waitcnt lgkmcnt(0)\ns_barrier")
    for fi, (c, T) in enumerate(WOS):
        for i in range(8):
            A(f"v_mov_b32 v{32 + 8*(fi&1) + i}, v{RE + 32*(c-2) + 4*i + T}")
        A(f"ds_write_b128 v{V_R[0]}, {v(32 + 8*(fi&1), 4)} offset:{O_WO + fi*2048}")
        A(f"ds_write_b128 v{V_R[0]}, {v(36 + 8*(fi&1), 4)} offset:{O_WO + fi*2048+1024}")
    wq_prefetch(A, 0, 10 if KD[0] else 14)
    stamp(A, cfg, 2)
    if ep: A(f"s_cmp_gt_u32 s{S_RDY}, 1\ns_cbranch_scc1 C_GO\ns_mov_b32 s{S_RDY}, 0")
    A(f"""
    s_add_u32 m0, s{S_RING}, {O_S}
    C_W0:
    buffer_load_dwordx2 v[24:25], off, {srd(R_DBG)}, 0 offset:{D_HIST} sc1
    buffer_load_dwordx4 v[28:31], off, {srd(R_DBG)}, 0 offset:{D_ARR} sc1
    buffer_load_dwordx4 v[32:35], off, {srd(R_DBG)}, 0 offset:{D_ARR+16} sc1
    """)
    spin_dec(A)
    A(f"""
    s_waitcnt vmcnt(0)
    v_sad_u8 v26, v24, 0, 0
    v_sad_u8 v26, v25, 0, v26
    v_lshlrev_b32 v26, 22, v26
    v_min3_u32 v26, v26, v29, v30
    v_min3_u32 v26, v26, v31, v32
    v_min3_u32 v26, v26, v33, v34
    v_min_u32 v26, v26, v35
    v_readfirstlane_b32 s{S_T0}, v26
    s_cmp_lt_u32 s{S_T0}, 0x20000000
    s_cbranch_scc1 C_W0
    v_or_b32 v24, v24, v25
    v_and_b32 v24, 0x80808080, v24
    v_readfirstlane_b32 s{S_SENT}, v24      ; nonzero -> all chain workgroups share one XCC
    """)

def kv_ready(A, s_target, tag):
    A(f"""
    s_cmp_gt_u32 s{S_RDY}, s{s_target}
    s_cbranch_scc1 RDY_OK{tag}
    RDY_P{tag}:
    buffer_load_dwordx4 v[24:27], off, {srd(R_WS)}, s{S_FKV} sc1
    buffer_load_dwordx4 v[28:31], off, {srd(R_WS)}, s{S_FKV} offset:16 sc1
    """)
    spin_dec(A)
    A("s_waitcnt vmcnt(0)")
    for g in range(7):
        A(f"v_mad_u32_u24 v{25+g}, v{25+g}, 7, {g}")
    A(f"""
    v_min3_u32 v24, v25, v26, v27
    v_min3_u32 v24, v24, v28, v29
    v_min3_u32 v24, v24, v30, v31
    s_nop 0
    v_readfirstlane_b32 s{S_RDY}, v24
    s_cmp_gt_u32 s{S_RDY}, s{s_target}
    s_cbranch_scc0 RDY_P{tag}
    RDY_OK{tag}:
    """)

def wqr(f): return f"ds_read_b128 {v(WQS[f >> 1] + 4*(f & 1), 4)}, v{V_R[0]} offset:{O_WQ + f*1024}"
def kdma(i): return f"buffer_load_dwordx4 v{V_KA if i < 2 else V_MA}, {srd(R_WS)}, s{S_KVB} offen offset:{i*1024} sc1 lds"
def wq_prefetch(A, f0=0, f1=14):
    for f in range(f0, f1):
        if KD[0]:
            A(wqr(PFO[f]) if f < 10 else f"ds_read_b128 {v(RKX + 4*(f-10), 4)}, v{V_R[0]} offset:{O_S + (f-10)*1024}")
            continue
        A(f"ds_read_b128 {v(RE + 4*f, 4)}, v{V_R[0]} offset:{O_WQ + f*1024}")

def fold(A, acc, d0, d1):
    A(f"v_pk_add_f32 {v(acc,2)}, {v(acc,2)}, {v(acc+2,2)}")
    A(f"v_pk_add_f32 {v(acc+4,2)}, {v(acc+4,2)}, {v(acc+6,2)}")
    A(f"v_cvt_pk_bf16_f32 v{d0}, v{acc}, v{acc+1}")
    A(f"v_cvt_pk_bf16_f32 v{d1}, v{acc+4}, v{acc+5}")

def delay(A, n):
    if n > 0: A("; back-off between two polls of the same lines")
    while n > 0:
        A(f"s_nop {min(n,16)-1}"); n -= min(n, 16)

ABL = {1: r"buffer_load|buffer_store_dwordx4 v\[12", 2: r"v_mov_b64 v\[\d+:\d+\], 0", 3: r"ds_read_b128 .*offset:(16|17|18|19|2\d|30|31)\d\d\d$",
       4: r"v_smfmac_f32_16x16x64_bf16 v\[10[48]", 5: r"s_barrier", 6: r"v_fmac|v_mul_f32 v10", 7: r"s_waitcnt lgkmcnt",
       9: r"buffer_store_dwordx4 v\[12", 10: r"buffer_load_dword v100", 11: r"buffer_store_dwordx4 v\[12|buffer_load_dword v100",
       8: r"buffer_load|buffer_store_dwordx4 v\[12|v_mov_b64 v\[\d+:\d+\], 0|ds_read_b128 .*offset:(16|17|18|19|2\d|30|31)\d\d\d$"}
def chain_loop(A, cfg, tag, sc):
    fine = cfg.get("prof", 0) >= 2
    P = lambda i: A(f"s_memtime s[{4+2*i}:{5+2*i}]") if fine and (cfg.get("pm", -1) >> i) & 1 else None
    import os
    abl = ABL.get(cfg.get("abl", 0))
    cnt = [0, 2]
    def sl(*ins):
        if fine and "g0" in cfg and cnt[0] >= cfg["g0"] and (cnt[0] - cfg["g0"]) % cfg.get("gs", 4) == 0 and cnt[1] < 18:
            A(f"s_memtime s[{4+2*cnt[1]}:{5+2*cnt[1]}]"); cnt[1] += 1
        cnt[0] += 1
        for x in ins:
            for y in x.split("\n"):
                if abl and re.search(abl, y): continue
                A(y)
    fr = lambda t, R=RA: R + 4 * t
    q = lambda t, ab, R=RA: SM(RQ + 4*ab, fr(t, R), WQ(t, ab))
    k = lambda t, ab, R=RA: SM(RK + 4*ab, fr(t, R), WK(t, ab))
    vv = lambda t, ab, R=RA: SM(RV + 4*ab, fr(t, R), WV(t, ab))
    rd = lambda t: f"ds_read_b128 {v(fr(t),4)}, v{V_R[t>>1]} offset:{O_A + (t&1)*1024}"
    def wo(c, T, hf):
        fi = list(WOS).index((c, T))
        return f"ds_read_b128 {v(WOS[(c, T)] + 4*hf, 4)}, v{V_R[0]} offset:{O_WO + fi*2048 + hf*1024}"
    add = lambda acc, i: f"v_add_f32 v{acc+i}, v{acc+i}, v{acc+2+i}"
    cvt = lambda d, s_: f"v_cvt_pk_bf16_f32 v{d}, v{s_}, v{s_+1}"
    z = lambda r: f"v_mov_b64 {v(r,2)}, 0"
    lg = lambda n: f"s_waitcnt lgkmcnt({n})"
    def m_loads(R):
        A(f"buffer_load_dwordx4 {v(R,4)}, v{V_MA}, {srd(R_WS)}, s{S_MB} offen sc1")
        A(f"buffer_load_dwordx4 {v(R+4,4)}, v{V_MA}, {srd(R_WS)}, s{S_MB} offen offset:1024 sc1")
    kvl = lambda i: f"buffer_load_dwordx4 {v(RKX+4*i,4)}, v{V_KA if i < 2 else V_MA}, {srd(R_WS)}, s{S_KVB} offen offset:{i*1024} sc1"
    TCH, SX, PX, PM, ON, QF, KF = 100, 96, 100, 18, 20, 48, 56
    SA, LL, O0, O1, OP, SEL = 24, 28, 32, 36, 40, 44
    pub = f"buffer_store_dwordx4 {v(PUB,4)}, v{V_MA}, {srd(R_WS)}, s{S_PUB} offen sc1"
    mulc = lambda r: f"v_mul_f32 v{r}, s{S_C}, v{r}"
    fw = lambda r, off: f"ds_write_b32 v{V_FW}, v{r} offset:{off}"
    tr = lambda r, off: f"ds_read_b64_tr_b16 {v(r,2)}, v{V_FR} offset:{off}"
    ad = lambda r, i: f"v_add_f32_dpp v{r+2+i}, v{r+i}, v{r+2+i} {DPP('0,1,0,1')}"
    exd = lambda r, i: f"v_exp_f32_dpp v{r+i}, v{r+2+i} {DPP('2,3,2,3')}"
    tw = cfg.get("tw", 0)
    kd = KD[0]
    def dump():
        if fine:
            P(18)
            A(f"s_cmp_eq_u32 s{S_S}, {cfg.get('pstep', 41)}\ns_cbranch_scc0 NODUMP{tag}\ns_waitcnt lgkmcnt(0) vmcnt(0)")
            for i in range(19): A(f"v_writelane_b32 v26, s{4+2*i}, {i}")
            A(f"v_lshrrev_b32 v27, 2, v{V_MA}\nbuffer_store_dword v26, v27, {srd(R_WS)}, s{S_PROF} offen offset:512\ns_waitcnt vmcnt(0)\nNODUMP{tag}:")
            P(0)
    def norm(fast):
        o = (lambda *x: x) if fast else (lambda *x: ())
        sl(*o(f"v_max_f32 v{LL}, v{LL}, v{LL+2}", f"v_cmp_lt_f32 vcc, s{S_THR}, v{LL}"))
        for i in range(2): A(f"v_pk_mul_f32 {v(O0+2*i,2)}, {v(O0+2*i,2)}, {v(LL+2,2)} op_sel_hi:[1,0]")
        sl(cvt(OP, O0), cvt(OP + 1, O0 + 2))
        if fast: P(11)
        for i in range(2): A(f"v_pk_mul_f32 {v(O1+2*i,2)}, {v(O1+2*i,2)}, {v(LL+2,2)} op_sel_hi:[1,0]")
        sl(cvt(OP + 2, O1), cvt(OP + 3, O1 + 2), f"ds_write_b128 v{V_R[0]}, {v(OP,4)} offset:{O_A}")
    if cfg.get("ph"):
        KF, CK = 88, 28
        ml = lambda sg: f"buffer_load_dwordx4 {v(RA+4*sg,4)}, v{V_MA}, {srd(R_WS)}, s{S_MB} offen offset:{1024*sg} sc1"
        chk = lambda sg: [f"v_max3_u32 v{CK}, v{RA+4*sg}, v{RA+4*sg+1}, v{RA+4*sg+2}", f"v_max_u32 v{CK}, v{CK}, v{RA+4*sg+3}",
                          f"ds_write_b128 v{V_R[0]}, {v(RA+4*sg,4)} offset:{O_A+1024*sg}"]
        cmpv = f"v_cmp_eq_u32 vcc, -1, v{CK}"
        dp = [[1, 17, 19, 21, 23], [1, 3, 6, 17, 20], [1, 2, 4, 6, 8], [1, 3, 17, 19, 21], [17, 1, 3, 19, 21]][cfg.get("dpos", 0)]
        vops = [pub, kdma(0), kdma(1), kdma(2), kdma(3)]
        ex = lambda n: [vops[dp.index(n)]] if n in dp else []
        A(f"LOOP{tag}:")
        A(ml(0))
        dump()
        for i in range(4): A(z(RV + 2*i))
        A(f"s_waitcnt vmcnt({3 if cfg.get('prof') else 2}) lgkmcnt(0)")
        for i in range(4): A(z(RK + 2*i))
        delay(A, cfg.get("dm1", 16))
        A(f"MP{tag}:")
        A(ml(0))
        spin_dec(A)
        A("s_nop 2")
        for i in range(4): A(z(RQ + 2*i))
        A("s_waitcnt vmcnt(1)")
        P(1)
        sl(*chk(0))
        sl(q(0, 0), cmpv)
        sl(q(0, 1), f"s_cbranch_vccnz MP{tag}", ml(1))
        sl(k(0, 0), wqr(6))
        sl(k(0, 1), wqr(7), lg(2)); A("s_barrier"); P(2)
        sl(rd(2), rd(4), rd(6))
        sl(vv(0, 0), ml(1))
        sl(vv(0, 1), wqr(14), lg(3))
        sl(q(2, 0), wqr(15), lg(3))
        sl(q(4, 0), lg(2))
        sl(q(6, 0), wqr(12))
        sl(q(2, 1), wqr(13), "s_waitcnt vmcnt(1)", *chk(1))
        sl(q(4, 1), cmpv)
        sl(q(6, 1), f"s_cbranch_vccnz MR{tag}")
        A(f"MC{tag}:")
        P(9)
        ke = [k(2, 0), k(4, 0), k(6, 0), k(2, 1), k(4, 1), k(6, 1)]
        npre = cfg.get("npre", 2)
        sl(q(1, 0), f"s_cmp_eq_u32 s{S_S}, 63")
        sl(q(1, 1))
        sl(k(1, 0))
        sl(k(1, 1))
        for x in ke[:npre]: sl(x)
        A(lg(0)); A("s_barrier"); P(3)
        sl(rd(3), rd(5), rd(7))
        for i, x in enumerate(ke[npre:]): sl(x, *ex(i + 1 - (2 - npre)))
        sl("s_cbranch_scc1 C_LAST", lg(2))
        sl(q(3, 0), wo(2, 0, 0), *ex(5), lg(2))
        sl(q(5, 0), wo(2, 0, 1), *ex(6), lg(2))
        sl(q(7, 0), wo(3, 0, 0), *ex(7))
        sl(q(3, 1), wo(3, 0, 1), *ex(8))
        sl(q(5, 1), add(RQ, 0))
        sl(q(7, 1), add(RQ, 1))
        sl(k(3, 0), mulc(RQ))
        sl(k(5, 0), mulc(RQ + 1), add(RQ + 4, 0))
        sl(k(7, 0), cvt(RQ + 2, RQ), fw(RQ + 2, 2048), add(RQ + 4, 1))
        sl(k(3, 1), mulc(RQ + 4), mulc(RQ + 5))
        sl(k(5, 1), cvt(RQ + 6, RQ + 4), fw(RQ + 6, 2560), add(RK, 0))
        sl(k(7, 1), add(RK, 1), *(ex(17) if dp[0] == 17 else []), cvt(PUB, RK), fw(PUB, 0))
        P(4)
        sl(vv(1, 0), *(ex(17) if dp[0] != 17 else []), z(RQ))
        sl(vv(1, 1), add(RK + 4, 0), add(RK + 4, 1), cvt(PUB + 2, RK + 4), fw(PUB + 2, 512))
        sl(vv(2, 0), *ex(19), z(RQ + 2))
        sl(vv(2, 1), *ex(20), z(RQ + 4))
        sl(vv(3, 0), *ex(21), z(RQ + 6))
        sl(vv(4, 0), lg(0), "s_barrier", tr(QF, 2048), tr(QF + 2, 2560))
        P(5)
        sl(vv(5, 0), tr(QF + 4, 3072), tr(QF + 6, 3584), tr(KF, 0), tr(KF + 2, 512))
        sl(vv(6, 0), tr(KF + 4, 1024), tr(KF + 6, 1536), f"v_min_u32 v{PUB}, -2, v{PUB}")
        sl(vv(7, 0), *ex(23), f"s_add_u32 s{S_KVB}, s{S_KVB}, 0x80000", z(RK))
        sl(vv(3, 1), "s_waitcnt vmcnt(5) lgkmcnt(6)", z(RK + 2))
        sl(MF(SX, RKX, QF, 0), lg(4), f"v_mov_b64 {v(ON,2)}, s[{S_ON}:{S_ON+1}]", add(RV, 0))
        sl(MF(SX, RKX + 4, QF + 4, v(SX, 4)), lg(2), add(RV, 1), f"v_mov_b64 {v(ON+2,2)}, s[{S_ON}:{S_ON+1}]")
        sl(MF(SA, KF, QF, 0), lg(0), cvt(PUB + 1, RV), f"v_mov_b32 v{PM}, 0", wo(2, 2, 0))
        sl(MF(SA, KF + 4, QF + 4, v(SA, 4)), wo(2, 2, 1), ad(SX, 0), ad(SX, 1))
        sl(vv(4, 1), exd(SX, 0), exd(SX, 1))
        sl(vv(5, 1), cvt(SX, SX), f"ds_write_b32 v{V_PW}, v{SX} offset:{L_PX}")
        P(6)
        sl(vv(6, 1), ad(SA, 0), ad(SA, 1), f"s_add_u32 s{S_PUB}, s{S_PUB}, 0x20000")
        sl(vv(7, 1), exd(SA, 0), exd(SA, 1), z(RK + 4), cvt(PM + 1, SA))
        sl(lg(0), "s_barrier", f"ds_read_b128 {v(PX,4)}, v{V_MA} offset:{L_PX}")
        P(7)
        def pv(fast):
            o = (lambda *x: x) if fast else (lambda *x: ())
            if not fast: sl(exd(SA, 0), exd(SA, 1), cvt(PM + 1, SA))
            sl(MH(LL, ON, PM, 0), *o(add(RV + 4, 0), add(RV + 4, 1), wo(2, 1, 0)))
            sl(MH(O0, PUB, PM, 0), *o(cvt(PUB + 3, RV + 4), z(RK + 6), wo(2, 1, 1)))
            sl(MH(O1, PUB + 2, PM, 0), *o(wo(3, 1, 0), lg(3)))
            if fast: P(8)
            sl(MF(LL, ON, PX, v(LL, 4)), *o(wo(3, 1, 1)))
            sl(MF(O0, RVX, PX, v(O0, 4)), *o(wo(3, 2, 0)))
            sl(MF(O1, RVX + 4, PX, v(O1, 4)), *o(wo(3, 2, 1)), f"v_rcp_f32 v{LL+2}, v{LL}")
            if fast: P(10)
            norm(fast)
        pv(True)
    else:
        if cfg.get("al", 0) & 1 and tag == "F":
            A(f".p2align 6")
            for i in range(cfg.get("ao", 0)): A("s_nop 0")
        A(f"LOOP{tag}:")
        delay(A, cfg.get("dm0", 0))
        if cfg.get("sp"):
            ml = lambda sg: f"buffer_load_dwordx4 {v(RA+4*sg,4)}, v{V_MA}, {srd(R_WS)}, s{S_MB} offen offset:{1024*sg} sc1"
            chk = lambda sg: [f"v_max3_u32 v25, v{RA+4*sg}, v{RA+4*sg+1}, v{RA+4*sg+2}", f"v_max_u32 v25, v25, v{RA+4*sg+3}", "v_cmp_eq_u32 vcc, -1, v25"]
            dw = lambda sg: f"ds_write_b128 v{V_R[0]}, {v(RA+4*sg,4)} offset:{O_A+1024*sg}"
            A(ml(0))
            for i in range(4): A(z(RV + 2*i))
            A(f"s_waitcnt vmcnt({3 if cfg.get('prof') else 2}) lgkmcnt(0)")
            for i in range(4): A(z(RK + 2*i))
            for i in range(4): A(z(RQ + 2*i))
            delay(A, cfg.get("dm1", 16))
            A(ml(1))
            A(f"s_waitcnt vmcnt(1)\nMC{tag}:")
            sl(*chk(0))
            sl(q(0, 0), dw(0))
            sl(q(0, 1), f"s_cbranch_vccnz MR{tag}")
            delay(A, cfg.get("dm2", 0))
            A(f"MP{tag}:")
            A(ml(1))
            spin_dec(A)
            A(f"s_cmp_eq_u32 s{S_S}, 63\ns_waitcnt vmcnt(1)")
            sl(*chk(1), dw(1), f"s_cbranch_vccnz MP{tag}")
            sl(q(1, 0))
        else:
            m_loads(RA)
            if fine:
                P(18)
                A(f"s_cmp_eq_u32 s{S_S}, {cfg.get('pstep', 41)}\ns_cbranch_scc0 NODUMP{tag}\ns_waitcnt lgkmcnt(0) vmcnt(0)")
                for i in range(19): A(f"v_writelane_b32 v26, s{4+2*i}, {i}")
                A(f"v_lshrrev_b32 v27, 2, v{V_MA}\nbuffer_store_dword v26, v27, {srd(R_WS)}, s{S_PROF} offen offset:512\ns_waitcnt vmcnt(0)\nNODUMP{tag}:")
                P(0)
            for i in range(4): A(z(RV + 2*i))
            A(f"s_waitcnt vmcnt({4 if cfg.get('prof') else 3}) lgkmcnt(0)")
            for i in range(4): A(z(RK + 2*i))
            delay(A, cfg.get("dm1", 16))
            A(f"MP{tag}:")
            m_loads(RA)
            spin_dec(A)
            A(f"s_cmp_eq_u32 s{S_S}, 63")
            for i in (2, 3, 0, 1): A(z(RQ + 2*i))
            A("s_waitcnt vmcnt(3)")
            sl(f"v_max3_u32 v25, v{RA}, v{RA+1}, v{RA+2}", f"v_max_u32 v25, v25, v{RA+3}")
            sl(q(0, 0), f"ds_write_b128 v{V_R[0]}, {v(RA,4)} offset:{O_A}", "s_waitcnt vmcnt(2)")
            P(1)
            sl(f"v_max3_u32 v25, v25, v{RA+4}, v{RA+5}", f"v_max3_u32 v25, v25, v{RA+6}, v{RA+7}", f"v_cmp_eq_u32 vcc, -1, v25")
            sl(q(0, 1), f"ds_write_b128 v{V_R[0]}, {v(RA+4,4)} offset:{O_A+1024}")
            sl(q(1, 0), f"s_cbranch_vccnz MP{tag}")
        if kd:
            dp = [[1, 4, 7, 10, 13], [1, 3, 5, 7, 9], [5, 8, 11, 14, 17], [1, 2, 3, 4, 5], [1, 17, 19, 21, 24], [1, 13, 17, 19, 21], [1, 5, 17, 19, 21], [3, 17, 19, 21, 24], [11, 17, 19, 21, 24], [15, 17, 19, 21, 24], [1, 15, 19, 21, 24]][cfg.get("dpos", 0)]
            vops = [kdma(0), kdma(1), kdma(2), kdma(3), pub] if cfg.get("pe", 1) == 1 else [pub, kdma(0), kdma(1), kdma(2), kdma(3)]
            if "nd" in cfg: vops = [x if i <= cfg["nd"] else "s_nop 0" for i, x in enumerate(vops)]
            ex = lambda n: [vops[dp.index(n)]] if n in dp else []
            sl(q(1, 1))
            sl(vv(0, 0))
            sl(vv(0, 1), lg(0)); P(2); A("s_barrier"); P(3)
            sl(rd(2), rd(4))
            sl(vv(1, 0), rd(5), *ex(1))
            sl(vv(1, 1), rd(6), *ex(2))
            sl(k(0, 0), rd(7), *ex(3))
            sl(k(0, 1), rd(3), *ex(4), "s_cbranch_scc1 C_LAST", lg(5))
            sl(q(2, 0), wqr(12), *ex(5), lg(5))
            sl(q(4, 0), wqr(13), *ex(6), lg(5))
            sl(q(5, 0), wqr(10), *ex(7), lg(5))
            sl(q(6, 0), wqr(11), *ex(8), lg(5))
            sl(q(7, 0), wqr(14), *ex(9), lg(3))
            sl(q(3, 0), wqr(15), *ex(10))
            sl(q(4, 1), wo(2, 0, 0), *ex(11))
            sl(q(5, 1), wo(2, 0, 1), *ex(12), add(RQ, 0))
            sl(q(6, 1), wo(3, 0, 0), *ex(13), add(RQ, 1), lg(5))
            sl(q(2, 1), wo(3, 0, 1), *ex(14), mulc(RQ))
            sl(q(7, 1), *ex(15), mulc(RQ + 1), lg(4))
            sl(q(3, 1), wo(2, 1, 0), *ex(16), cvt(RQ + 2, RQ))
        else:
            sl(q(1, 1), f"ds_read_b128 {v(RE,4)}, v{V_R[0]} offset:{O_WQ + 14*1024}")
            sl(vv(0, 0), f"ds_read_b128 {v(RE+4,4)}, v{V_R[0]} offset:{O_WQ + 15*1024}")
            sl(vv(0, 1), lg(2)); P(2); A("s_barrier"); P(3)
            sl(rd(2), rd(3))
            sl(vv(1, 0), rd(4), kvl(0))
            sl(vv(1, 1), rd(5))
            sl(k(0, 0), rd(6))
            sl(k(0, 1), rd(7), "s_cbranch_scc1 C_LAST", lg(5))
            sl(q(2, 0), kvl(1), lg(4))
            sl(q(3, 0), lg(3))
            sl(q(4, 0), lg(2))
            sl(q(5, 0), lg(1), f"v_lshl_add_u32 v{TCH}, v{V_MA}, 3, s{S_TX}" if tw else f"v_lshlrev_b32 v{TCH}, 2, v{V_MA}")
            sl(q(6, 0), kvl(2), lg(0))
            sl(q(7, 0), wo(2, 0, 0))
            sl(q(2, 1), wo(2, 0, 1))
            sl(q(3, 1), wo(3, 0, 0), add(RQ, 0))
            sl(q(4, 1), kvl(3), add(RQ, 1))
            sl(q(5, 1), wo(3, 0, 1), f"s_add_u32 s{S_KVB}, s{S_KVB}, 0x80000", mulc(RQ))
            sl(q(6, 1), wo(2, 1, 0), mulc(RQ + 1), *([f"s_sub_u32 s{S_TB}, s{S_KVB}, 8192"] if tw else []))
            sl(q(7, 1), wo(2, 1, 1), cvt(RQ + 2, RQ))
        P(4)
        sl(k(1, 0), fw(RQ + 2, 2048), z(RQ), *([wo(2, 1, 1)] + ex(17) if kd else []))
        sl(k(2, 0), add(RQ + 4, 0), add(RQ + 4, 1), mulc(RQ + 4), mulc(RQ + 5), cvt(RQ + 6, RQ + 4), fw(RQ + 6, 2560))
        tch = lambda o=0: f"buffer_load_dword v{TCH}, {srd(R_WS)}, s{S_TB if tw else S_KVB} offen offset:{o} sc1 lds"
        if cfg.get("at"):
            tch = lambda o=0: f"buffer_atomic_or v{RQ}, v{TCH}, {srd(R_WS)}, s{S_TB if tw else S_KVB} offen offset:{o}" + [""," sc1"][cfg["at"]-1]
        pe = cfg.get("pe", 1)
        nx = 1 if tw == 2 else 0
        sl(k(3, 0), *(ex(19) if kd else [pub if pe == 2 else tch()]), z(RQ + 2))
        sl(k(4, 0), z(RQ + 4), *([tch(64)] if nx else []))
        sl(k(5, 0), *(ex(21) if kd else [tch()] if pe == 2 else [pub] if pe else []), z(RQ + 6))
        sl(k(6, 0), lg(0), "s_barrier", tr(QF, 2048), tr(QF + 2, 2560))
        if cfg.get("ack5"): A("s_waitcnt vmcnt(0)")
        P(5)
        sl(k(7, 0), tr(QF + 4, 3072), tr(QF + 6, 3584))
        sl(k(1, 1), *(ex(24) + [f"s_add_u32 s{S_KVB}, s{S_KVB}, 0x80000"] if kd else []))
        sl(k(2, 1), add(RK, 0))
        sl(k(3, 1), "s_waitcnt vmcnt(5) lgkmcnt(2)" if kd else f"s_waitcnt vmcnt({nx + (4 if pe else 3)}) lgkmcnt(2)", add(RK, 1))
        sl(MF(SX, RKX, QF, 0), lg(0), cvt(RK + 2, RK), f"v_mov_b64 {v(ON,2)}, s[{S_ON}:{S_ON+1}]")
        sl(MF(SX, RKX + 4, QF + 4, v(SX, 4)), fw(RK + 2, 0), z(RK), f"v_mov_b64 {v(ON+2,2)}, s[{S_ON}:{S_ON+1}]")
        sl(k(4, 1), f"v_mov_b32 v{PM}, 0")
        sl(k(5, 1), ad(SX, 0))
        sl(k(6, 1), ad(SX, 1))
        sl(k(7, 1), exd(SX, 0))
        sl(vv(2, 0), exd(SX, 1))
        sl(vv(3, 0), add(RK + 4, 0), add(RK + 4, 1), cvt(RK + 6, RK + 4), fw(RK + 6, 512), cvt(SX, SX))
        P(6)
        sl(vv(4, 0), f"ds_write_b32 v{V_PW}, v{SX} offset:{L_PX}", z(RK + 4))
        sl(vv(5, 0))
        sl(vv(6, 0))
        sl(vv(7, 0))
        sl(vv(2, 1), lg(0), "s_barrier", tr(KF, 0), tr(KF + 2, 512))
        P(7)
        sl(vv(3, 1), tr(KF + 4, 1024), tr(KF + 6, 1536), add(RV, 0))
        sl(vv(4, 1), f"ds_read_b128 {v(PX,4)}, v{V_MA} offset:{L_PX}", add(RV, 1))
        sl(vv(5, 1), *([] if pe else [pub]))
        sl(vv(6, 1), f"s_add_u32 s{S_PUB}, s{S_PUB}, 0x20000", cvt(PUB + 1, RV))
        sl(vv(7, 1), lg(3), f"v_min_u32 v{PUB}, -2, v{RK+2}")
        P(8)
        sl(MF(SA, KF, QF, 0), lg(1), f"v_mov_b32 v{PUB+2}, v{RK+6}", z(RK + 2))
        sl(MF(SA, KF + 4, QF + 4, v(SA, 4)), lg(0) if kd else f"s_waitcnt vmcnt({nx + 2}) lgkmcnt(0)", z(RK + 6), add(RV + 4, 0))
        if cfg.get("ack9"): A("s_waitcnt vmcnt(0)")
        P(9)
        def pv(fast):
            o = (lambda *x: x) if fast else (lambda *x: ())
            sl(MF(LL, ON, PX, 0), *o(wo(3, 1, 0), add(RV + 4, 1), cvt(PUB + 3, RV + 4), wo(3, 1, 1), ad(SA, 0), ad(SA, 1)))
            sl(MF(O0, RVX, PX, 0), exd(SA, 0), exd(SA, 1))
            sl(MF(O1, RVX + 4, PX, 0), cvt(PM + 1, SA), *o(wo(2, 2, 0), wo(2, 2, 1)))
            if fast: P(10)
            sl(MH(LL, ON, PM, v(LL, 4)), *o(wo(3, 2, 0)))
            sl(MH(O0, PUB, PM, v(O0, 4)), *o(wo(3, 2, 1)))
            sl(MH(O1, PUB + 2, PM, v(O1, 4)), f"v_rcp_f32 v{LL+2}, v{LL}")
            sl(*o(f"v_max_f32 v{LL}, v{LL}, v{LL+2}", f"v_cmp_lt_f32 vcc, s{S_THR}, v{LL}"))
            if cfg.get("pk0", 1):
                for i in range(2): A(f"v_pk_mul_f32 {v(O0+2*i,2)}, {v(O0+2*i,2)}, {v(LL+2,2)} op_sel_hi:[1,0]")
            else:
                for i in range(4): A(f"v_mul_f32 v{O0+i}, v{O0+i}, v{LL+2}")
            sl(cvt(OP, O0), cvt(OP + 1, O0 + 2))
            if fast: P(11)
            for i in range(2): A(f"v_pk_mul_f32 {v(O1+2*i,2)}, {v(O1+2*i,2)}, {v(LL+2,2)} op_sel_hi:[1,0]")
            sl(cvt(OP + 2, O1), cvt(OP + 3, O1 + 2), f"ds_write_b128 v{V_R[0]}, {v(OP,4)} offset:{O_A}")
        pv(True)
    A(f"s_cbranch_vccnz {'FRET' if abl else 'FBK'}{tag}\nFRET{tag}:")
    OF = [OP, 64, 68, 24]
    so = lambda c, T: SM(RQ + 4*T, OF[c], WO(c, T))
    sl(so(0, 0), f"s_add_u32 s{S_S}, s{S_S}, 1", f"s_and_b32 s{S_T0}, s{S_S}, 3", f"s_lshl_b32 s{S_T0}, s{S_T0}, 13")
    sl(so(0, 1), f"s_add_u32 s{S_MW}, s{S_T0}, {WS_M}", f"s_add_u32 s{S_MB}, s{S_MW}, s{S_W2K}", f"s_xor_b32 s{S_MR}, s{S_MW}, 0x4000")
    sl(so(0, 2), f"s_cmp_lt_u32 s{S_W}, 2", lg(0)); P(12); A("s_barrier"); P(13)
    for c in range(1, 4): A(f"ds_read_b128 {v(OF[c],4)}, v{V_R[c]} offset:{O_A}")
    sl(so(0, 3), wo(2, 3, 0), wo(2, 3, 1), lg(4))
    PK = 32
    pk = lambda i: cvt(PK + i, RQ + 2*i)
    tg = lambda sg: f"v_and_or_b32 v{PK+4*sg}, v{PK+4*sg}, -2, s{S_TAG}"
    ps = lambda sg: f"buffer_store_dwordx4 {v(PK+4*sg,4)}, v{V_PST}, {srd(R_WS)}, s{S_PR1 if sg else S_PW} offen {sc}"
    sl(so(1, 0), lg(3))
    sl(so(2, 0), lg(2), f"v_mov_b32 v42, -1")
    sl(so(3, 0), wo(3, 3, 0))
    sl(so(1, 1), wo(3, 3, 1))
    sl(so(2, 1), f"ds_read_b128 {v(SEL,4)}, v{V_MA} offset:{L_SEL}", pk(0))
    sl(so(3, 1), tg(0))
    sl(so(1, 2), pk(1))
    sl(so(2, 2), pk(2), pk(3), ps(0))
    P(14)
    sl(so(3, 2), lg(0))
    sl(so(1, 3))
    sl(so(2, 3), pk(4))
    sl(so(3, 3), tg(1), pk(5))
    sl(pk(6), pk(7), ps(1))
    P(15)
    n0 = cfg.get("n0", 14)
    wq_prefetch(A, 0, n0)
    A(f"s_cbranch_scc1 RED{tag}")
    if fine and cfg.get("ack"):
        A("s_waitcnt vmcnt(2)"); P(16); A(f"s_waitcnt vmcnt({2 - cfg['ack']})"); P(17)
    if kd: A("s_waitcnt vmcnt(2)")
    wq_prefetch(A, n0, 14)
    A(f"""
    buffer_store_dword v42, v{V_MST}, {srd(R_WS)}, s{S_MR} offen {sc}
    s_cmp_eq_u32 s{S_W}, 3
    s_cbranch_scc0 JOIN{tag}
    s_add_u32 s{S_T3}, s{S_S}, 1
    s_min_u32 s{S_T3}, s{S_T3}, 63
    """)
    kv_ready(A, S_T3, tag)
    A(f"""
    JOIN{tag}:
    s_xor_b32 s{S_TAG}, s{S_TAG}, 1
    s_waitcnt lgkmcnt(0)
    s_barrier
    s_branch LOOP{tag}
    """)
    if cfg.get("ph"):
        A(f"MR{tag}:")
        A(ml(1))
        spin_dec(A)
        A("s_waitcnt vmcnt(1)")
        for x in chk(1) + [cmpv]: A(x)
        A(f"s_cbranch_vccnz MR{tag}\ns_branch MC{tag}")
    if cfg.get("sp"):
        A(f"MR{tag}:")
        A(ml(0))
        A(ml(1))
        spin_dec(A)
        A("s_waitcnt vmcnt(1)\ns_nop 7")
        for i in range(4): A(z(RQ + 2*i))
        A(f"s_branch MC{tag}")
    A(f"""
    FBK{tag}:
    """)
    X = 104 - 8 * 9
    for r in (SX + 2, SX + 3, SA + 2, SA + 3): A(f"v_mov_b32_dpp v{r}, v{r} {DPP('2,3,2,3')}")
    A(f"""
    ds_write_b32 v{V_PW}, v{SX+2} offset:{L_PX + 1024}
    ds_write_b32 v{V_PW}, v{SX+3} offset:{L_PX + 2048}
    s_waitcnt lgkmcnt(0)
    s_barrier
    ds_read_b128 {v(X,4)}, v{V_MA} offset:{L_PX + 1024}
    ds_read_b128 {v(X+4,4)}, v{V_MA} offset:{L_PX + 2048}
    v_max_f32 v{LL}, v{SA+2}, v{SA+3}
    s_waitcnt lgkmcnt(0)
    """)
    for i in range(4): A(f"v_max3_f32 v{LL}, v{LL}, v{X+2*i}, v{X+2*i+1}")
    xG(A, LL, LL + 1, "v_max_f32")
    for r in list(range(X, X + 8)) + [SA + 2, SA + 3]: A(f"v_sub_f32 v{r}, v{r}, v{LL}")
    for i in range(8): A(f"v_exp_f32 v{X+i}, v{X+i}")
    for i in range(4): A(f"v_cvt_pk_bf16_f32 v{PX+i}, v{X+i}, v{X+4+i}")
    pv(False)
    A(f"s_branch FRET{tag}")
    PB, PA = 24, 20
    if cfg.get("al", 0) & 2 and tag == "F":
        A(".p2align 6")
        for i in range(cfg.get("ar", 0)): A("s_nop 0")
    A(f"""
    RED{tag}:
    s_cmp_eq_u32 s{S_W}, 0
    """)
    if cfg.get("dp0", -1) >= 0:
        A(f"s_cbranch_scc1 PW{tag}")
        delay(A, cfg.get("dp1", 0))
        A(f"PW{tag}:")
        delay(A, cfg["dp0"])
        A("s_waitcnt vmcnt(2)")
    elif cfg.get("pw", 0) == 1:
        delay(A, cfg.get("dpw", 0))
        A("s_waitcnt vmcnt(0)")
    else:
        delay(A, cfg.get("dpw", 0))
        A(f"""
        s_cbranch_scc1 PW{tag}
        s_waitcnt vmcnt(0)
        PW{tag}:
        s_waitcnt vmcnt(1)
        """ if cfg.get("pb", 0) else f"""
        s_waitcnt vmcnt(1)
        s_cbranch_scc1 PP{tag}
        s_waitcnt vmcnt(0)
        """)
    def pl(B):
        for i in range(4):
            A(f"buffer_load_dwordx4 {v(B+4*i,4)}, v{V_MA}, {srd(R_WS)}, s{S_PR0} offen offset:{i*1024} sc1")
    def pr(B, nb, br=None):
        for i in range(4):
            A(f"s_waitcnt vmcnt({nb+3-i})")
            A(MF(PA, SEL, B + 4*i, "0" if i == 0 else v(PA, 4)))
            if i == 1: A(f"v_bitop3_b32 v40, v{B}, v{B+4}, s{S_TAG} bitop3:0x7e")
        A(f"""
        v_bitop3_b32 v41, v{B+8}, v{B+12}, s{S_TAG} bitop3:0x7e
        v_bitop3_b32 v40, v40, 1, v41 bitop3:0xc8
        v_cmp_ne_u32 vcc, 0, v40
        {br or ''}
        """)
        if br and "s_branch" in br: return
        A(f"""
        v_add_f32_dpp v{PA}, v{PA}, v{PA} row_ror:8 row_mask:0xf bank_mask:0xf
        v_add_f32_dpp v{PA+1}, v{PA+1}, v{PA+1} row_ror:8 row_mask:0xf bank_mask:0xf
        v_cvt_pk_bf16_f32 v41, v{PA}, v{PA+1}
        v_min_u32 v41, -2, v41
        """)
    A(f"PP{tag}:")
    if cfg.get("ps", 2) == 2:
        pl(PB)
        P(16)
        wq_prefetch(A, n0, 14)
        delay(A, cfg.get("dp2", 20))
        A(f"PQ{tag}:")
        pl(RQ)
        if cfg.get("eb", 0):
            pr(PB, 4, f"s_cbranch_vccnz PF{tag}\nPD{tag}:")
        else:
            pr(PB, 4)
            A(f"s_cbranch_vccnz PF{tag}\nPD{tag}:")
    else:
        pl(PB)
        P(16)
        spin_dec(A)
        pr(PB, 0)
        A(f"s_cbranch_vccnz PP{tag}")
    A(f"""
    buffer_store_dword v41, v{V_MST}, {srd(R_WS)}, s{S_MW} offen {sc}
    """)
    P(17)
    A(f"""
    s_barrier
    s_xor_b32 s{S_TAG}, s{S_TAG}, 1
    """)
    if cfg.get("prof"):
        A(f"""
        s_memtime s[{S_TS}:{S_TS+1}]
        s_lshl_b32 s{S_T0}, s{S_S}, 2
        s_add_u32 s{S_T0}, s{S_T0}, s{S_PROF}
        s_waitcnt lgkmcnt(0)
        v_mov_b32 v43, s{S_TS}
        s_mov_b64 exec, 1
        buffer_store_dword v43, off, {srd(R_WS)}, s{S_T0} offset:64
        s_mov_b64 exec, -1
        """)
    A(f"s_branch LOOP{tag}")
    if cfg.get("ps", 2) == 2:
        if cfg.get("al", 0) & 4 and tag == "F": A(".p2align 6")
        A(f"PF{tag}:")
        pf = cfg.get("pf", 0) if not cfg.get("prof") else 0
        if pf:
            if pf == 1: pl(PB)
            pr(RQ, 4 if pf == 1 else 0)
            A(f'''
            s_cbranch_vccnz PG{tag}
            buffer_store_dword v41, v{V_MST}, {srd(R_WS)}, s{S_MW} offen {sc}
            s_barrier
            s_xor_b32 s{S_TAG}, s{S_TAG}, 1
            s_branch LOOP{tag}
            PG{tag}:
            ''')
            if pf == 2: pl(PB)
            spin_dec(A)
            A(f"s_branch PQ{tag}")
            return
        pl(PB)
        spin_dec(A)
        if cfg.get("eb", 0):
            pr(RQ, 4, f"s_cbranch_vccnz PQ{tag}\ns_nop 7\ns_branch PD{tag}")
        else:
            pr(RQ, 4)
            A(f"s_cbranch_vccz PD{tag}\ns_branch PQ{tag}")

def chain(A, cfg):
    cfg["vt"] = 23
    KD[0] = cfg.get("kd", 0)
    if cfg.get("ph"):
        WQS[:] = [48, 88, 72, 88, 96, 80, 96, 48]
        PFO[:] = [0, 1, 2, 3, 8, 9, 10, 11, 4, 5]
    assert cfg.get("n0", 14) <= 10 or not KD[0]
    chain_init(A, cfg)
    A(f"s_mov_b32 s{S_T3}, 1")
    kv_ready(A, S_T3, "I")
    if KD[0]:
        for i in range(4): A(kdma(i))
        A(f"C_GO:\ns_add_u32 s{S_KVB}, s{S_KVB}, 0x80000\ns_waitcnt vmcnt(0)")
        wq_prefetch(A, 10, 14)
    stamp(A, cfg, 3)
    A(f"s_waitcnt lgkmcnt(0)\ns_barrier\ns_cmp_eq_u32 s{S_SENT}, 0\ns_cbranch_scc1 LOOPS")
    chain_loop(A, cfg, "F", "")
    chain_loop(A, cfg, "S", "sc1")
    A("C_LAST:")
    A(f"buffer_store_dwordx4 {v(PUB,4)}, v{V_MA}, {srd(R_WS)}, s{S_PUB} offen sc1")
    A(f"s_add_u32 s{S_PUB}, s{S_PUB}, 0x20000")
    A("s_waitcnt lgkmcnt(0)")
    for t in range(1 if cfg.get("ph") else 2, 8):
        for ab in range(2): A(SM(RV + 4*ab, RA + 4*t, WV(t, ab)))
    for t in ((3, 5, 7) if cfg.get("ph") else range(1, 8)):
        for ab in range(2): A(SM(RK + 4*ab, RA + 4*t, WK(t, ab)))
    fold(A, RV, 73, 75)
    fold(A, RK, 72, 74)
    A(f"v_min_u32 v72, -2, v72")
    A(f"buffer_store_dwordx4 v[72:75], v{V_MA}, {srd(R_WS)}, s{S_PUB} offen sc1")
    cfg["vt"] = 76
    stamp(A, cfg, 4)
    A("s_waitcnt vmcnt(0)")
```

```python
import re
from common import *
from worker import stamp, spin_dec, xG

L_PX, L_SEL, L_F, L_REG, RP = 0, 0xC00, 0x1000, 0x2000, 0x9800
O_WQ, O_WO, O_A, O_S = 0, 0x4000, 0x8000, 0x8800
L_DUMMY = L_REG + O_S
V_IDX, V_MA, V_KA, V_FW, V_FR, V_PW, V_PST, V_MST = 0, 1, 2, 3, 4, 5, 6, 7
V_R = [8, 9, 10, 11]
PUB = 12
RA, RE, RV, RQ, RK, ALT = 16, 48, 104, 112, 120, 40
RKX, RVX = 56, 64
S_S, S_RING, S_ROT = 64, 65, 66
S_RDY, S_PW, S_MB, S_KVB, S_MW, S_PUB, S_TAG, S_FKV = 70, 71, 72, 73, 74, 75, 76, 77
S_C, S_THR = 78, 79
S_B1, S_ON, S_HF = 80, 82, 90
S_SENT, S_PR0, S_PR1, S_W2K, S_MR = 84, 85, 86, 87, 88
S_TX, S_TB = 92, 93

KD = [0]
WQS = [48, 88, 96, 72, 80, 88, 96, 48]
PFO = list(range(10))
def WQ(t, ab): return v(WQS[2 * t + ab] if KD[0] else RE + 8 * ((2 * t + ab) % 7), 8) if t < 4 else v(128 + 8 * (2 * (t - 4) + ab), 8)
def WK(t, ab): return a(8 * (2 * t + ab), 8)
def WV(t, ab): return a(128 + 8 * (2 * t + ab), 8)
WOS = {(2, 0): 72, (3, 0): 80, (2, 1): 88, (3, 1): 48, (2, 2): 56, (3, 2): 104, (2, 3): 96, (3, 3): 16}
def WO(c, T): return v(192 + 8 * (4 * c + T), 8) if c < 2 else v(WOS[(c, T)], 8)
def SM(d, aa, b): return f"v_smfmac_f32_16x16x64_bf16 {v(d,4)}, {v(aa,4)}, {b}, v{V_IDX}"
def MF(d, aa, b, c): return f"v_mfma_f32_16x16x32_bf16 {v(d,4)}, {v(aa,4)}, {v(b,4)}, {c}"
def MH(d, aa, b, c): return f"v_mfma_f32_16x16x16_bf16 {v(d,4)}, {v(aa,2)}, {v(b,2)}, {c}"
DPP = lambda p: f"quad_perm:[{p}] row_mask:0xf bank_mask:0xf"

def chain_init(A, cfg):
    L, L16 = 20, 21
    vm = VM(A)
    A(f"""
    CHAIN:
    v_mov_b32 v{L}, v1
    v_mov_b32 v{L16}, v2
    s_mul_i32 s{S_RING}, s{S_W}, {RP}
    s_add_u32 s{S_RING}, s{S_RING}, {L_REG}
    s_lshl_b32 s{S_W2K}, s{S_W}, 11
    """)
    for i in range(4):
        A(f"s_add_u32 s{S_T0}, s{S_W}, {i}\ns_and_b32 s{S_ROT+i}, s{S_T0}, 3")
    A(f"""
    v_lshrrev_b32 v22, 4, v{L}
    v_bfe_u32 v23, v{L}, 2, 1
    v_lshlrev_b32 v{V_MST}, 8, v23
    v_bfe_u32 v23, v{L}, 1, 1
    v_lshl_add_u32 v{V_MST}, v23, 5, v{V_MST}
    v_and_b32 v23, 1, v{L}
    v_lshl_add_u32 v{V_MST}, v23, 3, v{V_MST}
    v_and_b32 v23, 1, v22
    v_lshl_add_u32 v{V_MST}, v23, 4, v{V_MST}
    v_lshrrev_b32 v24, 5, v{L}
    v_lshl_add_u32 v{V_MST}, v24, 2, v{V_MST}
    v_lshlrev_b32 v25, 10, v23
    v_lshl_add_u32 v25, v24, 2, v25
    v_and_b32 v24, 7, v{L}
    v_lshl_add_u32 v25, v24, 4, v25
    s_lshr_b32 s{S_T0}, s{S_H}, 3            ; w'
    s_bfe_u32 s{S_T1}, s{S_H}, 0x20001       ; G'
    s_and_b32 s{S_T2}, s{S_H}, 1             ; nh
    s_and_b32 s{S_T3}, s{S_W}, 1             ; sig
    s_lshl_b32 s{S_PW}, s{S_T0}, 11
    s_lshl_b32 s{S_MB}, s{S_T3}, 10
    s_add_u32 s{S_PW}, s{S_PW}, s{S_MB}
    s_lshl_b32 s{S_MB}, s{S_T2}, 9
    s_add_u32 s{S_PW}, s{S_PW}, s{S_MB}
    s_lshl_b32 s{S_MB}, s{S_T1}, 6
    s_add_u32 s{S_PW}, s{S_PW}, s{S_MB}
    v_add_u32 v{V_MST}, s{S_PW}, v{V_MST}
    s_lshl_b32 s{S_T1}, s{S_T1}, 11
    s_lshl_b32 s{S_PW}, s{S_T0}, 8
    s_add_u32 s{S_T1}, s{S_T1}, s{S_PW}
    s_lshl_b32 s{S_T2}, s{S_T2}, 7
    s_add_u32 s{S_T1}, s{S_T1}, s{S_T2}
    s_lshl_b32 s{S_T3}, s{S_T3}, 3
    s_add_u32 s{S_T1}, s{S_T1}, s{S_T3}
    """)
    m0l = vm.issue(f"buffer_load_dword v28, v25, {srd(R_M0)}, s{S_T1} offen")
    A(f"""
    v_lshrrev_b32 v23, 3, v{L}
    s_lshl_b32 s{S_T1}, s{S_W}, 3
    v_add_u32 v23, s{S_T1}, v23
    v_lshlrev_b32 v{V_PST}, 13, v23
    v_lshl_add_u32 v{V_PST}, v24, 4, v{V_PST}
    v_and_b32 v23, {cfg.get("swz", 31)}, v23
    v_xor_b32 v23, s{S_H}, v23
    v_lshl_add_u32 v{V_PST}, v23, 7, v{V_PST}
    v_mov_b32 v24, -1
    v_mov_b32 v25, -1
    v_mov_b32 v26, -1
    v_mov_b32 v27, -1
    s_mov_b32 s{S_PW}, {WS_P}
    s_mov_b32 s{S_PR1}, {WS_P + 4096}
    """)
    vm.issue(f"buffer_store_dwordx4 v[24:27], v{V_PST}, {srd(R_WS)}, s{S_PW} offen sc1")
    vm.issue(f"buffer_store_dwordx4 v[24:27], v{V_PST}, {srd(R_WS)}, s{S_PR1} offen sc1")
    for i in range(1, 4):
        A(f"s_mov_b32 s{S_T0}, {WS_M + i*8192}")
        vm.issue(f"buffer_store_dword v24, v{V_MST}, {srd(R_WS)}, s{S_T0} offen sc1")
    A(f"""
    v_and_b32 v23, 15, v{L}
    v_lshlrev_b32 v30, 12, v22
    v_lshl_add_u32 v30, v23, 4, v30
    s_lshl_b32 s{S_T0}, s{S_H}, 17
    s_lshl_b32 s{S_T1}, s{S_W}, 8
    s_add_u32 s{S_T0}, s{S_T0}, s{S_T1}
    v_add_u32 v30, s{S_T0}, v30
    """)
    def wo_raw(cs):
        for ci, c in enumerate(cs):
            A(f"s_lshl_b32 s{S_T0}, s{S_ROT+c}, 15\ns_add_u32 s{S_T1}, s{S_T0}, 16384")
            for i in range(8):
                r = RE + 32 * ci + 4 * i
                k = vm.issue(f"buffer_load_dwordx4 {v(r,4)}, v30, {srd(R_WO)}, s{S_T0 if i < 4 else S_T1} offen offset:{(i&3)*1024}{' nt' if cfg.get('nt', 0) & 2 else ''}")
        return k
    wo1 = wo_raw([0, 1])
    NT = " nt" if cfg.get("nt", 0) & 1 else ""
    VG, VA = 16, 112
    A(f"""
    v_and_b32 v31, 1, v22
    v_lshlrev_b32 v31, 4, v31
    v_lshrrev_b32 v32, 5, v{L}
    v_add_u32 v31, v31, v32                  ; 16(j&1) + (j>>1)
    v_lshlrev_b32 v31, 13, v31
    v_lshlrev_b32 v32, 2, v22
    v_xor_b32 v32, v32, v23
    v_lshl_add_u32 v31, v32, 4, v31
    s_lshl_b32 s{S_T0}, s{S_H}, 8
    s_lshl_b32 s{S_T1}, s{S_W}, 20
    s_add_u32 s{S_T0}, s{S_T0}, s{S_T1}
    v_add_u32 v{VG}, s{S_T0}, v31
    s_lshl_b32 s{S_MR}, s{S_W}, 12
    s_add_u32 s{S_MR}, s{S_MR}, {L_REG + O_WO}
    """)
    qpos = cfg.get('qpos', 0)
    units = [(R, par, m) for R in [(R_WQ, R_WK, R_WV), (R_WK, R_WQ, R_WV)][qpos] for par in range(2) for m in range(4)]
    uid = {}
    def u_issue(u):
        R, par, m = units[u]
        for G in range(4):
            A(f"s_add_u32 m0, s{S_MR}, {(u & 3) * RP + G * 1024}")
            A(f"s_mov_b32 s{S_T0}, {(2*(m&1) + 64*(m>>1) + 4*par + 8*(G&1) + 32*(G>>1)) * 8192}")
            uid[u] = vm.issue(f"buffer_load_dwordx4 v{VG}, {srd(R)}, s{S_T0} offen{' nt' if cfg.get('nt', 0) & (1 if R == R_WQ else 8) else ''} lds")
    def u_read(u):
        R, par, m = units[u]
        regf = {R_WK: WK, R_WV: WV, R_WQ: lambda t, ab: WQ(t, ab) if t >= 4 else v(RE + 8 * (2*t + ab), 8)}[R]
        for i in range(4):
            for ab in range(2):
                kind, r0 = regs_of(regf(2*i + par, ab))[0]
                A(f"ds_read_b64_tr_b16 {kind}[{r0+2*m}:{r0+2*m+1}], v{VA + i + 4*((u&3)>>1)} offset:{(u & 1) * RP + ab*8}")
    for u in range(4): u_issue(u)
    A(f"""
    v_bfe_u32 v23, v{L}, 2, 2
    v_and_b32 v32, 3, v{L}
    v_lshlrev_b32 v31, 10, v22
    v_lshl_add_u32 v31, v23, 8, v31
    v_lshl_add_u32 v31, v32, 4, v31
    v_xor_b32 v23, s{S_W}, v23
    v_lshl_add_u32 v31, v23, 6, v31
    """)
    for i in range(4):
        A(f"""
        s_lshl_b32 s{S_T0}, s{S_ROT+i}, 12
        s_add_u32 s{S_T0}, s{S_T0}, {L_REG + O_WO}
        v_add_u32 v{VA+i}, s{S_T0}, v31
        v_add_u32 v{VA+4+i}, {2*RP}, v{VA+i}
        """)
    vm.wait(m0l)
    A(f"""
    v_min_u32 v28, -2, v28
    s_mov_b32 s{S_T0}, {WS_M}
    """)
    m0s = vm.issue(f"buffer_store_dword v28, v{V_MST}, {srd(R_WS)}, s{S_T0} offen sc1")
    lane_ma(A, V_MA, L, 23)
    A(f"""
    v_and_b32 v23, 2, v{L}
    v_cmp_eq_u32 vcc, 0, v23
    v_mov_b32 v23, 0xdddddddd
    v_mov_b32 v33, 0x88888888
    v_cndmask_b32 v{V_IDX}, v23, v33, vcc
    v_bfe_u32 v23, v{L}, 2, 2
    v_xor_b32 v23, v23, v22
    v_and_b32 v33, 15, v{L}
    v_lshlrev_b32 v33, 5, v33
    v_lshl_add_u32 v33, v23, 3, v33
    s_and_b32 s{S_T0}, s{S_W}, 1
    s_lshl_b32 s{S_T0}, s{S_T0}, 10
    s_lshr_b32 s{S_T1}, s{S_W}, 1
    s_lshl2_add_u32 s{S_T0}, s{S_T1}, s{S_T0}
    s_add_u32 s{S_T0}, s{S_T0}, {L_F}
    v_add_u32 v{V_FW}, s{S_T0}, v33
    v_xor_b32 v33, v{L}, v22
    v_lshlrev_b32 v33, 3, v33
    v_add_u32 v{V_FR}, {L_F}, v33
    s_lshl_b32 s{S_T0}, s{S_W}, 2
    v_add_u32 v{V_PW}, s{S_T0}, v{L16}
    v_lshlrev_b32 v{V_KA}, 8, v22
    v_bfe_u32 v33, v{L}, 1, 1
    v_lshl_add_u32 v{V_KA}, v33, 7, v{V_KA}
    v_bfe_u32 v33, v{L}, 2, 2
    v_lshl_add_u32 v{V_KA}, v33, 5, v{V_KA}
    v_and_b32 v33, 1, v{L}
    v_lshl_add_u32 v{V_KA}, v33, 4, v{V_KA}
    s_mov_b32 s{S_C}, {f2u(128**-0.5 * 1.4426950408889634)}
    s_mov_b32 s{S_THR}, {f2u(2.0 ** cfg.get("thr", 32))}
    s_mov_b32 s{S_ON}, 0x3f803f80
    s_mov_b32 s{S_ON+1}, 0x3f803f80
    s_mov_b32 s{S_RDY}, 0
    s_mov_b32 s{S_S}, 0
    s_mov_b32 s{S_TAG}, 0
    s_lshl_b32 s{S_T0}, s{S_H}, 13
    s_and_b32 s{S_T1}, s{S_W}, 1
    s_lshl_b32 s{S_T1}, s{S_T1}, 12
    s_add_u32 s{S_T1}, s{S_T1}, s{S_T0}
    s_add_u32 s{S_PR0}, s{S_T1}, {WS_P}
    s_add_u32 s{S_T1}, s{S_T0}, s{S_W2K}       ; h*8K + w*2K
    s_lshl_b32 s{S_KVB}, s{S_T1}, 1
    s_add_u32 s{S_KVB}, s{S_KVB}, {WS_KV}
    s_lshr_b32 s{S_PUB}, s{S_T1}, 1
    s_add_u32 s{S_PUB}, s{S_PUB}, {WS_KVM - 131072}
    s_add_u32 s{S_MB}, s{S_W2K}, {WS_M}
    s_lshl_b32 s{S_FKV}, s{S_H}, 7
    s_add_u32 s{S_FKV}, s{S_FKV}, {FL_KV}
    s_and_b32 s{S_TX}, s{S_W}, 1
    s_lshl_b32 s{S_TX}, s{S_TX}, 12
    s_cmp_lt_u32 s{S_W}, 2
    s_cselect_b32 s{S_TX}, 0x40000000, s{S_TX}
    """)
    for i in range(4):
        A(f"s_mul_i32 s{S_T0}, s{S_ROT+i}, {RP}\ns_add_u32 s{S_T0}, s{S_T0}, {L_REG}\nv_add_u32 v{V_R[i]}, s{S_T0}, v{L16}")
    A(f"""
    v_mov_b32 v{PUB}, 0
    v_mov_b32 v{PUB+1}, 0
    v_mov_b32 v{PUB+2}, 0
    v_mov_b32 v{PUB+3}, 0
    v_lshlrev_b32 v23, 2, v{L}
    v_and_b32 v23, 16, v23
    v_mov_b32 v33, 0x3f80
    v_lshlrev_b32 v33, v23, v33
    v_bfe_u32 v23, v{L}, 3, 1
    v_and_b32 v34, 1, v{L}
    v_lshl_add_u32 v23, v23, 1, v34
    """)
    for i in range(4):
        A(f"v_cmp_eq_u32 vcc, {i}, v23\nv_cndmask_b32 v{44+i}, 0, v33, vcc")
    A(f"ds_write_b128 v{V_MA}, v[44:47] offset:{L_SEL}")
    vm.wait(wo1)
    for c in range(2):
        for T in range(4):
            for i in range(8):
                A(f"v_mov_b32 v{192 + 8*(4*c+T) + i}, v{RE + 32*c + 4*i + T}")
    stamp(A, cfg, 1); vm.n += bool(cfg.get("prof"))
    ep = cfg.get("ep", 0) if KD[0] else 0
    ua = cfg.get("ua", ep - 4)
    assert not ep or 17 <= ep <= 20
    for u in range(24):
        vm.wait(uid[u])
        if u == 4: vm.wait(m0s)
        A("s_waitcnt lgkmcnt(0)\ns_barrier")
        if u >= 1 and u + 3 < 24: u_issue(u + 3)
        if u == 9 + 8 * qpos: wo2 = wo_raw([2, 3])
        if ep and u == ua:
            vm.issue(f"buffer_load_dwordx2 v[24:25], off, {srd(R_DBG)}, 0 offset:{D_HIST} sc1")
            vm.issue(f"buffer_load_dwordx4 v[32:35], off, {srd(R_DBG)}, 0 offset:{D_ARR} sc1")
            arl = vm.issue(f"buffer_load_dwordx4 v[36:39], off, {srd(R_DBG)}, 0 offset:{D_ARR+16} sc1")
        if ep and u == ep:
            vm.wait(arl)
            vm.issue(f"buffer_load_dwordx4 v[40:43], off, {srd(R_WS)}, s{S_FKV} sc1")
            kfl = vm.issue(f"buffer_load_dwordx4 v[44:47], off, {srd(R_WS)}, s{S_FKV} offset:16 sc1")
        if ep and u == ep + 3:
            vm.wait(kfl)
            A(f"s_add_u32 m0, s{S_RING}, {O_S}")
            for i in range(4): kd0 = vm.issue(kdma(i))
        u_read(u)
        if ep and u == ep + 3:
            A(f'''
            v_sad_u8 v26, v24, 0, 0
            v_sad_u8 v26, v25, 0, v26
            v_lshlrev_b32 v26, 22, v26
            v_min3_u32 v26, v26, v33, v34
            v_min3_u32 v26, v26, v35, v36
            v_min3_u32 v26, v26, v37, v38
            v_min_u32 v26, v26, v39
            v_or_b32 v24, v24, v25
            v_and_b32 v24, 0x80808080, v24
            ''')
            for g in range(7): A(f"v_mad_u32_u24 v{41+g}, v{41+g}, 7, {g}")
            A(f'''
            v_min3_u32 v40, v41, v42, v43
            v_min3_u32 v40, v40, v44, v45
            v_min3_u32 v40, v40, v46, v47
            v_readfirstlane_b32 s{S_T0}, v26
            v_readfirstlane_b32 s{S_SENT}, v24
            v_readfirstlane_b32 s{S_RDY}, v40
            s_cmp_lt_u32 s{S_T0}, 0x20000000
            s_cselect_b32 s{S_RDY}, 0, s{S_RDY}
            ''')
        if u == 4:
            A(f"""
            s_cmp_eq_u32 s{S_W}, 3
            s_cbranch_scc0 C_NOH
            s_and_b32 s{S_T0}, s{S_XCC}, 3
            s_lshl_b32 s{S_T0}, s{S_T0}, 3
            s_lshl_b32 s{S_T0}, 4, s{S_T0}
            s_and_b32 s{S_T1}, s{S_XCC}, 4
            v_mov_b32 v23, s{S_T0}
            s_mov_b64 exec, 1
            buffer_atomic_add v23, off, {srd(R_DBG)}, s{S_T1} offset:{D_HIST}
            s_mov_b64 exec, -1
            C_NOH:
            """)
        if u == 8 + 8 * qpos:
            for f in range(16):
                A(f"ds_write_b128 v{V_R[0]}, {v(RE + 4*f, 4)} offset:{O_WQ + f*1024}")
    assert vm.known >= wo2
    A("s_waitcnt lgkmcnt(0)\ns_barrier")
    for fi, (c, T) in enumerate(WOS):
        for i in range(8):
            A(f"v_mov_b32 v{32 + 8*(fi&1) + i}, v{RE + 32*(c-2) + 4*i + T}")
        A(f"ds_write_b128 v{V_R[0]}, {v(32 + 8*(fi&1), 4)} offset:{O_WO + fi*2048}")
        A(f"ds_write_b128 v{V_R[0]}, {v(36 + 8*(fi&1), 4)} offset:{O_WO + fi*2048+1024}")
    wq_prefetch(A, 0, 10 if KD[0] else 14)
    stamp(A, cfg, 2)
    if ep: A(f"s_cmp_gt_u32 s{S_RDY}, 1\ns_cbranch_scc1 C_GO\ns_mov_b32 s{S_RDY}, 0")
    A(f"""
    s_add_u32 m0, s{S_RING}, {O_S}
    C_W0:
    buffer_load_dwordx2 v[24:25], off, {srd(R_DBG)}, 0 offset:{D_HIST} sc1
    buffer_load_dwordx4 v[28:31], off, {srd(R_DBG)}, 0 offset:{D_ARR} sc1
    buffer_load_dwordx4 v[32:35], off, {srd(R_DBG)}, 0 offset:{D_ARR+16} sc1
    """)
    spin_dec(A)
    A(f"""
    s_waitcnt vmcnt(0)
    v_sad_u8 v26, v24, 0, 0
    v_sad_u8 v26, v25, 0, v26
    v_lshlrev_b32 v26, 22, v26
    v_min3_u32 v26, v26, v29, v30
    v_min3_u32 v26, v26, v31, v32
    v_min3_u32 v26, v26, v33, v34
    v_min_u32 v26, v26, v35
    v_readfirstlane_b32 s{S_T0}, v26
    s_cmp_lt_u32 s{S_T0}, 0x20000000
    s_cbranch_scc1 C_W0
    v_or_b32 v24, v24, v25
    v_and_b32 v24, 0x80808080, v24
    v_readfirstlane_b32 s{S_SENT}, v24      ; nonzero -> all chain workgroups share one XCC
    """)

def kv_ready(A, s_target, tag):
    A(f"""
    s_cmp_gt_u32 s{S_RDY}, s{s_target}
    s_cbranch_scc1 RDY_OK{tag}
    RDY_P{tag}:
    buffer_load_dwordx4 v[24:27], off, {srd(R_WS)}, s{S_FKV} sc1
    buffer_load_dwordx4 v[28:31], off, {srd(R_WS)}, s{S_FKV} offset:16 sc1
    """)
    spin_dec(A)
    A("s_waitcnt vmcnt(0)")
    for g in range(7):
        A(f"v_mad_u32_u24 v{25+g}, v{25+g}, 7, {g}")
    A(f"""
    v_min3_u32 v24, v25, v26, v27
    v_min3_u32 v24, v24, v28, v29
    v_min3_u32 v24, v24, v30, v31
    s_nop 0
    v_readfirstlane_b32 s{S_RDY}, v24
    s_cmp_gt_u32 s{S_RDY}, s{s_target}
    s_cbranch_scc0 RDY_P{tag}
    RDY_OK{tag}:
    """)

def wqr(f): return f"ds_read_b128 {v(WQS[f >> 1] + 4*(f & 1), 4)}, v{V_R[0]} offset:{O_WQ + f*1024}"
def kdma(i): return f"buffer_load_dwordx4 v{V_KA if i < 2 else V_MA}, {srd(R_WS)}, s{S_KVB} offen offset:{i*1024} sc1 lds"
def wq_prefetch(A, f0=0, f1=14):
    for f in range(f0, f1):
        if KD[0]:
            A(wqr(PFO[f]) if f < 10 else f"ds_read_b128 {v(RKX + 4*(f-10), 4)}, v{V_R[0]} offset:{O_S + (f-10)*1024}")
            continue
        A(f"ds_read_b128 {v(RE + 4*f, 4)}, v{V_R[0]} offset:{O_WQ + f*1024}")

def fold(A, acc, d0, d1):
    A(f"v_pk_add_f32 {v(acc,2)}, {v(acc,2)}, {v(acc+2,2)}")
    A(f"v_pk_add_f32 {v(acc+4,2)}, {v(acc+4,2)}, {v(acc+6,2)}")
    A(f"v_cvt_pk_bf16_f32 v{d0}, v{acc}, v{acc+1}")
    A(f"v_cvt_pk_bf16_f32 v{d1}, v{acc+4}, v{acc+5}")

def delay(A, n):
    if n > 0: A("; back-off between two polls of the same lines")
    while n > 0:
        A(f"s_nop {min(n,16)-1}"); n -= min(n, 16)

ABL = {1: r"buffer_load|buffer_store_dwordx4 v\[12", 2: r"v_mov_b64 v\[\d+:\d+\], 0", 3: r"ds_read_b128 .*offset:(16|17|18|19|2\d|30|31)\d\d\d$",
       4: r"v_smfmac_f32_16x16x64_bf16 v\[10[48]", 5: r"s_barrier", 6: r"v_fmac|v_mul_f32 v10", 7: r"s_waitcnt lgkmcnt",
       9: r"buffer_store_dwordx4 v\[12", 10: r"buffer_load_dword v100", 11: r"buffer_store_dwordx4 v\[12|buffer_load_dword v100",
       8: r"buffer_load|buffer_store_dwordx4 v\[12|v_mov_b64 v\[\d+:\d+\], 0|ds_read_b128 .*offset:(16|17|18|19|2\d|30|31)\d\d\d$"}
def chain_loop(A, cfg, tag, sc):
    fine = cfg.get("prof", 0) >= 2
    P = lambda i: A(f"s_memtime s[{4+2*i}:{5+2*i}]") if fine and (cfg.get("pm", -1) >> i) & 1 else None
    import os
    abl = ABL.get(cfg.get("abl", 0))
    cnt = [0, 2]
    def sl(*ins):
        if fine and "g0" in cfg and cnt[0] >= cfg["g0"] and (cnt[0] - cfg["g0"]) % cfg.get("gs", 4) == 0 and cnt[1] < 18:
            A(f"s_memtime s[{4+2*cnt[1]}:{5+2*cnt[1]}]"); cnt[1] += 1
        cnt[0] += 1
        for x in ins:
            for y in x.split("\n"):
                if abl and re.search(abl, y): continue
                A(y)
    fr = lambda t, R=RA: R + 4 * t
    q = lambda t, ab, R=RA: SM(RQ + 4*ab, fr(t, R), WQ(t, ab))
    k = lambda t, ab, R=RA: SM(RK + 4*ab, fr(t, R), WK(t, ab))
    vv = lambda t, ab, R=RA: SM(RV + 4*ab, fr(t, R), WV(t, ab))
    rd = lambda t: f"ds_read_b128 {v(fr(t),4)}, v{V_R[t>>1]} offset:{O_A + (t&1)*1024}"
    def wo(c, T, hf):
        fi = list(WOS).index((c, T))
        return f"ds_read_b128 {v(WOS[(c, T)] + 4*hf, 4)}, v{V_R[0]} offset:{O_WO + fi*2048 + hf*1024}"
    add = lambda acc, i: f"v_add_f32 v{acc+i}, v{acc+i}, v{acc+2+i}"
    cvt = lambda d, s_: f"v_cvt_pk_bf16_f32 v{d}, v{s_}, v{s_+1}"
    z = lambda r: f"v_mov_b64 {v(r,2)}, 0"
    lg = lambda n: f"s_waitcnt lgkmcnt({n})"
    def m_loads(R):
        A(f"buffer_load_dwordx4 {v(R,4)}, v{V_MA}, {srd(R_WS)}, s{S_MB} offen sc1")
        A(f"buffer_load_dwordx4 {v(R+4,4)}, v{V_MA}, {srd(R_WS)}, s{S_MB} offen offset:1024 sc1")
    kvl = lambda i: f"buffer_load_dwordx4 {v(RKX+4*i,4)}, v{V_KA if i < 2 else V_MA}, {srd(R_WS)}, s{S_KVB} offen offset:{i*1024} sc1"
    TCH, SX, PX, PM, ON, QF, KF = 100, 96, 100, 18, 20, 48, 56
    SA, LL, O0, O1, OP, SEL = 24, 28, 32, 36, 40, 44
    pub = f"buffer_store_dwordx4 {v(PUB,4)}, v{V_MA}, {srd(R_WS)}, s{S_PUB} offen sc1"
    mulc = lambda r: f"v_mul_f32 v{r}, s{S_C}, v{r}"
    fw = lambda r, off: f"ds_write_b32 v{V_FW}, v{r} offset:{off}"
    tr = lambda r, off: f"ds_read_b64_tr_b16 {v(r,2)}, v{V_FR} offset:{off}"
    ad = lambda r, i: f"v_add_f32_dpp v{r+2+i}, v{r+i}, v{r+2+i} {DPP('0,1,0,1')}"
    exd = lambda r, i: f"v_exp_f32_dpp v{r+i}, v{r+2+i} {DPP('2,3,2,3')}"
    tw = cfg.get("tw", 0)
    kd = KD[0]
    def dump():
        if fine:
            P(18)
            A(f"s_cmp_eq_u32 s{S_S}, {cfg.get('pstep', 41)}\ns_cbranch_scc0 NODUMP{tag}\ns_waitcnt lgkmcnt(0) vmcnt(0)")
            for i in range(19): A(f"v_writelane_b32 v26, s{4+2*i}, {i}")
            A(f"v_lshrrev_b32 v27, 2, v{V_MA}\nbuffer_store_dword v26, v27, {srd(R_WS)}, s{S_PROF} offen offset:512\ns_waitcnt vmcnt(0)\nNODUMP{tag}:")
            P(0)
    def norm(fast):
        o = (lambda *x: x) if fast else (lambda *x: ())
        sl(*o(f"v_max_f32 v{LL}, v{LL}, v{LL+2}", f"v_cmp_lt_f32 vcc, s{S_THR}, v{LL}"))
        for i in range(2): A(f"v_pk_mul_f32 {v(O0+2*i,2)}, {v(O0+2*i,2)}, {v(LL+2,2)} op_sel_hi:[1,0]")
        sl(cvt(OP, O0), cvt(OP + 1, O0 + 2))
        if fast: P(11)
        for i in range(2): A(f"v_pk_mul_f32 {v(O1+2*i,2)}, {v(O1+2*i,2)}, {v(LL+2,2)} op_sel_hi:[1,0]")
        sl(cvt(OP + 2, O1), cvt(OP + 3, O1 + 2), f"ds_write_b128 v{V_R[0]}, {v(OP,4)} offset:{O_A}")
    if cfg.get("ph"):
        KF, CK = 88, 28
        ml = lambda sg: f"buffer_load_dwordx4 {v(RA+4*sg,4)}, v{V_MA}, {srd(R_WS)}, s{S_MB} offen offset:{1024*sg} sc1"
        chk = lambda sg: [f"v_max3_u32 v{CK}, v{RA+4*sg}, v{RA+4*sg+1}, v{RA+4*sg+2}", f"v_max_u32 v{CK}, v{CK}, v{RA+4*sg+3}",
                          f"ds_write_b128 v{V_R[0]}, {v(RA+4*sg,4)} offset:{O_A+1024*sg}"]
        cmpv = f"v_cmp_eq_u32 vcc, -1, v{CK}"
        dp = [[1, 17, 19, 21, 23], [1, 3, 6, 17, 20], [1, 2, 4, 6, 8], [1, 3, 17, 19, 21], [17, 1, 3, 19, 21]][cfg.get("dpos", 0)]
        vops = [pub, kdma(0), kdma(1), kdma(2), kdma(3)]
        ex = lambda n: [vops[dp.index(n)]] if n in dp else []
        A(f"LOOP{tag}:")
        A(ml(0))
        dump()
        for i in range(4): A(z(RV + 2*i))
        A(f"s_waitcnt vmcnt({3 if cfg.get('prof') else 2}) lgkmcnt(0)")
        for i in range(4): A(z(RK + 2*i))
        delay(A, cfg.get("dm1", 16))
        A(f"MP{tag}:")
        A(ml(0))
        spin_dec(A)
        A("s_nop 2")
        for i in range(4): A(z(RQ + 2*i))
        A("s_waitcnt vmcnt(1)")
        P(1)
        sl(*chk(0))
        sl(q(0, 0), cmpv)
        sl(q(0, 1), f"s_cbranch_vccnz MP{tag}", ml(1))
        sl(k(0, 0), wqr(6))
        sl(k(0, 1), wqr(7), lg(2)); A("s_barrier"); P(2)
        sl(rd(2), rd(4), rd(6))
        sl(vv(0, 0), ml(1))
        sl(vv(0, 1), wqr(14), lg(3))
        sl(q(2, 0), wqr(15), lg(3))
        sl(q(4, 0), lg(2))
        sl(q(6, 0), wqr(12))
        sl(q(2, 1), wqr(13), "s_waitcnt vmcnt(1)", *chk(1))
        sl(q(4, 1), cmpv)
        sl(q(6, 1), f"s_cbranch_vccnz MR{tag}")
        A(f"MC{tag}:")
        P(9)
        ke = [k(2, 0), k(4, 0), k(6, 0), k(2, 1), k(4, 1), k(6, 1)]
        npre = cfg.get("npre", 2)
        sl(q(1, 0), f"s_cmp_eq_u32 s{S_S}, 63")
        sl(q(1, 1))
        sl(k(1, 0))
        sl(k(1, 1))
        for x in ke[:npre]: sl(x)
        A(lg(0)); A("s_barrier"); P(3)
        sl(rd(3), rd(5), rd(7))
        for i, x in enumerate(ke[npre:]): sl(x, *ex(i + 1 - (2 - npre)))
        sl("s_cbranch_scc1 C_LAST", lg(2))
        sl(q(3, 0), wo(2, 0, 0), *ex(5), lg(2))
        sl(q(5, 0), wo(2, 0, 1), *ex(6), lg(2))
        sl(q(7, 0), wo(3, 0, 0), *ex(7))
        sl(q(3, 1), wo(3, 0, 1), *ex(8))
        sl(q(5, 1), add(RQ, 0))
        sl(q(7, 1), add(RQ, 1))
        sl(k(3, 0), mulc(RQ))
        sl(k(5, 0), mulc(RQ + 1), add(RQ + 4, 0))
        sl(k(7, 0), cvt(RQ + 2, RQ), fw(RQ + 2, 2048), add(RQ + 4, 1))
        sl(k(3, 1), mulc(RQ + 4), mulc(RQ + 5))
        sl(k(5, 1), cvt(RQ + 6, RQ + 4), fw(RQ + 6, 2560), add(RK, 0))
        sl(k(7, 1), add(RK, 1), *(ex(17) if dp[0] == 17 else []), cvt(PUB, RK), fw(PUB, 0))
        P(4)
        sl(vv(1, 0), *(ex(17) if dp[0] != 17 else []), z(RQ))
        sl(vv(1, 1), add(RK + 4, 0), add(RK + 4, 1), cvt(PUB + 2, RK + 4), fw(PUB + 2, 512))
        sl(vv(2, 0), *ex(19), z(RQ + 2))
        sl(vv(2, 1), *ex(20), z(RQ + 4))
        sl(vv(3, 0), *ex(21), z(RQ + 6))
        sl(vv(4, 0), lg(0), "s_barrier", tr(QF, 2048), tr(QF + 2, 2560))
        P(5)
        sl(vv(5, 0), tr(QF + 4, 3072), tr(QF + 6, 3584), tr(KF, 0), tr(KF + 2, 512))
        sl(vv(6, 0), tr(KF + 4, 1024), tr(KF + 6, 1536), f"v_min_u32 v{PUB}, -2, v{PUB}")
        sl(vv(7, 0), *ex(23), f"s_add_u32 s{S_KVB}, s{S_KVB}, 0x80000", z(RK))
        sl(vv(3, 1), "s_waitcnt vmcnt(5) lgkmcnt(6)", z(RK + 2))
        sl(MF(SX, RKX, QF, 0), lg(4), f"v_mov_b64 {v(ON,2)}, s[{S_ON}:{S_ON+1}]", add(RV, 0))
        sl(MF(SX, RKX + 4, QF + 4, v(SX, 4)), lg(2), add(RV, 1), f"v_mov_b64 {v(ON+2,2)}, s[{S_ON}:{S_ON+1}]")
        sl(MF(SA, KF, QF, 0), lg(0), cvt(PUB + 1, RV), f"v_mov_b32 v{PM}, 0", wo(2, 2, 0))
        sl(MF(SA, KF + 4, QF + 4, v(SA, 4)), wo(2, 2, 1), ad(SX, 0), ad(SX, 1))
        sl(vv(4, 1), exd(SX, 0), exd(SX, 1))
        sl(vv(5, 1), cvt(SX, SX), f"ds_write_b32 v{V_PW}, v{SX} offset:{L_PX}")
        P(6)
        sl(vv(6, 1), ad(SA, 0), ad(SA, 1), f"s_add_u32 s{S_PUB}, s{S_PUB}, 0x20000")
        sl(vv(7, 1), exd(SA, 0), exd(SA, 1), z(RK + 4), cvt(PM + 1, SA))
        sl(lg(0), "s_barrier", f"ds_read_b128 {v(PX,4)}, v{V_MA} offset:{L_PX}")
        P(7)
        def pv(fast):
            o = (lambda *x: x) if fast else (lambda *x: ())
            if not fast: sl(exd(SA, 0), exd(SA, 1), cvt(PM + 1, SA))
            sl(MH(LL, ON, PM, 0), *o(add(RV + 4, 0), add(RV + 4, 1), wo(2, 1, 0)))
            sl(MH(O0, PUB, PM, 0), *o(cvt(PUB + 3, RV + 4), z(RK + 6), wo(2, 1, 1)))
            sl(MH(O1, PUB + 2, PM, 0), *o(wo(3, 1, 0), lg(3)))
            if fast: P(8)
            sl(MF(LL, ON, PX, v(LL, 4)), *o(wo(3, 1, 1)))
            sl(MF(O0, RVX, PX, v(O0, 4)), *o(wo(3, 2, 0)))
            sl(MF(O1, RVX + 4, PX, v(O1, 4)), *o(wo(3, 2, 1)), f"v_rcp_f32 v{LL+2}, v{LL}")
            if fast: P(10)
            norm(fast)
        pv(True)
    else:
        if cfg.get("al", 0) & 1 and tag == "F":
            A(f".p2align 6")
            for i in range(cfg.get("ao", 0)): A("s_nop 0")
        A(f"LOOP{tag}:")
        delay(A, cfg.get("dm0", 0))
        if cfg.get("sp"):
            ml = lambda sg: f"buffer_load_dwordx4 {v(RA+4*sg,4)}, v{V_MA}, {srd(R_WS)}, s{S_MB} offen offset:{1024*sg} sc1"
            chk = lambda sg: [f"v_max3_u32 v25, v{RA+4*sg}, v{RA+4*sg+1}, v{RA+4*sg+2}", f"v_max_u32 v25, v25, v{RA+4*sg+3}", "v_cmp_eq_u32 vcc, -1, v25"]
            dw = lambda sg: f"ds_write_b128 v{V_R[0]}, {v(RA+4*sg,4)} offset:{O_A+1024*sg}"
            A(ml(0))
            for i in range(4): A(z(RV + 2*i))
            A(f"s_waitcnt vmcnt({3 if cfg.get('prof') else 2}) lgkmcnt(0)")
            for i in range(4): A(z(RK + 2*i))
            for i in range(4): A(z(RQ + 2*i))
            delay(A, cfg.get("dm1", 16))
            A(ml(1))
            A(f"s_waitcnt vmcnt(1)\nMC{tag}:")
            sl(*chk(0))
            sl(q(0, 0), dw(0))
            sl(q(0, 1), f"s_cbranch_vccnz MR{tag}")
            delay(A, cfg.get("dm2", 0))
            A(f"MP{tag}:")
            A(ml(1))
            spin_dec(A)
            A(f"s_cmp_eq_u32 s{S_S}, 63\ns_waitcnt vmcnt(1)")
            sl(*chk(1), dw(1), f"s_cbranch_vccnz MP{tag}")
            sl(q(1, 0))
        else:
            m_loads(RA)
            if fine:
                P(18)
                A(f"s_cmp_eq_u32 s{S_S}, {cfg.get('pstep', 41)}\ns_cbranch_scc0 NODUMP{tag}\ns_waitcnt lgkmcnt(0) vmcnt(0)")
                for i in range(19): A(f"v_writelane_b32 v26, s{4+2*i}, {i}")
                A(f"v_lshrrev_b32 v27, 2, v{V_MA}\nbuffer_store_dword v26, v27, {srd(R_WS)}, s{S_PROF} offen offset:512\ns_waitcnt vmcnt(0)\nNODUMP{tag}:")
                P(0)
            for i in range(4): A(z(RV + 2*i))
            A(f"s_waitcnt vmcnt({4 if cfg.get('prof') else 3}) lgkmcnt(0)")
            for i in range(4): A(z(RK + 2*i))
            delay(A, cfg.get("dm1", 16))
            A(f"MP{tag}:")
            m_loads(RA)
            spin_dec(A)
            A(f"s_cmp_eq_u32 s{S_S}, 63")
            for i in (2, 3, 0, 1): A(z(RQ + 2*i))
            A("s_waitcnt vmcnt(3)")
            sl(f"v_max3_u32 v25, v{RA}, v{RA+1}, v{RA+2}", f"v_max_u32 v25, v25, v{RA+3}")
            od = (lambda x, y: (y, x)) if cfg.get("wf") else (lambda x, y: (x, y))
            sl(*od(q(0, 0), f"ds_write_b128 v{V_R[0]}, {v(RA,4)} offset:{O_A}"), "s_waitcnt vmcnt(2)")
            P(1)
            cm = f"v_cmp_eq_u32 vcc, -1, v25"
            sl(f"v_max3_u32 v25, v25, v{RA+4}, v{RA+5}", f"v_max3_u32 v25, v25, v{RA+6}, v{RA+7}", *([] if cfg.get("wf") else [cm]))
            sl(*od(q(0, 1), f"ds_write_b128 v{V_R[0]}, {v(RA+4,4)} offset:{O_A+1024}"), *([cm] if cfg.get("wf") else []))
            sl(q(1, 0), f"s_cbranch_vccnz MP{tag}")
        if kd:
            dp = [[1, 4, 7, 10, 13], [1, 3, 5, 7, 9], [5, 8, 11, 14, 17], [1, 2, 3, 4, 5], [1, 17, 19, 21, 24], [1, 13, 17, 19, 21], [1, 5, 17, 19, 21], [3, 17, 19, 21, 24], [11, 17, 19, 21, 24], [15, 17, 19, 21, 24], [1, 15, 19, 21, 24]][cfg.get("dpos", 0)]
            vops = [kdma(0), kdma(1), kdma(2), kdma(3), pub] if cfg.get("pe", 1) == 1 else [pub, kdma(0), kdma(1), kdma(2), kdma(3)]
            if "nd" in cfg: vops = [x if i <= cfg["nd"] else "s_nop 0" for i, x in enumerate(vops)]
            ex = lambda n: [vops[dp.index(n)]] if n in dp else []
            sl(q(1, 1))
            if cfg.get("wb"):
                sl(vv(0, 0), lg(0)); P(2); A("s_barrier"); P(3)
                sl(rd(2), rd(4))
                sl(vv(0, 1), rd(5), *ex(1))
                sl(vv(1, 0), rd(6), *ex(2))
                sl(vv(1, 1), rd(7), *ex(3))
                sl(k(0, 0), rd(3), *ex(4))
                sl(k(0, 1), "s_cbranch_scc1 C_LAST", lg(5))
            else:
                sl(vv(0, 0))
                if cfg.get("mv") == 1: sl(k(1, 1))
                sl(vv(0, 1), lg(0)); P(2); A("s_barrier"); P(3)
                sl(rd(2), rd(4))
                sl(vv(1, 0), rd(5), *ex(1))
                sl(vv(1, 1), rd(6), *ex(2))
                sl(k(0, 0), rd(7), *ex(3))
                if cfg.get("mv") == 2: sl(k(1, 1))
                sl(k(0, 1), rd(3), *ex(4), "s_cbranch_scc1 C_LAST", lg(5))
            sl(q(2, 0), wqr(12), *ex(5), lg(5))
            sl(q(4, 0), wqr(13), *ex(6), lg(5))
            sl(q(5, 0), wqr(10), *ex(7), lg(5))
            sl(q(6, 0), wqr(11), *ex(8), lg(5))
            sl(q(7, 0), wqr(14), *ex(9), lg(3))
            sl(q(3, 0), wqr(15), *ex(10))
            sl(q(4, 1), wo(2, 0, 0), *ex(11))
            sl(q(5, 1), wo(2, 0, 1), *ex(12), add(RQ, 0))
            sl(q(6, 1), wo(3, 0, 0), *ex(13), add(RQ, 1), lg(5))
            sl(q(2, 1), wo(3, 0, 1), *ex(14), mulc(RQ))
            sl(q(7, 1), *ex(15), mulc(RQ + 1), lg(4))
            sl(q(3, 1), wo(2, 1, 0), *ex(16), cvt(RQ + 2, RQ))
        else:
            sl(q(1, 1), f"ds_read_b128 {v(RE,4)}, v{V_R[0]} offset:{O_WQ + 14*1024}")
            sl(vv(0, 0), f"ds_read_b128 {v(RE+4,4)}, v{V_R[0]} offset:{O_WQ + 15*1024}")
            sl(vv(0, 1), lg(2)); P(2); A("s_barrier"); P(3)
            sl(rd(2), rd(3))
            sl(vv(1, 0), rd(4), kvl(0))
            sl(vv(1, 1), rd(5))
            sl(k(0, 0), rd(6))
            sl(k(0, 1), rd(7), "s_cbranch_scc1 C_LAST", lg(5))
            sl(q(2, 0), kvl(1), lg(4))
            sl(q(3, 0), lg(3))
            sl(q(4, 0), lg(2))
            sl(q(5, 0), lg(1), f"v_lshl_add_u32 v{TCH}, v{V_MA}, 3, s{S_TX}" if tw else f"v_lshlrev_b32 v{TCH}, 2, v{V_MA}")
            sl(q(6, 0), kvl(2), lg(0))
            sl(q(7, 0), wo(2, 0, 0))
            sl(q(2, 1), wo(2, 0, 1))
            sl(q(3, 1), wo(3, 0, 0), add(RQ, 0))
            sl(q(4, 1), kvl(3), add(RQ, 1))
            sl(q(5, 1), wo(3, 0, 1), f"s_add_u32 s{S_KVB}, s{S_KVB}, 0x80000", mulc(RQ))
            sl(q(6, 1), wo(2, 1, 0), mulc(RQ + 1), *([f"s_sub_u32 s{S_TB}, s{S_KVB}, 8192"] if tw else []))
            sl(q(7, 1), wo(2, 1, 1), cvt(RQ + 2, RQ))
        P(4)
        sl(k(1, 0), fw(RQ + 2, 2048), z(RQ), *([wo(2, 1, 1)] + ex(17) if kd else []))
        sl(k(2, 0), add(RQ + 4, 0), add(RQ + 4, 1), mulc(RQ + 4), mulc(RQ + 5), cvt(RQ + 6, RQ + 4), fw(RQ + 6, 2560))
        tch = lambda o=0: f"buffer_load_dword v{TCH}, {srd(R_WS)}, s{S_TB if tw else S_KVB} offen offset:{o} sc1 lds"
        if cfg.get("at"):
            tch = lambda o=0: f"buffer_atomic_or v{RQ}, v{TCH}, {srd(R_WS)}, s{S_TB if tw else S_KVB} offen offset:{o}" + [""," sc1"][cfg["at"]-1]
        pe = cfg.get("pe", 1)
        nx = 1 if tw == 2 else 0
        sl(k(3, 0), *(ex(19) if kd else [pub if pe == 2 else tch()]), z(RQ + 2))
        sl(k(4, 0), z(RQ + 4), *([tch(64)] if nx else []))
        sl(k(5, 0), *(ex(21) if kd else [tch()] if pe == 2 else [pub] if pe else []), z(RQ + 6))
        sl(k(6, 0), lg(0), "s_barrier", tr(QF, 2048), tr(QF + 2, 2560))
        if cfg.get("ack5"): A("s_waitcnt vmcnt(0)")
        P(5)
        sl(k(7, 0), tr(QF + 4, 3072), tr(QF + 6, 3584))
        mv = 1 if cfg.get("mv") else 0
        sl(k(1 + mv, 1), *(ex(24) + [f"s_add_u32 s{S_KVB}, s{S_KVB}, 0x80000"] if kd else []))
        sl(k(2 + mv, 1), add(RK, 0))
        sl(k(3 + mv, 1), "s_waitcnt vmcnt(5) lgkmcnt(2)" if kd else f"s_waitcnt vmcnt({nx + (4 if pe else 3)}) lgkmcnt(2)", add(RK, 1))
        sl(MF(SX, RKX, QF, 0), lg(0), cvt(RK + 2, RK), f"v_mov_b64 {v(ON,2)}, s[{S_ON}:{S_ON+1}]")
        sl(MF(SX, RKX + 4, QF + 4, v(SX, 4)), fw(RK + 2, 0), z(RK), f"v_mov_b64 {v(ON+2,2)}, s[{S_ON}:{S_ON+1}]")
        if mv:
            sl(k(5, 1), f"v_mov_b32 v{PM}, 0")
            sl(k(6, 1), ad(SX, 0))
            sl(k(7, 1), ad(SX, 1))
            sl(vv(2, 0), exd(SX, 0))
            sl(vv(3, 0), exd(SX, 1), add(RK + 4, 0), add(RK + 4, 1), cvt(RK + 6, RK + 4), fw(RK + 6, 512), cvt(SX, SX))
        else:
            sl(k(4, 1), f"v_mov_b32 v{PM}, 0")
            sl(k(5, 1), ad(SX, 0))
            sl(k(6, 1), ad(SX, 1))
            sl(k(7, 1), exd(SX, 0))
            sl(vv(2, 0), exd(SX, 1))
            sl(vv(3, 0), add(RK + 4, 0), add(RK + 4, 1), cvt(RK + 6, RK + 4), fw(RK + 6, 512), cvt(SX, SX))
        P(6)
        sl(vv(4, 0), f"ds_write_b32 v{V_PW}, v{SX} offset:{L_PX}", z(RK + 4))
        sl(vv(5, 0))
        sl(vv(6, 0))
        sl(vv(7, 0))
        sl(vv(2, 1), lg(0), "s_barrier", tr(KF, 0), tr(KF + 2, 512))
        P(7)
        sl(vv(3, 1), tr(KF + 4, 1024), tr(KF + 6, 1536), add(RV, 0))
        sl(vv(4, 1), f"ds_read_b128 {v(PX,4)}, v{V_MA} offset:{L_PX}", add(RV, 1))
        sl(vv(5, 1), *([] if pe else [pub]))
        sl(vv(6, 1), f"s_add_u32 s{S_PUB}, s{S_PUB}, 0x20000", cvt(PUB + 1, RV))
        sl(vv(7, 1), lg(3), f"v_min_u32 v{PUB}, -2, v{RK+2}")
        P(8)
        sl(MF(SA, KF, QF, 0), lg(1), f"v_mov_b32 v{PUB+2}, v{RK+6}", z(RK + 2))
        sl(MF(SA, KF + 4, QF + 4, v(SA, 4)), lg(0) if kd else f"s_waitcnt vmcnt({nx + 2}) lgkmcnt(0)", z(RK + 6), add(RV + 4, 0))
        if cfg.get("ack9"): A("s_waitcnt vmcnt(0)")
        P(9)
        def pv(fast):
            o = (lambda *x: x) if fast else (lambda *x: ())
            sl(MF(LL, ON, PX, 0), *o(wo(3, 1, 0), add(RV + 4, 1), cvt(PUB + 3, RV + 4), wo(3, 1, 1), ad(SA, 0), ad(SA, 1)))
            sl(MF(O0, RVX, PX, 0), exd(SA, 0), exd(SA, 1))
            sl(MF(O1, RVX + 4, PX, 0), cvt(PM + 1, SA), *o(wo(2, 2, 0), wo(2, 2, 1)))
            if fast: P(10)
            sl(MH(LL, ON, PM, v(LL, 4)), *o(wo(3, 2, 0)))
            sl(MH(O0, PUB, PM, v(O0, 4)), *o(wo(3, 2, 1)))
            sl(MH(O1, PUB + 2, PM, v(O1, 4)), f"v_rcp_f32 v{LL+2}, v{LL}")
            sl(*o(f"v_max_f32 v{LL}, v{LL}, v{LL+2}", f"v_cmp_lt_f32 vcc, s{S_THR}, v{LL}"))
            if cfg.get("pk0", 1):
                for i in range(2): A(f"v_pk_mul_f32 {v(O0+2*i,2)}, {v(O0+2*i,2)}, {v(LL+2,2)} op_sel_hi:[1,0]")
            else:
                for i in range(4): A(f"v_mul_f32 v{O0+i}, v{O0+i}, v{LL+2}")
            sl(cvt(OP, O0), cvt(OP + 1, O0 + 2))
            if fast: P(11)
            for i in range(2): A(f"v_pk_mul_f32 {v(O1+2*i,2)}, {v(O1+2*i,2)}, {v(LL+2,2)} op_sel_hi:[1,0]")
            sl(cvt(OP + 2, O1), cvt(OP + 3, O1 + 2), f"ds_write_b128 v{V_R[0]}, {v(OP,4)} offset:{O_A}")
        pv(True)
    A(f"s_cbranch_vccnz {'FRET' if abl else 'FBK'}{tag}\nFRET{tag}:")
    OF = [OP, 64, 68, 24]
    so = lambda c, T: SM(RQ + 4*T, OF[c], WO(c, T))
    sl(so(0, 0), f"s_add_u32 s{S_S}, s{S_S}, 1", f"s_and_b32 s{S_T0}, s{S_S}, 3", f"s_lshl_b32 s{S_T0}, s{S_T0}, 13")
    sl(so(0, 1), f"s_add_u32 s{S_MW}, s{S_T0}, {WS_M}", f"s_add_u32 s{S_MB}, s{S_MW}, s{S_W2K}", f"s_xor_b32 s{S_MR}, s{S_MW}, 0x4000")
    sl(so(0, 2), f"s_cmp_lt_u32 s{S_W}, 2", lg(0)); P(12); A("s_barrier"); P(13)
    for c in range(1, 4): A(f"ds_read_b128 {v(OF[c],4)}, v{V_R[c]} offset:{O_A}")
    sl(so(0, 3), wo(2, 3, 0), wo(2, 3, 1), lg(4))
    PK = 32
    pk = lambda i: cvt(PK + i, RQ + 2*i)
    tg = lambda sg: f"v_and_or_b32 v{PK+4*sg}, v{PK+4*sg}, -2, s{S_TAG}"
    ps = lambda sg: f"buffer_store_dwordx4 {v(PK+4*sg,4)}, v{V_PST}, {srd(R_WS)}, s{S_PR1 if sg else S_PW} offen {sc}"
    sl(so(1, 0), lg(3))
    sl(so(2, 0), lg(2), f"v_mov_b32 v42, -1")
    sl(so(3, 0), wo(3, 3, 0))
    sl(so(1, 1), wo(3, 3, 1))
    sl(so(2, 1), f"ds_read_b128 {v(SEL,4)}, v{V_MA} offset:{L_SEL}", pk(0))
    sl(so(3, 1), tg(0))
    sl(so(1, 2), pk(1))
    sl(so(2, 2), pk(2), pk(3), ps(0))
    P(14)
    sl(so(3, 2), lg(0))
    sl(so(1, 3))
    sl(so(2, 3), pk(4))
    sl(so(3, 3), tg(1), pk(5))
    sl(pk(6), pk(7), ps(1))
    P(15)
    n0 = cfg.get("n0", 14)
    wq_prefetch(A, 0, n0)
    A(f"s_cbranch_scc1 RED{tag}")
    if fine and cfg.get("ack"):
        A("s_waitcnt vmcnt(2)"); P(16); A(f"s_waitcnt vmcnt({2 - cfg['ack']})"); P(17)
    if kd: A("s_waitcnt vmcnt(2)")
    wq_prefetch(A, n0, 14)
    A(f"""
    buffer_store_dword v42, v{V_MST}, {srd(R_WS)}, s{S_MR} offen {sc}
    s_cmp_eq_u32 s{S_W}, 3
    s_cbranch_scc0 JOIN{tag}
    s_add_u32 s{S_T3}, s{S_S}, 1
    s_min_u32 s{S_T3}, s{S_T3}, 63
    """)
    kv_ready(A, S_T3, tag)
    A(f"""
    JOIN{tag}:
    s_xor_b32 s{S_TAG}, s{S_TAG}, 1
    s_waitcnt lgkmcnt(0)
    s_barrier
    s_branch LOOP{tag}
    """)
    if cfg.get("ph"):
        A(f"MR{tag}:")
        A(ml(1))
        spin_dec(A)
        A("s_waitcnt vmcnt(1)")
        for x in chk(1) + [cmpv]: A(x)
        A(f"s_cbranch_vccnz MR{tag}\ns_branch MC{tag}")
    if cfg.get("sp"):
        A(f"MR{tag}:")
        A(ml(0))
        A(ml(1))
        spin_dec(A)
        A("s_waitcnt vmcnt(1)\ns_nop 7")
        for i in range(4): A(z(RQ + 2*i))
        A(f"s_branch MC{tag}")
    A(f"""
    FBK{tag}:
    """)
    X = 104 - 8 * 9
    for r in (SX + 2, SX + 3, SA + 2, SA + 3): A(f"v_mov_b32_dpp v{r}, v{r} {DPP('2,3,2,3')}")
    A(f"""
    ds_write_b32 v{V_PW}, v{SX+2} offset:{L_PX + 1024}
    ds_write_b32 v{V_PW}, v{SX+3} offset:{L_PX + 2048}
    s_waitcnt lgkmcnt(0)
    s_barrier
    ds_read_b128 {v(X,4)}, v{V_MA} offset:{L_PX + 1024}
    ds_read_b128 {v(X+4,4)}, v{V_MA} offset:{L_PX + 2048}
    v_max_f32 v{LL}, v{SA+2}, v{SA+3}
    s_waitcnt lgkmcnt(0)
    """)
    for i in range(4): A(f"v_max3_f32 v{LL}, v{LL}, v{X+2*i}, v{X+2*i+1}")
    xG(A, LL, LL + 1, "v_max_f32")
    for r in list(range(X, X + 8)) + [SA + 2, SA + 3]: A(f"v_sub_f32 v{r}, v{r}, v{LL}")
    for i in range(8): A(f"v_exp_f32 v{X+i}, v{X+i}")
    for i in range(4): A(f"v_cvt_pk_bf16_f32 v{PX+i}, v{X+i}, v{X+4+i}")
    pv(False)
    A(f"s_branch FRET{tag}")
    PB, PA = 24, 20
    if cfg.get("al", 0) & 2 and tag == "F":
        A(".p2align 6")
        for i in range(cfg.get("ar", 0)): A("s_nop 0")
    A(f"""
    RED{tag}:
    s_cmp_eq_u32 s{S_W}, 0
    """)
    if cfg.get("dp0", -1) >= 0:
        A(f"s_cbranch_scc1 PW{tag}")
        delay(A, cfg.get("dp1", 0))
        A(f"PW{tag}:")
        delay(A, cfg["dp0"])
        A("s_waitcnt vmcnt(2)")
    elif cfg.get("pw", 0) == 1:
        delay(A, cfg.get("dpw", 0))
        A("s_waitcnt vmcnt(0)")
    else:
        delay(A, cfg.get("dpw", 0))
        A(f"""
        s_cbranch_scc1 PW{tag}
        s_waitcnt vmcnt(0)
        PW{tag}:
        s_waitcnt vmcnt(1)
        """ if cfg.get("pb", 0) else f"""
        s_waitcnt vmcnt(1)
        s_cbranch_scc1 PP{tag}
        s_waitcnt vmcnt(0)
        """)
    def pl(B):
        for i in range(4):
            A(f"buffer_load_dwordx4 {v(B+4*i,4)}, v{V_MA}, {srd(R_WS)}, s{S_PR0} offen offset:{i*1024} sc1")
    def pr(B, nb, br=None):
        for i in range(4):
            A(f"s_waitcnt vmcnt({nb+3-i})")
            A(MF(PA, SEL, B + 4*i, "0" if i == 0 else v(PA, 4)))
            if i == 1: A(f"v_bitop3_b32 v40, v{B}, v{B+4}, s{S_TAG} bitop3:0x7e")
        A(f"""
        v_bitop3_b32 v41, v{B+8}, v{B+12}, s{S_TAG} bitop3:0x7e
        v_bitop3_b32 v40, v40, 1, v41 bitop3:0xc8
        v_cmp_ne_u32 vcc, 0, v40
        {br or ''}
        """)
        if br and "s_branch" in br: return
        A(f"""
        v_add_f32_dpp v{PA}, v{PA}, v{PA} row_ror:8 row_mask:0xf bank_mask:0xf
        v_add_f32_dpp v{PA+1}, v{PA+1}, v{PA+1} row_ror:8 row_mask:0xf bank_mask:0xf
        v_cvt_pk_bf16_f32 v41, v{PA}, v{PA+1}
        v_min_u32 v41, -2, v41
        """)
    A(f"PP{tag}:")
    if cfg.get("ps", 2) == 2:
        pl(PB)
        P(16)
        wq_prefetch(A, n0, 14)
        delay(A, cfg.get("dp2", 20))
        A(f"PQ{tag}:")
        pl(RQ)
        if cfg.get("eb", 0):
            pr(PB, 4, f"s_cbranch_vccnz PF{tag}\nPD{tag}:")
        else:
            pr(PB, 4)
            A(f"s_cbranch_vccnz PF{tag}\nPD{tag}:")
    else:
        pl(PB)
        P(16)
        spin_dec(A)
        pr(PB, 0)
        A(f"s_cbranch_vccnz PP{tag}")
    A(f"""
    buffer_store_dword v41, v{V_MST}, {srd(R_WS)}, s{S_MW} offen {sc}
    """)
    P(17)
    A(f"""
    s_barrier
    s_xor_b32 s{S_TAG}, s{S_TAG}, 1
    """)
    if cfg.get("prof"):
        A(f"""
        s_memtime s[{S_TS}:{S_TS+1}]
        s_lshl_b32 s{S_T0}, s{S_S}, 2
        s_add_u32 s{S_T0}, s{S_T0}, s{S_PROF}
        s_waitcnt lgkmcnt(0)
        v_mov_b32 v43, s{S_TS}
        s_mov_b64 exec, 1
        buffer_store_dword v43, off, {srd(R_WS)}, s{S_T0} offset:64
        s_mov_b64 exec, -1
        """)
    A(f"s_branch LOOP{tag}")
    if cfg.get("ps", 2) == 2:
        if cfg.get("al", 0) & 4 and tag == "F": A(".p2align 6")
        A(f"PF{tag}:")
        pf = cfg.get("pf", 0) if not cfg.get("prof") else 0
        if pf:
            if pf == 1: pl(PB)
            pr(RQ, 4 if pf == 1 else 0)
            A(f'''
            s_cbranch_vccnz PG{tag}
            buffer_store_dword v41, v{V_MST}, {srd(R_WS)}, s{S_MW} offen {sc}
            s_barrier
            s_xor_b32 s{S_TAG}, s{S_TAG}, 1
            s_branch LOOP{tag}
            PG{tag}:
            ''')
            if pf == 2: pl(PB)
            spin_dec(A)
            A(f"s_branch PQ{tag}")
            return
        pl(PB)
        spin_dec(A)
        if cfg.get("eb", 0):
            pr(RQ, 4, f"s_cbranch_vccnz PQ{tag}\ns_nop 7\ns_branch PD{tag}")
        else:
            pr(RQ, 4)
            A(f"s_cbranch_vccz PD{tag}\ns_branch PQ{tag}")

def chain(A, cfg):
    cfg["vt"] = 23
    KD[0] = cfg.get("kd", 0)
    if cfg.get("ph"):
        WQS[:] = [48, 88, 72, 88, 96, 80, 96, 48]
        PFO[:] = [0, 1, 2, 3, 8, 9, 10, 11, 4, 5]
    assert cfg.get("n0", 14) <= 10 or not KD[0]
    chain_init(A, cfg)
    A(f"s_mov_b32 s{S_T3}, 1")
    kv_ready(A, S_T3, "I")
    if KD[0]:
        for i in range(4): A(kdma(i))
        A(f"C_GO:\ns_add_u32 s{S_KVB}, s{S_KVB}, 0x80000\ns_waitcnt vmcnt(0)")
        wq_prefetch(A, 10, 14)
    stamp(A, cfg, 3)
    A(f"s_waitcnt lgkmcnt(0)\ns_barrier\ns_cmp_eq_u32 s{S_SENT}, 0\ns_cbranch_scc1 LOOPS")
    chain_loop(A, cfg, "F", "")
    chain_loop(A, cfg, "S", "sc1")
    A("C_LAST:")
    A(f"buffer_store_dwordx4 {v(PUB,4)}, v{V_MA}, {srd(R_WS)}, s{S_PUB} offen sc1")
    A(f"s_add_u32 s{S_PUB}, s{S_PUB}, 0x20000")
    A("s_waitcnt lgkmcnt(0)")
    for t in range(1 if cfg.get("ph") else 2, 8):
        for ab in range(2): A(SM(RV + 4*ab, RA + 4*t, WV(t, ab)))
    for t in ((3, 5, 7) if cfg.get("ph") else range(1, 8)):
        for ab in range(2):
            if not (cfg.get("mv") and (t, ab) == (1, 1)): A(SM(RK + 4*ab, RA + 4*t, WK(t, ab)))
    fold(A, RV, 73, 75)
    fold(A, RK, 72, 74)
    A(f"v_min_u32 v72, -2, v72")
    A(f"buffer_store_dwordx4 v[72:75], v{V_MA}, {srd(R_WS)}, s{S_PUB} offen sc1")
    cfg["vt"] = 76
    stamp(A, cfg, 4)
    A("s_waitcnt vmcnt(0)")
```
